```python
import torch

def _softmax(x, axis=-1):
    return torch.softmax(x, dim=axis)
def _gelu(x):
    return torch.nn.functional.gelu(x, approximate="tanh")
def _silu(x):
    return torch.nn.functional.silu(x)
def _sigmoid(x):
    return torch.sigmoid(x)
def _layernorm(x, axis=-1, eps=1e-5):
    m = x.mean(dim=axis, keepdim=True)
    v = x.var(dim=axis, keepdim=True, unbiased=False)
    return (x - m) / torch.sqrt(v + eps)
def _scatter_add(tgt, idx, src, axis=0):
    return tgt.clone().index_add_(axis, idx, src)
def _segment_sum(src, seg, n):
    out = torch.zeros((n,) + src.shape[1:], dtype=src.dtype)
    return out.index_add_(0, seg, src)
def _pad(x, pw):
    flat = tuple(v for pair in reversed(pw) for v in pair)
    return torch.nn.functional.pad(x, flat)

kernel_name = 'gated_mix__linear_kernel_hedgehog__sliding_block__prompt'

def setup_inputs():

    _w = (lambda a: (lambda t: t.to(torch.bfloat16) if t.is_floating_point() else t)(torch.as_tensor(a)))
    def _A_setup():
        B, S, D, H = 1, 2048, 576, 32
        Dh = D // H
        return {
            "x": _w((lambda *s: torch.randn(*s, dtype=torch.bfloat16) * 0.05)(B, S, D)),
            "wqkv": _w((lambda *s: torch.randn(*s, dtype=torch.bfloat16) * 1.6)(D, 3 * D)),
            "w_phi": _w((lambda *s: torch.randn(*s, dtype=torch.bfloat16) * 1.6)(H, Dh, Dh) * (Dh ** -0.5)),
            "wo": _w((lambda *s: torch.randn(*s, dtype=torch.bfloat16) * 0.1)(D, D)),
        }
    _A_in = _A_setup()

    def _B_setup():
        B, S, D = 1, 2048, 576
        return {
            "x": _w((lambda *s: torch.randn(*s, dtype=torch.bfloat16) * 0.05)(B, S, D)),
            "wqkv": _w((lambda *s: torch.randn(*s, dtype=torch.bfloat16) * 0.8)(D, 3 * D)),
            "wo": _w((lambda *s: torch.randn(*s, dtype=torch.bfloat16) * 0.05)(D, D)),
        }
    _B_in = _B_setup()

    return {
        "A_x": _A_in["x"],
        "A_wqkv": _A_in["wqkv"],
        "A_w_phi": _A_in["w_phi"],
        "A_wo": _A_in["wo"],
        "B_x": _B_in["x"],
        "B_wqkv": _B_in["wqkv"],
        "B_wo": _B_in["wo"],
        "gate_w": _w((lambda *s: torch.randn(*s, dtype=torch.bfloat16) * 0.05)(576) * 16.0),
    }

def reference(A_x, A_wqkv, A_w_phi, A_wo, B_x, B_wqkv, B_wo, gate_w):
    def _A_ref(x, wqkv, w_phi, wo):
        B, S, D = x.shape
        H = 32; Dh = D // H
        qkv = (lambda x, *d: x.permute(*d))((x @ wqkv).reshape(B, S, 3, H, Dh), 2, 0, 3, 1, 4)
        q, k, v = qkv[0], qkv[1], qkv[2]
        pq = torch.einsum("bhsd,hdf->bhsf", q, w_phi)
        pk = torch.einsum("bhsd,hdf->bhsf", k, w_phi)
        phi_q = torch.concatenate([_softmax(pq, axis=-1), _softmax(-pq, axis=-1)], axis=-1)
        phi_k = torch.concatenate([_softmax(pk, axis=-1), _softmax(-pk, axis=-1)], axis=-1)
        kv = torch.einsum("bhsf,bhsd->bhfd", phi_k, v)
        z  = torch.einsum("bhsf->bhf", phi_k)
        num = torch.einsum("bhqf,bhfd->bhqd", phi_q, kv)
        den = torch.einsum("bhqf,bhf->bhq", phi_q, z)[..., None] + 1e-6
        o = num / den
        return (lambda x, *d: x.permute(*d))(o, 0, 2, 1, 3).reshape(B, S, D) @ wo

    def _B_ref(x, wqkv, wo):
        B, S, D = x.shape
        H = 32; Dh = D // H; W = 256
        qkv = (lambda x, *d: x.permute(*d))((x @ wqkv).reshape(B, S, 3, H, Dh), 2, 0, 3, 1, 4)
        q, k, v = qkv[0], qkv[1], qkv[2]
        scores = torch.einsum("bhqd,bhkd->bhqk", q, k) * (Dh ** -0.5)
        idx = torch.arange(S)
        mask = (idx[:, None] - idx[None, :] >= 0) & (idx[:, None] - idx[None, :] < W)
        scores = torch.where(mask[None, None], scores, -1e9)
        p = _softmax(scores, axis=-1)
        o = torch.einsum("bhqk,bhkd->bhqd", p, v)
        return (lambda x, *d: x.permute(*d))(o, 0, 2, 1, 3).reshape(B, S, D) @ wo

    x = A_x
    g = _sigmoid((x * gate_w).sum(-1, keepdims=True))
    a = _A_ref(x, A_wqkv, A_w_phi, A_wo)
    b = _B_ref(x, B_wqkv, B_wo)
    return g * a + (1 - g) * b
```

```python
import re
KN = "gated_mix__linear_kernel_hedgehog__sliding_block__prompt_kernel"

class I:
    __slots__ = ("t", "tag", "wvm", "wlg", "kind")
    def __init__(self, t, tag=None, wvm=None, wlg=None, kind=None):
        self.t = t; self.tag = tag; self.wvm = wvm; self.wlg = wlg; self.kind = kind

def W(vm=None, lg=None):
    return I(None, wvm=vm, wlg=lg, kind="wait")

class Seq:
    def __init__(self): self.l = []
    def __call__(self, s, tag=None):
        if isinstance(s, I): self.l.append(s); return
        if isinstance(s, Seq): self.l.extend(s.l); return
        if isinstance(s, list):
            for x in s: self(x, tag)
            return
        for ln in s.split("\n"):
            ln = ln.strip()
            if ln: self.l.append(I(ln, tag))
    def wait(self, vm=None, lg=None): self.l.append(W(vm, lg))
    def label(self, n): self.l.append(I(n + ":", kind="label"))

def weave(main, fill, start=0, per=None):
    main = main.l if isinstance(main, Seq) else main
    fill = fill.l if isinstance(fill, Seq) else fill
    out = []; n = len(main) - start; k = 0
    for i, m in enumerate(main):
        out.append(m)
        if i >= start:
            tgt = len(fill) if i == len(main) - 1 else (min(len(fill), (i - start + 1) * per) if per else (len(fill) * (i - start + 1) + n - 1) // n)
            while k < tgt:
                f = fill[k]; k += 1
                if isinstance(f, list): out.extend(f)
                else: out.append(f)
    return out

_rr = re.compile(r"^(-|\|)?([vas])(\d+)\|?$"); _rs = re.compile(r"^(-|\|)?([vas])\[(\d+):(\d+)\]\|?$")
def regs(op):
    op = op.strip()
    m = _rr.match(op)
    if m: return {(m.group(2), int(m.group(3)))}
    m = _rs.match(op)
    if m: return {(m.group(2), i) for i in range(int(m.group(3)), int(m.group(4)) + 1)}
    if op == "vcc": return {("s", 106), ("s", 107)}
    if op == "exec": return {("s", 126), ("s", 127)}
    if op == "m0": return {("s", 124)}
    if op == "exec_lo": return {("s", 126)}
    if op == "exec_hi": return {("s", 127)}
    return set()

TRANS = ("v_exp_f32", "v_log_f32", "v_rcp_f32", "v_rsq_f32", "v_sqrt_f32")
SCC = ("c", 0)
SCCW = ("s_add", "s_sub", "s_cmp", "s_and", "s_or", "s_xor", "s_lshl", "s_lshr", "s_ashr", "s_bfe", "s_min", "s_max", "s_bitcmp", "s_not", "s_andn2", "s_abs")
SCCR = ("s_cselect", "s_addc", "s_subb", "s_cbranch_scc", "s_cmov")
def parse(t):
    mn, _, rest = t.partition(" ")
    ops = [o.strip().split(" ")[0] for o in rest.split(",")] if rest else []
    R = [regs(o) for o in ops]
    U = lambda xs: set().union(*xs) if xs else set()
    d = dict(mn=mn, cls="other", w=set(), r=set(), C=set(), AB=set(), passes=0, wide=set(), xr=set(), xw=set())
    if mn.startswith("v_mfma"):
        d.update(cls="mfma", w=R[0], AB=R[1] | R[2], C=R[3], r=R[1] | R[2] | R[3], passes=8 if "32x32" in mn else 4)
    elif mn.startswith("v_"):
        d["cls"] = "valu"
        if "swap" in mn: d.update(w=R[0] | R[1], r=R[0] | R[1])
        elif "_co_" in mn: d.update(w=R[0] | R[1], r=U(R[2:]))
        else:
            d.update(w=R[0], r=U(R[1:]))
            if mn.startswith(("v_fmac", "v_dot2c", "v_mac", "v_writelane")) or "dpp" in t or "row_" in t: d["r"] |= R[0]
    elif mn.startswith("ds_read"): d.update(cls="ds", w=R[0], r=U(R[1:]))
    elif mn.startswith("ds_"): d.update(cls="ds", r=U(R))
    elif mn.startswith(("buffer_", "global_")):
        d["cls"] = "vmem"
        if " lds" in t: d.update(r=U(R) | {("s", 124)}, dma=True)
        elif "load" in mn: d.update(w=R[0], r=U(R[1:]))
        else:
            d.update(r=U(R))
            if "x4" in mn or "x3" in mn: d["wide"] = R[0] if mn.startswith("buffer") else R[1]
    elif mn.startswith("s_"):
        d["cls"] = "salu"
        if R and not mn.startswith(("s_cmp", "s_cbranch", "s_bitcmp")): d["w"] = set(R[0]); d["r"] = U(R[1:])
        else: d["r"] = U(R)
        if mn.startswith(("s_bitset", "s_cmov")): d["r"] |= R[0]
        if mn.startswith(SCCW): d["xw"] = {SCC}
        if mn.startswith(SCCR): d["xr"] = {SCC}
    if d["cls"] in ("valu", "mfma", "ds", "vmem"): d["xr"] = {("s", 126), ("s", 127)}
    return d

def need(p, c):
    n = 0
    vw = {x for x in p["w"] if x[0] != "s"}; sw = {x for x in p["w"] if x[0] == "s"}
    if p["cls"] == "valu":
        if c["cls"] == "mfma" and vw & c["r"]: n = max(n, 2)
        if c["cls"] == "valu":
            if p["mn"].startswith(TRANS) and vw & c["r"]: n = max(n, 1)
            if c["mn"].startswith(("v_readlane", "v_readfirstlane")) and vw & c["r"]: n = max(n, 1)
            if (c["mn"].startswith("v_permlane") or c.get("dpp")) and vw & c["r"]: n = max(n, 2)
            if sw & c["r"]: n = max(n, 4 if c["mn"].startswith(("v_readlane", "v_writelane")) else 2)
            if p["mn"].startswith("v_dot") and vw & (c["r"] | c["w"]) and c["mn"] != p["mn"]: n = max(n, 3)
        if c["cls"] == "vmem" and sw & c["r"]: n = max(n, 5)
    if p["cls"] == "mfma":
        big = 12 if p["passes"] == 8 else 8
        if c["cls"] == "mfma":
            if p["w"] & c["AB"]: n = max(n, big)
            if p["w"] & c["C"] and not (p["w"] == c["C"] and p["passes"] == c["passes"]): n = max(n, big - 2)
            if p["w"] & c["w"] and not (p["w"] == c["w"] and p["passes"] == c["passes"]): n = max(n, big)
        elif c["cls"] in ("valu", "ds", "vmem"):
            if p["w"] & (c["r"] | c["w"]): n = max(n, big)
            if p["C"] & c["w"]: n = max(n, 7 if p["passes"] == 8 else 3)
    if p["cls"] == "vmem" and p["wide"] and p["wide"] & c["w"]: n = max(n, 2)
    if p["cls"] == "salu" and ("s", 124) in p["w"] and c.get("dma"): n = max(n, 1)
    return n

def finalize(l, verbose=False):
    out = []; vm = []; lg = []; hist = []; nnop = 0
    def cnt(q, tags, mx):
        if tags == 0: return 0
        if not isinstance(tags, (list, tuple)): tags = [tags]
        last = -1
        for i, x in enumerate(q):
            if x[0] in tags: last = i
        if last < 0: return None
        return min(len(q) - 1 - last, mx)
    def emit(t, ws=1, d=None):
        out.append(t)
        for h in hist: h[1] += ws
        hist[:] = [h for h in hist if h[1] < 14]
        if d: hist.append([d, 0])
    for ins in l:
        if ins.kind == "label":
            out.append(ins.t); continue
        if ins.kind == "wait":
            parts = []
            if ins.wvm is not None:
                n = cnt(vm, ins.wvm, 63)
                if n is not None: parts.append(f"vmcnt({n})"); vm[:] = vm[len(vm) - n:] if n else []
            if ins.wlg is not None:
                n = cnt(lg, ins.wlg, 15)
                if n is not None:
                    if any(x[0] == "smem" for x in lg): n = 0
                    parts.append(f"lgkmcnt({n})"); lg[:] = lg[len(lg) - n:] if n else []
            if parts: emit("    s_waitcnt " + " ".join(parts))
            continue
        t = ins.t
        if t.startswith((".", ";")): out.append(t); continue
        d = parse(t)
        if "row_" in t or "quad_perm" in t or "_dpp" in t: d["dpp"] = True
        rw = d["r"] | d["w"]; parts = []
        for q, nm, mx in ((vm, "vmcnt", 63), (lg, "lgkmcnt", 15)):
            last = -1
            for i, x in enumerate(q):
                if x[1] & rw and not (x[2] == d["cls"] == "ds" and not (x[1] & d["r"])): last = i
            if last >= 0:
                n = min(len(q) - 1 - last, mx)
                if nm == "lgkmcnt" and any(x[0] == "smem" for x in q): n = 0
                parts.append(f"{nm}({n})"); q[:] = q[len(q) - n:] if n else []
        if parts: emit("    s_waitcnt " + " ".join(parts))
        n = max([need(h[0], d) - h[1] for h in hist] + [0])
        while n > 0:
            k = min(n, 8); emit(f"    s_nop {k-1}", k); n -= k; nnop += k
        if d["mn"] == "s_nop": emit("    " + t, int(t.split()[1]) + 1); continue
        if ins.tag == "nocount": pass
        elif d["cls"] == "vmem": vm.append((ins.tag, d["w"], "vmem"))
        elif d["cls"] == "ds": lg.append((ins.tag, d["w"], "ds"))
        elif d["mn"].startswith(("s_load", "s_memrealtime", "s_memtime")): lg.append(("smem", d["w"], "smem"))
        emit("    " + t, 1, d)
    if verbose: print("auto nops:", nnop, "instrs:", len(out))
    return "\n".join(out) + "\n"

class Fence(I):
    def __init__(self): I.__init__(self, ";", kind="fence")

def flat(l):
    out = []
    for x in (l.l if isinstance(l, Seq) else l):
        if isinstance(x, (list, tuple, Seq)): out.extend(flat(x))
        else: out.append(x)
    return out

LAT_DS, LAT_VM, VMC = 128, 1500, 72
def icost(d):
    if d["cls"] == "valu": return 8 if d["mn"].startswith(TRANS) else 4
    if d["cls"] == "ds" and not d["mn"].startswith("ds_read"): return 16 if "b128" in d["mn"] else 8
    if d["cls"] == "vmem" and "store" in d["mn"]: return 16 if "x4" in d["mn"] else 8
    return 4
def sched(l, win=48, rep=None, beta=0.0):
    l = flat(l); out = []; seg = []
    tot = [0]
    def hard(x):
        if x.kind in ("label", "fence"): return True
        if x.kind == "wait": return False
        return x.t.startswith(("s_cbranch", "s_branch", "s_endpgm", "s_memrealtime", "s_memtime", "s_load", "s_waitcnt", "s_getpc", ".", ";"))
    def run(seg):
        n = len(seg)
        if n == 0: return
        D = []
        for x in seg:
            if x.kind == "wait": d = dict(mn="s_waitcnt", cls="salu", w=set(), r=set(), C=set(), AB=set(), passes=0, wide=set(), xr=set(), xw=set(), fence=True)
            else:
                d = parse(x.t)
                if "row_" in x.t or "quad_perm" in x.t or "_dpp" in x.t: d["dpp"] = True
                if d["mn"] == "s_barrier": d["fence"] = True
            D.append(d)
        pred = [dict() for _ in range(n)]
        lw = {}; lr = {}; lds = lvm = -1
        for i, d in enumerate(D):
            R = d["r"] | d["xr"]; Wr = d["w"] | d["xw"]
            def dep(j, lat=0):
                if j < 0 or j == i: return
                o = pred[i].get(j, (0, 0))
                pred[i][j] = (max(o[0], lat), need(D[j], d))
            for r in R:
                j = lw.get(r, -1)
                if j >= 0: dep(j, LAT_DS if D[j]["cls"] == "ds" else LAT_VM if D[j]["cls"] == "vmem" else 0)
            for r in Wr:
                j = lw.get(r, -1)
                if j >= 0: dep(j, 0 if D[j]["cls"] == d["cls"] == "ds" else LAT_DS if D[j]["cls"] == "ds" else LAT_VM if D[j]["cls"] == "vmem" else 0)
                for j in lr.get(r, ()): dep(j)
            if d["cls"] == "ds" or d.get("fence"): dep(lds, LAT_DS if (d.get("fence") and seg[i].kind == "wait" and seg[i].wlg == 0 and lds >= 0 and D[lds]["cls"] == "ds") else 0); lds = i
            if d["cls"] == "vmem" or d.get("fence"): dep(lvm); lvm = i
            for r in R: lr.setdefault(r, []).append(i)
            for r in Wr: lw[r] = i; lr[r] = []
        done = [None] * n
        t = 0; pos = 0; pipe = 0; mft = -99; vend = -99; lo = 0; vfree = 0
        while pos < n:
            while done[lo] is not None: lo += 1
            cands = []; cnt = 0; i = lo
            while i < n and cnt < win:
                if done[i] is None:
                    cnt += 1
                    if all(done[j] is not None for j in pred[i]):
                        d = D[i]; st = t
                        for j, (lat, ws) in pred[i].items():
                            st = max(st, done[j][0] + lat, t + 4 * (ws - (pos - done[j][1] - 1)))
                        c = d["cls"]
                        if c == "mfma": st = max(st, pipe)
                        elif c in ("valu", "ds", "vmem"):
                            st = max(st, mft + 8)
                            if c != "valu": st = max(st, vend + 8)
                            if c == "vmem": st = max(st, vfree)
                        cands.append((st - t, i))
                i += 1
            mf = [x for x in cands if D[x[1]]["cls"] == "mfma"]
            mf = min(mf) if mf else None
            best = None
            for st, i in cands:
                c = D[i]["cls"]; pen = st
                if mf and c != "mfma" and i > mf[1]: pen += max(0, st + icost(D[i]) - mf[0])
                pen += beta * (i - lo)
                key = (pen, {"mfma": 0, "ds": 1, "vmem": 1, "salu": 2, "other": 2, "valu": 2}[c], i)
                if best is None or key < best[0]: best = (key, st, i)
            _, st, i = best
            d = D[i]; t += st
            done[i] = (t, pos); pos += 1; out.append(seg[i])
            if d["cls"] == "mfma": pipe = t + 4 * d["passes"]; mft = t
            if d["cls"] == "vmem": vfree = t + (VMC if "x4" in d["mn"] else VMC // 2 if seg[i].tag == "wo" else 16)
            t += icost(d)
            if d["cls"] == "valu": vend = t
        tot[0] += max(t, pipe)
    for x in l:
        if hard(x):
            run(seg); seg = []
            if x.kind != "fence": out.append(x)
        else: seg.append(x)
    run(seg)
    if rep: print(f"sched {rep}: model cycles {tot[0]}, instrs {len(out)}")
    return out

def magic_div(d, nmax):
    for s in range(6, 32):
        m = -(-(1 << s) // d)
        if m * (nmax - 1) >= (1 << 32) or m >= (1 << 24): continue
        if all(((i * m) >> s) == i // d for i in range(nmax)): return m, s
    raise ValueError

def wrap(body, lds, vgprs=512, accum=256):
    return f"""; @launch grid=(256,1,1) block=(256,1,1) lds={lds}
.amdgcn_target "amdgcn-amd-amdhsa--gfx950"
.text
.globl {KN}
.p2align 8
.type {KN},@function
{KN}:
{body}.section .rodata,"a"
.p2align 6
.amdhsa_kernel {KN}
  .amdhsa_next_free_vgpr {vgprs}
  .amdhsa_next_free_sgpr 102
  .amdhsa_accum_offset {accum}
  .amdhsa_group_segment_fixed_size 0
  .amdhsa_kernarg_size 88
  .amdhsa_user_sgpr_count 2
  .amdhsa_user_sgpr_kernarg_segment_ptr 1
  .amdhsa_system_sgpr_workgroup_id_x 1
.end_amdhsa_kernel
"""
```

```python
import sys
sys.path.insert(0, "work")
from fw import *

class Cfg:
    stop = 99
    stamps = True
    ldpol = "sc1"
    rotmod = 9
    stp = 0
    pst = 0
    gx = (1, 3, 6, 8)
    gw = (2, 5, 8)
    sch = 48
    beta = 0
    s_prod = 0
    s_fw = 5
    s_pw = 5
    s_wo = 3
    h_f1 = 10
    h_kv = 16
    n_kv = 7
    h_f2 = 27
    phq = 60
    tlb = 0
    dep = 4
    f2n = 2
NW = 5
F1, FW, F3, F2 = 0x10000, 0x18000, 0x20000, 0x40000
KVO, PKO, PARO, WOO, OPO = 0x100000, 0x600000, 0x8A0000, 0x960000, 0xAB0000
KV_PAIR, KV_KIND = 163840, 2621440
WOBLK = 5248
PSEC = 72 * 1152
WSL = 12416
KVR = 62080
XR = KVR
WOS = KVR + 49152
STG = KVR + 61440
SST = 7680
WPH = STG + 4 * SST
KVS = WPH + 4096
LDS_TOTAL = KVS + 4096
SX, SW1, SPK, SPS, SWS, SM = 4, 8, 12, 16, 20, 24
sW, sR, sG, sT = 28, 29, 30, 31
sKA, sKP, sLE, sQS = 32, 37, 46, 18
sL, sM0x, sM0w1, sM0w2 = 54, 55, 56, 57
sTAG = 58
sKX, sKW = 64, 73
sCB, sRT, sP = 96, 97, 98
sOA, sOT = 16, 17
def srd(n): return f"s[{n}:{n+3}]"
def vr(n, k): return f"v[{n}:{n+k-1}]"
def ar(n, k): return f"a[{n}:{n+k-1}]"
vL = 1
PM = 2
vX, vXR, vW1, vWA1, vWT1, vPAT, vGA = 10, 14, 16, 19, 20, 21, 22
vPK, vPS, vSA, vST, vSL, vK2, vF1 = 31, 34, 35, 36, 37, 38, 39
vKS = 10
AX, WA1, WA2, AD, FR, AY, ACC = 40, 64, 76, 88, 96, 144, 160
vPR1, vPR3, vPS3, vRP, vMD, vP4, vWP, vWP2, vWM = 200, 201, 203, 204, 207, 211, 212, 213, 214
vTW, vSC, V4, VT, VT4, vFW, vFO = 216, 218, 219, 220, 221, 222, 223
vL16, vG0, vG1, vTR = 224, 225, 226, 227
vBL, vBH, vBT, vKL, vKT = 231, 232, 233, 234, 235
vBT2, vQM, vQT, vONE = 236, 237, 238, 239
vOA, vOT, vF2, vF3, vPD, vTG, CM, vSTAMP = 240, 241, 242, 243, 244, 246, 248, 255
fT, fKG, fH, fKL, fRR, fC, fC0, fC1, fQ = range(144, 153)
M32 = "v_mfma_f32_32x32x16_bf16"
M16 = "v_mfma_f32_16x16x32_bf16"

nst = [0]
def stamp(a, c):
    if not c.stamps: return
    a("s_memrealtime s[60:61]")
    a.wait(lg=0)
    a(f"v_writelane_b32 v{vSTAMP}, s60, {nst[0]}")
    nst[0] += 1

def lin(a, dst, terms, const=None):
    first = True
    for f, m in terms:
        if first:
            a(f"v_mul_u32_u24 v{dst}, {m}, v{f}")
            if not (const is None or const == 0): a(f"v_add_u32 v{dst}, {const}, v{dst}")
            first = False
        else:
            if 0 <= m <= 64: a(f"v_mad_u32_u24 v{dst}, v{f}, {m}, v{dst}")
            else:
                a(f"s_movk_i32 s63, {m}" if m < 32768 else f"s_mov_b32 s63, {m}")
                a(f"v_mad_u32_u24 v{dst}, v{f}, s63, v{dst}")

def mksrd(a, n, lo, hi, off=None, nrec=0x7fffffff):
    if off is None: a(f"s_mov_b32 s{n}, s{lo}\ns_mov_b32 s{n+1}, s{hi}")
    else: a(f"s_add_u32 s{n}, s{lo}, {off}\ns_addc_u32 s{n+1}, s{hi}, 0")
    a(f"s_mov_b32 s{n+2}, {nrec}\ns_mov_b32 s{n+3}, 0x20000")

def dma_x(s):
    q = Seq()
    q(f"s_add_u32 m0, s{sM0x}, {(s % 3) * 16384}")
    for i in range(4):
        q(f"buffer_load_dwordx4 v{vX+i}, {srd(SX)}, s{sKX+s} offen offset:{i*1024} lds", f"x{s}")
    return q.l
def dma_w(c, n):
    q = Seq()
    q(f"s_add_u32 m0, s{sM0w1 if n < 9 else sM0w2}, {(n % NW) * WSL}")
    for i in range(3):
        if n < 9: q(f"buffer_load_dwordx4 v{vW1+i}, {srd(SW1)}, s{sKW+n} offen offset:{i*1024} lds", f"w{n}")
        elif n < 14: q(f"buffer_load_dwordx4 v{vPK+i}, {srd(SPK)}, s{sKA+n-9} offen offset:{i*1024} {c.ldpol} lds", f"w{n}")
        else: q(f"buffer_load_dwordx4 v{vPS}, {srd(SPK)}, s{sKP+3*((n-14)%3)+i} offen offset:{i*1024} {c.ldpol} lds", f"w{n}")
    if n in (16, 19): q(f"v_add_u32 v{vPS}, {PSEC}, v{vPS}")
    return q.l
def rd_w(n, ks):
    base = (n % NW) * WSL; out = []
    for h in range(5):
        for j in range(2):
            ad = vWA1 if h < 4 else vWT1; off = base + ks * 6208 + j * 768 + (h * 48 if h < 4 else 0)
            out.append(I(f"ds_read_b64_tr_b16 {vr(FR + ks*24 + h*4 + j*2, 2)}, v{ad} offset:{off}", f"f{n}_{ks}"))
    return out
def rd_x(s):
    return [I(f"ds_read_b128 {ar((s*4 + ks*2 + tt)*4, 4)}, v{vXR+ks} offset:{(s%3)*16384 + tt*2048}", f"xr{s}") for ks in range(2) for tt in range(2)]
def mm(s, ks):
    out = []
    for h in range(5):
        for tt in range(2):
            d = vr(ACC + (h*2 + tt)*4, 4)
            out.append(I(f"{M16} {d}, {vr(FR + ks*24 + h*4, 4)}, {ar((s*4 + ks*2 + tt)*4, 4)}, {0 if (s == 0 and ks == 0) else d}"))
    return out
def patch(s): return I(f"ds_write_b16 v{vPAT}, v{vGA+s} offset:{(s % NW) * WSL}", "pat")

def prologue(a, c):
    a("s_getpc_b64 s[60:61]")
    a("s_load_dwordx16 s[32:47], s[0:1], 0\ns_load_dwordx4 s[48:51], s[0:1], 64\ns_load_dwordx2 s[52:53], s[0:1], 80")
    a(f"s_memrealtime s[{sTAG}:{sTAG+1}]")
    a("s_cmp_ge_u32 s2, 256\ns_cbranch_scc1 .Lend")
    a(f"v_lshrrev_b32 v2, 6, v0\nv_and_b32 v{vL}, 63, v0")
    a(f"v_readfirstlane_b32 s{sW}, v2")
    a("s_lshr_b32 s3, s2, 3")
    a(f"s_and_b32 s62, s3, 7\ns_lshl_b32 s62, s62, 13\nv_and_b32 v{fT}, 15, v0\nv_lshlrev_b32 v3, 7, v{fT}\nv_lshl_add_u32 v3, v2, 11, v3\nv_add_u32 v3, s62, v3")
    a(f"v_min_u32 v3, .Lcodeend-{KN}-8, v3")
    a("global_load_dword v9, v3, s[60:61]", "pf")
    a(f"s_and_b32 s62, s2, 1\ns_lshl_b32 s62, s62, 3\ns_and_b32 s{sR}, s3, 7\ns_or_b32 s{sR}, s{sR}, s62")
    a(f"s_and_b32 s62, s2, 6\ns_bfe_u32 s{sG}, s3, 0x10003\ns_or_b32 s{sG}, s{sG}, s62\ns_lshr_b32 s{sT}, s3, 4")
    m, sh = magic_div(c.rotmod, 32)
    a(f"s_mul_i32 s62, s3, {m}\ns_lshr_b32 s62, s62, {sh}\ns_mul_i32 s62, s62, {c.rotmod}\ns_sub_u32 s62, s3, s62")
    a(f"s_lshl_b32 s{sKX}, s62, 7\ns_mul_i32 s{sKW}, s62, 221184")
    a(f"v_lshrrev_b32 v{fKG}, 4, v{vL}\nv_and_b32 v4, 7, v0\nv_xor_b32 v4, v4, v{fKG}\nv_lshlrev_b32 v4, 4, v4\nv_xor_b32 v5, 64, v4")
    a(f"v_lshrrev_b32 v6, 3, v{vL}\nv_lshl_add_u32 v6, v2, 5, v6\nv_mul_u32_u24 v6, 1152, v6")
    a(f"v_add_u32 v{vX}, v6, v4\nv_add_u32 v5, v6, v5\nv_add_u32 v{vX+1}, 8192, v5\nv_add_u32 v{vX+2}, 16384, v{vX}\nv_add_u32 v{vX+3}, 24576, v5")
    a(f"s_lshr_b32 s62, s{sW}, 1\ns_lshl_b32 s62, s62, 2\ns_and_b32 s63, s{sW}, 1\ns_add_u32 s89, s62, s63\ns_mul_i32 s99, s89, {8*3456}")
    m12, s12 = magic_div(12, 192); m3, s3 = magic_div(3, 12)
    for i in range(3):
        a(f"v_add_u32 v4, {64*i}, v{vL}\nv_mul_u32_u24 v5, {m12}, v4\nv_lshrrev_b32 v5, {s12}, v5")
        a(f"v_mad_i32_i24 v4, v5, -12, v4\nv_mul_u32_u24 v6, {m3}, v4\nv_lshrrev_b32 v6, {s3}, v6")
        a(f"v_mad_i32_i24 v4, v6, -3, v4\nv_lshlrev_b32 v4, 4, v4\nv_min_u32 v4, 20, v4\nv_mad_u32_u24 v4, v6, 36, v4")
        a(f"v_and_b32 v6, 8, v5\nv_add_u32 v5, v5, v6\nv_mul_u32_u24 v5, 3456, v5\nv_add3_u32 v{vW1+i}, v4, v5, s99")
        if i: a(f"v_subrev_u32 v{vW1+i}, {1024*i}, v{vW1+i}")
    a(f"s_lshl_b32 s{sM0x}, s{sW}, 12\ns_add_u32 s{sM0x}, s{sM0x}, {XR}\ns_mul_i32 s{sM0w1}, s{sW}, 3104\ns_mul_i32 s{sM0w2}, s{sW}, 3072")
    a(f"s_mul_i32 s62, s{sR}, {128*1152}\ns_mul_i32 s90, s{sG}, 144\ns_mul_i32 s3, s{sT}, 1152\ns_add_u32 s63, s90, s3\ns_add_u32 s63, s63, 1152")
    a.wait(lg=0)
    mksrd(a, SX, 32, 33, "s62"); mksrd(a, SW1, 42, 43, "s63")
    if c.stamps: a(f"v_writelane_b32 v{vSTAMP}, s{sTAG}, 0"); nst[0] = 1
    a(dma_x(0)); a(dma_w(c, 0))
    if c.pst: stamp(a, c)
    mksrd(a, SM, 46, 47, nrec=1152)
    a(f"s_lshr_b32 s62, s{sW}, 1\ns_lshl_b32 s62, s62, 6\ns_and_b32 s63, s{sW}, 1\ns_lshl_b32 s63, s63, 4\ns_add_u32 s62, s62, s63\ns_lshl_b32 s88, s{sW}, 10\ns_add_u32 m0, s88, {KVS}")
    a(f"v_lshrrev_b32 v4, 1, v{vL}\nv_lshl_add_u32 v4, v4, 7, s{sKX}\nv_subrev_u32 v5, 1152, v4\nv_min_u32 v4, v4, v5\nv_and_b32 v5, 1, v0\nv_lshl_add_u32 v4, v5, 5, v4")
    a(f"buffer_load_dwordx4 v4, {srd(SM)}, s62 offen lds", "ga")
    a(f"s_lshr_b32 s62, s{sR}, 1\ns_mul_i32 s62, s62, {72*3456}\ns_add_u32 s62, s62, s90\ns_add_u32 s63, s3, 1152\ns_bitcmp1_b32 s{sR}, 0\ns_cselect_b32 s63, 0, s63\ns_add_u32 s62, s62, s63")
    a(f"s_and_b32 s63, s{sR}, s{sT}\ns_cselect_b32 s100, s42, s34\ns_cselect_b32 s101, s43, s35")
    mksrd(a, SPS, 100, 101, "s62", nrec=71*3456+144)
    a(f"s_mul_i32 s91, s{sW}, {SST}\ns_add_u32 s91, s91, {STG}\ns_mov_b32 m0, s91")
    m3b, s3b = magic_div(3, 64)
    a(f"v_mul_u32_u24 v5, {m3b}, v{vL}\nv_lshrrev_b32 v5, {s3b}, v5\nv_mad_i32_i24 v4, v5, -3, v{vL}\nv_lshlrev_b32 v4, 4, v4\nv_min_u32 v4, 20, v4\nv_mad_u32_u24 v{vMD}, v5, 36, v4")
    for i in range(3): a(f"buffer_load_dwordx4 v{vW1+i}, {srd(SPS)}, 0 offen offset:{i*1024} lds", "pr")
    a(f"s_mul_i32 s62, s{sW}, 36\ns_add_u32 s62, s62, {64*3456-3072}\nv_mul_u32_u24 v5, 3456, v5\nv_add3_u32 v{vP4}, v4, v5, s62")
    a(f"buffer_load_dwordx4 v{vP4}, {srd(SPS)}, 0 offen offset:3072 lds", "pr")
    a(f"s_or_b32 s62, s2, s{sW}\ns_cbranch_scc1 .Lnotag")
    a(f"s_bitset1_b32 s{sTAG+1}, 31\nv_mov_b32 v4, s{sTAG}\nv_mov_b32 v5, s{sTAG+1}\nv_mov_b32 v6, 0")
    a("global_store_dwordx2 v6, v[4:5], s[50:51] sc1", "nocount")
    a.label(".Lnotag")
    if c.pst: stamp(a, c)
    for s in range(1, 9):
        a(f"s_add_u32 s{sKX+s}, s{sKX+s-1}, 128\ns_cmp_eq_u32 s{sKX+s}, 1152\ns_cselect_b32 s{sKX+s}, 0, s{sKX+s}\ns_mul_i32 s{sKW+s}, s{sKX+s}, 1728")
    a(f"s_lshl_b32 s{sP}, s{sG}, 1\ns_add_u32 s{sP}, s{sP}, s{sT}\ns_lshl_b32 s{sL}, s{sR}, 4\ns_add_u32 s{sL}, s{sL}, s{sP}")
    a(f"s_bfe_u32 s63, s{sL}, 0x40001\ns_mul_i32 s63, s63, {36*1152}\ns_lshr_b32 s3, s{sL}, 5\ns_mul_i32 s3, s3, 144\ns_add_u32 s63, s63, s3")
    a(f"s_bitcmp1_b32 s{sL}, 0\ns_cselect_b32 s100, s38, s44\ns_cselect_b32 s101, s39, s45")
    mksrd(a, 84, 100, 101, "s63", nrec=35*1152+144)
    m9, s9 = magic_div(9, 512)
    for i in range(2):
        a(f"v_add_u32 v4, {256*i}, v0\nv_mul_u32_u24 v5, {m9}, v4\nv_lshrrev_b32 v5, {s9}, v5\nv_mad_i32_i24 v4, v5, -9, v4\nv_lshlrev_b32 v4, 4, v4\nv_mul_u32_u24 v5, 1152, v5\nv_add_u32 v{vMD+1+i}, v4, v5")
    a(f"s_and_b32 s63, s{sW}, 1\ns_lshl_b32 s62, s{sP}, 1\ns_add_u32 s62, s62, s63\ns_mul_i32 s62, s62, 648")
    mksrd(a, SM, 36, 37, "s62", nrec=648)
    a(f"v_lshrrev_b32 v4, 2, v{vL}\ns_add_u32 s62, s88, {KVS}\nv_lshl_add_u32 v{vMD+3}, v4, 1, s62")
    a(f"v_and_b32 v{fC}, 3, v0\nv_mul_u32_u24 v{vPAT}, 192, v4\nv_mad_u32_u24 v{vPAT}, v{fC}, 48, v{vPAT}\nv_add3_u32 v{vPAT}, v{vPAT}, s{sM0w1}, 40")
    mksrd(a, SWS, 52, 53, nrec=0x10000000)
    if c.tlb:
        a(f"v_min_u32 v5, {(1 << (24 - c.tlb)) - 1}, v{vL}\nv_lshlrev_b32 v5, {c.tlb}, v5")
        a(f"buffer_load_dword v96, v5, {srd(SWS)}, 0 offen", "pf")
        a(f"v_min_u32 v5, {2048*1152 - 4}, v5\nglobal_load_dword v97, v5, s[48:49]", "pf")
    a(f"s_mul_i32 s62, s{sG}, {4*PSEC}\ns_add_u32 s62, s62, {PKO - 2048}")
    mksrd(a, SPK, 52, 53, "s62", nrec=4*PSEC + 2048)
    a(f"s_lshr_b32 s3, s2, 3\ns_lshr_b32 s{sCB}, s3, 2\ns_and_b32 s{sRT}, s3, 3\ns_and_b32 s62, s2, 1\ns_lshl_b32 s62, s62, 4\ns_add_u32 s{sRT}, s{sRT}, s62\ns_and_b32 s62, s2, 6\ns_lshl_b32 s62, s62, 1\ns_add_u32 s{sRT}, s{sRT}, s62")
    a(f"v_lshrrev_b32 v{fH}, 5, v{vL}\nv_and_b32 v{fKL}, 1, v{fKG}\nv_bfe_u32 v{fRR}, v0, 2, 2\nv_and_b32 v{fC0}, 1, v0\nv_bfe_u32 v{fC1}, v0, 1, 1\nv_and_b32 v{fQ}, 31, v0")
    a(f"v_lshlrev_b32 v{vL16}, 4, v{vL}")
    a(f"v_lshrrev_b32 v4, 1, v{fT}\nv_xor_b32 v4, v4, v{fKG}\nv_lshlrev_b32 v4, 4, v4\nv_lshl_add_u32 v4, v{fT}, 7, v4\nv_add_u32 v{vXR}, s{sM0x}, v4\nv_xor_b32 v{vXR+1}, 64, v{vXR}")
    lin(a, 4, [(fKL, 3104), (fH, 1536), (fRR, 192)])
    a(f"v_lshl_add_u32 v{vWA1}, v{fC}, 3, v4\nv_mad_u32_u24 v{vWT1}, v{fC}, 48, v4\nv_add_u32 v{vWT1}, 40, v{vWT1}")

def wo_dma():
    out = []
    for i in range(2): out.append([I(f"s_add_u32 m0, s88, {WOS + 4096*i}"), I(f"buffer_load_dwordx4 v{vMD+1+i}, {srd(84)}, 0 offen lds", "wos")])
    out.append([I(f"s_and_b32 s63, s88, 1024"), I(f"s_add_u32 m0, s63, {WPH}"), I(f"buffer_load_dwordx4 v{vMD}, {srd(SM)}, 0 offen lds", "wos")])
    return out

def setup1(a, c):
    lin(a, vPR1, [(fRR, 192), (fKG, 48), (fC, 8)], "s91")
    lin(a, 4, [(fRR, 192), (fKL, 1536), (fC, 48)], 40)
    lin(a, 5, [(fRR, 48)], 3072)
    a(f"v_lshlrev_b32 v6, 3, v{fC}\nv_cmp_eq_u32 vcc, 0, v{fKL}\nv_cndmask_b32 v6, 40, v6, vcc\nv_add_u32 v5, v5, v6")
    a(f"v_cmp_eq_u32 vcc, 0, v{fH}\nv_cndmask_b32 v4, v5, v4, vcc\nv_add_u32 v{vPR3}, s91, v4\nv_mov_b32 v5, 192\nv_mov_b32 v6, 768\nv_cndmask_b32 v5, v5, v6, vcc\nv_add_u32 v{vPR3+1}, v{vPR3}, v5")
    a(f"s_mul_i32 s62, s89, 1152\ns_add_u32 s62, s62, 992")
    lin(a, 4, [(fKL, 2304), (fRR, 32), (fC, 16)], "s62")
    a(f"s_lshl_b32 s62, s{sW}, 8\ns_add_u32 s62, s62, 9216\nv_lshl_add_u32 v5, v{fT}, 4, s62\ns_lshl_b32 s62, s{sW}, 5\ns_add_u32 s62, s62, {9216+992}\nv_lshl_add_u32 v6, v{fC}, 4, s62")
    a(f"v_cndmask_b32 v4, v5, v4, vcc\nv_cmp_eq_u32 vcc, 3, v{fKG}\nv_cndmask_b32 v{vPS3}, v4, v6, vcc")
    a(f"s_and_b32 s62, s{sR}, 1\ns_lshl_b32 s62, s62, 1\ns_lshl_b32 s63, s{sG}, 2\ns_add_u32 s62, s62, s63\ns_add_u32 s62, s62, s{sT}\ns_mul_i32 s62, s62, {PSEC}\ns_lshr_b32 s63, s{sR}, 1\ns_mul_i32 s63, s63, {9*1152}\ns_add_u32 s62, s62, s63\ns_add_u32 s92, s62, {PKO}")
    a(f"s_mul_i32 s63, s89, 1152\ns_add_u32 s93, s63, s92")
    lin(a, vWP2, [(fH, 1024), (fRR, 48)], WPH)
    lin(a, vWP, [(fKL, 16), (fC1, 8), (vWP2, 1)])
    a(f"v_add_u32 v{vWP2}, 40, v{vWP2}\nv_bfe_u32 v4, v0, 2, 1\nv_cmp_eq_u32 vcc, v4, v{fH}\nv_cndmask_b32 v{vWM}, 0, -1, vcc")
    lin(a, 4, [(fH, 18*144), (fKL, 4*144), (fRR, 144)], WOS)
    a(f"v_bfe_u32 v6, v0, 2, 1\nv_bfe_u32 v7, v0, 3, 1")
    lin(a, 5, [(7, 18*144), (6, 144)], WOS + 16*144)
    a(f"s_lshr_b32 s62, s{sW}, 1\ns_lshl_b32 s62, s62, 6\ns_and_b32 s3, s{sW}, 1\ns_lshl_b32 s63, s3, 3\ns_add_u32 s62, s62, s63")
    a(f"v_lshl_add_u32 v{vRP}, v{fC}, 4, v4\nv_add_u32 v{vRP}, s62, v{vRP}")
    a(f"v_lshlrev_b32 v6, 3, v{fC0}\nv_add_u32 v6, 128, v6\nv_and_b32 v7, 7, v0")
    a(f"s_cmp_ge_u32 s{sW}, 2\ns_cbranch_scc1 .Lrp2")
    a(f"s_mul_i32 s62, s3, 1152\nv_add3_u32 v{vRP+1}, v4, v6, s62\nv_lshl_add_u32 v7, v{fKG}, 3, v7\nv_lshlrev_b32 v7, 4, v7\ns_add_u32 s63, s63, 4096\nv_add_u32 v{vRP+2}, s63, v7\ns_branch .Lrp4")
    a.label(".Lrp2")
    a(f"s_cmp_eq_u32 s{sW}, 3\ns_cbranch_scc1 .Lrp3")
    lin(a, vRP+1, [(fH, 64), (fC, 16), (fKL, 8), (5, 1)])
    a(f"v_lshlrev_b32 v{vRP+2}, 3, v{vL}\nv_add_u32 v{vRP+2}, 4608, v{vRP+2}\ns_branch .Lrp4")
    a.label(".Lrp3")
    a(f"v_add_u32 v{vRP+1}, v5, v6\nv_lshlrev_b32 v{vRP+2}, 3, v7\nv_add_u32 v{vRP+2}, 5120, v{vRP+2}")
    a.label(".Lrp4")

def setup2(a, c):
    a(f"s_lshl_b32 s62, s{sT}, 9\ns_add_u32 s62, s62, 2048")
    lin(a, vPK, [(fKG, 1152), (fT, 16)], "s62")
    a(f"v_subrev_u32 v{vPK+1}, 768, v{vPK}\ns_and_b32 s63, s{sW}, 1\ns_lshl_b32 s63, s63, 8\ns_add_u32 s63, s63, {PSEC - 2048}\nv_add_u32 v{vPS}, s63, v{vPK}")
    a(f"s_lshl_b32 s62, s{sT}, 6\ns_add_u32 s62, s62, 1024")
    lin(a, vPK+2, [(fKG, 1152), (fRR, PSEC), (fC, 16)], "s62")
    a(f"s_lshr_b32 s62, s{sKX}, 6\ns_add_u32 s63, s62, s{sW}\ns_mul_i32 s63, s63, 4608\ns_lshr_b32 s3, s{sW}, 1\ns_mul_i32 s3, s3, 3\ns_add_u32 s62, s62, s3\ns_mul_i32 s62, s62, 4608")
    for j in range(5):
        if j: a(f"s_add_u32 s63, s{sKA+j-1}, {4*4608}")
        a(f"s_sub_u32 s3, s63, {PSEC}\ns_cselect_b32 s{sKA+j}, s63, s3")
    for j in range(9):
        if j: a(f"s_add_u32 s62, s62, {4608*(4 if j % 3 == 0 else 1)}")
        a(f"s_sub_u32 s3, s62, {PSEC}\ns_cselect_b32 s62, s62, s3\ns_add_u32 s{sKP+j}, s62, {2048 - 1024*(j % 3)}")
    a(f"s_mov_b32 s{sLE}, 0x3fb8aa3b\ns_mov_b32 s{sQS}, 0x3eae1a93")
    a(f"v_lshlrev_b32 v4, 2, v{fH}\nv_xor_b32 v4, v4, v{fT}")
    lin(a, vSA, [(fH, 512), (4, 16), (fKL, 8)], "s91")
    lin(a, vST, [(fKG, 1280), (fT, 8)], "s91"); a(f"v_add_u32 v{vST}, 1024, v{vST}")
    a(f"v_add_u32 v{vSL}, s91, v{vL16}")
    lin(a, vK2, [(fH, KV_PAIR - 2560), (vL16, 1)])
    lin(a, vBL, [(fH, 1280), (fQ, 16)], "s91")
    a(f"v_xor_b32 v{vBH}, 64, v{vBL}\nv_add_u32 v{vBH}, 512, v{vBH}")
    lin(a, vBT, [(fH, 1280), (fQ, 8)], "s91"); a(f"v_add_u32 v{vBT}, 1024, v{vBT}")
    a(f"s_lshl_b32 s62, s{sW}, 8\ns_add_u32 s62, s62, {WPH + 2048}")
    lin(a, vBT2, [(fH, 1024), (fQ, 8)], "s62")
    a(f"s_add_u32 s3, s91, 1024\nv_mov_b32 v4, s3\nv_mov_b32 v5, s62\nv_cmp_eq_u32 vcc, 0, v{fH}\nv_cndmask_b32 v4, v5, v4, vcc\nv_mov_b32 v5, 2048\nv_mov_b32 v6, 2560\nv_cndmask_b32 v5, v5, v6, vcc")
    a(f"v_mad_u32_u24 v4, v5, v{fKL}, v4\nv_lshl_add_u32 v{vTW}, v{fT}, 3, v4\nv_lshrrev_b32 v5, 1, v5\nv_add_u32 v{vTW+1}, v{vTW}, v5")
    a(f"s_add_u32 s62, s62, 2048\nv_lshl_add_u32 v4, v{fQ}, 3, s62\nv_mov_b32 v5, {WPH + 896}\nv_cndmask_b32 v{vQT}, v5, v4, vcc")
    a(f"v_mov_b32 v4, 0x3f803f80\nv_cndmask_b32 v{CM+2}, 0, v4, vcc\nv_mov_b32 v{vONE}, 0x3f80")
    for r in (CM+1, CM+3, CM+4, CM+5): a(f"v_mov_b32 v{r}, 0")
    a(f"v_mov_b32 v4, s{sQS}\nv_cmp_eq_u32 vcc, 3, v{fKG}\nv_cndmask_b32 v{vSC}, 1.0, v4, vcc")
    a(f"v_lshl_add_u32 v4, v{fH}, 2, v{fRR}\nv_lshlrev_b32 v5, 2, v{fC1}\nv_xor_b32 v5, v5, v4")
    lin(a, 6, [(fC1, 512), (5, 16), (fC0, 8)])
    lin(a, 7, [(4, 8)], 1024)
    a(f"v_lshlrev_b32 v5, 2, v{fC0}\nv_xor_b32 v5, v5, v4")
    lin(a, 8, [(fC0, 512), (5, 16), (fC1, 8)])
    a(f"s_mul_i32 s62, s{sW}, 2560\ns_add_u32 s62, s62, {KVR}\ns_add_u32 s3, s62, 30720")
    a(f"v_cmp_eq_u32 vcc, 0, v{fKL}\nv_cndmask_b32 v6, v7, v6, vcc\nv_cndmask_b32 v{AD}, v7, v8, vcc\nv_mov_b32 v4, 64\nv_mov_b32 v5, 128\nv_cndmask_b32 v7, v4, v5, vcc")
    a(f"v_add_u32 v{vTR}, s3, v6")
    a(f"v_lshlrev_b32 v4, 2, v{fH}\nv_xor_b32 v4, v4, v{fQ}")
    lin(a, vKL, [(fH, 512), (4, 16)], "s62")
    lin(a, vKT, [(fQ, 8)], "s62"); a(f"v_add_u32 v{vKT}, 1024, v{vKT}")
    a(f"s_sub_u32 s62, s91, s62\ns_add_u32 s62, s62, 2560\nv_add_u32 v{vQM}, s62, v{vKL}")
    a(f"s_and_b32 s62, s{sW}, 1\ns_mul_i32 s62, s62, 1280\ns_lshr_b32 s3, s{sW}, 1\ns_mul_i32 s3, s3, 5120\ns_add_u32 s3, s62, s3\ns_add_u32 s3, s3, {STG}\nv_add_u32 v{AD}, s3, v{AD}")
    a(f"s_add_u32 s62, s62, {STG + 2560}\nv_add_u32 v{AD+4}, s62, v6")
    for i in range(1, 4): a(f"v_add_u32 v{vTR+i}, v{vTR+i-1}, v7\nv_add_u32 v{AD+i}, v{AD+i-1}, v7\nv_add_u32 v{AD+4+i}, v{AD+3+i}, v7")
    a(f"v_bfe_u32 v4, v0, 2, 3\ns_lshl_b32 s62, s{sW}, 3\nv_add_u32 v4, s62, v4\nv_lshrrev_b32 v5, 1, v4\nv_and_b32 v6, 1, v4\nv_lshl_add_u32 v5, v5, 4, v6\ns_lshl_b32 s62, s{sG}, 1\nv_add_u32 v5, s62, v5")
    a(f"s_lshl_b32 s63, s{sCB}, 5\nv_add_u32 v4, s63, v4\nv_lshlrev_b32 v6, 3, v{fC}\nv_lshl_add_u32 v{vFO}, v4, 7, v6\nv_lshl_add_u32 v{vFW}, v5, 7, v6")
    a(f"s_and_b32 s63, s{sW}, 1\ns_mul_i32 s63, s63, 6\ns_lshl_b32 s3, s{sR}, 2\ns_add_u32 s63, s63, s3\ns_sub_u32 s63, s63, 8\nv_min_u32 v4, 5, v{vL}\nv_add_u32 v4, s63, v4\nv_max_i32 v4, 0, v4")
    a(f"s_lshr_b32 s63, s{sW}, 1\ns_add_u32 s62, s62, s63\nv_lshrrev_b32 v5, 2, v4\nv_lshl_add_u32 v5, v5, 4, s62\nv_and_b32 v4, 3, v4\nv_lshlrev_b32 v4, 3, v4\nv_lshl_add_u32 v{vF1}, v5, 7, v4")
    a(f"s_lshl_b32 s62, s{sP}, 2\ns_add_u32 s62, s62, s{sW}\nv_lshl_add_u32 v4, v{fT}, 6, s62\nv_lshlrev_b32 v{vF2}, 7, v4")
    a(f"s_lshr_b32 s62, s{sRT}, 1\ns_lshl_b32 s62, s62, 6\ns_lshl_b32 s3, s{sW}, 4\ns_add_u32 s62, s62, s3\ns_and_b32 s3, s{sRT}, 1\ns_lshl_b32 s3, s3, 1\ns_add_u32 s62, s62, s3")
    a(f"v_bfe_u32 v4, v0, 1, 2\nv_lshl_add_u32 v4, v4, 2, v{fC0}\nv_add_u32 v4, s62, v4\nv_lshlrev_b32 v{vF3}, 7, v4")
    a(f"s_lshl_b32 s62, s{sCB}, 2\ns_add_u32 s62, s62, s{sW}\ns_mul_i32 s100, s62, {8*WOBLK}\ns_add_u32 s100, s100, {WOO}")
    a(f"v_and_b32 v{VT4}, 7, v0\nv_lshl_add_u32 v{V4}, v{fKG}, 3, v{VT4}\nv_lshlrev_b32 v{V4}, 4, v{V4}\nv_add_u32 v{V4}, 4096, v{V4}")
    a(f"v_mul_u32_u24 v{VT}, {2*WOBLK}, v{fKG}\nv_add_u32 v{VT}, 4608, v{VT}\nv_lshl_add_u32 v{VT4}, v{VT4}, 3, v{VT}\nv_lshl_add_u32 v{VT}, v{fT}, 3, v{VT}")
    a(f"v_mul_u32_u24 v{vOT}, 36864, v{fKL}\nv_lshl_add_u32 v{vOT}, v{fT}, 4, v{vOT}\nv_lshl_add_u32 v{vOA}, v{fH}, 8, v{vOT}")
    a(f"s_lshl_b32 s62, s{sR}, 2\ns_add_u32 s62, s62, s{sW}\ns_mul_i32 s62, s62, {2*36864}\ns_lshr_b32 s63, s{sP}, 2\ns_mul_i32 s63, s63, 9216\ns_add_u32 s62, s62, s63\ns_add_u32 s62, s62, {OPO}")
    a(f"s_and_b32 s63, s{sP}, 3\ns_lshl_b32 s3, s63, 11\ns_add_u32 s{sOA}, s62, s3\ns_lshl_b32 s3, s63, 8\ns_add_u32 s{sOT}, s62, s3\ns_add_u32 s{sOT}, s{sOT}, 8192")

def setup3(a, c):
    a(f"v_mul_u32_u24 v{vKS+1}, 320, v{fH}\nv_lshl_add_u32 v{vKS+1}, v{fQ}, 4, v{vKS+1}\nv_lshlrev_b32 v{vKS}, 2, v{fQ}")
    a(f"v_mad_i32_i24 v12, v{fH}, -4, v{fQ}\nv_mov_b32 v13, 0xffff")
    for r in range(16): a(f"v_cmp_le_i32 s[{64+2*r}:{65+2*r}], {8*(r>>2) + (r&3)}, v12")
    for j in range(8): a(f"v_cndmask_b32 v{PM+j}, 0, v13, s[{64+4*j}:{65+4*j}]")
    for j in range(8): a(f"v_cndmask_b32 v{PM+j}, v{PM+j}, -1, s[{66+4*j}:{67+4*j}]")

def producer(c):
    q = Seq(); T = AX
    q.wait(vm="pr")
    for k in range(2):
        for j in range(2): q(f"ds_read_b64_tr_b16 {vr(T + 4*k + 2*j, 2)}, v{vPR1} offset:{k*1536 + j*768}")
    for j in range(2): q(f"ds_read_b64_tr_b16 {vr(T + 8 + 2*j, 2)}, v{vPR3+j}")
    g = Seq()
    for k in range(2): g(f"buffer_store_dwordx4 {vr(T + 4*k, 4)}, v{vL16}, {srd(SWS)}, s93 offen offset:{2304*k} sc1", "stp")
    g("s_mov_b32 exec_lo, 0xcccccccc\ns_mov_b32 exec_hi, 0xcffff")
    g(f"buffer_store_dwordx4 {vr(T+8, 4)}, v{vPS3}, {srd(SWS)}, s92 offen sc1", "stp")
    g("s_mov_b64 exec, -1")
    return q.l, g.l
def wo_repack():
    q = Seq(); T = AX
    q(f"ds_read_b64_tr_b16 {vr(T+12, 2)}, v{vRP}\nds_read_b64_tr_b16 {vr(T+14, 2)}, v{vRP} offset:1152\nds_read_b64_tr_b16 {vr(T+16, 2)}, v{vRP+1}")
    r = Seq()
    r(f"s_mul_i32 s63, s{sL}, {WOBLK}\ns_add_u32 s63, s63, {WOO}\ns_add_u32 s3, s88, s63")
    r(f"buffer_store_dwordx4 {vr(T+12, 4)}, v{vL16}, {srd(SWS)}, s3 offen sc1\nbuffer_store_dwordx2 {vr(T+16, 2)}, v{vRP+2}, {srd(SWS)}, s63 offen sc1", "stw")
    return q.l, r.l
def wa_load():
    q = Seq()
    for i in range(5):
        q(f"ds_read_b64_tr_b16 {vr(WA1 + 2*i, 2)}, v{vWP} offset:{192*i}\nds_read_b64_tr_b16 {vr(WA2 + 2*i, 2)}, v{vWP2} offset:{192*i}")
    for r in (WA1 + 10, WA1 + 11, WA2 + 10, WA2 + 11): q(f"v_mov_b32 v{r}, 0")
    for i in range(10): q(f"v_and_b32 v{WA1+i}, v{vWM}, v{WA1+i}\nv_and_b32 v{WA2+i}, v{vWM}, v{WA2+i}")
    return q.l

def put(mf, items):
    out = []
    for g, m in enumerate(mf):
        out.append(m)
        for gg, it in items:
            if gg == g or (g == len(mf) - 1 and gg > g):
                out.extend(it if isinstance(it, list) else [it])
    return out
def grp(q): return [q[:2]] + q[2:]

def poll_issue(voff, base, name):
    q = Seq()
    q(f"s_mov_b32 s62, {base}")
    q(f"buffer_load_dwordx2 {vr(vPD, 2)}, v{voff}, {srd(SWS)}, s62 offen sc1", name)
    return q.l
def poll_check(voff, base, name):
    q = Seq()
    q.wait(vm=name)
    q(f"v_cmp_ne_u64 vcc, s[{sTAG}:{sTAG+1}], {vr(vPD, 2)}\ns_cbranch_vccz .Lq{name}\ns_mov_b32 s62, {base}\ns_mov_b32 s63, 300000")
    q.label(f".Lp{name}")
    q(f"buffer_load_dwordx2 {vr(vPD, 2)}, v{voff}, {srd(SWS)}, s62 offen sc1", "nocount")
    q("s_waitcnt vmcnt(0)")
    q(f"v_cmp_ne_u64 vcc, s[{sTAG}:{sTAG+1}], {vr(vPD, 2)}")
    q(f"s_sub_u32 s63, s63, 1\ns_cbranch_scc1 .Lend\ns_cbranch_vccnz .Lp{name}")
    q.label(f".Lq{name}")
    return q.l
def flag_store(base, sidx, line):
    q = Seq()
    if line: q(f"s_lshl_b32 s62, s{sidx}, 2\ns_add_u32 s62, s62, s{sW}\ns_lshl_b32 s62, s62, 7")
    else: q(f"s_lshl_b32 s62, s{sidx}, 4\ns_add_u32 s62, s62, s{sW}\ns_lshl_b32 s62, s62, 3")
    q(f"s_add_u32 s62, s62, {base}")
    q(f"buffer_store_dwordx2 {vr(vTG, 2)}, off, {srd(SWS)}, s62 sc1", "flag")
    return q.l
def tag_issue():
    q = Seq()
    q(f"v_mov_b32 v{vTG}, 0")
    q(f"global_load_dwordx2 {vr(vTG, 2)}, v{vTG}, s[50:51] sc1", "tag")
    return q.l
def tag_check():
    q = Seq()
    q.wait(vm="tag")
    q(f"v_readfirstlane_b32 s{sTAG+1}, v{vTG+1}\ns_mov_b32 s63, 300000\ns_cmp_lg_u32 s{sTAG+1}, 0\ns_cbranch_scc1 .Ltag2")
    q.label(".Ltag")
    q(f"v_mov_b32 v{vTG}, 0")
    q(f"global_load_dwordx2 {vr(vTG, 2)}, v{vTG}, s[50:51] sc1", "nocount")
    q("s_waitcnt vmcnt(0)")
    q(f"v_readfirstlane_b32 s{sTAG+1}, v{vTG+1}")
    q(f"s_sub_u32 s63, s63, 1\ns_cbranch_scc1 .Lend\ns_cmp_eq_u32 s{sTAG+1}, 0\ns_cbranch_scc1 .Ltag")
    q.label(".Ltag2")
    q(f"v_readfirstlane_b32 s{sTAG}, v{vTG}")
    return q.l
```

```python
from g3a import *
import g3a

def g2_half(m, hf):
    g = m - 9
    if g < 5:
        ks = [4*g + 2*hf, 4*g + 2*hf + 1] if g < 4 else [16 + hf]
        return [((k - 4*g)*3 + t, AX + 8*t, k) for k in ks for t in range(3)]
    sec, j = divmod(g - 5, 3); A = AX if sec == 1 else AY
    return [((2*hf + h)*3 + i, A + 8*h, 6*j + 3*hf + i) for i in range(3) for h in range(2)]
def g2_rd(m, hf):
    return [I(f"ds_read_b128 {vr(FR + 24*hf + 4*q, 4)}, v{vL16} offset:{(m % NW)*WSL + f*1024}", f"f{m}_{hf}") for q, (f, A, k) in enumerate(g2_half(m, hf))]
def g2_mm(m, hf):
    out = []
    for q, (f, A, k) in enumerate(g2_half(m, hf)):
        for tt in range(2):
            d = vr(A + 4*tt, 4)
            out.append(I(f"{M16} {d}, {vr(FR + 24*hf + 4*q, 4)}, {ar((k*2 + tt)*4, 4)}, {d if k else 0}"))
    return out

def wsched(c):
    d = {}; m = 3
    for n in range(23):
        for h in range(2):
            l = []
            while m < 23 and m <= n - 1 + h + (NW if (n, h) <= (9, 0) else c.dep) and len(l) < (1 if m < 9 or m > 10 else 2):
                if m < 9 and (h == 0 or m > n + 3): break
                if m >= 9 and (n, h) < (c.s_pw, 1): break
                l.append(m); m += 1
            d[(n, h)] = l
    return d

def pass1(a, c, extra):
    ws = wsched(c)
    for s in range(9):
        a.wait(lg=[f"f{s}_0", f"xr{s}"])
        it = [(k // 2, r) for k, r in enumerate(rd_w(s, 1))]
        if s + 3 < 9: it += list(zip(c.gx, grp(dma_x(s + 3))))
        for m in ws[(s, 0)]: it += list(zip(c.gw, grp(dma_w(c, m))))
        it.append((5, [W(vm=[f"w{s+1}", f"x{s+1}"])] + ([patch(s + 1)] if s + 1 < 9 else [])))
        it += extra.get(2*s, [])
        it.sort(key=lambda x: x[0])
        a(put(mm(s, 0), it))
        a(extra.get(("pre", s), []))
        a.wait(lg=0)
        a("s_barrier")
        if c.stp & 1: stamp(a, c)
        if s < 8:
            fc = rd_w(s + 1, 0)
            fc = fc[:4] + rd_x(s + 1)[:2] + fc[4:] + rd_x(s + 1)[2:]
        else: fc = g2_rd(9, 0)
        it = [(k // 2, r) for k, r in enumerate(fc)]
        for i, m in enumerate(ws[(s, 1)]):
            it += list(zip(c.gw if len(ws[(s, 1)]) == 1 else [(1, 2, 4), (5, 7, 8)][i], grp(dma_w(c, m))))
        it += extra.get(2*s + 1, [])
        it.sort(key=lambda x: x[0])
        a(put(mm(s, 1), it))

def epi1():
    q = Seq()
    q(f"v_and_b32 v{vG1}, 16, v0\nv_cmp_eq_u32 vcc, 0, v{vG1}\ns_mul_i32 s63, s{sT}, 0x3f80")
    for h in range(5):
        for tt in range(2):
            d = ACC + (h*2 + tt)*4
            if h < 4:
                q(f"v_cvt_pk_bf16_f32 v{d}, v{d}, v{d+1}\nv_cvt_pk_bf16_f32 v{d+1}, v{d+2}, v{d+3}")
                q(f"ds_write_b64 v{vSA}, {vr(d, 2)} offset:{h*1280 + tt*256}")
            else:
                q(f"v_cvt_pk_bf16_f32 v{d+2}, v{d+2}, v{d+3}\nv_mov_b32 v{d+3}, s63")
                q(f"ds_write_b64 v{vST}, {vr(d+2, 2)} offset:{tt*128}")
    for i in range(5): q(f"ds_read_b128 {vr(ACC+4*i, 4)}, v{vSL} offset:{i*1024}")
    q(f"v_cndmask_b32 v{vG1}, v{ACC+36}, v{ACC+32}, vcc\nv_mul_f32 v{vG1}, 0xbfb8aa3b, v{vG1}\nv_exp_f32 v{vG1}, v{vG1}\nv_add_f32 v{vG1}, 1.0, v{vG1}\nv_rcp_f32 v{vG0}, v{vG1}\nv_sub_f32 v{vG1}, 1.0, v{vG0}")
    q(f"s_mul_i32 s63, s{sT}, {KV_KIND}\ns_mul_i32 s3, s{sG}, {2*KV_PAIR}\ns_add_u32 s63, s63, s3\ns_lshl_b32 s3, s{sR}, 2\ns_add_u32 s3, s3, s{sW}\ns_mul_i32 s3, s3, 2560\ns_add_u32 s63, s63, s3\ns_add_u32 s63, s63, {KVO}\ns_add_u32 s3, s63, {KV_PAIR+512}")
    for i in range(5):
        q(f"buffer_store_dwordx4 {vr(ACC+4*i, 4)}, v{vK2 if i == 2 else vL16}, {srd(SWS)}, {'s63' if i < 3 else 's3'} offen offset:{(i % 3)*1024} sc1", "st1")
    return q.l

def sout(A, blk, scale=False):
    q = Seq()
    for h in range(2):
        for tt in range(2):
            d = A + 8*h + 4*tt
            if scale:
                for i in (0, 2): q(f"v_pk_mul_f32 {vr(d+i, 2)}, {vr(d+i, 2)}, s[{sQS}:{sQS+1}] op_sel_hi:[1,0]")
            q(f"v_cvt_pk_bf16_f32 v{d}, v{d}, v{d+1}\nv_cvt_pk_bf16_f32 v{d+1}, v{d+2}, v{d+3}")
            q(f"ds_write_b64 v{vSA}, {vr(d, 2)} offset:{(blk + h)*1280 + tt*256}")
    return q.l
def tails():
    q = Seq()
    for tt in range(2):
        for h in range(2):
            d = AX + 16 + 4*tt + 2*h
            q(f"v_pk_mul_f32 {vr(d, 2)}, {vr(d, 2)}, {vr(vSC, 2)} op_sel_hi:[1,0]\nv_cvt_pk_bf16_f32 v{d}, v{d}, v{d+1}")
            q(f"ds_write2_b32 v{vTW+h}, v{d}, v{vONE} offset0:{32*tt} offset1:{32*tt+1}")
    return q.l

D2, D1, EM, PT = 160, 176, 192, 210
def phi(vT):
    BO = EM; T = PT
    q = Seq()
    q(f"ds_read_b128 {vr(BO, 4)}, v{vBL}\nds_read_b128 {vr(BO+4, 4)}, v{vBH}\nds_read_b64 {vr(BO+8, 2)}, v{vT}")
    q(f"v_mov_b32 v{BO+10}, 0\nv_mov_b32 v{BO+11}, 0")
    rd = q.l
    q = Seq()
    for s in range(3):
        q(f"{M32} {vr(D1, 16)}, {vr(WA1+4*s, 4)}, {vr(BO+4*s, 4)}, {vr(D1, 16) if s else 0}")
        q(f"{M32} {vr(D2, 16)}, {vr(WA2+4*s, 4)}, {vr(BO+4*s, 4)}, {vr(D2, 16) if s else 0}")
    mf = q.l
    q = Seq()
    P = [D1 + i for i in range(16)] + [D2 + 2, D2 + 3]
    E = [EM + i for i in range(18)]
    U = D2
    q(f"v_max3_f32 v{T}, v{P[0]}, v{P[1]}, v{P[2]}\nv_min3_f32 v{T+1}, v{P[0]}, v{P[1]}, v{P[2]}")
    for i in range(3, 17, 2): q(f"v_max3_f32 v{T}, v{T}, v{P[i]}, v{P[i+1]}\nv_min3_f32 v{T+1}, v{T+1}, v{P[i]}, v{P[i+1]}")
    q(f"v_max_f32 v{T}, v{T}, v{P[17]}\nv_min_f32 v{T+1}, v{T+1}, v{P[17]}")
    q(f"v_mul_f32 v{U}, s{sLE}, v{T+1}\nv_mul_f32 v{T}, s{sLE}, v{T}")
    for i in range(0, 18, 2):
        q(f"v_pk_fma_f32 {vr(E[i], 2)}, {vr(P[i], 2)}, s[{sLE}:{sLE+1}], {vr(U, 2)} op_sel_hi:[1,0,0] neg_lo:[1,0,0] neg_hi:[1,0,0]")
        q(f"v_pk_fma_f32 {vr(P[i], 2)}, {vr(P[i], 2)}, s[{sLE}:{sLE+1}], {vr(T, 2)} op_sel_hi:[1,0,0] neg_lo:[0,0,1] neg_hi:[0,0,1]")
    for R, S in ((E, T + 2), (P, T + 4)):
        for i in range(0, 18, 2):
            q(f"v_exp_f32 v{R[i]}, v{R[i]}\nv_exp_f32 v{R[i+1]}, v{R[i+1]}")
            if i == 4: q(f"v_pk_add_f32 {vr(S, 2)}, {vr(R[0], 2)}, {vr(R[2], 2)}")
            if i > 4: q(f"v_pk_add_f32 {vr(S, 2)}, {vr(S, 2)}, {vr(R[i-2], 2)}")
    for R, S in ((E, T + 2), (P, T + 4)):
        q(f"v_pk_add_f32 {vr(S, 2)}, {vr(S, 2)}, {vr(R[16], 2)}")
    for S in (T + 2, T + 4): q(f"v_add_f32 v{S}, v{S}, v{S+1}")
    for S in (T + 2, T + 4): q(f"v_rcp_f32 v{S}, v{S}")
    for sg, R, S in ((1, E, T + 2), (0, P, T + 4)):
        for i in range(9):
            q(f"v_pk_mul_f32 {vr(R[2*i], 2)}, {vr(R[2*i], 2)}, {vr(S, 2)} op_sel_hi:[1,0]\nv_cvt_pk_bf16_f32 v{R[i]}, v{R[2*i]}, v{R[2*i+1]}")
            if i == 3: q(f"ds_write_b128 v{vBL}, {vr(R[0], 4)} offset:{sg*5120}")
            if i == 7: q(f"ds_write_b128 v{vBH}, {vr(R[4], 4)} offset:{sg*5120}")
            if i == 8: q(f"ds_write_b32 v{vBT}, v{R[8]} offset:{sg*5120}")
    return rd, mf, q.l

def kvpart():
    D = D1
    rd = []; mf = []
    for b in range(4):
        for m in range(2):
            o = 144 + 8*(b*2 + m)
            for j in range(2):
                rd.append(I(f"ds_read_b64_tr_b16 {ar(o + 2*j, 2)}, v{AD + 2*m + j} offset:{b*SST}"))
                rd.append(I(f"ds_read_b64_tr_b16 {ar(o + 4 + 2*j, 2)}, v{AD + 4 + 2*m + j} offset:{b*SST}"))
            mf.append(I(f"{M32} {vr(D, 16)}, {ar(o, 4)}, {ar(o+4, 4)}, {vr(D, 16) if (b or m) else 0}"))
    q = Seq()
    for i in range(5): q(f"v_cvt_pk_bf16_f32 v{D+i}, v{D+2*i}, v{D+2*i+1}")
    g = Seq()
    g(f"s_lshl_b32 s62, s{sP}, 4\ns_add_u32 s62, s62, s{sR}\ns_lshl_b32 s62, s62, 2\ns_add_u32 s62, s62, s{sW}\ns_mul_i32 s3, s62, 768\ns_add_u32 s3, s3, {PARO}")
    g("s_mov_b32 exec_lo, 0xfffff\ns_mov_b32 exec_hi, 0xfffff")
    g(f"buffer_store_dwordx4 {vr(D, 4)}, v{vKS+1}, {srd(SWS)}, s3 offen sc1", "st2")
    g("s_mov_b32 exec_hi, 0")
    g(f"buffer_store_dword v{D+4}, v{vKS}, {srd(SWS)}, s3 offen offset:640 sc1", "st2")
    g("s_mov_b64 exec, -1")
    return rd, mf, q.l + [g.l]

def kv_dma(c):
    q = Seq()
    q(f"s_lshr_b32 s62, s{sW}, 1\ns_mul_i32 s62, s62, {KV_KIND}\ns_mul_i32 s63, s{sP}, {KV_PAIR}\ns_add_u32 s62, s62, s63\ns_add_u32 s62, s62, {KVO - 8*2560}")
    q(f"s_and_b32 s63, s{sW}, 1\ns_mul_i32 s63, s63, 6\ns_lshl_b32 s3, s{sR}, 2\ns_add_u32 s99, s63, s3\ns_mul_i32 s63, s99, 2560\ns_add_u32 s62, s62, s63")
    mksrd(q, SM, 52, 53, "s62", nrec=15360)
    q(f"s_mul_i32 s{sM0x}, s{sW}, 15360\ns_add_u32 s{sM0x}, s{sM0x}, {KVR}")
    pre = q.l; groups = []
    for g in range(3):
        for o, n in ((0, 2), (2048, 3)):
            q = Seq()
            if o == 0: q(f"s_cmp_ge_u32 s99, {8 - 2*g}\ns_cselect_b32 s{SM+2}, 15360, 0")
            q(f"s_add_u32 m0, s{sM0x}, {g*5120 + o}\ns_movk_i32 s19, {g*5120 + o}")
            for i in range(n):
                if i: q = Seq(); q(f"s_add_u32 m0, s{sM0x}, {g*5120 + o}")
                q(f"buffer_load_dwordx4 v{vL16}, {srd(SM)}, s19 offen offset:{i*1024} {c.ldpol} lds", "kv")
                groups.append(q.l)
    return pre, groups

def kv_ready():
    a = Seq()
    a.wait(vm="kv")
    a(f"s_cmp_ge_u32 s{sW}, 2\ns_cbranch_scc1 .Lmk2\ns_add_u32 s63, s99, 6\ns_min_u32 s63, s63, 8\ns_cmp_ge_u32 s99, 8\ns_cbranch_scc1 .Lmk2")
    a(f"v_and_b32 v60, 31, v0\nv_bfe_u32 v61, v0, 5, 1\nv_mul_u32_u24 v61, 1280, v61\nv_lshl_add_u32 v60, v60, 3, v61\nv_add_u32 v60, s{sM0x}, v60\nv_mov_b32 v61, 0xf149")
    a.label(".Lmk")
    a("ds_write_b16 v60, v61 offset:1028", "nocount")
    a("v_add_u32 v60, 2560, v60\ns_add_u32 s99, s99, 1\ns_cmp_lt_u32 s99, s63\ns_cbranch_scc1 .Lmk")
    a("s_waitcnt lgkmcnt(0)")
    a.label(".Lmk2")
    return a.l

WOE = [(8, ct) for ct in range(5)] + [(s, 4) for s in range(8)] + [(s, ct) for s in range(4) for ct in range(4)][:14]
WOL = [(s, ct) for s in range(8) for ct in range(4) if (s, ct) not in WOE]
def awo(s, ct): return 144 + 4*WOE.index((s, ct)) if (s, ct) in WOE else 4*WOL.index((s, ct))
APT = 72
def wo_loads(c, lst):
    out = []; cur = None
    def ld(sb, t):
        nonlocal cur
        out.append(I(t, "wo") if sb == cur else [I(f"s_add_u32 s101, s100, {sb*WOBLK}"), I(t, "wo")]); cur = sb
    for part in range(2):
        for s, ct in lst:
            if s == 8: ld(part, f"buffer_load_dwordx2 {ar(awo(s, ct) + 2*part, 2)}, v{VT if ct < 4 else VT4}, {srd(SWS)}, s101 offen offset:{ct*128} {c.ldpol}")
    for s, ct in sorted(lst):
        if s < 8: ld(s, f"buffer_load_dwordx4 {ar(awo(s, ct), 4)}, v{vL16 if ct < 4 else V4}, {srd(SWS)}, s101 offen offset:{(ct&3)*1024} {c.ldpol}")
    return out

def g2(a, c):
    side = [[] for _ in range(29)]; side2 = [[] for _ in range(29)]
    def spread(S, items, h0, h1):
        n = len(items)
        for k, it in enumerate(items): S[h0 + k * (h1 - h0) // n].append(it)
    e1 = epi1()
    spread(side, e1[:-5], 0, 3)
    side[c.h_f1].append([W(vm="st1")] + flag_store(F1, sL, False))
    rd, mf, sm = phi(vBT)
    spread(side, sout(AX, 0) + tails() + rd + mf, 10, 11)
    spread(side, sm, 11, 19)
    spread(side2, sout(AY, 2), 16, 17)
    krd, kmf, ks = kvpart()
    spread(side, krd, 19, 21); spread(side2, kmf, 20, 22); side2[21] += ks
    if c.h_f2 < 28: side[c.h_f2].append([W(vm="st2")] + flag_store(F2, sL, True))
    rd, mf, sm = phi(vBT2)
    spread(side, sout(AX, 0) + rd + mf, 22, 23)
    spread(side, sm[:len(sm) - c.phq], 23, 28)
    pre, kd = kv_dma(c)
    side2[c.h_kv - 2].append(poll_issue(vF1, F1, "f1") + pre)
    side2[c.h_kv].insert(0, poll_check(vF1, F1, "f1"))
    vm = [[] for _ in range(29)]
    ws = wsched(c)
    for m in range(9, 23):
        for hf in range(2):
            H = 2*(m - 9) + hf
            for n in ws[(m, hf)]:
                d = dma_w(c, n)
                for i in range(3): vm[H + (i + 1) // 3].append([d[0]] + d[1+i: 2+i if i < 2 else 9])
    spread(vm, kd, c.h_kv, c.h_kv + c.n_kv)
    for k, h in enumerate((3, 4, 4, 5, 6)): vm[h].append(e1[k-5])
    side2[23].append(poll_issue(vFO, F1, "fo"))
    for m in range(9, 23):
        for hf in range(2):
            H = 2*(m - 9) + hf
            mf = g2_mm(m, hf)
            rd = g2_rd(m, 1) if hf == 0 else g2_rd(m + 1, 0) if m < 22 else []
            it = [(k, r) for k, r in enumerate(rd)] + [((2*k + 1) * len(mf) // (2*len(vm[H])), x) for k, x in enumerate(vm[H])]
            for S in (side[H], side2[H]): it += [(k * len(mf) // len(S), x) for k, x in enumerate(S)]
            it.sort(key=lambda x: x[0])
            a(put(mf, it))
            if hf == 0:
                if m < 22: a.wait(vm=f"w{m+1}"); a.wait(lg=0 if (m in (18, 19) or c.dep == NW) else f"f{m}_0")
                else: a(poll_check(vFO, F1, "fo")); a(kv_ready())
                a("s_barrier")
                if c.stp & 2: stamp(a, c)
    a(sout(AY, 2, True))
    for hd in range(2):
        a(f"ds_read_b128 {vr(Q0 + 4*hd, 4)}, v{vQM} offset:{hd*1280}\nds_read_b64 {vr(QT + 2 + 4*hd, 2)}, v{vQT} offset:{hd*1024}")
    for r in (QT, QT+1, QT+4, QT+5, QT+8, QT+9): a(f"v_mov_b32 v{r}, 0")
    return sm[len(sm) - c.phq:]

Q0, QT, OB0, OB1, KM, KT, VV, MX = 10, 18, 28, 44, 60, 68, 76, 92
TL = 236
def ST(i): return 96 + 16*i
ORDER = [0, 8, 1, 2, 3, 4, 5, 6, 7]
def sdst(t): return OB1 if t == 0 else ST(0) if t == 8 else ST(t)
def k_rd(hd, n):
    t = ORDER[n]; o = t*2560 + hd*1280
    return [I(f"ds_read_b128 {vr(KM + 4*(n&1), 4)}, v{vKL} offset:{o}"),
            I(f"ds_read_b64 {vr(KT + 4*((n>>1)&1) + 2*(n&1), 2)}, v{vKT} offset:{o}")]
def qk(hd, n):
    d = vr(sdst(ORDER[n]), 16)
    return [I(f"{M32} {d}, {vr(KM + 4*(n&1), 4)}, {vr(Q0 + 4*hd, 4)}, 0"),
            I(f"{M32} {d}, {vr(KT + 4*((n>>1)&1), 4)}, {vr(QT + 4*hd + (0 if n & 1 else 2), 4)}, {d}")]
def merge(): return [I(f"v_cndmask_b32 v{ST(0)+r}, v{OB1+r}, v{ST(0)+r}, s[{64+2*r}:{65+2*r}]") for r in range(16)]
def mx(i):
    out = []
    for j in range(8):
        m = MX + (j & 1); x = ST(i) + 2*j
        if i == 0 and j < 2: out.append(I(f"v_max_f32 v{m}, v{x}, v{x+1}"))
        else: out.append(I(f"v_max3_f32 v{m}, v{m}, v{x}, v{x+1}"))
    return out
def mx_fin():
    q = Seq()
    q(f"v_max_f32 v{MX}, v{MX}, v{MX+1}\nv_mov_b32 v{MX+1}, v{MX}\nv_permlane32_swap_b32 v{MX}, v{MX+1}\nv_max_f32 v{MX}, v{MX}, v{MX+1}")
    q(f"v_and_b32 v{MX+1}, 0xffff0000, v{MX}\nv_sub_f32 v{MX}, v{MX+1}, v{MX}\nv_cvt_pk_bf16_f32 v{CM}, -v{MX+1}, v{MX}")
    return q.l
def sub(i):
    d = vr(ST(i), 16)
    return I(f"{M32} {d}, {vr(CM+2, 4)}, {vr(CM, 4)}, {d}")
def ex(i):
    out = []; b = ST(i)
    for j in range(8):
        out += [I(f"v_exp_f32 v{b+2*j}, v{b+2*j}"), I(f"v_exp_f32 v{b+2*j+1}, v{b+2*j+1}")]
        if j: out.append(I(f"v_cvt_pk_bf16_f32 v{b+j-1}, v{b+2*j-2}, v{b+2*j-1}"))
    out.append(I(f"v_cvt_pk_bf16_f32 v{b+7}, v{b+14}, v{b+15}"))
    if i == 0:
        for j in range(8): out.append(I(f"v_and_b32 v{b+8+j}, v{PM+j}, v{b+j}"))
        for j in range(8): out.append(I(f"v_xor_b32 v{b+j}, v{b+8+j}, v{b+j}"))
    return out
def v_rd(hd, n):
    t = ORDER[n]
    return [I(f"ds_read_b64_tr_b16 {vr(VV + 8*(n&1) + 2*i, 2)}, v{vTR+i} offset:{t*2560 + hd*1280}") for i in range(4)]
def pv(hd, n):
    t = ORDER[n]; o = vr(OB0 if hd == 0 else OB1, 16)
    p = ST(0) if t == 0 else ST(0) + 8 if t == 8 else ST(t)
    return [I(f"{M32} {o}, {vr(VV + 8*(n&1), 4)}, {vr(p, 4)}, {o if n else 0}"),
            I(f"{M32} {o}, {vr(VV + 8*(n&1) + 4, 4)}, {vr(p + 4, 4)}, {o}")]
def fin(u, O, c):
    q = Seq(); t = O + 10
    if u >= 2: q(f"v_add_f32 v{t}, 0x358637bd, v{t}")
    q(f"v_rcp_f32 v{t}, v{t}\nv_mul_f32 v{t}, v{vG0 if u >= 2 else vG1}, v{t}")
    for i in range(5):
        q(f"v_pk_mul_f32 {vr(O+2*i, 2)}, {vr(O+2*i, 2)}, {vr(t, 2)} op_sel_hi:[1,0]\nv_cvt_pk_bf16_f32 v{O+12+i if i < 4 else TL+u}, v{O+2*i}, v{O+2*i+1}")
    q(f"buffer_store_dwordx4 {vr(O+12, 4)}, v{vOA}, {srd(SWS)}, s{sOA} offen offset:{u*512} sc1", "st3")
    return q.l
def par_loads(c):
    q = Seq(); VP = 245
    q(f"s_lshl_b32 s62, s{sP}, 6\ns_add_u32 s62, s62, s{sW}\ns_mul_i32 s99, s62, 768\ns_add_u32 s99, s99, {PARO}\nv_min_u32 v{VP}, {44*16}, v{vL16}")
    out = [q.l]
    for r in range(16):
        out.append([I(f"buffer_load_dwordx4 {ar(APT + 4*r, 4)}, v{VP}, {srd(SWS)}, s99 offen {c.ldpol}", "pl"), I("s_add_u32 s99, s99, 3072")])
    return out
def kvsum():
    q = Seq(); ID = Q0; t = Q0 + 4
    q(f"v_bfe_u32 v{t}, v0, 3, 2\nv_bfe_u32 v{t+1}, v0, 1, 1\nv_lshl_add_u32 v{t}, v{t}, 1, v{t+1}")
    q(f"v_and_b32 v{t+1}, 1, v0\nv_lshlrev_b32 v{t+1}, 4, v{t+1}\nv_mov_b32 v{t+2}, 0x3f80\nv_lshlrev_b32 v{t+1}, v{t+1}, v{t+2}")
    q(f"v_bfe_u32 v{t+2}, v0, 2, 1\nv_bfe_u32 v{t+3}, v0, 5, 1\nv_cmp_eq_u32 vcc, v{t+2}, v{t+3}\nv_cndmask_b32 v{t+1}, 0, v{t+1}, vcc")
    for i in range(4): q(f"v_cmp_eq_u32 vcc, {i}, v{t}\nv_cndmask_b32 v{ID+i}, 0, v{t+1}, vcc")
    pre = [q.l]
    o = vr(OB0, 16)
    mf = [I(f"{M32} {o}, {vr(ID, 4)}, {ar(APT + 4*r, 4)}, {o if r else 0}") for r in range(16)]
    q = Seq()
    q(f"s_lshl_b32 s62, s{sW}, 10\ns_add_u32 s62, s62, {KVS}\nv_add_u32 v{t}, s62, v{vL16}")
    for i in range(4): q(f"v_cvt_pk_bf16_f32 v{OB0+i}, v{OB0+2*i}, v{OB0+2*i+1}")
    q(f"ds_write_b128 v{t}, {vr(OB0, 4)}")
    return pre, mf, q.l
def a_apply(T, O):
    q = Seq(); t = Q0
    q(f"v_and_b32 v{t}, 31, v0\nv_and_b32 v{t+1}, 19, v0\nv_cmp_gt_u32 vcc, 16, v{t}\nv_cndmask_b32 v{t}, v{t+1}, v{t}, vcc\nv_bfe_u32 v{t+1}, v0, 5, 1")
    q(f"v_mul_u32_u24 v{t+2}, 320, v{t+1}\nv_lshl_add_u32 v{t+2}, v{t}, 4, v{t+2}\nv_add_u32 v{t+2}, {KVS}, v{t+2}")
    q(f"v_lshlrev_b32 v{t+3}, 11, v{t+1}\nv_lshl_add_u32 v{t+3}, v{t}, 2, v{t+3}\nv_add_u32 v{t+3}, {KVS + 640}, v{t+3}")
    q(f"s_mul_i32 s62, s{sW}, 5120\ns_add_u32 s62, s62, {STG - KVR}\nv_add_u32 v{t}, s62, v{vKL}\nv_mul_u32_u24 v{t+1}, 5120, v{t+1}\nv_add3_u32 v{t+1}, v{t+1}, s62, v{vKT}")
    for hd in range(2):
        b = T + 24*hd
        q(f"ds_read_b128 {vr(b+14, 4)}, v{t} offset:{hd*1280}\nds_read_b128 {vr(b+18, 4)}, v{t} offset:{5120 + hd*1280}\nds_read_b32 v{b+12}, v{t+1} offset:{hd*1280}")
        for r in (9, 10, 11, 13): q(f"v_mov_b32 v{b+r}, 0")
    pre = q.l
    q = Seq()
    for hd in range(2):
        b = T + 24*hd
        q(f"ds_read_b128 {vr(b, 4)}, v{t+2} offset:{hd*1024}\nds_read_b128 {vr(b+4, 4)}, v{t+2} offset:{2048 + hd*1024}\nds_read_b32 v{b+8}, v{t+3} offset:{hd*1024}")
    for hd in range(2):
        b = T + 24*hd; o = vr(O[hd], 16)
        q(f"{M32} {o}, {vr(b, 4)}, {vr(b+14, 4)}, 0\n{M32} {o}, {vr(b+4, 4)}, {vr(b+18, 4)}, {o}\n{M32} {o}, {vr(b+8, 4)}, {vr(b+12, 4)}, {o}")
    return pre, q.l

def attention(a, c, rest):
    ld = wo_loads(c, WOE[:13])
    wl = wo_loads(c, WOE[13:] + WOL)
    a(k_rd(0, 0) + k_rd(0, 1) + [k_rd(0, 2)[1], k_rd(0, 3)[1]])
    k = len(rest) // 2
    a(rest[:k]); rest = rest[k:]
    if c.stp & 4: stamp(a, c)
    for n in range(9):
        a(qk(0, n))
        if n + 2 < 9: a(k_rd(0, n + 2)[:1 if n < 2 else 2])
        for _ in range(3):
            if ld: a(ld.pop(0))
        if n < 3: a(rest[n*len(rest)//3: (n+1)*len(rest)//3])
        if n == 3: a(merge())
        if n >= 4: a(mx(n - 4))
        if n == c.h_f2 - 28: a([W(vm="st2")] + flag_store(F2, sL, True))
    a(k_rd(1, 0) + k_rd(1, 1) + v_rd(0, 0) + v_rd(0, 1))
    a(qk(1, 0))
    for i in range(5, 8): a(mx(i))
    ld = wl[:2*c.f2n - 1] + [poll_issue(vF2, F2, "f2")] + wl[2*c.f2n - 1: 2*c.f2n + 3]
    ld += [poll_check(vF2, F2, "f2")] + par_loads(c) + wl[2*c.f2n + 3:]
    stamp(a, c)
    for hd in range(2):
        a(mx_fin())
        a(sub(0)); a(sub(1))
        if hd == 1:
            kpre, kmf, kfin = kvsum()
            a(fin(0, OB0, c)); a(kpre)
        for i in range(9):
            main = ex(i) if i < 8 else []
            fill = []
            if i + 2 < 8: fill.append(sub(i + 2))
            if i >= 1:
                ns = [0, 1] if i == 1 else [i]
                for n in ns:
                    fill += pv(hd, n)
                    if n + 2 < 9: fill += v_rd(hd, n + 2)
                if hd == 0:
                    fill += qk(1, i)
                    if i + 1 < 9: fill += k_rd(1, i + 1)
                    if i == 3: main += merge()
                    if i >= 4: main += mx(i - 4)
            if hd == 1 and 2 <= i <= 5: fill += kmf[4*(i-2): 4*i-4]
            if hd == 1 and i == 7: main += kfin
            for _ in range(3 if i else 2):
                if ld: fill.append(ld.pop(0))
            if main: a(weave(main, fill))
            else: a(fill)
        if hd == 0:
            a(v_rd(1, 0) + v_rd(1, 1))
            for i in range(5, 8): a(mx(i))
        stamp(a, c)
    assert not ld
    apre, amf = a_apply(ST(2), [ST(0), ST(1)])
    a(apre)
    a.wait(lg=0); a("s_barrier")
    a(amf)
    a(fin(1, OB1, c))
    a(fin(2, ST(0), c)); a(fin(3, ST(1), c))
    a(f"s_mov_b32 exec_hi, 0\nbuffer_store_dwordx4 {vr(TL, 4)}, v{vOT}, {srd(SWS)}, s{sOT} offen sc1\ns_mov_b32 exec_hi, -1", "st3")
    a.wait(vm="st3")
    a(flag_store(F3, sL, True))

def p3(a, c):
    OP, AC = 0, 144
    V1, V2, VW, VO = 236, 237, 238, 241
    a(poll_issue(vF3, F3, "f3"))
    a(f"v_add_u32 v{V1}, 4096, v{vL16}\nv_add_u32 v{V2}, 8192, v{vL16}")
    for tt in range(4):
        a(f"s_add_u32 s62, s{sW}, {tt}\ns_and_b32 s62, s62, 3")
        if tt: a(f"s_mul_i32 s63, s62, 15360\ns_add_u32 s63, s63, {(tt-1)*5120}\nv_add_u32 v{VW+tt-1}, s63, v{vL16}")
        a(f"s_lshl_b32 s63, s{sRT}, 2\ns_add_u32 s62, s62, s63\ns_mul_i32 s62, s62, 36864\ns_mul_i32 s63, s{sW}, 9216\ns_add_u32 s62, s62, s63\ns_add_u32 s{64+tt}, s62, {OPO}")
    a(f"v_and_b32 v{VO}, 15, v0\nv_mul_u32_u24 v{VO}, 1152, v{VO}\nv_bfe_u32 v{VO+1}, v0, 4, 1\nv_lshl_add_u32 v{VO+1}, v{VO+1}, 3, v{VO}\nv_and_b32 v254, 48, v0\nv_add_u32 v{VO}, v254, v{VO}")
    a(f"s_lshl_b32 s62, s{sRT}, 2\ns_add_u32 s62, s62, s{sW}\ns_mul_i32 s62, s62, {16*1152}\ns_mul_i32 s63, s{sCB}, 144\ns_add_u32 s68, s62, s63")
    a(f"s_mul_i32 s62, s{sW}, 15360\nv_add_u32 v254, s62, v{vL16}")
    mksrd(a, SM, 48, 49, nrec=2048*1152)
    a(poll_check(vF3, F3, "f3"))
    stamp(a, c)
    for s in range(9):
        for tt in range(4):
            a(f"buffer_load_dwordx4 {vr(OP + (s*4 + tt)*4, 4)}, v{[vL16, V1, V2][s >> 2]}, {srd(SWS)}, s{64+tt} offen offset:{(s & 3)*1024} {c.ldpol}")
    for s in range(9):
        for tt in ([0, 1, 2, 3] if s < 8 else [1, 2, 3, 0]):
            for ct in range(5):
                d = vr(AC + (tt*5 + ct)*4, 4)
                a(f"{M16} {d}, {ar(awo(s, ct), 4)}, {vr(OP + (s*4 + tt)*4, 4)}, {d if s else 0}")
    stamp(a, c)
    for tt in range(1, 4):
        for ct in range(5): a(f"ds_write_b128 v{VW+tt-1}, {vr(AC + (tt*5 + ct)*4, 4)} offset:{ct*1024}")
    a.wait(lg=0); a("s_barrier")
    for ct in range(5):
        for sl in range(3): a(f"ds_read_b128 {vr((ct*3 + sl)*4, 4)}, v254 offset:{sl*5120 + ct*1024}")
    for ct in range(5):
        d = AC + ct*4; b = ct*12
        for i in (0, 2): a(f"v_pk_add_f32 {vr(d+i, 2)}, {vr(d+i, 2)}, {vr(b+i, 2)}\nv_pk_add_f32 {vr(b+4+i, 2)}, {vr(b+4+i, 2)}, {vr(b+8+i, 2)}")
        for i in (0, 2): a(f"v_pk_add_f32 {vr(d+i, 2)}, {vr(d+i, 2)}, {vr(b+4+i, 2)}")
        a(f"v_cvt_pk_bf16_f32 v{64+2*ct}, v{d}, v{d+1}\nv_cvt_pk_bf16_f32 v{65+2*ct}, v{d+2}, v{d+3}")
        if ct in (1, 3): a(f"buffer_store_dwordx4 {vr(64 + 2*(ct-1), 4)}, v{VO}, {srd(SM)}, s68 offen offset:{32*(ct-1)}")
        if ct == 4: a(f"s_mov_b32 exec_hi, 0\nbuffer_store_dwordx2 {vr(72, 2)}, v{VO+1}, {srd(SM)}, s68 offen offset:128\ns_mov_b32 exec_hi, -1")

def finish(a, c):
    stamp(a, c)
    if c.stamps:
        a(f"s_cmp_lg_u32 s{sW}, 0\ns_cbranch_scc1 .Lend\ns_lshl_b32 s62, s2, 7\nv_lshrrev_b32 v4, 2, v{vL16}\ns_mov_b64 exec, 0xffffffff")
        a(f"buffer_store_dword v{vSTAMP}, v4, {srd(SWS)}, s62 offen")
    a.label(".Lend")
    a("s_endpgm")
    a.label(".Lcodeend")

def build(c, path):
    a = Seq(); nst[0] = 0
    prologue(a, c)
    setup1(a, c)
    setup2(a, c)
    a(dma_x(1)); a(dma_w(c, 1))
    if c.pst: stamp(a, c)
    a.wait(vm=["w0", "x0", "ga"])
    if c.pst: stamp(a, c)
    for s in range(9): a(f"ds_read_u16 v{vGA+s}, v{vMD+3} offset:{32*s}", f"g{s}")
    a(rd_x(0)); a(dma_x(2)); a.wait(lg="g0")
    a(patch(0)); a.wait(lg=0); a("s_barrier")
    stamp(a, c)
    a(rd_w(0, 0)); a(dma_w(c, 2))
    ex = {}
    def add(k, v, pos=9): ex.setdefault(k, []).append(flat(v) if isinstance(k, tuple) else (pos, flat(v)))
    p1, p2 = producer(c)
    add(c.s_prod, p1, 0); add(c.s_prod, p2, 4)
    add(c.s_fw - 2, tag_issue())
    add(c.s_fw, tag_check() + [W(vm="stp")] + flag_store(FW, sL, False))
    add(2*c.s_pw - 1, poll_issue(vFW, FW, "fw"))
    add(("pre", c.s_pw), poll_check(vFW, FW, "fw"))
    add(2*c.s_wo, wo_dma())
    add(("pre", c.s_wo + 2), [W(vm="wos")])
    p1, p2 = wo_repack()
    add(2*c.s_wo + 5, p1, 7); add(2*c.s_wo + 6, p2, 9)
    add(2*c.s_wo + 7, wa_load())
    q = Seq(); setup3(q, c); add(15, q.l)
    pass1(a, c, ex)
    stamp(a, c)
    b = Seq()
    rest = g2(b, c)
    attention(b, c, rest)
    a(sched(b.l, c.sch, "g2+att", c.beta / 100) if c.sch else b.l)
    stamp(a, c)
    p3(a, c)
    finish(a, c)
    open(path, "w").write(wrap(finalize(a.l, True), LDS_TOTAL))

if __name__ == "__main__":
    c = Cfg()
    path = sys.argv[1]
    for kv in sys.argv[2:]:
        k, v = kv.split("=")
        setattr(c, k, type(getattr(c, k))(int(v)) if not isinstance(getattr(c, k), str) else v)
    build(c, path)
```

```python
import sys
sys.path.insert(0, "work")
from fw import *

class Cfg:
    stop = 99
    stamps = True
    ldpol = "sc1"
    rotmod = 9
    stag = 0x7520
    o1 = 'pr'
    o2 = 'x1,w1'
    o2b = 'tag,x2'
    o3 = 'w2'
    p_pr = 0
    s_rp = 11
    fl = 1
    g3f = 1
    nwg = 256
    px = '1368'
    pw = 'cfi'
    pw2 = '258124578'
    pv = 5
    exp = 0
    m44 = 0
    wol = 0
    h_fo = 13
    s_wa = 9
    x2l = 0
    stp = 0
    pst = 0
    gx = (1, 3, 6, 8)
    gw = (2, 5, 8)
    sch = 32
    beta = 50
    s_prod = 0
    s_fw = 3
    s_pw = 6
    s_wo = 3
    h_f1 = 10
    h_kv = 16
    n_kv = 7
    h_f2 = 27
    phq = 60
    tlb = 0
    dep = 4
    f2n = 2
NW = 5
F1, FW, F3, F2, FO, F3B = 0x60000, 0x80000, 0x20000, 0x40000, 0xA0000, 0xC0000
KVO, PKO, PARO, WOO, OPO = 0x100000, 0x600000, 0x8A0000, 0x960000, 0xAB0000
KV_PAIR, KV_KIND = 163840, 2621440
WOBLK = 5248
PSEC = 72 * 1152
WSL = 12416
KVR = 62080
XR = KVR
WOS = KVR + 49152
STG = KVR + 61440
SST = 7680
WPH = STG + 4 * SST
KVS = WPH + 4096
LDS_TOTAL = KVS + 4096
SX, SW1, SPK, SPS, SWS, SM = 4, 8, 12, 92, 20, 24
sW, sR, sG, sT = 28, 29, 30, 31
sKA, sKP, sLE, sQS = 32, 37, 46, 18
sL, sM0x, sM0w1, sM0w2 = 54, 55, 56, 57
sTAG = 58
sKX, sKW = 64, 73
sCB, sRT, sP = 96, 97, 98
sOA, sOT = 16, 17
def srd(n): return f"s[{n}:{n+3}]"
def vr(n, k): return f"v[{n}:{n+k-1}]"
def ar(n, k): return f"a[{n}:{n+k-1}]"
vL = 1
PM = 2
vX, vXR, vW1, vWA1, vWT1, vPAT, vGA = 10, 14, 16, 19, 20, 21, 22
vPK, vPS, vSA, vST, vSL, vK2, vF1 = 31, 34, 35, 36, 37, 38, 39
vKS = 10
AX, WA1, WA2, AD, FR, AY, ACC = 40, 64, 76, 88, 96, 144, 160
vPR1, vPR3, vPS3, vRP, vMD, vP4, vWP, vWP2, vWM = 200, 201, 203, 204, 207, 211, 212, 213, 214
vTW, vSC, V4, VT, VT4, vFW, vFO = 216, 218, 219, 220, 221, 222, 223
vL16, vG0, vG1, vTR = 224, 225, 226, 227
vBL, vBH, vBT, vKL, vKT = 231, 232, 233, 234, 235
vBT2, vQM, vQT, vONE = 236, 237, 238, 239
vOA, vOT, vF2, vF3, vPD, vTG, CM, vSTAMP = 240, 241, 242, 243, 244, 246, 248, 255
fT, fKG, fH, fKL, fRR, fC, fC0, fC1, fQ = range(144, 153)
M32 = "v_mfma_f32_32x32x16_bf16"
M16 = "v_mfma_f32_16x16x32_bf16"

nst = [0]
def stamp(a, c):
    if not c.stamps: return
    a("s_memrealtime s[60:61]")
    a.wait(lg=0)
    a(f"v_writelane_b32 v{vSTAMP}, s60, {nst[0]}")
    nst[0] += 1

def lin(a, dst, terms, const=None):
    first = True
    for f, m in terms:
        if first:
            a(f"v_mul_u32_u24 v{dst}, {m}, v{f}")
            if not (const is None or const == 0): a(f"v_add_u32 v{dst}, {const}, v{dst}")
            first = False
        else:
            if 0 <= m <= 64: a(f"v_mad_u32_u24 v{dst}, v{f}, {m}, v{dst}")
            else:
                a(f"s_movk_i32 s63, {m}" if m < 32768 else f"s_mov_b32 s63, {m}")
                a(f"v_mad_u32_u24 v{dst}, v{f}, s63, v{dst}")

def mksrd(a, n, lo, hi, off=None, nrec=0x7fffffff):
    if off is None: a(f"s_mov_b32 s{n}, s{lo}\ns_mov_b32 s{n+1}, s{hi}")
    else: a(f"s_add_u32 s{n}, s{lo}, {off}\ns_addc_u32 s{n+1}, s{hi}, 0")
    a(f"s_mov_b32 s{n+2}, {nrec}\ns_mov_b32 s{n+3}, 0x20000")

def dma_x(s):
    q = Seq()
    q(f"s_add_u32 m0, s{sM0x}, {(s % 3) * 16384}")
    for i in range(4):
        q(f"buffer_load_dwordx4 v{vX+i}, {srd(SX)}, s{sKX+s} offen offset:{i*1024} lds", f"x{s}")
    return q.l
def dma_w(c, n):
    q = Seq()
    q(f"s_add_u32 m0, s{sM0w1 if n < 9 else sM0w2}, {(n % NW) * WSL}")
    for i in range(3):
        if n < 9: q(f"buffer_load_dwordx4 v{vW1+i}, {srd(SW1)}, s{sKW+n} offen offset:{i*1024} lds", f"w{n}")
        elif n < 14: q(f"buffer_load_dwordx4 v{vPK+i}, {srd(SPK)}, s{sKA+n-9} offen offset:{i*1024} {c.ldpol} lds", f"w{n}")
        else: q(f"buffer_load_dwordx4 v{vPS}, {srd(SPK)}, s{sKP+3*((n-14)%3)+i} offen offset:{i*1024} {c.ldpol} lds", f"w{n}")
    if n in (16, 19): q(f"v_add_u32 v{vPS}, {PSEC}, v{vPS}")
    return q.l
def rd_w(n, ks):
    base = (n % NW) * WSL; out = []
    for h in range(5):
        for j in range(2):
            ad = vWA1 if h < 4 else vWT1; off = base + ks * 6208 + j * 768 + (h * 48 if h < 4 else 0)
            out.append(I(f"ds_read_b64_tr_b16 {vr(FR + ks*24 + h*4 + j*2, 2)}, v{ad} offset:{off}", f"f{n}_{ks}"))
    return out
def rd_x(s):
    return [I(f"ds_read_b128 {ar((s*4 + ks*2 + tt)*4, 4)}, v{vXR+ks} offset:{(s%3)*16384 + tt*2048}", f"xr{s}") for ks in range(2) for tt in range(2)]
def mm(s, ks):
    out = []
    for h in range(5):
        for tt in range(2):
            d = vr(ACC + (h*2 + tt)*4, 4)
            out.append(I(f"{M16} {d}, {vr(FR + ks*24 + h*4, 4)}, {ar((s*4 + ks*2 + tt)*4, 4)}, {0 if (s == 0 and ks == 0) else d}"))
    return out
def patch(s): return I(f"ds_write_b16 v{vPAT}, v{vGA+s} offset:{(s % NW) * WSL}", "pat")

def pr_dma():
    q = Seq()
    q("s_mov_b32 m0, s91")
    for i in range(4): q(f"buffer_load_dwordx4 v{vW1+i if i < 3 else vP4}, {srd(SPS)}, 0 offen offset:{i*1024} lds", "pr")
    return q.l
def issue(a, c, o):
    for t in o.split(","):
        if t == "pr": a(pr_dma())
        elif t == "tag": a(tag_issue())
        elif t == "wo": a(wo_dma())
        elif t and t[0] == "x": a(dma_x(int(t[1])))
        elif t and t[0] == "w": a(dma_w(c, int(t[1])))

def prologue(a, c):
    a("s_getpc_b64 s[60:61]")
    a("s_load_dwordx16 s[32:47], s[0:1], 0\ns_load_dwordx4 s[48:51], s[0:1], 64\ns_load_dwordx2 s[52:53], s[0:1], 80")
    a(f"s_memrealtime s[{sTAG}:{sTAG+1}]")
    a(f"s_cmp_ge_u32 s2, {c.nwg}\ns_cbranch_scc1 .Lend")
    a(f"v_lshrrev_b32 v2, 6, v0\nv_and_b32 v{vL}, 63, v0")
    a(f"v_readfirstlane_b32 s{sW}, v2")
    a("s_lshr_b32 s3, s2, 3")
    a(f"s_and_b32 s62, s3, 7\ns_lshl_b32 s62, s62, 13\nv_and_b32 v{fT}, 15, v0\nv_lshlrev_b32 v3, 7, v{fT}\nv_lshl_add_u32 v3, v2, 11, v3\nv_add_u32 v3, s62, v3")
    a(f"v_min_u32 v3, .Lcodeend-{KN}-8, v3")
    a("global_load_dword v9, v3, s[60:61]", "pf")
    if c.m44:
        a(f"s_and_b32 s62, s2, 3\ns_and_b32 s63, s3, 3\ns_lshl2_add_u32 s{sR}, s62, s63")
        a(f"s_and_b32 s62, s2, 4\ns_bfe_u32 s{sG}, s3, 0x20002\ns_or_b32 s{sG}, s{sG}, s62\ns_lshr_b32 s{sT}, s3, 4")
        a(f"s_lshl_b32 s62, s63, 2\ns_lshr_b32 s62, {c.stag}, s62\ns_and_b32 s62, s62, 15\ns_lshr_b32 s63, s3, 2\ns_add_u32 s62, s62, s63\ns_sub_u32 s63, s62, 9\ns_cselect_b32 s62, s62, s63")
    else:
        a(f"s_and_b32 s62, s2, 1\ns_lshl_b32 s62, s62, 3\ns_and_b32 s{sR}, s3, 7\ns_or_b32 s{sR}, s{sR}, s62")
        a(f"s_and_b32 s62, s2, 6\ns_bfe_u32 s{sG}, s3, 0x10003\ns_or_b32 s{sG}, s{sG}, s62\ns_lshr_b32 s{sT}, s3, 4")
    if c.m44: pass
    elif c.stag == 0:
        m, sh = magic_div(c.rotmod, 32)
        a(f"s_mul_i32 s62, s3, {m}\ns_lshr_b32 s62, s62, {sh}\ns_mul_i32 s62, s62, {c.rotmod}\ns_sub_u32 s62, s3, s62")
    else:
        a(f"s_lshr_b32 s62, s3, 1\ns_and_b32 s62, s62, 12\ns_lshr_b32 s62, {c.stag}, s62\ns_and_b32 s62, s62, 15\ns_and_b32 s63, s3, 7\ns_add_u32 s62, s62, s63\ns_sub_u32 s63, s62, 9\ns_cselect_b32 s62, s62, s63")
    a(f"s_lshl_b32 s{sKX}, s62, 7\ns_mul_i32 s{sKW}, s62, 221184")
    a(f"v_lshrrev_b32 v{fKG}, 4, v{vL}\nv_and_b32 v4, 7, v0\nv_xor_b32 v4, v4, v{fKG}\nv_lshlrev_b32 v4, 4, v4\nv_xor_b32 v5, 64, v4")
    a(f"v_lshrrev_b32 v6, 3, v{vL}\nv_lshl_add_u32 v6, v2, 5, v6\nv_mul_u32_u24 v6, 1152, v6")
    a(f"v_add_u32 v{vX}, v6, v4\nv_add_u32 v5, v6, v5\nv_add_u32 v{vX+1}, 8192, v5\nv_add_u32 v{vX+2}, 16384, v{vX}\nv_add_u32 v{vX+3}, 24576, v5")
    a(f"s_lshr_b32 s62, s{sW}, 1\ns_lshl_b32 s62, s62, 2\ns_and_b32 s63, s{sW}, 1\ns_add_u32 s89, s62, s63\ns_mul_i32 s99, s89, {8*3456}")
    m12, s12 = magic_div(12, 192); m3, s3 = magic_div(3, 12)
    for i in range(3):
        a(f"v_add_u32 v4, {64*i}, v{vL}\nv_mul_u32_u24 v5, {m12}, v4\nv_lshrrev_b32 v5, {s12}, v5")
        a(f"v_mad_i32_i24 v4, v5, -12, v4\nv_mul_u32_u24 v6, {m3}, v4\nv_lshrrev_b32 v6, {s3}, v6")
        a(f"v_mad_i32_i24 v4, v6, -3, v4\nv_lshlrev_b32 v4, 4, v4\nv_min_u32 v4, 20, v4\nv_mad_u32_u24 v4, v6, 36, v4")
        a(f"v_and_b32 v6, 8, v5\nv_add_u32 v5, v5, v6\nv_mul_u32_u24 v5, 3456, v5\nv_add3_u32 v{vW1+i}, v4, v5, s99")
        if i: a(f"v_subrev_u32 v{vW1+i}, {1024*i}, v{vW1+i}")
    a(f"s_lshl_b32 s{sM0x}, s{sW}, 12\ns_add_u32 s{sM0x}, s{sM0x}, {XR}\ns_mul_i32 s{sM0w1}, s{sW}, 3104\ns_mul_i32 s{sM0w2}, s{sW}, 3072")
    a(f"s_mul_i32 s62, s{sR}, {128*1152}\ns_mul_i32 s90, s{sG}, 144\ns_mul_i32 s3, s{sT}, 1152\ns_add_u32 s63, s90, s3\ns_add_u32 s63, s63, 1152")
    a.wait(lg=0)
    mksrd(a, SX, 32, 33, "s62"); mksrd(a, SW1, 42, 43, "s63")
    if c.stamps: a(f"v_writelane_b32 v{vSTAMP}, s{sTAG}, 0"); nst[0] = 1
    a(f"s_or_b32 s62, s2, s{sW}\ns_cbranch_scc1 .Lnotag")
    a(f"s_bitset1_b32 s{sTAG+1}, 31\nv_mov_b32 v4, s{sTAG}\nv_mov_b32 v5, s{sTAG+1}\nv_lshlrev_b32 v6, 3, v{fT}")
    a("global_store_dwordx2 v6, v[4:5], s[50:51] sc1", "nocount")
    a.label(".Lnotag")
    a(dma_x(0)); a(dma_w(c, 0))
    kn = lambda s: f"s_add_u32 s{sKX+s}, s{sKX+s-1}, 128\ns_cmp_eq_u32 s{sKX+s}, 1152\ns_cselect_b32 s{sKX+s}, 0, s{sKX+s}\ns_mul_i32 s{sKW+s}, s{sKX+s}, 1728"
    a(kn(1))
    if "x1" in c.o1: a(dma_x(1))
    if c.pst: stamp(a, c)
    mksrd(a, SM, 46, 47, nrec=1152)
    a(f"s_lshr_b32 s62, s{sW}, 1\ns_lshl_b32 s62, s62, 6\ns_and_b32 s63, s{sW}, 1\ns_lshl_b32 s63, s63, 4\ns_add_u32 s62, s62, s63\ns_lshl_b32 s88, s{sW}, 10\ns_add_u32 m0, s88, {KVS}")
    a(f"v_lshrrev_b32 v4, 1, v{vL}\nv_lshl_add_u32 v4, v4, 7, s{sKX}\nv_subrev_u32 v5, 1152, v4\nv_min_u32 v4, v4, v5\nv_and_b32 v5, 1, v0\nv_lshl_add_u32 v4, v5, 5, v4")
    a(f"buffer_load_dwordx4 v4, {srd(SM)}, s62 offen lds", "ga")
    a(f"s_lshr_b32 s62, s{sR}, 1\ns_mul_i32 s62, s62, {72*3456}\ns_add_u32 s62, s62, s90\ns_add_u32 s63, s3, 1152\ns_bitcmp1_b32 s{sR}, 0\ns_cselect_b32 s63, 0, s63\ns_add_u32 s62, s62, s63")
    a(f"s_and_b32 s63, s{sR}, s{sT}\ns_cselect_b32 s100, s42, s34\ns_cselect_b32 s101, s43, s35")
    mksrd(a, SPS, 100, 101, "s62", nrec=71*3456+144)
    a(f"s_mul_i32 s91, s{sW}, {SST}\ns_add_u32 s91, s91, {STG}")
    m3b, s3b = magic_div(3, 64)
    a(f"v_mul_u32_u24 v5, {m3b}, v{vL}\nv_lshrrev_b32 v5, {s3b}, v5\nv_mad_i32_i24 v4, v5, -3, v{vL}\nv_lshlrev_b32 v4, 4, v4\nv_min_u32 v4, 20, v4\nv_mad_u32_u24 v{vMD}, v5, 36, v4")
    if "pr" in c.o1: a(pr_dma()[:4])
    a(f"s_mul_i32 s62, s{sW}, 36\ns_add_u32 s62, s62, {64*3456-3072}\nv_mul_u32_u24 v5, 3456, v5\nv_add3_u32 v{vP4}, v4, v5, s62")
    if c.g3f:
        a(f"v_bfe_u32 v5, v0, 2, 3\nv_mul_u32_u24 v5, 3456, v5\nv_and_b32 v4, 3, v0\nv_mad_u32_u24 v4, v4, 36, v5\nv_add_u32 v4, {64*3456-3072+20}, v4\nv_cmp_le_u32 vcc, 32, v{vL}\nv_cndmask_b32 v{vP4}, v{vP4}, v4, vcc")
    if "pr" in c.o1: a(pr_dma()[4:])
    if c.pst: stamp(a, c)
    for s in range(2, 9): a(kn(s))
    a(f"s_lshl_b32 s{sP}, s{sG}, 1\ns_add_u32 s{sP}, s{sP}, s{sT}\ns_lshl_b32 s{sL}, s{sR}, 4\ns_add_u32 s{sL}, s{sL}, s{sP}")
    a(f"s_bfe_u32 s63, s{sL}, 0x40001\ns_mul_i32 s63, s63, {36*1152}\ns_lshr_b32 s3, s{sL}, 5\ns_mul_i32 s3, s3, 144\ns_add_u32 s63, s63, s3")
    a(f"s_bitcmp1_b32 s{sL}, 0\ns_cselect_b32 s100, s38, s44\ns_cselect_b32 s101, s39, s45")
    mksrd(a, 84, 100, 101, "s63", nrec=35*1152+144)
    m9, s9 = magic_div(9, 512)
    for i in range(2):
        a(f"v_add_u32 v4, {256*i}, v0\nv_mul_u32_u24 v5, {m9}, v4\nv_lshrrev_b32 v5, {s9}, v5\nv_mad_i32_i24 v4, v5, -9, v4\nv_lshlrev_b32 v4, 4, v4\nv_mul_u32_u24 v5, 1152, v5\nv_add_u32 v{vMD+1+i}, v4, v5")
    a(f"s_and_b32 s63, s{sW}, 1\ns_lshl_b32 s62, s{sP}, 1\ns_add_u32 s62, s62, s63\ns_mul_i32 s62, s62, 648")
    mksrd(a, SM, 36, 37, "s62", nrec=648)
    if c.wol == 1: a(wo_dma()[2])
    a(f"v_lshrrev_b32 v4, 2, v{vL}\ns_add_u32 s62, s88, {KVS}\nv_lshl_add_u32 v{vMD+3}, v4, 1, s62")
    a(f"v_and_b32 v{fC}, 3, v0\nv_mul_u32_u24 v{vPAT}, 192, v4\nv_mad_u32_u24 v{vPAT}, v{fC}, 48, v{vPAT}\nv_add3_u32 v{vPAT}, v{vPAT}, s{sM0w1}, 40")
    mksrd(a, SWS, 52, 53, nrec=0x10000000)
    if c.tlb:
        a(f"v_min_u32 v5, {(1 << (24 - c.tlb)) - 1}, v{vL}\nv_lshlrev_b32 v5, {c.tlb}, v5")
        a(f"buffer_load_dword v96, v5, {srd(SWS)}, 0 offen", "pf")
        a(f"v_min_u32 v5, {2048*1152 - 4}, v5\nglobal_load_dword v97, v5, s[48:49]", "pf")
    a(f"s_mul_i32 s62, s{sG}, {4*PSEC}\ns_add_u32 s62, s62, {PKO - 2048}")
    mksrd(a, SPK, 52, 53, "s62", nrec=4*PSEC + 2048)
    if c.m44: a(f"s_lshr_b32 s3, s2, 3\ns_lshr_b32 s{sCB}, s3, 2\ns_and_b32 s{sRT}, s3, 3\ns_and_b32 s62, s2, 3\ns_lshl3_add_u32 s{sRT}, s62, s{sRT}\ns_and_b32 s62, s2, 4\ns_add_u32 s{sRT}, s{sRT}, s62")
    else: a(f"s_lshr_b32 s3, s2, 3\ns_lshr_b32 s{sCB}, s3, 2\ns_and_b32 s{sRT}, s3, 3\ns_and_b32 s62, s2, 1\ns_lshl_b32 s62, s62, 4\ns_add_u32 s{sRT}, s{sRT}, s62\ns_and_b32 s62, s2, 6\ns_lshl_b32 s62, s62, 1\ns_add_u32 s{sRT}, s{sRT}, s62")
    a(f"v_lshrrev_b32 v{fH}, 5, v{vL}\nv_and_b32 v{fKL}, 1, v{fKG}\nv_bfe_u32 v{fRR}, v0, 2, 2\nv_and_b32 v{fC0}, 1, v0\nv_bfe_u32 v{fC1}, v0, 1, 1\nv_and_b32 v{fQ}, 31, v0")
    a(f"v_lshlrev_b32 v{vL16}, 4, v{vL}")
    a(f"v_lshrrev_b32 v4, 1, v{fT}\nv_xor_b32 v4, v4, v{fKG}\nv_lshlrev_b32 v4, 4, v4\nv_lshl_add_u32 v4, v{fT}, 7, v4\nv_add_u32 v{vXR}, s{sM0x}, v4\nv_xor_b32 v{vXR+1}, 64, v{vXR}")
    lin(a, 4, [(fKL, 3104), (fH, 1536), (fRR, 192)])
    a(f"v_lshl_add_u32 v{vWA1}, v{fC}, 3, v4\nv_mad_u32_u24 v{vWT1}, v{fC}, 48, v4\nv_add_u32 v{vWT1}, 40, v{vWT1}")

def wo_dma(S=84, s88=88):
    out = []
    for i in range(2): out.append([I(f"s_add_u32 m0, s{s88}, {WOS + 4096*i}"), I(f"buffer_load_dwordx4 v{vMD+1+i}, {srd(S)}, 0 offen lds", "wos")])
    out.append([I(f"s_and_b32 s63, s88, 1024"), I(f"s_add_u32 m0, s63, {WPH}"), I(f"buffer_load_dwordx4 v{vMD}, {srd(SM)}, 0 offen lds", "wos")])
    return out

def setup1(a, c):
    lin(a, vPR1, [(fRR, 192), (fKG, 48), (fC, 8)], "s91")
    lin(a, 4, [(fRR, 192), (fKL, 1536), (fC, 48)], 40)
    if c.g3f:
        lin(a, 5, [(fRR, 48), (fC, 8)], 3072)
        lin(a, 6, [(fT, 16)], 3072 + 512 + 8)
        a(f"v_cmp_eq_u32 vcc, 0, v{fKL}\nv_cndmask_b32 v5, v6, v5, vcc\nv_lshlrev_b32 v7, 6, v{fKL}\nv_add_u32 v7, 192, v7")
        a(f"v_cmp_eq_u32 vcc, 0, v{fH}\nv_cndmask_b32 v4, v5, v4, vcc\nv_add_u32 v{vPR3}, s91, v4\nv_mov_b32 v6, 768\nv_cndmask_b32 v5, v7, v6, vcc\nv_add_u32 v{vPR3+1}, v{vPR3}, v5")
        a(f"s_mul_i32 s62, s89, 1152\nv_mov_b32 v4, s62\nv_mov_b32 v5, {9216-2304}\nv_cndmask_b32 v4, v5, v4, vcc")
        lin(a, 4, [(4, 1), (fKL, 2304), (fRR, 32), (fC, 16)], 992)
        a(f"s_lshl_b32 s62, s{sW}, 8\ns_add_u32 s62, s62, 9216\nv_lshl_add_u32 v5, v{fT}, 4, s62")
        a(f"v_cmp_eq_u32 vcc, 2, v{fKG}\nv_cndmask_b32 v{vPS3}, v4, v5, vcc")
    else:
        lin(a, 5, [(fRR, 48)], 3072)
        a(f"v_lshlrev_b32 v6, 3, v{fC}\nv_cmp_eq_u32 vcc, 0, v{fKL}\nv_cndmask_b32 v6, 40, v6, vcc\nv_add_u32 v5, v5, v6")
        a(f"v_cmp_eq_u32 vcc, 0, v{fH}\nv_cndmask_b32 v4, v5, v4, vcc\nv_add_u32 v{vPR3}, s91, v4\nv_mov_b32 v5, 192\nv_mov_b32 v6, 768\nv_cndmask_b32 v5, v5, v6, vcc\nv_add_u32 v{vPR3+1}, v{vPR3}, v5")
        a(f"s_mul_i32 s62, s89, 1152\ns_add_u32 s62, s62, 992")
        lin(a, 4, [(fKL, 2304), (fRR, 32), (fC, 16)], "s62")
        a(f"s_lshl_b32 s62, s{sW}, 8\ns_add_u32 s62, s62, 9216\nv_lshl_add_u32 v5, v{fT}, 4, s62\ns_lshl_b32 s62, s{sW}, 5\ns_add_u32 s62, s62, {9216+992}\nv_lshl_add_u32 v6, v{fC}, 4, s62")
        a(f"v_cndmask_b32 v4, v5, v4, vcc\nv_cmp_eq_u32 vcc, 3, v{fKG}\nv_cndmask_b32 v{vPS3}, v4, v6, vcc")
    a(f"s_and_b32 s62, s{sR}, 1\ns_lshl_b32 s62, s62, 1\ns_lshl_b32 s63, s{sG}, 2\ns_add_u32 s62, s62, s63\ns_add_u32 s62, s62, s{sT}\ns_mul_i32 s62, s62, {PSEC}\ns_lshr_b32 s63, s{sR}, 1\ns_mul_i32 s63, s63, {9*1152}\ns_add_u32 s62, s62, s63\ns_add_u32 s82, s62, {PKO}")
    a(f"s_mul_i32 s63, s89, 1152\ns_add_u32 s83, s63, s82")
    lin(a, vWP2, [(fH, 1024), (fRR, 48)], WPH)
    lin(a, vWP, [(fKL, 16), (fC1, 8), (vWP2, 1)])
    a(f"v_add_u32 v{vWP2}, 40, v{vWP2}\nv_bfe_u32 v4, v0, 2, 1\nv_cmp_eq_u32 vcc, v4, v{fH}\nv_cndmask_b32 v{vWM}, 0, -1, vcc")
    lin(a, 4, [(fH, 18*144), (fKL, 4*144), (fRR, 144)], WOS)
    a(f"v_bfe_u32 v6, v0, 2, 1\nv_bfe_u32 v7, v0, 3, 1")
    lin(a, 5, [(7, 18*144), (6, 144)], WOS + 16*144)
    a(f"s_lshr_b32 s62, s{sW}, 1\ns_lshl_b32 s62, s62, 6\ns_and_b32 s3, s{sW}, 1\ns_lshl_b32 s63, s3, 3\ns_add_u32 s62, s62, s63")
    a(f"v_lshl_add_u32 v{vRP}, v{fC}, 4, v4\nv_add_u32 v{vRP}, s62, v{vRP}")
    a(f"v_lshlrev_b32 v6, 3, v{fC0}\nv_add_u32 v6, 128, v6\nv_and_b32 v7, 7, v0")
    a(f"s_cmp_ge_u32 s{sW}, 2\ns_cbranch_scc1 .Lrp2")
    a(f"v_add_u32 v{vRP+1}, v4, v6\nv_lshl_add_u32 v7, v{fKG}, 3, v7\nv_lshlrev_b32 v7, 4, v7\nv_add_u32 v{vRP+2}, 4096, v7\ns_branch .Lrp4")
    a.label(".Lrp2")
    a(f"s_cmp_eq_u32 s{sW}, 3\ns_cbranch_scc1 .Lrp3")
    lin(a, vRP+1, [(fH, 64), (fC, 16), (fKL, 8), (5, 1)])
    a(f"v_lshlrev_b32 v{vRP+2}, 3, v{vL}\nv_add_u32 v{vRP+2}, 4608, v{vRP+2}\ns_branch .Lrp4")
    a.label(".Lrp3")
    a(f"v_add_u32 v{vRP+1}, v5, v6\nv_lshlrev_b32 v{vRP+2}, 3, v{fT}\nv_add_u32 v{vRP+2}, 5120, v{vRP+2}")
    a.label(".Lrp4")

def setup2(a, c):
    a(f"s_lshl_b32 s62, s{sT}, 9\ns_add_u32 s62, s62, 2048")
    lin(a, vPK, [(fKG, 1152), (fT, 16)], "s62")
    a(f"v_subrev_u32 v{vPK+1}, 768, v{vPK}\ns_and_b32 s63, s{sW}, 1\ns_lshl_b32 s63, s63, 8\ns_add_u32 s63, s63, {PSEC - 2048}\nv_add_u32 v{vPS}, s63, v{vPK}")
    a(f"s_lshl_b32 s62, s{sT}, 6\ns_add_u32 s62, s62, 1024")
    lin(a, vPK+2, [(fKG, 1152), (fRR, PSEC), (fC, 16)], "s62")
    a(f"s_lshr_b32 s62, s{sKX}, 6\ns_add_u32 s63, s62, s{sW}\ns_mul_i32 s63, s63, 4608\ns_lshr_b32 s3, s{sW}, 1\ns_mul_i32 s3, s3, 3\ns_add_u32 s62, s62, s3\ns_mul_i32 s62, s62, 4608")
    for j in range(5):
        if j: a(f"s_add_u32 s63, s{sKA+j-1}, {4*4608}")
        a(f"s_sub_u32 s3, s63, {PSEC}\ns_cselect_b32 s{sKA+j}, s63, s3")
    for j in range(9):
        if j: a(f"s_add_u32 s62, s62, {4608*(4 if j % 3 == 0 else 1)}")
        a(f"s_sub_u32 s3, s62, {PSEC}\ns_cselect_b32 s62, s62, s3\ns_add_u32 s{sKP+j}, s62, {2048 - 1024*(j % 3)}")
    a(f"s_mov_b32 s{sLE}, 0x3fb8aa3b\ns_mov_b32 s{sQS}, 0x3eae1a93")
    a(f"v_lshlrev_b32 v4, 2, v{fH}\nv_xor_b32 v4, v4, v{fT}")
    lin(a, vSA, [(fH, 512), (4, 16), (fKL, 8)], "s91")
    lin(a, vST, [(fKG, 1280), (fT, 8)], "s91"); a(f"v_add_u32 v{vST}, 1024, v{vST}")
    a(f"v_add_u32 v{vSL}, s91, v{vL16}")
    lin(a, vK2, [(fH, KV_PAIR - 2560), (vL16, 1)])
    lin(a, vBL, [(fH, 1280), (fQ, 16)], "s91")
    a(f"v_xor_b32 v{vBH}, 64, v{vBL}\nv_add_u32 v{vBH}, 512, v{vBH}")
    lin(a, vBT, [(fH, 1280), (fQ, 8)], "s91"); a(f"v_add_u32 v{vBT}, 1024, v{vBT}")
    a(f"s_lshl_b32 s62, s{sW}, 8\ns_add_u32 s62, s62, {WPH + 2048}")
    lin(a, vBT2, [(fH, 1024), (fQ, 8)], "s62")
    a(f"s_add_u32 s3, s91, 1024\nv_mov_b32 v4, s3\nv_mov_b32 v5, s62\nv_cmp_eq_u32 vcc, 0, v{fH}\nv_cndmask_b32 v4, v5, v4, vcc\nv_mov_b32 v5, 2048\nv_mov_b32 v6, 2560\nv_cndmask_b32 v5, v5, v6, vcc")
    a(f"v_mad_u32_u24 v4, v5, v{fKL}, v4\nv_lshl_add_u32 v{vTW}, v{fT}, 3, v4\nv_lshrrev_b32 v5, 1, v5\nv_add_u32 v{vTW+1}, v{vTW}, v5")
    a(f"s_add_u32 s62, s62, 2048\nv_lshl_add_u32 v4, v{fQ}, 3, s62\nv_mov_b32 v5, {WPH + 896}\nv_cndmask_b32 v{vQT}, v5, v4, vcc")
    a(f"v_mov_b32 v4, 0x3f803f80\nv_cndmask_b32 v{CM+2}, 0, v4, vcc\nv_mov_b32 v{vONE}, 0x3f80")
    for r in (CM+1, CM+3, CM+4, CM+5): a(f"v_mov_b32 v{r}, 0")
    a(f"v_mov_b32 v4, s{sQS}\nv_cmp_eq_u32 vcc, 3, v{fKG}\nv_cndmask_b32 v{vSC}, 1.0, v4, vcc")
    a(f"v_lshl_add_u32 v4, v{fH}, 2, v{fRR}\nv_lshlrev_b32 v5, 2, v{fC1}\nv_xor_b32 v5, v5, v4")
    lin(a, 6, [(fC1, 512), (5, 16), (fC0, 8)])
    lin(a, 7, [(4, 8)], 1024)
    a(f"v_lshlrev_b32 v5, 2, v{fC0}\nv_xor_b32 v5, v5, v4")
    lin(a, 8, [(fC0, 512), (5, 16), (fC1, 8)])
    a(f"s_mul_i32 s62, s{sW}, 2560\ns_add_u32 s62, s62, {KVR}\ns_add_u32 s3, s62, 30720")
    a(f"v_cmp_eq_u32 vcc, 0, v{fKL}\nv_cndmask_b32 v6, v7, v6, vcc\nv_cndmask_b32 v{AD}, v7, v8, vcc\nv_mov_b32 v4, 64\nv_mov_b32 v5, 128\nv_cndmask_b32 v7, v4, v5, vcc")
    a(f"v_add_u32 v{vTR}, s3, v6")
    a(f"v_lshlrev_b32 v4, 2, v{fH}\nv_xor_b32 v4, v4, v{fQ}")
    lin(a, vKL, [(fH, 512), (4, 16)], "s62")
    lin(a, vKT, [(fQ, 8)], "s62"); a(f"v_add_u32 v{vKT}, 1024, v{vKT}")
    a(f"s_sub_u32 s62, s91, s62\ns_add_u32 s62, s62, 2560\nv_add_u32 v{vQM}, s62, v{vKL}")
    a(f"s_and_b32 s62, s{sW}, 1\ns_mul_i32 s62, s62, 1280\ns_lshr_b32 s3, s{sW}, 1\ns_mul_i32 s3, s3, 5120\ns_add_u32 s3, s62, s3\ns_add_u32 s3, s3, {STG}\nv_add_u32 v{AD}, s3, v{AD}")
    a(f"s_add_u32 s62, s62, {STG + 2560}\nv_add_u32 v{AD+4}, s62, v6")
    for i in range(1, 4): a(f"v_add_u32 v{vTR+i}, v{vTR+i-1}, v7\nv_add_u32 v{AD+i}, v{AD+i-1}, v7\nv_add_u32 v{AD+4+i}, v{AD+3+i}, v7")
    a(f"v_bfe_u32 v4, v0, 2, 3\ns_lshl_b32 s62, s{sW}, 3\nv_add_u32 v4, s62, v4\nv_lshrrev_b32 v5, 1, v4\nv_and_b32 v6, 1, v4\nv_lshl_add_u32 v5, v5, 4, v6\ns_lshl_b32 s62, s{sG}, 1\nv_add_u32 v5, s62, v5")
    a(f"s_lshl_b32 s63, s{sCB}, 5\nv_add_u32 v4, s63, v4\nv_lshlrev_b32 v6, 7, v{fC}\nv_lshl_add_u32 v{vFO}, v4, 9, v6\nv_lshl_add_u32 v{vFW}, v5, 9, v6")
    a(f"s_and_b32 s63, s{sW}, 1\ns_mul_i32 s63, s63, 6\ns_lshl_b32 s3, s{sR}, 2\ns_add_u32 s63, s63, s3\ns_sub_u32 s63, s63, 8\nv_min_u32 v4, 5, v{vL}\nv_add_u32 v4, s63, v4\nv_max_i32 v4, 0, v4")
    a(f"s_lshr_b32 s63, s{sW}, 1\ns_add_u32 s62, s62, s63\nv_lshrrev_b32 v5, 2, v4\nv_lshl_add_u32 v5, v5, 4, s62\nv_and_b32 v4, 3, v4\nv_lshlrev_b32 v4, 7, v4\nv_lshl_add_u32 v{vF1}, v5, 9, v4")
    a(f"s_lshl2_add_u32 s62, s{sL}, s{sW}\ns_lshl_b32 s62, s62, 7\nv_lshl_add_u32 v{vL}, v{fT}, {3 if c.fl else 31}, s62")
    if not c.fl: a(f"v_mov_b32 v{vL}, s62")
    a(f"s_lshl_b32 s62, s{sP}, 2\ns_add_u32 s62, s62, s{sW}\nv_lshl_add_u32 v4, v{fT}, 6, s62\nv_lshlrev_b32 v{vF2}, 7, v4")
    a(f"s_lshr_b32 s62, s{sRT}, 1\ns_lshl_b32 s62, s62, 6\ns_lshl_b32 s3, s{sW}, 4\ns_add_u32 s62, s62, s3\ns_and_b32 s3, s{sRT}, 1\ns_lshl_b32 s3, s3, 1\ns_add_u32 s62, s62, s3")
    a(f"v_bfe_u32 v4, v0, 1, 2\nv_lshl_add_u32 v4, v4, 2, v{fC0}\nv_add_u32 v4, s62, v4\nv_lshlrev_b32 v{vF3}, 7, v4")
    a(f"s_lshl_b32 s62, s{sCB}, 2\ns_add_u32 s62, s62, s{sW}\ns_mul_i32 s100, s62, {8*WOBLK}\ns_add_u32 s100, s100, {WOO}")
    a(f"v_and_b32 v{VT4}, 7, v0\nv_lshl_add_u32 v{V4}, v{fKG}, 3, v{VT4}\nv_lshlrev_b32 v{V4}, 4, v{V4}\nv_add_u32 v{V4}, 4096, v{V4}")
    a(f"v_mul_u32_u24 v{VT}, {2*WOBLK}, v{fKG}\nv_add_u32 v{VT}, 4608, v{VT}\nv_lshl_add_u32 v{VT4}, v{VT4}, 3, v{VT}\nv_lshl_add_u32 v{VT}, v{fT}, 3, v{VT}")
    a(f"v_mul_u32_u24 v{vOT}, 36864, v{fKL}\nv_lshl_add_u32 v{vOT}, v{fT}, 4, v{vOT}\nv_lshl_add_u32 v{vOA}, v{fH}, 8, v{vOT}")
    a(f"s_lshl_b32 s62, s{sR}, 2\ns_add_u32 s62, s62, s{sW}\ns_mul_i32 s62, s62, {2*36864}\ns_lshr_b32 s63, s{sP}, 2\ns_mul_i32 s63, s63, 9216\ns_add_u32 s62, s62, s63\ns_add_u32 s62, s62, {OPO}")
    a(f"s_and_b32 s63, s{sP}, 3\ns_lshl_b32 s3, s63, 11\ns_add_u32 s{sOA}, s62, s3\ns_lshl_b32 s3, s63, 8\ns_add_u32 s{sOT}, s62, s3\ns_add_u32 s{sOT}, s{sOT}, 8192")

def setup3(a, c):
    if c.wol == 1: a(f"s_mov_b64 s[{SX}:{SX+1}], s[84:85]\ns_mov_b32 s{SX+2}, {35*1152+144}\ns_mov_b32 s{SW1}, s88")
    a(f"v_mul_u32_u24 v{vKS+1}, 320, v{fH}\nv_lshl_add_u32 v{vKS+1}, v{fQ}, 4, v{vKS+1}\nv_lshlrev_b32 v{vKS}, 2, v{fQ}")
    a(f"v_mad_i32_i24 v12, v{fH}, -4, v{fQ}\nv_mov_b32 v13, 0xffff")
    for r in range(16): a(f"v_cmp_le_i32 s[{64+2*r}:{65+2*r}], {8*(r>>2) + (r&3)}, v12")
    for j in range(8): a(f"v_cndmask_b32 v{PM+j}, 0, v13, s[{64+4*j}:{65+4*j}]")
    for j in range(8): a(f"v_cndmask_b32 v{PM+j}, v{PM+j}, -1, s[{66+4*j}:{67+4*j}]")

def producer(c):
    q = Seq(); T = AX
    q.wait(vm="pr")
    for k in range(2):
        for j in range(2): q(f"ds_read_b64_tr_b16 {vr(T + 4*k + 2*j, 2)}, v{vPR1} offset:{k*1536 + j*768}")
    for j in range(2): q(f"ds_read_b64_tr_b16 {vr(T + 8 + 2*j, 2)}, v{vPR3+j}")
    g = Seq()
    for k in range(2): g(f"buffer_store_dwordx4 {vr(T + 4*k, 4)}, v{vL16}, {srd(SWS)}, s83 offen offset:{2304*k} sc1", "stp")
    if c.g3f: g(f"s_cmp_eq_u32 s{sW}, 0\ns_mov_b32 s62, 0xffff\ns_cselect_b32 exec_hi, 0xccccffff, s62\ns_mov_b32 exec_lo, 0xcccccccc")
    else: g("s_mov_b32 exec_lo, 0xcccccccc\ns_mov_b32 exec_hi, 0xcffff")
    g(f"buffer_store_dwordx4 {vr(T+8, 4)}, v{vPS3}, {srd(SWS)}, s82 offen sc1", "stp")
    g("s_mov_b64 exec, -1")
    return q.l, g.l
def wo_repack(T=AX, s88=88):
    q = Seq()
    q(f"ds_read_b64_tr_b16 {vr(T+12, 2)}, v{vRP}\nds_read_b64_tr_b16 {vr(T+14, 2)}, v{vRP} offset:1152\nds_read_b64_tr_b16 {vr(T+16, 2)}, v{vRP+1}\nds_read_b64_tr_b16 {vr(T+18, 2)}, v{vRP+1} offset:1152", "rp")
    r = Seq()
    r(f"s_mul_i32 s63, s{sL}, {WOBLK}\ns_add_u32 s63, s63, {WOO}\ns_add_u32 s3, s{s88}, s63")
    r(f"buffer_store_dwordx4 {vr(T+12, 4)}, v{vL16}, {srd(SWS)}, s3 offen sc1", "stw")
    r.wait(lg="rp")
    r(f"s_cmp_ge_u32 s{sW}, 2\ns_cbranch_scc1 .Lw2\ns_cmp_eq_u32 s{sW}, 0\ns_cselect_b32 exec_lo, -1, 0\ns_cselect_b32 exec_hi, 0, -1")
    r(f"buffer_store_dwordx4 {vr(T+16, 4)}, v{vRP+2}, {srd(SWS)}, s63 offen sc1", "nocount")
    r("s_mov_b64 exec, -1\ns_branch .Lw3")
    r.label(".Lw2")
    r(f"buffer_store_dwordx2 {vr(T+16, 2)}, v{vRP+2}, {srd(SWS)}, s63 offen sc1", "stw")
    r.label(".Lw3")
    r("s_nop 1")
    return q.l, r.l
def wa_load():
    q = Seq()
    for i in range(5):
        q(f"ds_read_b64_tr_b16 {vr(WA1 + 2*i, 2)}, v{vWP} offset:{192*i}\nds_read_b64_tr_b16 {vr(WA2 + 2*i, 2)}, v{vWP2} offset:{192*i}")
    for r in (WA1 + 10, WA1 + 11, WA2 + 10, WA2 + 11): q(f"v_mov_b32 v{r}, 0")
    for i in range(10): q(f"v_and_b32 v{WA1+i}, v{vWM}, v{WA1+i}\nv_and_b32 v{WA2+i}, v{vWM}, v{WA2+i}")
    return q.l

def put(mf, items):
    out = []
    for g, m in enumerate(mf):
        out.append(m)
        for gg, it in items:
            if gg == g or (g == len(mf) - 1 and gg > g):
                out.extend(it if isinstance(it, list) else [it])
    return out
def grp(q): return [q[:2]] + q[2:]

def poll_issue(voff, base, name):
    q = Seq()
    q(f"s_mov_b32 s62, {base}")
    q(f"buffer_load_dwordx2 {vr(vPD, 2)}, v{voff}, {srd(SWS)}, s62 offen sc1", name)
    return q.l
def poll_check(voff, base, name):
    q = Seq()
    q.wait(vm=name)
    q(f"v_cmp_ne_u64 vcc, s[{sTAG}:{sTAG+1}], {vr(vPD, 2)}\ns_cbranch_vccz .Lq{name}\ns_mov_b32 s62, {base}\ns_mov_b32 s63, 300000")
    q.label(f".Lp{name}")
    q(f"buffer_load_dwordx2 {vr(vPD, 2)}, v{voff}, {srd(SWS)}, s62 offen sc1", "nocount")
    q("s_waitcnt vmcnt(0)")
    q(f"v_cmp_ne_u64 vcc, s[{sTAG}:{sTAG+1}], {vr(vPD, 2)}")
    q(f"s_sub_u32 s63, s63, 1\ns_cbranch_scc1 .Lend\ns_cbranch_vccnz .Lp{name}")
    q.label(f".Lq{name}")
    return q.l
def flag_store(base, sidx=None, line=None):
    q = Seq()
    q(f"s_mov_b32 s62, {base}")
    q(f"buffer_store_dwordx2 {vr(vTG, 2)}, v{vL}, {srd(SWS)}, s62 offen sc1", "flag")
    return q.l
def tag_issue():
    q = Seq()
    q(f"v_mov_b32 v{vTG}, 0")
    q(f"global_load_dwordx2 {vr(vTG, 2)}, v{vTG}, s[50:51] sc1", "tag")
    return q.l
def tag_check():
    q = Seq()
    q.wait(vm="tag")
    q(f"v_readfirstlane_b32 s{sTAG+1}, v{vTG+1}\ns_mov_b32 s63, 300000\ns_cmp_lg_u32 s{sTAG+1}, 0\ns_cbranch_scc1 .Ltag2")
    q.label(".Ltag")
    q(f"v_mov_b32 v{vTG}, 0")
    q(f"global_load_dwordx2 {vr(vTG, 2)}, v{vTG}, s[50:51] sc1", "nocount")
    q("s_waitcnt vmcnt(0)")
    q(f"v_readfirstlane_b32 s{sTAG+1}, v{vTG+1}")
    q(f"s_sub_u32 s63, s63, 1\ns_cbranch_scc1 .Lend\ns_cmp_eq_u32 s{sTAG+1}, 0\ns_cbranch_scc1 .Ltag")
    q.label(".Ltag2")
    q(f"v_readfirstlane_b32 s{sTAG}, v{vTG}")
    return q.l
```

```python
from g3a import *
import g3a

def g2_half(m, hf):
    g = m - 9
    if g < 5:
        ks = [4*g + 2*hf, 4*g + 2*hf + 1] if g < 4 else [16 + hf]
        return [((k - 4*g)*3 + t, AX + 8*t, k) for k in ks for t in range(3)]
    sec, j = divmod(g - 5, 3); A = AX if sec == 1 else AY
    return [((2*hf + h)*3 + i, A + 8*h, 6*j + 3*hf + i) for i in range(3) for h in range(2)]
def g2_rd(m, hf):
    return [I(f"ds_read_b128 {vr(FR + 24*hf + 4*q, 4)}, v{vL16} offset:{(m % NW)*WSL + f*1024}", f"f{m}_{hf}") for q, (f, A, k) in enumerate(g2_half(m, hf))]
def g2_mm(m, hf):
    out = []
    for q, (f, A, k) in enumerate(g2_half(m, hf)):
        for tt in range(2):
            d = vr(A + 4*tt, 4)
            out.append(I(f"{M16} {d}, {vr(FR + 24*hf + 4*q, 4)}, {ar((k*2 + tt)*4, 4)}, {d if k else 0}"))
    return out

def wsched(c):
    d = {}; m = 3
    for n in range(23):
        for h in range(2):
            l = []
            while m < 23 and m <= n - 1 + h + (NW if (n, h) <= (9, 0) else c.dep) and len(l) < (1 if m < 9 or m > 10 else 2):
                if m < 9 and (h == 0 or m > n + 3): break
                if m >= 9 and ((n, h) < (c.s_pw, 1) or c.exp & 8): break
                l.append(m); m += 1
            d[(n, h)] = l
    return d

def sep(d):
    n = 4 if len(d) == 5 and "lds" in d[4].t else 3
    return [[d[0]] + (d[1+i: 2+i] if i < n - 1 else d[1+i:]) for i in range(n)]
def pass1(a, c, extra):
    ws = wsched(c)
    PX = [int(x, 36) for x in c.px]; PW = [int(x, 36) for x in c.pw]; PW2 = [int(x, 36) for x in c.pw2]
    for s in range(9):
        dm = []
        if s + 3 < 9:
            dm += list(zip(PX, sep(dma_x(s + 3)))) + list(zip(PW, sep(dma_w(c, s + 3))))
        g = [[m for m in ws[(s, h)] if m >= 9] for h in range(2)]
        for h in range(2):
            for i, m in enumerate(g[h]):
                dm += [(10*h + p, x) for p, x in zip(PW2[:3] if len(g[h]) == 1 else PW2[3+3*i: 6+3*i], sep(dma_w(c, m)))]
        a.wait(lg=[f"f{s}_0", f"xr{s}"])
        it = [(k // 2, r) for k, r in enumerate(rd_w(s, 1))]
        it += [x for x in dm if x[0] < 10]
        it.append((c.pv, [W(vm=[f"w{s+1}", f"x{s+1}"])] + ([patch(s + 1)] if s + 1 < 9 else [])))
        it += extra.get(2*s, [])
        it.sort(key=lambda x: x[0])
        a(put(mm(s, 0), it))
        a(extra.get(("pre", s), []))
        a.wait(lg=0)
        a("s_barrier")
        if c.stp & 1: stamp(a, c)
        if s < 8:
            fc = rd_w(s + 1, 0)
            fc = fc[:4] + rd_x(s + 1)[:2] + fc[4:] + rd_x(s + 1)[2:]
        else: fc = g2_rd(9, 0)
        it = [(k // 2, r) for k, r in enumerate(fc)]
        it += [(p - 10, x) for p, x in dm if p >= 10]
        it += extra.get(2*s + 1, [])
        it.sort(key=lambda x: x[0])
        a(put(mm(s, 1), it))

def epi1():
    q = Seq()
    q(f"v_and_b32 v{vG1}, 16, v0\nv_cmp_eq_u32 vcc, 0, v{vG1}\ns_mul_i32 s63, s{sT}, 0x3f80")
    for h in range(5):
        for tt in range(2):
            d = ACC + (h*2 + tt)*4
            if h < 4:
                q(f"v_cvt_pk_bf16_f32 v{d}, v{d}, v{d+1}\nv_cvt_pk_bf16_f32 v{d+1}, v{d+2}, v{d+3}")
                q(f"ds_write_b64 v{vSA}, {vr(d, 2)} offset:{h*1280 + tt*256}")
            else:
                q(f"v_cvt_pk_bf16_f32 v{d+2}, v{d+2}, v{d+3}\nv_mov_b32 v{d+3}, s63")
                q(f"ds_write_b64 v{vST}, {vr(d+2, 2)} offset:{tt*128}")
    for i in range(5): q(f"ds_read_b128 {vr(ACC+4*i, 4)}, v{vSL} offset:{i*1024}")
    q(f"v_cndmask_b32 v{vG1}, v{ACC+36}, v{ACC+32}, vcc\nv_mul_f32 v{vG1}, 0xbfb8aa3b, v{vG1}\nv_exp_f32 v{vG1}, v{vG1}\nv_add_f32 v{vG1}, 1.0, v{vG1}\nv_rcp_f32 v{vG0}, v{vG1}\nv_sub_f32 v{vG1}, 1.0, v{vG0}")
    q(f"s_mul_i32 s63, s{sT}, {KV_KIND}\ns_mul_i32 s3, s{sG}, {2*KV_PAIR}\ns_add_u32 s63, s63, s3\ns_lshl_b32 s3, s{sR}, 2\ns_add_u32 s3, s3, s{sW}\ns_mul_i32 s3, s3, 2560\ns_add_u32 s63, s63, s3\ns_add_u32 s63, s63, {KVO}\ns_add_u32 s3, s63, {KV_PAIR+512}")
    for i in range(5):
        q(f"buffer_store_dwordx4 {vr(ACC+4*i, 4)}, v{vK2 if i == 2 else vL16}, {srd(SWS)}, {'s63' if i < 3 else 's3'} offen offset:{(i % 3)*1024} sc1", "st1")
    return q.l

def sout(A, blk, scale=False):
    q = Seq()
    for h in range(2):
        for tt in range(2):
            d = A + 8*h + 4*tt
            if scale:
                for i in (0, 2): q(f"v_pk_mul_f32 {vr(d+i, 2)}, {vr(d+i, 2)}, s[{sQS}:{sQS+1}] op_sel_hi:[1,0]")
            q(f"v_cvt_pk_bf16_f32 v{d}, v{d}, v{d+1}\nv_cvt_pk_bf16_f32 v{d+1}, v{d+2}, v{d+3}")
            q(f"ds_write_b64 v{vSA}, {vr(d, 2)} offset:{(blk + h)*1280 + tt*256}")
    return q.l
def tails():
    q = Seq()
    for tt in range(2):
        for h in range(2):
            d = AX + 16 + 4*tt + 2*h
            q(f"v_pk_mul_f32 {vr(d, 2)}, {vr(d, 2)}, {vr(vSC, 2)} op_sel_hi:[1,0]\nv_cvt_pk_bf16_f32 v{d}, v{d}, v{d+1}")
            q(f"ds_write2_b32 v{vTW+h}, v{d}, v{vONE} offset0:{32*tt} offset1:{32*tt+1}")
    return q.l

D2, D1, EM, PT = 160, 176, 192, 210
def phi(vT):
    BO = EM; T = PT
    q = Seq()
    q(f"ds_read_b128 {vr(BO, 4)}, v{vBL}\nds_read_b128 {vr(BO+4, 4)}, v{vBH}\nds_read_b64 {vr(BO+8, 2)}, v{vT}")
    q(f"v_mov_b32 v{BO+10}, 0\nv_mov_b32 v{BO+11}, 0")
    rd = q.l
    q = Seq()
    for s in range(3):
        q(f"{M32} {vr(D1, 16)}, {vr(WA1+4*s, 4)}, {vr(BO+4*s, 4)}, {vr(D1, 16) if s else 0}")
        q(f"{M32} {vr(D2, 16)}, {vr(WA2+4*s, 4)}, {vr(BO+4*s, 4)}, {vr(D2, 16) if s else 0}")
    mf = q.l
    q = Seq()
    P = [D1 + i for i in range(16)] + [D2 + 2, D2 + 3]
    E = [EM + i for i in range(18)]
    U = D2
    q(f"v_max3_f32 v{T}, v{P[0]}, v{P[1]}, v{P[2]}\nv_min3_f32 v{T+1}, v{P[0]}, v{P[1]}, v{P[2]}")
    for i in range(3, 17, 2): q(f"v_max3_f32 v{T}, v{T}, v{P[i]}, v{P[i+1]}\nv_min3_f32 v{T+1}, v{T+1}, v{P[i]}, v{P[i+1]}")
    q(f"v_max_f32 v{T}, v{T}, v{P[17]}\nv_min_f32 v{T+1}, v{T+1}, v{P[17]}")
    q(f"v_mul_f32 v{U}, s{sLE}, v{T+1}\nv_mul_f32 v{T}, s{sLE}, v{T}")
    for i in range(0, 18, 2):
        q(f"v_pk_fma_f32 {vr(E[i], 2)}, {vr(P[i], 2)}, s[{sLE}:{sLE+1}], {vr(U, 2)} op_sel_hi:[1,0,0] neg_lo:[1,0,0] neg_hi:[1,0,0]")
        q(f"v_pk_fma_f32 {vr(P[i], 2)}, {vr(P[i], 2)}, s[{sLE}:{sLE+1}], {vr(T, 2)} op_sel_hi:[1,0,0] neg_lo:[0,0,1] neg_hi:[0,0,1]")
    for R, S in ((E, T + 2), (P, T + 4)):
        for i in range(0, 18, 2):
            q(f"v_exp_f32 v{R[i]}, v{R[i]}\nv_exp_f32 v{R[i+1]}, v{R[i+1]}")
            if i == 4: q(f"v_pk_add_f32 {vr(S, 2)}, {vr(R[0], 2)}, {vr(R[2], 2)}")
            if i > 4: q(f"v_pk_add_f32 {vr(S, 2)}, {vr(S, 2)}, {vr(R[i-2], 2)}")
    for R, S in ((E, T + 2), (P, T + 4)):
        q(f"v_pk_add_f32 {vr(S, 2)}, {vr(S, 2)}, {vr(R[16], 2)}")
    for S in (T + 2, T + 4): q(f"v_add_f32 v{S}, v{S}, v{S+1}")
    for S in (T + 2, T + 4): q(f"v_rcp_f32 v{S}, v{S}")
    for sg, R, S in ((1, E, T + 2), (0, P, T + 4)):
        for i in range(9):
            q(f"v_pk_mul_f32 {vr(R[2*i], 2)}, {vr(R[2*i], 2)}, {vr(S, 2)} op_sel_hi:[1,0]\nv_cvt_pk_bf16_f32 v{R[i]}, v{R[2*i]}, v{R[2*i+1]}")
            if i == 3: q(f"ds_write_b128 v{vBL}, {vr(R[0], 4)} offset:{sg*5120}")
            if i == 7: q(f"ds_write_b128 v{vBH}, {vr(R[4], 4)} offset:{sg*5120}")
            if i == 8: q(f"ds_write_b32 v{vBT}, v{R[8]} offset:{sg*5120}")
    return rd, mf, q.l

def kvpart():
    D = D1
    rd = []; mf = []
    for b in range(4):
        for m in range(2):
            o = 144 + 8*(b*2 + m)
            for j in range(2):
                rd.append(I(f"ds_read_b64_tr_b16 {ar(o + 2*j, 2)}, v{AD + 2*m + j} offset:{b*SST}"))
                rd.append(I(f"ds_read_b64_tr_b16 {ar(o + 4 + 2*j, 2)}, v{AD + 4 + 2*m + j} offset:{b*SST}"))
            mf.append(I(f"{M32} {vr(D, 16)}, {ar(o, 4)}, {ar(o+4, 4)}, {vr(D, 16) if (b or m) else 0}"))
    q = Seq()
    for i in range(5): q(f"v_cvt_pk_bf16_f32 v{D+i}, v{D+2*i}, v{D+2*i+1}")
    g = Seq()
    g(f"s_lshl_b32 s62, s{sP}, 4\ns_add_u32 s62, s62, s{sR}\ns_lshl_b32 s62, s62, 2\ns_add_u32 s62, s62, s{sW}\ns_mul_i32 s3, s62, 768\ns_add_u32 s3, s3, {PARO}")
    g("s_mov_b32 exec_lo, 0xfffff\ns_mov_b32 exec_hi, 0xfffff")
    g(f"buffer_store_dwordx4 {vr(D, 4)}, v{vKS+1}, {srd(SWS)}, s3 offen sc1", "st2")
    g("s_mov_b32 exec_lo, -1\ns_mov_b32 exec_hi, 0")
    g(f"buffer_store_dword v{D+4}, v{vKS}, {srd(SWS)}, s3 offen offset:640 sc1", "st2")
    g("s_mov_b64 exec, -1")
    return rd, mf, q.l + [g.l]

def kv_dma(c):
    q = Seq()
    q(f"s_lshr_b32 s62, s{sW}, 1\ns_mul_i32 s62, s62, {KV_KIND}\ns_mul_i32 s63, s{sP}, {KV_PAIR}\ns_add_u32 s62, s62, s63\ns_add_u32 s62, s62, {KVO - 8*2560}")
    q(f"s_and_b32 s63, s{sW}, 1\ns_mul_i32 s63, s63, 6\ns_lshl_b32 s3, s{sR}, 2\ns_add_u32 s99, s63, s3\ns_mul_i32 s63, s99, 2560\ns_add_u32 s62, s62, s63")
    mksrd(q, SM, 52, 53, "s62", nrec=15360)
    q(f"s_mul_i32 s{sM0x}, s{sW}, 15360\ns_add_u32 s{sM0x}, s{sM0x}, {KVR}")
    pre = q.l; groups = []
    for g in range(3):
        for o, n in ((0, 2), (2048, 3)):
            q = Seq()
            if o == 0: q(f"s_cmp_ge_u32 s99, {8 - 2*g}\ns_cselect_b32 s{SM+2}, 15360, 0")
            q(f"s_add_u32 m0, s{sM0x}, {g*5120 + o}\ns_movk_i32 s19, {g*5120 + o}")
            for i in range(n):
                if i: q = Seq(); q(f"s_add_u32 m0, s{sM0x}, {g*5120 + o}")
                q(f"buffer_load_dwordx4 v{vL16}, {srd(SM)}, s19 offen offset:{i*1024} {c.ldpol} lds", "kv")
                groups.append(q.l)
    return pre, groups

def kv_ready():
    a = Seq()
    a.wait(vm="kv")
    a(f"s_cmp_ge_u32 s{sW}, 2\ns_cbranch_scc1 .Lmk2\ns_add_u32 s63, s99, 6\ns_min_u32 s63, s63, 8\ns_cmp_ge_u32 s99, 8\ns_cbranch_scc1 .Lmk2")
    a(f"v_and_b32 v60, 31, v0\nv_bfe_u32 v61, v0, 5, 1\nv_mul_u32_u24 v61, 1280, v61\nv_lshl_add_u32 v60, v60, 3, v61\nv_add_u32 v60, s{sM0x}, v60\nv_mov_b32 v61, 0xf149")
    a.label(".Lmk")
    a("ds_write_b16 v60, v61 offset:1028", "nocount")
    a("v_add_u32 v60, 2560, v60\ns_add_u32 s99, s99, 1\ns_cmp_lt_u32 s99, s63\ns_cbranch_scc1 .Lmk")
    a("s_waitcnt lgkmcnt(0)")
    a.label(".Lmk2")
    return a.l

WOE = [(8, ct) for ct in range(5)] + [(s, 4) for s in range(8)] + [(s, ct) for s in range(4) for ct in range(4)][:14]
WOL = [(s, ct) for s in range(8) for ct in range(4) if (s, ct) not in WOE]
def awo(s, ct): return 144 + 4*WOE.index((s, ct)) if (s, ct) in WOE else 4*WOL.index((s, ct))
APT = 72
def wo_loads(c, lst):
    out = []; cur = None
    def ld(sb, t):
        nonlocal cur
        out.append(I(t, "wo") if sb == cur else [I(f"s_add_u32 s101, s100, {sb*WOBLK}"), I(t, "wo")]); cur = sb
    for part in range(2):
        for s, ct in lst:
            if s == 8: ld(part, f"buffer_load_dwordx2 {ar(awo(s, ct) + 2*part, 2)}, v{VT if ct < 4 else VT4}, {srd(SWS)}, s101 offen offset:{ct*128} {c.ldpol}")
    for s, ct in sorted(lst):
        if s < 8: ld(s, f"buffer_load_dwordx4 {ar(awo(s, ct), 4)}, v{vL16 if ct < 4 else V4}, {srd(SWS)}, s101 offen offset:{(ct&3)*1024} {c.ldpol}")
    return out

def g2(a, c):
    side = [[] for _ in range(29)]; side2 = [[] for _ in range(29)]
    def spread(S, items, h0, h1):
        n = len(items)
        for k, it in enumerate(items): S[h0 + k * (h1 - h0) // n].append(it)
    e1 = epi1()
    spread(side, e1[:-5], 0, 3)
    side[c.h_f1].append([W(vm="st1")] + flag_store(F1, sL, False))
    rd, mf, sm = phi(vBT)
    spread(side, sout(AX, 0) + tails() + rd + mf, 10, 11)
    spread(side, sm, 11, 19)
    spread(side2, sout(AY, 2), 16, 17)
    krd, kmf, ks = kvpart()
    spread(side, krd, 19, 21); spread(side2, kmf, 20, 22); side2[21] += ks
    if c.h_f2 < 28: side[c.h_f2].append([W(vm="st2")] + flag_store(F2, sL, True))
    rd, mf, sm = phi(vBT2)
    spread(side, sout(AX, 0) + rd + mf, 22, 23)
    spread(side, sm[:len(sm) - c.phq], 23, 28)
    pre, kd = kv_dma(c)
    side2[c.h_kv - 2].append(poll_issue(vF1, F1, "f1") + pre)
    side2[c.h_kv].insert(0, poll_check(vF1, F1, "f1"))
    vm = [[] for _ in range(29)]
    ws = wsched(c)
    for m in range(9, 23):
        for hf in range(2):
            H = 2*(m - 9) + hf
            for n in ws[(m, hf)]:
                d = dma_w(c, n)
                for i in range(3): vm[H + (i + 1) // 3].append([d[0]] + d[1+i: 2+i if i < 2 else 9])
    spread(vm, kd, c.h_kv, c.h_kv + c.n_kv)
    for k, h in enumerate((3, 4, 4, 5, 6)): vm[h].append(e1[k-5])
    FO = g3a.FO if c.wol == 1 else F1
    if c.wol == 1:
        d = wo_dma(SX, SW1); vm[0].append(d[0]); vm[1].append(d[1])
        p1, p2 = wo_repack(PT - 12, SW1)
        side2[9].append(p1); vm[10].append(p2[:4]); vm[10].append(p2[4:])
        side[c.h_fo].append([W(vm="stw")] + flag_store(FO, sL, False))
    side2[23].append(poll_issue(vFO, FO, "fo"))
    for m in range(9, 23):
        for hf in range(2):
            H = 2*(m - 9) + hf
            mf = g2_mm(m, hf)
            rd = g2_rd(m, 1) if hf == 0 else g2_rd(m + 1, 0) if m < 22 else []
            it = [(k, r) for k, r in enumerate(rd)] + [((2*k + 1) * len(mf) // (2*len(vm[H])), x) for k, x in enumerate(vm[H])]
            for S in (side[H], side2[H]): it += [(k * len(mf) // len(S), x) for k, x in enumerate(S)]
            it.sort(key=lambda x: x[0])
            a(put(mf, it))
            if hf == 0:
                if m < 22: a.wait(vm=[f"w{m+1}"] + (["wos"] if m == 13 else [])); a.wait(lg=0 if (m in (18, 19) or c.dep == NW) else f"f{m}_0")
                else: a(poll_check(vFO, FO, "fo")); a(kv_ready())
                a("s_barrier")
                if c.stp & 2: stamp(a, c)
    a(sout(AY, 2, True))
    for hd in range(2):
        a(f"ds_read_b128 {vr(Q0 + 4*hd, 4)}, v{vQM} offset:{hd*1280}\nds_read_b64 {vr(QT + 2 + 4*hd, 2)}, v{vQT} offset:{hd*1024}")
    for r in (QT, QT+1, QT+4, QT+5, QT+8, QT+9): a(f"v_mov_b32 v{r}, 0")
    return sm[len(sm) - c.phq:]

Q0, QT, OB0, OB1, KM, KT, VV, MX = 10, 18, 28, 44, 60, 68, 76, 92
TL = 236
def ST(i): return 96 + 16*i
ORDER = [0, 8, 1, 2, 3, 4, 5, 6, 7]
def sdst(t): return OB1 if t == 0 else ST(0) if t == 8 else ST(t)
def k_rd(hd, n):
    t = ORDER[n]; o = t*2560 + hd*1280
    return [I(f"ds_read_b128 {vr(KM + 4*(n&1), 4)}, v{vKL} offset:{o}"),
            I(f"ds_read_b64 {vr(KT + 4*((n>>1)&1) + 2*(n&1), 2)}, v{vKT} offset:{o}")]
def qk(hd, n):
    d = vr(sdst(ORDER[n]), 16)
    return [I(f"{M32} {d}, {vr(KM + 4*(n&1), 4)}, {vr(Q0 + 4*hd, 4)}, 0"),
            I(f"{M32} {d}, {vr(KT + 4*((n>>1)&1), 4)}, {vr(QT + 4*hd + (0 if n & 1 else 2), 4)}, {d}")]
def merge(): return [I(f"v_cndmask_b32 v{ST(0)+r}, v{OB1+r}, v{ST(0)+r}, s[{64+2*r}:{65+2*r}]") for r in range(16)]
def mx(i):
    out = []
    for j in range(8):
        m = MX + (j & 1); x = ST(i) + 2*j
        if i == 0 and j < 2: out.append(I(f"v_max_f32 v{m}, v{x}, v{x+1}"))
        else: out.append(I(f"v_max3_f32 v{m}, v{m}, v{x}, v{x+1}"))
    return out
def mx_fin():
    q = Seq()
    q(f"v_max_f32 v{MX}, v{MX}, v{MX+1}\nv_mov_b32 v{MX+1}, v{MX}\nv_permlane32_swap_b32 v{MX}, v{MX+1}\nv_max_f32 v{MX}, v{MX}, v{MX+1}")
    q(f"v_and_b32 v{MX+1}, 0xffff0000, v{MX}\nv_sub_f32 v{MX}, v{MX+1}, v{MX}\nv_cvt_pk_bf16_f32 v{CM}, -v{MX+1}, v{MX}")
    return q.l
def sub(i):
    d = vr(ST(i), 16)
    return I(f"{M32} {d}, {vr(CM+2, 4)}, {vr(CM, 4)}, {d}")
def ex(i):
    out = []; b = ST(i)
    for j in range(8):
        out += [I(f"v_exp_f32 v{b+2*j}, v{b+2*j}"), I(f"v_exp_f32 v{b+2*j+1}, v{b+2*j+1}")]
        if j: out.append(I(f"v_cvt_pk_bf16_f32 v{b+j-1}, v{b+2*j-2}, v{b+2*j-1}"))
    out.append(I(f"v_cvt_pk_bf16_f32 v{b+7}, v{b+14}, v{b+15}"))
    if i == 0:
        for j in range(8): out.append(I(f"v_and_b32 v{b+8+j}, v{PM+j}, v{b+j}"))
        for j in range(8): out.append(I(f"v_xor_b32 v{b+j}, v{b+8+j}, v{b+j}"))
    return out
def v_rd(hd, n):
    t = ORDER[n]
    return [I(f"ds_read_b64_tr_b16 {vr(VV + 8*(n&1) + 2*i, 2)}, v{vTR+i} offset:{t*2560 + hd*1280}") for i in range(4)]
def pv(hd, n):
    t = ORDER[n]; o = vr(OB0 if hd == 0 else OB1, 16)
    p = ST(0) if t == 0 else ST(0) + 8 if t == 8 else ST(t)
    return [I(f"{M32} {o}, {vr(VV + 8*(n&1), 4)}, {vr(p, 4)}, {o if n else 0}"),
            I(f"{M32} {o}, {vr(VV + 8*(n&1) + 4, 4)}, {vr(p + 4, 4)}, {o}")]
def fin(u, O, c):
    q = Seq(); t = O + 10
    if u >= 2: q(f"v_add_f32 v{t}, 0x358637bd, v{t}")
    q(f"v_rcp_f32 v{t}, v{t}\nv_mul_f32 v{t}, v{vG0 if u >= 2 else vG1}, v{t}")
    for i in range(5):
        q(f"v_pk_mul_f32 {vr(O+2*i, 2)}, {vr(O+2*i, 2)}, {vr(t, 2)} op_sel_hi:[1,0]\nv_cvt_pk_bf16_f32 v{O+12+i if i < 4 else TL+u}, v{O+2*i}, v{O+2*i+1}")
    q(f"buffer_store_dwordx4 {vr(O+12, 4)}, v{vOA}, {srd(SWS)}, s{sOA} offen offset:{u*512} sc1", "st3")
    return q.l
def par_loads(c):
    q = Seq(); VP = 245
    q(f"s_lshl_b32 s62, s{sP}, 6\ns_add_u32 s62, s62, s{sW}\ns_mul_i32 s99, s62, 768\ns_add_u32 s99, s99, {PARO}\nv_min_u32 v{VP}, {44*16}, v{vL16}")
    out = [q.l]
    for r in range(16):
        out.append([I(f"buffer_load_dwordx4 {ar(APT + 4*r, 4)}, v{VP}, {srd(SWS)}, s99 offen {c.ldpol}", "pl"), I("s_add_u32 s99, s99, 3072")])
    return out
def kvsum():
    q = Seq(); ID = Q0; t = Q0 + 4
    q(f"v_bfe_u32 v{t}, v0, 3, 2\nv_bfe_u32 v{t+1}, v0, 1, 1\nv_lshl_add_u32 v{t}, v{t}, 1, v{t+1}")
    q(f"v_and_b32 v{t+1}, 1, v0\nv_lshlrev_b32 v{t+1}, 4, v{t+1}\nv_mov_b32 v{t+2}, 0x3f80\nv_lshlrev_b32 v{t+1}, v{t+1}, v{t+2}")
    q(f"v_bfe_u32 v{t+2}, v0, 2, 1\nv_bfe_u32 v{t+3}, v0, 5, 1\nv_cmp_eq_u32 vcc, v{t+2}, v{t+3}\nv_cndmask_b32 v{t+1}, 0, v{t+1}, vcc")
    for i in range(4): q(f"v_cmp_eq_u32 vcc, {i}, v{t}\nv_cndmask_b32 v{ID+i}, 0, v{t+1}, vcc")
    pre = [q.l]
    o = vr(OB0, 16)
    mf = [I(f"{M32} {o}, {vr(ID, 4)}, {ar(APT + 4*r, 4)}, {o if r else 0}") for r in range(16)]
    q = Seq()
    q(f"s_lshl_b32 s62, s{sW}, 10\ns_add_u32 s62, s62, {KVS}\nv_add_u32 v{t}, s62, v{vL16}")
    for i in range(4): q(f"v_cvt_pk_bf16_f32 v{OB0+i}, v{OB0+2*i}, v{OB0+2*i+1}")
    q(f"ds_write_b128 v{t}, {vr(OB0, 4)}")
    return pre, mf, q.l
def a_apply(T, O):
    q = Seq(); t = Q0
    q(f"v_and_b32 v{t}, 31, v0\nv_and_b32 v{t+1}, 19, v0\nv_cmp_gt_u32 vcc, 16, v{t}\nv_cndmask_b32 v{t}, v{t+1}, v{t}, vcc\nv_bfe_u32 v{t+1}, v0, 5, 1")
    q(f"v_mul_u32_u24 v{t+2}, 320, v{t+1}\nv_lshl_add_u32 v{t+2}, v{t}, 4, v{t+2}\nv_add_u32 v{t+2}, {KVS}, v{t+2}")
    q(f"v_lshlrev_b32 v{t+3}, 11, v{t+1}\nv_lshl_add_u32 v{t+3}, v{t}, 2, v{t+3}\nv_add_u32 v{t+3}, {KVS + 640}, v{t+3}")
    q(f"s_mul_i32 s62, s{sW}, 5120\ns_add_u32 s62, s62, {STG - KVR}\nv_add_u32 v{t}, s62, v{vKL}\nv_mul_u32_u24 v{t+1}, 5120, v{t+1}\nv_add3_u32 v{t+1}, v{t+1}, s62, v{vKT}")
    for hd in range(2):
        b = T + 24*hd
        q(f"ds_read_b128 {vr(b+14, 4)}, v{t} offset:{hd*1280}\nds_read_b128 {vr(b+18, 4)}, v{t} offset:{5120 + hd*1280}\nds_read_b32 v{b+12}, v{t+1} offset:{hd*1280}")
        for r in (9, 10, 11, 13): q(f"v_mov_b32 v{b+r}, 0")
    pre = q.l
    q = Seq()
    for hd in range(2):
        b = T + 24*hd
        q(f"ds_read_b128 {vr(b, 4)}, v{t+2} offset:{hd*1024}\nds_read_b128 {vr(b+4, 4)}, v{t+2} offset:{2048 + hd*1024}\nds_read_b32 v{b+8}, v{t+3} offset:{hd*1024}")
    for hd in range(2):
        b = T + 24*hd; o = vr(O[hd], 16)
        q(f"{M32} {o}, {vr(b, 4)}, {vr(b+14, 4)}, 0\n{M32} {o}, {vr(b+4, 4)}, {vr(b+18, 4)}, {o}\n{M32} {o}, {vr(b+8, 4)}, {vr(b+12, 4)}, {o}")
    return pre, q.l

def attention(a, c, rest):
    ld = wo_loads(c, WOE[:13])
    wl = wo_loads(c, WOE[13:] + WOL)
    a(k_rd(0, 0) + k_rd(0, 1) + [k_rd(0, 2)[1], k_rd(0, 3)[1]])
    k = len(rest) // 2
    a(rest[:k]); rest = rest[k:]
    if c.stp & 4: stamp(a, c)
    for n in range(9):
        a(qk(0, n))
        if n + 2 < 9: a(k_rd(0, n + 2)[:1 if n < 2 else 2])
        for _ in range(3):
            if ld: a(ld.pop(0))
        if n < 3: a(rest[n*len(rest)//3: (n+1)*len(rest)//3])
        if n == 3: a(merge())
        if n >= 4: a(mx(n - 4))
        if n == c.h_f2 - 28: a([W(vm="st2")] + flag_store(F2, sL, True))
    a(k_rd(1, 0) + k_rd(1, 1) + v_rd(0, 0) + v_rd(0, 1))
    a(qk(1, 0))
    for i in range(5, 8): a(mx(i))
    ld = wl[:2*c.f2n - 1] + [poll_issue(vF2, F2, "f2")] + wl[2*c.f2n - 1: 2*c.f2n + 3]
    ld += [poll_check(vF2, F2, "f2")] + par_loads(c) + wl[2*c.f2n + 3:]
    stamp(a, c)
    for hd in range(2):
        a(mx_fin())
        a(sub(0)); a(sub(1))
        if hd == 1:
            kpre, kmf, kfin = kvsum()
            a(fin(0, OB0, c)); a(kpre)
        for i in range(9):
            main = ex(i) if i < 8 else []
            fill = []
            if i + 2 < 8: fill.append(sub(i + 2))
            if i >= 1:
                ns = [0, 1] if i == 1 else [i]
                for n in ns:
                    fill += pv(hd, n)
                    if n + 2 < 9: fill += v_rd(hd, n + 2)
                if hd == 0:
                    fill += qk(1, i)
                    if i + 1 < 9: fill += k_rd(1, i + 1)
                    if i == 3: main += merge()
                    if i >= 4: main += mx(i - 4)
            if hd == 1 and 2 <= i <= 5: fill += kmf[4*(i-2): 4*i-4]
            if hd == 1 and i == 7: main += kfin
            for _ in range(3 if i else 2):
                if ld: fill.append(ld.pop(0))
            if main: a(weave(main, fill))
            else: a(fill)
        if hd == 0:
            a(v_rd(1, 0) + v_rd(1, 1))
            for i in range(5, 8): a(mx(i))
        stamp(a, c)
    assert not ld
    apre, amf = a_apply(ST(2), [ST(0), ST(1)])
    a(apre)
    a.wait(lg=0); a("s_barrier")
    a(amf)
    a(fin(1, OB1, c))
    a(fin(2, ST(0), c)); a(fin(3, ST(1), c))
    a(f"s_mov_b32 exec_hi, 0\nbuffer_store_dwordx4 {vr(TL, 4)}, v{vOT}, {srd(SWS)}, s{sOT} offen sc1\ns_mov_b32 exec_hi, -1", "st3")
    a.wait(vm="st3")
    a(flag_store(F3, sL, True))

def p3(a, c):
    OP, AC = 0, 144
    V1, V2, VW, VO = 236, 237, 238, 241
    a(poll_issue(vF3, F3, "f3"))
    a(f"v_add_u32 v{V1}, 4096, v{vL16}\nv_add_u32 v{V2}, 8192, v{vL16}")
    for tt in range(4):
        a(f"s_add_u32 s62, s{sW}, {tt}\ns_and_b32 s62, s62, 3")
        if tt: a(f"s_mul_i32 s63, s62, 15360\ns_add_u32 s63, s63, {(tt-1)*5120}\nv_add_u32 v{VW+tt-1}, s63, v{vL16}")
        a(f"s_lshl_b32 s63, s{sRT}, 2\ns_add_u32 s62, s62, s63\ns_mul_i32 s62, s62, 36864\ns_mul_i32 s63, s{sW}, 9216\ns_add_u32 s62, s62, s63\ns_add_u32 s{64+tt}, s62, {OPO}")
    a(f"v_and_b32 v{VO}, 15, v0\nv_mul_u32_u24 v{VO}, 1152, v{VO}\nv_bfe_u32 v{VO+1}, v0, 4, 1\nv_lshl_add_u32 v{VO+1}, v{VO+1}, 3, v{VO}\nv_and_b32 v254, 48, v0\nv_add_u32 v{VO}, v254, v{VO}")
    a(f"s_lshl_b32 s62, s{sRT}, 2\ns_add_u32 s62, s62, s{sW}\ns_mul_i32 s62, s62, {16*1152}\ns_mul_i32 s63, s{sCB}, 144\ns_add_u32 s68, s62, s63")
    a(f"s_mul_i32 s62, s{sW}, 15360\nv_add_u32 v254, s62, v{vL16}")
    mksrd(a, SM, 48, 49, nrec=2048*1152)
    a(poll_check(vF3, F3, "f3"))
    stamp(a, c)
    for s in range(9):
        for tt in range(4):
            a(f"buffer_load_dwordx4 {vr(OP + (s*4 + tt)*4, 4)}, v{[vL16, V1, V2][s >> 2]}, {srd(SWS)}, s{64+tt} offen offset:{(s & 3)*1024} {c.ldpol}")
    for s in range(9):
        for tt in ([0, 1, 2, 3] if s < 8 else [1, 2, 3, 0]):
            for ct in range(5):
                d = vr(AC + (tt*5 + ct)*4, 4)
                a(f"{M16} {d}, {ar(awo(s, ct), 4)}, {vr(OP + (s*4 + tt)*4, 4)}, {d if s else 0}")
    stamp(a, c)
    for tt in range(1, 4):
        for ct in range(5): a(f"ds_write_b128 v{VW+tt-1}, {vr(AC + (tt*5 + ct)*4, 4)} offset:{ct*1024}")
    a.wait(lg=0); a("s_barrier")
    for ct in range(5):
        for sl in range(3): a(f"ds_read_b128 {vr((ct*3 + sl)*4, 4)}, v254 offset:{sl*5120 + ct*1024}")
    for ct in range(5):
        d = AC + ct*4; b = ct*12
        for i in (0, 2): a(f"v_pk_add_f32 {vr(d+i, 2)}, {vr(d+i, 2)}, {vr(b+i, 2)}\nv_pk_add_f32 {vr(b+4+i, 2)}, {vr(b+4+i, 2)}, {vr(b+8+i, 2)}")
        for i in (0, 2): a(f"v_pk_add_f32 {vr(d+i, 2)}, {vr(d+i, 2)}, {vr(b+4+i, 2)}")
        a(f"v_cvt_pk_bf16_f32 v{64+2*ct}, v{d}, v{d+1}\nv_cvt_pk_bf16_f32 v{65+2*ct}, v{d+2}, v{d+3}")
        if ct in (1, 3): a(f"buffer_store_dwordx4 {vr(64 + 2*(ct-1), 4)}, v{VO}, {srd(SM)}, s68 offen offset:{32*(ct-1)}")
        if ct == 4: a(f"s_mov_b32 exec_hi, 0\nbuffer_store_dwordx2 {vr(72, 2)}, v{VO+1}, {srd(SM)}, s68 offen offset:128\ns_mov_b32 exec_hi, -1")

def finish(a, c):
    stamp(a, c)
    if c.stamps:
        a(f"s_cmp_lg_u32 s{sW}, 0\ns_cbranch_scc1 .Lend\ns_lshl_b32 s62, s2, 7\nv_lshrrev_b32 v4, 2, v{vL16}\ns_mov_b64 exec, 0xffffffff")
        a(f"buffer_store_dword v{vSTAMP}, v4, {srd(SWS)}, s62 offen")
    a.label(".Lend")
    a("s_endpgm")
    a.label(".Lcodeend")

def build(c, path):
    a = Seq(); nst[0] = 0
    prologue(a, c)
    setup1(a, c)
    setup2(a, c)
    issue(a, c, c.o2)
    if c.pst: stamp(a, c)
    a.wait(vm=["w0", "x0", "ga"])
    if c.pst: stamp(a, c)
    for s in range(9): a(f"ds_read_u16 v{vGA+s}, v{vMD+3} offset:{32*s}", f"g{s}")
    a(rd_x(0))
    issue(a, c, c.o2b)
    a.wait(lg="g0")
    a(patch(0)); a.wait(lg=0); a("s_barrier")
    stamp(a, c)
    a(rd_w(0, 0))
    issue(a, c, c.o3)
    ex = {}
    def add(k, v, pos=9): ex.setdefault(k, []).append(flat(v) if isinstance(k, tuple) else (pos, flat(v)))
    p1, p2 = producer(c)
    add(c.s_prod, p1, c.p_pr); add(c.s_prod + (c.p_pr + 4) // 10, p2, (c.p_pr + 4) % 10)
    add(c.s_fw, tag_check() + [W(vm="stp")] + flag_store(FW))
    add(2*c.s_pw - 1, poll_issue(vFW, FW, "fw"))
    add(("pre", c.s_pw), poll_check(vFW, FW, "fw"))
    allo = ",".join([c.o1, c.o2, c.o2b, c.o3]).split(",")
    if "wo" not in allo: add(2*c.s_wo, wo_dma())
    add(("pre", (c.s_rp - 1) // 2), [W(vm="wos")])
    p1, p2 = wo_repack()
    add(c.s_rp, p1, 7); add(c.s_rp + 1, p2, 9)
    add(c.s_rp + 2, wa_load())
    q = Seq(); setup3(q, c); add(15, q.l)
    pass1(a, c, ex)
    stamp(a, c)
    if c.stop == 1:
        a.wait(vm=0, lg=0); finish(a, c)
        open(path, "w").write(wrap(finalize(a.l, True), LDS_TOTAL)); return
    b = Seq()
    rest = g2(b, c)
    attention(b, c, rest)
    a(sched(b.l, c.sch, "g2+att", c.beta / 100) if c.sch else b.l)
    stamp(a, c)
    p3(a, c)
    finish(a, c)
    open(path, "w").write(wrap(finalize(a.l, True), LDS_TOTAL))

if __name__ == "__main__":
    c = Cfg()
    path = sys.argv[1]
    for kv in sys.argv[2:]:
        k, v = kv.split("=")
        setattr(c, k, type(getattr(c, k))(int(v)) if not isinstance(getattr(c, k), str) else v)
    build(c, path)
```

```python
import sys
sys.path.insert(0, "work")
from fw import *

class Cfg:
    stop = 99
    stamps = True
    ldpol = "sc1"
    rotmod = 9
    stag = 0x7520
    o1 = 'pr'
    o2 = 'x1,w1'
    o2b = 'tag,x2'
    o3 = 'w2'
    p_pr = 0
    s_rp = 11
    fl = 1
    g3f = 1
    nwg = 256
    px = '1368'
    pw = 'cfi'
    pw2 = '258124578'
    pv = 5
    exp = 0
    m44 = 0
    wol = 0
    h_fo = 13
    s_wa = 9
    x2l = 0
    stp = 0
    pst = 0
    gx = (1, 3, 6, 8)
    gw = (2, 5, 8)
    sch = 32
    beta = 50
    s_prod = 0
    s_fw = 3
    s_pw = 6
    s_wo = 2
    h_f1 = 12
    h_kv = 17
    n_kv = 7
    h_f2 = 27
    phq = 60
    tlb = 0
    dep = 4
    f2n = 2
    s2 = 1
    a2n = -1
    npl = 5
    ks0 = 9
    kn = 4
    po = 1
    nwl = 4
    pon = 3
    e1n = 3
    e1s = '34456'
    pe = 8
    peg = 15
    pop = 16
    p3d = 3
    f3n = 7
    nfl = 12
    p3s = 0
NW = 5
F1, FW, F3, F2, FO, F3B = 0x60000, 0x80000, 0x20000, 0x40000, 0xA0000, 0xC0000
KVO, PKO, PARO, WOO, OPO = 0x100000, 0x600000, 0x8A0000, 0x960000, 0xAB0000
KV_PAIR, KV_KIND = 163840, 2621440
WOBLK = 5248
PSEC = 72 * 1152
WSL = 12416
KVR = 62080
XR = KVR
WOS = KVR + 49152
STG = KVR + 61440
SST = 7680
WPH = STG + 4 * SST
KVS = WPH + 4096
LDS_TOTAL = KVS + 4096
SX, SW1, SPK, SPS, SWS, SM = 4, 8, 12, 92, 20, 24
sW, sR, sG, sT = 28, 29, 30, 31
sKA, sKP, sLE, sQS = 32, 37, 46, 18
sL, sM0x, sM0w1, sM0w2 = 54, 55, 56, 57
sTAG = 58
sKX, sKW = 64, 73
sCB, sRT, sP = 96, 97, 98
sOA, sOT = 16, 17
def srd(n): return f"s[{n}:{n+3}]"
def vr(n, k): return f"v[{n}:{n+k-1}]"
def ar(n, k): return f"a[{n}:{n+k-1}]"
vL = 1
PM = 2
vX, vXR, vW1, vWA1, vWT1, vPAT, vGA = 10, 14, 16, 19, 20, 21, 22
vPK, vPS, vSA, vST, vSL, vK2, vF1 = 31, 34, 35, 36, 37, 38, 39
vKS = 10
AX, WA1, WA2, AD, FR, AY, ACC = 40, 64, 76, 88, 96, 144, 160
vPR1, vPR3, vPS3, vRP, vMD, vP4, vWP, vWP2, vWM = 200, 201, 203, 204, 207, 211, 212, 213, 214
vTW, vSC, V4, VT, VT4, vFW, vFO = 216, 218, 219, 220, 221, 222, 223
vL16, vG0, vG1, vTR = 224, 225, 226, 227
vBL, vBH, vBT, vKL, vKT = 231, 232, 233, 234, 235
vBT2, vQM, vQT, vONE = 236, 237, 238, 239
vOA, vOT, vF2, vF3, vPD, vTG, CM, vSTAMP = 240, 241, 242, 243, 244, 246, 248, 255
vWM2 = 254
fT, fKG, fH, fKL, fRR, fC, fC0, fC1, fQ = range(144, 153)
M32 = "v_mfma_f32_32x32x16_bf16"
M16 = "v_mfma_f32_16x16x32_bf16"

nst = [0]
def stamp(a, c):
    if not c.stamps: return
    a("s_memrealtime s[60:61]")
    a.wait(lg=0)
    a(f"v_writelane_b32 v{vSTAMP}, s60, {nst[0]}")
    nst[0] += 1

def lin(a, dst, terms, const=None):
    first = True
    for f, m in terms:
        if first:
            a(f"v_mul_u32_u24 v{dst}, {m}, v{f}")
            if not (const is None or const == 0): a(f"v_add_u32 v{dst}, {const}, v{dst}")
            first = False
        else:
            if 0 <= m <= 64: a(f"v_mad_u32_u24 v{dst}, v{f}, {m}, v{dst}")
            else:
                a(f"s_movk_i32 s63, {m}" if m < 32768 else f"s_mov_b32 s63, {m}")
                a(f"v_mad_u32_u24 v{dst}, v{f}, s63, v{dst}")

def mksrd(a, n, lo, hi, off=None, nrec=0x7fffffff):
    if off is None: a(f"s_mov_b32 s{n}, s{lo}\ns_mov_b32 s{n+1}, s{hi}")
    else: a(f"s_add_u32 s{n}, s{lo}, {off}\ns_addc_u32 s{n+1}, s{hi}, 0")
    a(f"s_mov_b32 s{n+2}, {nrec}\ns_mov_b32 s{n+3}, 0x20000")

def dma_x(s):
    q = Seq()
    q(f"s_add_u32 m0, s{sM0x}, {(s % 3) * 16384}")
    for i in range(4):
        q(f"buffer_load_dwordx4 v{vX+i}, {srd(SX)}, s{sKX+s} offen offset:{i*1024} lds", f"x{s}")
    return q.l
def dma_w(c, n):
    q = Seq()
    q(f"s_add_u32 m0, s{sM0w1 if n < 9 else sM0w2}, {(n % NW) * WSL}")
    for i in range(3):
        if n < 9: q(f"buffer_load_dwordx4 v{vW1+i}, {srd(SW1)}, s{sKW+n} offen offset:{i*1024} lds", f"w{n}")
        elif n < 14: q(f"buffer_load_dwordx4 v{vPK+i}, {srd(SPK)}, s{sKA+n-9} offen offset:{i*1024} {c.ldpol} lds", f"w{n}")
        else: q(f"buffer_load_dwordx4 v{vPS}, {srd(SPK)}, s{sKP+3*((n-14)%3)+i} offen offset:{i*1024} {c.ldpol} lds", f"w{n}")
    if n in (16, 19): q(f"v_add_u32 v{vPS}, {PSEC}, v{vPS}")
    return q.l
def rd_w(n, ks):
    base = (n % NW) * WSL; out = []
    for h in range(5):
        for j in range(2):
            ad = vWA1 if h < 4 else vWT1; off = base + ks * 6208 + j * 768 + (h * 48 if h < 4 else 0)
            out.append(I(f"ds_read_b64_tr_b16 {vr(FR + ks*24 + h*4 + j*2, 2)}, v{ad} offset:{off}", f"f{n}_{ks}"))
    return out
def rd_x(s):
    return [I(f"ds_read_b128 {ar((s*4 + ks*2 + tt)*4, 4)}, v{vXR+ks} offset:{(s%3)*16384 + tt*2048}", f"xr{s}") for ks in range(2) for tt in range(2)]
def mm(s, ks):
    out = []
    for h in range(5):
        for tt in range(2):
            d = vr(ACC + (h*2 + tt)*4, 4)
            out.append(I(f"{M16} {d}, {vr(FR + ks*24 + h*4, 4)}, {ar((s*4 + ks*2 + tt)*4, 4)}, {0 if (s == 0 and ks == 0) else d}"))
    return out
def patch(s): return I(f"ds_write_b16 v{vPAT}, v{vGA+s} offset:{(s % NW) * WSL}", "pat")

def pr_dma():
    q = Seq()
    q("s_mov_b32 m0, s91")
    for i in range(4): q(f"buffer_load_dwordx4 v{vW1+i if i < 3 else vP4}, {srd(SPS)}, 0 offen offset:{i*1024} lds", "pr")
    return q.l
def issue(a, c, o):
    for t in o.split(","):
        if t == "pr": a(pr_dma())
        elif t == "tag": a(tag_issue())
        elif t == "wo": a(wo_dma())
        elif t and t[0] == "x": a(dma_x(int(t[1])))
        elif t and t[0] == "w": a(dma_w(c, int(t[1])))

def prologue(a, c):
    a("s_getpc_b64 s[60:61]")
    a("s_load_dwordx16 s[32:47], s[0:1], 0\ns_load_dwordx4 s[48:51], s[0:1], 64\ns_load_dwordx2 s[52:53], s[0:1], 80")
    a(f"s_memrealtime s[{sTAG}:{sTAG+1}]")
    a(f"s_cmp_ge_u32 s2, {c.nwg}\ns_cbranch_scc1 .Lend")
    a(f"v_lshrrev_b32 v2, 6, v0\nv_and_b32 v{vL}, 63, v0")
    a(f"v_readfirstlane_b32 s{sW}, v2")
    a("s_lshr_b32 s3, s2, 3")
    a(f"s_and_b32 s62, s3, 7\ns_lshl_b32 s62, s62, 13\nv_and_b32 v{fT}, 15, v0\nv_lshlrev_b32 v3, 7, v{fT}\nv_lshl_add_u32 v3, v2, 11, v3\nv_add_u32 v3, s62, v3")
    a(f"v_min_u32 v3, .Lcodeend-{KN}-8, v3")
    a("global_load_dword v9, v3, s[60:61]", "pf")
    if c.m44:
        a(f"s_and_b32 s62, s2, 3\ns_and_b32 s63, s3, 3\ns_lshl2_add_u32 s{sR}, s62, s63")
        a(f"s_and_b32 s62, s2, 4\ns_bfe_u32 s{sG}, s3, 0x20002\ns_or_b32 s{sG}, s{sG}, s62\ns_lshr_b32 s{sT}, s3, 4")
        a(f"s_lshl_b32 s62, s63, 2\ns_lshr_b32 s62, {c.stag}, s62\ns_and_b32 s62, s62, 15\ns_lshr_b32 s63, s3, 2\ns_add_u32 s62, s62, s63\ns_sub_u32 s63, s62, 9\ns_cselect_b32 s62, s62, s63")
    else:
        a(f"s_and_b32 s62, s2, 1\ns_lshl_b32 s62, s62, 3\ns_and_b32 s{sR}, s3, 7\ns_or_b32 s{sR}, s{sR}, s62")
        a(f"s_and_b32 s62, s2, 6\ns_bfe_u32 s{sG}, s3, 0x10003\ns_or_b32 s{sG}, s{sG}, s62\ns_lshr_b32 s{sT}, s3, 4")
    if c.m44: pass
    elif c.stag == 0:
        m, sh = magic_div(c.rotmod, 32)
        a(f"s_mul_i32 s62, s3, {m}\ns_lshr_b32 s62, s62, {sh}\ns_mul_i32 s62, s62, {c.rotmod}\ns_sub_u32 s62, s3, s62")
    else:
        a(f"s_lshr_b32 s62, s3, 1\ns_and_b32 s62, s62, 12\ns_lshr_b32 s62, {c.stag}, s62\ns_and_b32 s62, s62, 15\ns_and_b32 s63, s3, 7\ns_add_u32 s62, s62, s63\ns_sub_u32 s63, s62, 9\ns_cselect_b32 s62, s62, s63")
    a(f"s_lshl_b32 s{sKX}, s62, 7\ns_mul_i32 s{sKW}, s62, 221184")
    a(f"v_lshrrev_b32 v{fKG}, 4, v{vL}\nv_and_b32 v4, 7, v0\nv_xor_b32 v4, v4, v{fKG}\nv_lshlrev_b32 v4, 4, v4\nv_xor_b32 v5, 64, v4")
    a(f"v_lshrrev_b32 v6, 3, v{vL}\nv_lshl_add_u32 v6, v2, 5, v6\nv_mul_u32_u24 v6, 1152, v6")
    a(f"v_add_u32 v{vX}, v6, v4\nv_add_u32 v5, v6, v5\nv_add_u32 v{vX+1}, 8192, v5\nv_add_u32 v{vX+2}, 16384, v{vX}\nv_add_u32 v{vX+3}, 24576, v5")
    a(f"s_lshr_b32 s62, s{sW}, 1\ns_lshl_b32 s62, s62, 2\ns_and_b32 s63, s{sW}, 1\ns_add_u32 s89, s62, s63\ns_mul_i32 s99, s89, {8*3456}")
    m12, s12 = magic_div(12, 192); m3, s3 = magic_div(3, 12)
    for i in range(3):
        a(f"v_add_u32 v4, {64*i}, v{vL}\nv_mul_u32_u24 v5, {m12}, v4\nv_lshrrev_b32 v5, {s12}, v5")
        a(f"v_mad_i32_i24 v4, v5, -12, v4\nv_mul_u32_u24 v6, {m3}, v4\nv_lshrrev_b32 v6, {s3}, v6")
        a(f"v_mad_i32_i24 v4, v6, -3, v4\nv_lshlrev_b32 v4, 4, v4\nv_min_u32 v4, 20, v4\nv_mad_u32_u24 v4, v6, 36, v4")
        a(f"v_and_b32 v6, 8, v5\nv_add_u32 v5, v5, v6\nv_mul_u32_u24 v5, 3456, v5\nv_add3_u32 v{vW1+i}, v4, v5, s99")
        if i: a(f"v_subrev_u32 v{vW1+i}, {1024*i}, v{vW1+i}")
    a(f"s_lshl_b32 s{sM0x}, s{sW}, 12\ns_add_u32 s{sM0x}, s{sM0x}, {XR}\ns_mul_i32 s{sM0w1}, s{sW}, 3104\ns_mul_i32 s{sM0w2}, s{sW}, 3072")
    a(f"s_mul_i32 s62, s{sR}, {128*1152}\ns_mul_i32 s90, s{sG}, 144\ns_mul_i32 s3, s{sT}, 1152\ns_add_u32 s63, s90, s3\ns_add_u32 s63, s63, 1152")
    a.wait(lg=0)
    mksrd(a, SX, 32, 33, "s62"); mksrd(a, SW1, 42, 43, "s63")
    if c.stamps: a(f"v_writelane_b32 v{vSTAMP}, s{sTAG}, 0"); nst[0] = 1
    a(f"s_or_b32 s62, s2, s{sW}\ns_cbranch_scc1 .Lnotag")
    a(f"s_bitset1_b32 s{sTAG+1}, 31\nv_mov_b32 v4, s{sTAG}\nv_mov_b32 v5, s{sTAG+1}\nv_lshlrev_b32 v6, 3, v{fT}")
    a("global_store_dwordx2 v6, v[4:5], s[50:51] sc1", "nocount")
    a.label(".Lnotag")
    a(dma_x(0)); a(dma_w(c, 0))
    kn = lambda s: f"s_add_u32 s{sKX+s}, s{sKX+s-1}, 128\ns_cmp_eq_u32 s{sKX+s}, 1152\ns_cselect_b32 s{sKX+s}, 0, s{sKX+s}\ns_mul_i32 s{sKW+s}, s{sKX+s}, 1728"
    a(kn(1))
    if "x1" in c.o1: a(dma_x(1))
    if c.pst: stamp(a, c)
    mksrd(a, SM, 46, 47, nrec=1152)
    a(f"s_lshr_b32 s62, s{sW}, 1\ns_lshl_b32 s62, s62, 6\ns_and_b32 s63, s{sW}, 1\ns_lshl_b32 s63, s63, 4\ns_add_u32 s62, s62, s63\ns_lshl_b32 s88, s{sW}, 10\ns_add_u32 m0, s88, {KVS}")
    a(f"v_lshrrev_b32 v4, 1, v{vL}\nv_lshl_add_u32 v4, v4, 7, s{sKX}\nv_subrev_u32 v5, 1152, v4\nv_min_u32 v4, v4, v5\nv_and_b32 v5, 1, v0\nv_lshl_add_u32 v4, v5, 5, v4")
    a(f"buffer_load_dwordx4 v4, {srd(SM)}, s62 offen lds", "ga")
    a(f"s_lshr_b32 s62, s{sR}, 1\ns_mul_i32 s62, s62, {72*3456}\ns_add_u32 s62, s62, s90\ns_add_u32 s63, s3, 1152\ns_bitcmp1_b32 s{sR}, 0\ns_cselect_b32 s63, 0, s63\ns_add_u32 s62, s62, s63")
    a(f"s_and_b32 s63, s{sR}, s{sT}\ns_cselect_b32 s100, s42, s34\ns_cselect_b32 s101, s43, s35")
    mksrd(a, SPS, 100, 101, "s62", nrec=71*3456+144)
    a(f"s_mul_i32 s91, s{sW}, {SST}\ns_add_u32 s91, s91, {STG}")
    m3b, s3b = magic_div(3, 64)
    a(f"v_mul_u32_u24 v5, {m3b}, v{vL}\nv_lshrrev_b32 v5, {s3b}, v5\nv_mad_i32_i24 v4, v5, -3, v{vL}\nv_lshlrev_b32 v4, 4, v4\nv_min_u32 v4, 20, v4\nv_mad_u32_u24 v{vMD}, v5, 36, v4")
    if "pr" in c.o1: a(pr_dma()[:4])
    a(f"s_mul_i32 s62, s{sW}, 36\ns_add_u32 s62, s62, {64*3456-3072}\nv_mul_u32_u24 v5, 3456, v5\nv_add3_u32 v{vP4}, v4, v5, s62")
    if c.g3f:
        a(f"v_bfe_u32 v5, v0, 2, 3\nv_mul_u32_u24 v5, 3456, v5\nv_and_b32 v4, 3, v0\nv_mad_u32_u24 v4, v4, 36, v5\nv_add_u32 v4, {64*3456-3072+20}, v4\nv_cmp_le_u32 vcc, 32, v{vL}\nv_cndmask_b32 v{vP4}, v{vP4}, v4, vcc")
    if "pr" in c.o1: a(pr_dma()[4:])
    if c.pst: stamp(a, c)
    for s in range(2, 9): a(kn(s))
    a(f"s_lshl_b32 s{sP}, s{sG}, 1\ns_add_u32 s{sP}, s{sP}, s{sT}\ns_lshl_b32 s{sL}, s{sR}, 4\ns_add_u32 s{sL}, s{sL}, s{sP}")
    a(f"s_bfe_u32 s63, s{sL}, 0x40001\ns_mul_i32 s63, s63, {36*1152}\ns_lshr_b32 s3, s{sL}, 5\ns_mul_i32 s3, s3, 144\ns_add_u32 s63, s63, s3")
    a(f"s_bitcmp1_b32 s{sL}, 0\ns_cselect_b32 s100, s38, s44\ns_cselect_b32 s101, s39, s45")
    mksrd(a, 84, 100, 101, "s63", nrec=35*1152+144)
    m9, s9 = magic_div(9, 512)
    for i in range(2):
        a(f"v_add_u32 v4, {256*i}, v0\nv_mul_u32_u24 v5, {m9}, v4\nv_lshrrev_b32 v5, {s9}, v5\nv_mad_i32_i24 v4, v5, -9, v4\nv_lshlrev_b32 v4, 4, v4\nv_mul_u32_u24 v5, 1152, v5\nv_add_u32 v{vMD+1+i}, v4, v5")
    a(f"s_and_b32 s63, s{sW}, 1\ns_lshl_b32 s62, s{sP}, 1\ns_add_u32 s62, s62, s63\ns_mul_i32 s62, s62, 648")
    mksrd(a, SM, 36, 37, "s62", nrec=648)
    if c.wol == 1: a(wo_dma()[2])
    a(f"v_lshrrev_b32 v4, 2, v{vL}\ns_add_u32 s62, s88, {KVS}\nv_lshl_add_u32 v{vMD+3}, v4, 1, s62")
    a(f"v_and_b32 v{fC}, 3, v0\nv_mul_u32_u24 v{vPAT}, 192, v4\nv_mad_u32_u24 v{vPAT}, v{fC}, 48, v{vPAT}\nv_add3_u32 v{vPAT}, v{vPAT}, s{sM0w1}, 40")
    mksrd(a, SWS, 52, 53, nrec=0x10000000)
    if c.tlb:
        a(f"v_min_u32 v5, {(1 << (24 - c.tlb)) - 1}, v{vL}\nv_lshlrev_b32 v5, {c.tlb}, v5")
        a(f"buffer_load_dword v96, v5, {srd(SWS)}, 0 offen", "pf")
        a(f"v_min_u32 v5, {2048*1152 - 4}, v5\nglobal_load_dword v97, v5, s[48:49]", "pf")
    a(f"s_mul_i32 s62, s{sG}, {4*PSEC}\ns_add_u32 s62, s62, {PKO - 2048}")
    mksrd(a, SPK, 52, 53, "s62", nrec=4*PSEC + 2048)
    if c.m44: a(f"s_lshr_b32 s3, s2, 3\ns_lshr_b32 s{sCB}, s3, 2\ns_and_b32 s{sRT}, s3, 3\ns_and_b32 s62, s2, 3\ns_lshl3_add_u32 s{sRT}, s62, s{sRT}\ns_and_b32 s62, s2, 4\ns_add_u32 s{sRT}, s{sRT}, s62")
    else: a(f"s_lshr_b32 s3, s2, 3\ns_lshr_b32 s{sCB}, s3, 2\ns_and_b32 s{sRT}, s3, 3\ns_and_b32 s62, s2, 1\ns_lshl_b32 s62, s62, 4\ns_add_u32 s{sRT}, s{sRT}, s62\ns_and_b32 s62, s2, 6\ns_lshl_b32 s62, s62, 1\ns_add_u32 s{sRT}, s{sRT}, s62")
    a(f"v_lshrrev_b32 v{fH}, 5, v{vL}\nv_and_b32 v{fKL}, 1, v{fKG}\nv_bfe_u32 v{fRR}, v0, 2, 2\nv_and_b32 v{fC0}, 1, v0\nv_bfe_u32 v{fC1}, v0, 1, 1\nv_and_b32 v{fQ}, 31, v0")
    a(f"v_lshlrev_b32 v{vL16}, 4, v{vL}")
    a(f"v_lshrrev_b32 v4, 1, v{fT}\nv_xor_b32 v4, v4, v{fKG}\nv_lshlrev_b32 v4, 4, v4\nv_lshl_add_u32 v4, v{fT}, 7, v4\nv_add_u32 v{vXR}, s{sM0x}, v4\nv_xor_b32 v{vXR+1}, 64, v{vXR}")
    lin(a, 4, [(fKL, 3104), (fH, 1536), (fRR, 192)])
    a(f"v_lshl_add_u32 v{vWA1}, v{fC}, 3, v4\nv_mad_u32_u24 v{vWT1}, v{fC}, 48, v4\nv_add_u32 v{vWT1}, 40, v{vWT1}")

def wo_dma(S=84, s88=88):
    out = []
    for i in range(2): out.append([I(f"s_add_u32 m0, s{s88}, {WOS + 4096*i}"), I(f"buffer_load_dwordx4 v{vMD+1+i}, {srd(S)}, 0 offen lds", "wos")])
    out.append([I(f"s_and_b32 s63, s88, 1024"), I(f"s_add_u32 m0, s63, {WPH}"), I(f"buffer_load_dwordx4 v{vMD}, {srd(SM)}, 0 offen lds", "wos")])
    return out

def setup1(a, c):
    lin(a, vPR1, [(fRR, 192), (fKG, 48), (fC, 8)], "s91")
    lin(a, 4, [(fRR, 192), (fKL, 1536), (fC, 48)], 40)
    if c.g3f:
        lin(a, 5, [(fRR, 48), (fC, 8)], 3072)
        lin(a, 6, [(fT, 16)], 3072 + 512 + 8)
        a(f"v_cmp_eq_u32 vcc, 0, v{fKL}\nv_cndmask_b32 v5, v6, v5, vcc\nv_lshlrev_b32 v7, 6, v{fKL}\nv_add_u32 v7, 192, v7")
        a(f"v_cmp_eq_u32 vcc, 0, v{fH}\nv_cndmask_b32 v4, v5, v4, vcc\nv_add_u32 v{vPR3}, s91, v4\nv_mov_b32 v6, 768\nv_cndmask_b32 v5, v7, v6, vcc\nv_add_u32 v{vPR3+1}, v{vPR3}, v5")
        a(f"s_mul_i32 s62, s89, 1152\nv_mov_b32 v4, s62\nv_mov_b32 v5, {9216-2304}\nv_cndmask_b32 v4, v5, v4, vcc")
        lin(a, 4, [(4, 1), (fKL, 2304), (fRR, 32), (fC, 16)], 992)
        a(f"s_lshl_b32 s62, s{sW}, 8\ns_add_u32 s62, s62, 9216\nv_lshl_add_u32 v5, v{fT}, 4, s62")
        a(f"v_cmp_eq_u32 vcc, 2, v{fKG}\nv_cndmask_b32 v{vPS3}, v4, v5, vcc")
    else:
        lin(a, 5, [(fRR, 48)], 3072)
        a(f"v_lshlrev_b32 v6, 3, v{fC}\nv_cmp_eq_u32 vcc, 0, v{fKL}\nv_cndmask_b32 v6, 40, v6, vcc\nv_add_u32 v5, v5, v6")
        a(f"v_cmp_eq_u32 vcc, 0, v{fH}\nv_cndmask_b32 v4, v5, v4, vcc\nv_add_u32 v{vPR3}, s91, v4\nv_mov_b32 v5, 192\nv_mov_b32 v6, 768\nv_cndmask_b32 v5, v5, v6, vcc\nv_add_u32 v{vPR3+1}, v{vPR3}, v5")
        a(f"s_mul_i32 s62, s89, 1152\ns_add_u32 s62, s62, 992")
        lin(a, 4, [(fKL, 2304), (fRR, 32), (fC, 16)], "s62")
        a(f"s_lshl_b32 s62, s{sW}, 8\ns_add_u32 s62, s62, 9216\nv_lshl_add_u32 v5, v{fT}, 4, s62\ns_lshl_b32 s62, s{sW}, 5\ns_add_u32 s62, s62, {9216+992}\nv_lshl_add_u32 v6, v{fC}, 4, s62")
        a(f"v_cndmask_b32 v4, v5, v4, vcc\nv_cmp_eq_u32 vcc, 3, v{fKG}\nv_cndmask_b32 v{vPS3}, v4, v6, vcc")
    a(f"s_and_b32 s62, s{sR}, 1\ns_lshl_b32 s62, s62, 1\ns_lshl_b32 s63, s{sG}, 2\ns_add_u32 s62, s62, s63\ns_add_u32 s62, s62, s{sT}\ns_mul_i32 s62, s62, {PSEC}\ns_lshr_b32 s63, s{sR}, 1\ns_mul_i32 s63, s63, {9*1152}\ns_add_u32 s62, s62, s63\ns_add_u32 s82, s62, {PKO}")
    a(f"s_mul_i32 s63, s89, 1152\ns_add_u32 s83, s63, s82")
    lin(a, vWP2, [(fH, 1024), (fRR, 48)], WPH)
    lin(a, vWP, [(fKL, 16), (fC1, 8), (vWP2, 1)])
    a(f"v_add_u32 v{vWP2}, 40, v{vWP2}\nv_bfe_u32 v4, v0, 2, 1\nv_cmp_eq_u32 vcc, v4, v{fH}\nv_cndmask_b32 v{vWM}, 0, -1, vcc")
    lin(a, 4, [(fH, 18*144), (fKL, 4*144), (fRR, 144)], WOS)
    a(f"v_bfe_u32 v6, v0, 2, 1\nv_bfe_u32 v7, v0, 3, 1")
    lin(a, 5, [(7, 18*144), (6, 144)], WOS + 16*144)
    a(f"s_lshr_b32 s62, s{sW}, 1\ns_lshl_b32 s62, s62, 6\ns_and_b32 s3, s{sW}, 1\ns_lshl_b32 s63, s3, 3\ns_add_u32 s62, s62, s63")
    a(f"v_lshl_add_u32 v{vRP}, v{fC}, 4, v4\nv_add_u32 v{vRP}, s62, v{vRP}")
    a(f"v_lshlrev_b32 v6, 3, v{fC0}\nv_add_u32 v6, 128, v6\nv_and_b32 v7, 7, v0")
    a(f"s_cmp_ge_u32 s{sW}, 2\ns_cbranch_scc1 .Lrp2")
    a(f"v_add_u32 v{vRP+1}, v4, v6\nv_lshl_add_u32 v7, v{fKG}, 3, v7\nv_lshlrev_b32 v7, 4, v7\nv_add_u32 v{vRP+2}, 4096, v7\ns_branch .Lrp4")
    a.label(".Lrp2")
    a(f"s_cmp_eq_u32 s{sW}, 3\ns_cbranch_scc1 .Lrp3")
    lin(a, vRP+1, [(fH, 64), (fC, 16), (fKL, 8), (5, 1)])
    a(f"v_lshlrev_b32 v{vRP+2}, 3, v{vL}\nv_add_u32 v{vRP+2}, 4608, v{vRP+2}\ns_branch .Lrp4")
    a.label(".Lrp3")
    a(f"v_add_u32 v{vRP+1}, v5, v6\nv_lshlrev_b32 v{vRP+2}, 3, v{fT}\nv_add_u32 v{vRP+2}, 5120, v{vRP+2}")
    a.label(".Lrp4")

def setup2(a, c):
    a(f"s_lshl_b32 s62, s{sT}, 9\ns_add_u32 s62, s62, 2048")
    lin(a, vPK, [(fKG, 1152), (fT, 16)], "s62")
    a(f"v_subrev_u32 v{vPK+1}, 768, v{vPK}\ns_and_b32 s63, s{sW}, 1\ns_lshl_b32 s63, s63, 8\ns_add_u32 s63, s63, {PSEC - 2048}\nv_add_u32 v{vPS}, s63, v{vPK}")
    a(f"s_lshl_b32 s62, s{sT}, 6\ns_add_u32 s62, s62, 1024")
    lin(a, vPK+2, [(fKG, 1152), (fRR, PSEC), (fC, 16)], "s62")
    a(f"s_lshr_b32 s62, s{sKX}, 6\ns_add_u32 s63, s62, s{sW}\ns_mul_i32 s63, s63, 4608\ns_lshr_b32 s3, s{sW}, 1\ns_mul_i32 s3, s3, 3\ns_add_u32 s62, s62, s3\ns_mul_i32 s62, s62, 4608")
    for j in range(5):
        if j: a(f"s_add_u32 s63, s{sKA+j-1}, {4*4608}")
        a(f"s_sub_u32 s3, s63, {PSEC}\ns_cselect_b32 s{sKA+j}, s63, s3")
    for j in range(9):
        if j: a(f"s_add_u32 s62, s62, {4608*(4 if j % 3 == 0 else 1)}")
        a(f"s_sub_u32 s3, s62, {PSEC}\ns_cselect_b32 s62, s62, s3\ns_add_u32 s{sKP+j}, s62, {2048 - 1024*(j % 3)}")
    a(f"s_mov_b32 s{sLE}, 0x3fb8aa3b\ns_mov_b32 s{sQS}, 0x3eae1a93")
    a(f"v_lshlrev_b32 v4, 2, v{fH}\nv_xor_b32 v4, v4, v{fT}")
    lin(a, vSA, [(fH, 512), (4, 16), (fKL, 8)], "s91")
    lin(a, vST, [(fKG, 1280), (fT, 8)], "s91"); a(f"v_add_u32 v{vST}, 1024, v{vST}")
    a(f"v_add_u32 v{vSL}, s91, v{vL16}")
    lin(a, vK2, [(fH, KV_PAIR - 2560), (vL16, 1)])
    lin(a, vBL, [(fH, 1280), (fQ, 16)], "s91")
    a(f"v_xor_b32 v{vBH}, 64, v{vBL}\nv_add_u32 v{vBH}, 512, v{vBH}")
    lin(a, vBT, [(fH, 1280), (fQ, 8)], "s91"); a(f"v_add_u32 v{vBT}, 1024, v{vBT}")
    a(f"s_lshl_b32 s62, s{sW}, 8\ns_add_u32 s62, s62, {WPH + 2048}")
    lin(a, vBT2, [(fH, 1024), (fQ, 8)], "s62")
    a(f"s_add_u32 s3, s91, 1024\nv_mov_b32 v4, s3\nv_mov_b32 v5, s62\nv_cmp_eq_u32 vcc, 0, v{fH}\nv_cndmask_b32 v4, v5, v4, vcc\nv_mov_b32 v5, 2048\nv_mov_b32 v6, 2560\nv_cndmask_b32 v5, v5, v6, vcc")
    a(f"v_mad_u32_u24 v4, v5, v{fKL}, v4\nv_lshl_add_u32 v{vTW}, v{fT}, 3, v4\nv_lshrrev_b32 v5, 1, v5\nv_add_u32 v{vTW+1}, v{vTW}, v5")
    a(f"s_add_u32 s62, s62, 2048\nv_lshl_add_u32 v4, v{fQ}, 3, s62\nv_mov_b32 v5, {WPH + 896}\nv_cndmask_b32 v{vQT}, v5, v4, vcc")
    a(f"v_mov_b32 v4, 0x3f803f80\nv_cndmask_b32 v{CM+2}, 0, v4, vcc\nv_mov_b32 v{vONE}, 0x3f80")
    for r in (CM+1, CM+3, CM+4, CM+5): a(f"v_mov_b32 v{r}, 0")
    a(f"v_mov_b32 v4, s{sQS}\nv_cmp_eq_u32 vcc, 3, v{fKG}\nv_cndmask_b32 v{vSC}, 1.0, v4, vcc")
    a(f"v_lshl_add_u32 v4, v{fH}, 2, v{fRR}\nv_lshlrev_b32 v5, 2, v{fC1}\nv_xor_b32 v5, v5, v4")
    lin(a, 6, [(fC1, 512), (5, 16), (fC0, 8)])
    lin(a, 7, [(4, 8)], 1024)
    a(f"v_lshlrev_b32 v5, 2, v{fC0}\nv_xor_b32 v5, v5, v4")
    lin(a, 8, [(fC0, 512), (5, 16), (fC1, 8)])
    a(f"s_mul_i32 s62, s{sW}, 2560\ns_add_u32 s62, s62, {KVR}\ns_add_u32 s3, s62, 30720")
    a(f"v_cmp_eq_u32 vcc, 0, v{fKL}\nv_cndmask_b32 v6, v7, v6, vcc\nv_cndmask_b32 v{AD}, v7, v8, vcc\nv_mov_b32 v4, 64\nv_mov_b32 v5, 128\nv_cndmask_b32 v7, v4, v5, vcc")
    a(f"v_add_u32 v{vTR}, s3, v6")
    a(f"v_lshlrev_b32 v4, 2, v{fH}\nv_xor_b32 v4, v4, v{fQ}")
    lin(a, vKL, [(fH, 512), (4, 16)], "s62")
    lin(a, vKT, [(fQ, 8)], "s62"); a(f"v_add_u32 v{vKT}, 1024, v{vKT}")
    a(f"s_sub_u32 s62, s91, s62\ns_add_u32 s62, s62, 2560\nv_add_u32 v{vQM}, s62, v{vKL}")
    a(f"s_and_b32 s62, s{sW}, 1\ns_mul_i32 s62, s62, 1280\ns_lshr_b32 s3, s{sW}, 1\ns_mul_i32 s3, s3, 5120\ns_add_u32 s3, s62, s3\ns_add_u32 s3, s3, {STG}\nv_add_u32 v{AD}, s3, v{AD}")
    a(f"s_add_u32 s62, s62, {STG + 2560}\nv_add_u32 v{AD+4}, s62, v6")
    for i in range(1, 4): a(f"v_add_u32 v{vTR+i}, v{vTR+i-1}, v7\nv_add_u32 v{AD+i}, v{AD+i-1}, v7\nv_add_u32 v{AD+4+i}, v{AD+3+i}, v7")
    a(f"v_bfe_u32 v4, v0, 2, 3\ns_lshl_b32 s62, s{sW}, 3\nv_add_u32 v4, s62, v4\nv_lshrrev_b32 v5, 1, v4\nv_and_b32 v6, 1, v4\nv_lshl_add_u32 v5, v5, 4, v6\ns_lshl_b32 s62, s{sG}, 1\nv_add_u32 v5, s62, v5")
    a(f"s_lshl_b32 s63, s{sCB}, 5\nv_add_u32 v4, s63, v4\nv_lshlrev_b32 v6, 7, v{fC}\nv_lshl_add_u32 v{vFO}, v4, 9, v6\nv_lshl_add_u32 v{vFW}, v5, 9, v6")
    a(f"s_and_b32 s63, s{sW}, 1\ns_mul_i32 s63, s63, 6\ns_lshl_b32 s3, s{sR}, 2\ns_add_u32 s63, s63, s3\ns_sub_u32 s63, s63, 8\nv_min_u32 v4, 5, v{vL}\nv_add_u32 v4, s63, v4\nv_max_i32 v4, 0, v4")
    a(f"s_lshr_b32 s63, s{sW}, 1\ns_add_u32 s62, s62, s63\nv_lshrrev_b32 v5, 2, v4\nv_lshl_add_u32 v5, v5, 4, s62\nv_and_b32 v4, 3, v4\nv_lshlrev_b32 v4, 7, v4\nv_lshl_add_u32 v{vF1}, v5, 9, v4")
    a(f"s_lshl2_add_u32 s62, s{sL}, s{sW}\ns_lshl_b32 s62, s62, 7\nv_lshl_add_u32 v{vL}, v{fT}, {3 if c.fl else 31}, s62")
    if not c.fl: a(f"v_mov_b32 v{vL}, s62")
    a(f"s_lshl_b32 s62, s{sP}, 2\ns_add_u32 s62, s62, s{sW}\nv_lshl_add_u32 v4, v{fT}, 6, s62\nv_lshlrev_b32 v{vF2}, 7, v4")
    a(f"s_lshr_b32 s62, s{sRT}, 1\ns_lshl_b32 s62, s62, 6\ns_lshl_b32 s3, s{sW}, 4\ns_add_u32 s62, s62, s3\ns_and_b32 s3, s{sRT}, 1\ns_lshl_b32 s3, s3, 1\ns_add_u32 s62, s62, s3")
    a(f"v_bfe_u32 v4, v0, 1, 2\nv_lshl_add_u32 v4, v4, 2, v{fC0}\nv_add_u32 v4, s62, v4\nv_lshlrev_b32 v{vF3}, 7, v4")
    a(f"s_lshl_b32 s62, s{sCB}, 2\ns_add_u32 s62, s62, s{sW}\ns_mul_i32 s100, s62, {8*WOBLK}\ns_add_u32 s100, s100, {WOO}")
    if c.s2:
        a(f"v_and_b32 v{VT4}, 7, v0\nv_lshl_add_u32 v{V4}, v{fKL}, 3, v{VT4}\nv_mul_u32_u24 v{vWM2}, {2*WOBLK}, v{fH}\nv_lshl_add_u32 v{V4}, v{V4}, 4, v{vWM2}\nv_add_u32 v{V4}, 4096, v{V4}\nv_lshl_add_u32 v{vWM2}, v{fQ}, 4, v{vWM2}")
    else: a(f"v_and_b32 v{VT4}, 7, v0\nv_lshl_add_u32 v{V4}, v{fKG}, 3, v{VT4}\nv_lshlrev_b32 v{V4}, 4, v{V4}\nv_add_u32 v{V4}, 4096, v{V4}")
    a(f"v_mul_u32_u24 v{VT}, {2*WOBLK}, v{fKG}\nv_add_u32 v{VT}, 4608, v{VT}\nv_lshl_add_u32 v{VT4}, v{VT4}, 3, v{VT}\nv_lshl_add_u32 v{VT}, v{fT}, 3, v{VT}")
    a(f"v_mul_u32_u24 v{vOT}, 36864, v{fKL}\nv_lshl_add_u32 v{vOT}, v{fT}, 4, v{vOT}\nv_lshl_add_u32 v{vOA}, v{fH}, 8, v{vOT}")
    a(f"s_lshl_b32 s62, s{sR}, 2\ns_add_u32 s62, s62, s{sW}\ns_mul_i32 s62, s62, {2*36864}\ns_lshr_b32 s63, s{sP}, 2\ns_mul_i32 s63, s63, 9216\ns_add_u32 s62, s62, s63\ns_add_u32 s62, s62, {OPO}")
    a(f"s_and_b32 s63, s{sP}, 3\ns_lshl_b32 s3, s63, {9 if c.s2 else 11}\ns_add_u32 s{sOA}, s62, s3\ns_lshl_b32 s3, s63, 8\ns_add_u32 s{sOT}, s62, s3\ns_add_u32 s{sOT}, s{sOT}, 8192")

def setup3(a, c):
    if c.wol == 1: a(f"s_mov_b64 s[{SX}:{SX+1}], s[84:85]\ns_mov_b32 s{SX+2}, {35*1152+144}\ns_mov_b32 s{SW1}, s88")
    a(f"v_mul_u32_u24 v{vKS+1}, 320, v{fH}\nv_lshl_add_u32 v{vKS+1}, v{fQ}, 4, v{vKS+1}\nv_lshlrev_b32 v{vKS}, 2, v{fQ}")
    a(f"v_mad_i32_i24 v12, v{fH}, -4, v{fQ}\nv_mov_b32 v13, 0xffff")
    for r in range(16): a(f"v_cmp_le_i32 s[{64+2*r}:{65+2*r}], {8*(r>>2) + (r&3)}, v12")
    for j in range(8): a(f"v_cndmask_b32 v{PM+j}, 0, v13, s[{64+4*j}:{65+4*j}]")
    for j in range(8): a(f"v_cndmask_b32 v{PM+j}, v{PM+j}, -1, s[{66+4*j}:{67+4*j}]")

def producer(c):
    q = Seq(); T = AX
    q.wait(vm="pr")
    for k in range(2):
        for j in range(2): q(f"ds_read_b64_tr_b16 {vr(T + 4*k + 2*j, 2)}, v{vPR1} offset:{k*1536 + j*768}")
    for j in range(2): q(f"ds_read_b64_tr_b16 {vr(T + 8 + 2*j, 2)}, v{vPR3+j}")
    g = Seq()
    for k in range(2): g(f"buffer_store_dwordx4 {vr(T + 4*k, 4)}, v{vL16}, {srd(SWS)}, s83 offen offset:{2304*k} sc1", "stp")
    if c.g3f: g(f"s_cmp_eq_u32 s{sW}, 0\ns_mov_b32 s62, 0xffff\ns_cselect_b32 exec_hi, 0xccccffff, s62\ns_mov_b32 exec_lo, 0xcccccccc")
    else: g("s_mov_b32 exec_lo, 0xcccccccc\ns_mov_b32 exec_hi, 0xcffff")
    g(f"buffer_store_dwordx4 {vr(T+8, 4)}, v{vPS3}, {srd(SWS)}, s82 offen sc1", "stp")
    g("s_mov_b64 exec, -1")
    return q.l, g.l
def wo_repack(T=AX, s88=88):
    q = Seq()
    q(f"ds_read_b64_tr_b16 {vr(T+12, 2)}, v{vRP}\nds_read_b64_tr_b16 {vr(T+14, 2)}, v{vRP} offset:1152\nds_read_b64_tr_b16 {vr(T+16, 2)}, v{vRP+1}\nds_read_b64_tr_b16 {vr(T+18, 2)}, v{vRP+1} offset:1152", "rp")
    r = Seq()
    r(f"s_mul_i32 s63, s{sL}, {WOBLK}\ns_add_u32 s63, s63, {WOO}\ns_add_u32 s3, s{s88}, s63")
    r(f"buffer_store_dwordx4 {vr(T+12, 4)}, v{vL16}, {srd(SWS)}, s3 offen sc1", "stw")
    r.wait(lg="rp")
    r(f"s_cmp_ge_u32 s{sW}, 2\ns_cbranch_scc1 .Lw2\ns_cmp_eq_u32 s{sW}, 0\ns_cselect_b32 exec_lo, -1, 0\ns_cselect_b32 exec_hi, 0, -1")
    r(f"buffer_store_dwordx4 {vr(T+16, 4)}, v{vRP+2}, {srd(SWS)}, s63 offen sc1", "nocount")
    r("s_mov_b64 exec, -1\ns_branch .Lw3")
    r.label(".Lw2")
    r(f"buffer_store_dwordx2 {vr(T+16, 2)}, v{vRP+2}, {srd(SWS)}, s63 offen sc1", "stw")
    r.label(".Lw3")
    r("s_nop 1")
    return q.l, r.l
def wa_load():
    q = Seq()
    for i in range(5):
        q(f"ds_read_b64_tr_b16 {vr(WA1 + 2*i, 2)}, v{vWP} offset:{192*i}\nds_read_b64_tr_b16 {vr(WA2 + 2*i, 2)}, v{vWP2} offset:{192*i}")
    for r in (WA1 + 10, WA1 + 11, WA2 + 10, WA2 + 11): q(f"v_mov_b32 v{r}, 0")
    for i in range(10): q(f"v_and_b32 v{WA1+i}, v{vWM}, v{WA1+i}\nv_and_b32 v{WA2+i}, v{vWM}, v{WA2+i}")
    return q.l

def put(mf, items):
    out = []
    for g, m in enumerate(mf):
        out.append(m)
        for gg, it in items:
            if gg == g or (g == len(mf) - 1 and gg > g):
                out.extend(it if isinstance(it, list) else [it])
    return out
def grp(q): return [q[:2]] + q[2:]

def poll_issue(voff, base, name):
    q = Seq()
    q(f"s_mov_b32 s62, {base}")
    q(f"buffer_load_dwordx2 {vr(vPD, 2)}, v{voff}, {srd(SWS)}, s62 offen sc1", name)
    return q.l
def poll_check(voff, base, name, slowflag=None):
    q = Seq()
    q.wait(vm=name)
    q(f"v_cmp_ne_u64 vcc, s[{sTAG}:{sTAG+1}], {vr(vPD, 2)}\ns_cbranch_vccz .Lq{name}")
    if slowflag is not None:
        q(f"s_waitcnt vmcnt(0)\ns_mov_b32 s62, {slowflag}")
        q(f"buffer_store_dwordx2 {vr(vTG, 2)}, v{vL}, {srd(SWS)}, s62 offen sc1", "nocount")
    q(f"s_mov_b32 s62, {base}\ns_mov_b32 s63, 300000")
    q.label(f".Lp{name}")
    q(f"buffer_load_dwordx2 {vr(vPD, 2)}, v{voff}, {srd(SWS)}, s62 offen sc1", "nocount")
    q("s_waitcnt vmcnt(0)")
    q(f"v_cmp_ne_u64 vcc, s[{sTAG}:{sTAG+1}], {vr(vPD, 2)}")
    q(f"s_sub_u32 s63, s63, 1\ns_cbranch_scc1 .Lend\ns_cbranch_vccnz .Lp{name}")
    q.label(f".Lq{name}")
    return q.l
def flag_store(base, sidx=None, line=None):
    q = Seq()
    q(f"s_mov_b32 s62, {base}")
    q(f"buffer_store_dwordx2 {vr(vTG, 2)}, v{vL}, {srd(SWS)}, s62 offen sc1", "flag")
    return q.l
def tag_issue():
    q = Seq()
    q(f"v_mov_b32 v{vTG}, 0")
    q(f"global_load_dwordx2 {vr(vTG, 2)}, v{vTG}, s[50:51] sc1", "tag")
    return q.l
def tag_check():
    q = Seq()
    q.wait(vm="tag")
    q(f"v_readfirstlane_b32 s{sTAG+1}, v{vTG+1}\ns_mov_b32 s63, 300000\ns_cmp_lg_u32 s{sTAG+1}, 0\ns_cbranch_scc1 .Ltag2")
    q.label(".Ltag")
    q(f"v_mov_b32 v{vTG}, 0")
    q(f"global_load_dwordx2 {vr(vTG, 2)}, v{vTG}, s[50:51] sc1", "nocount")
    q("s_waitcnt vmcnt(0)")
    q(f"v_readfirstlane_b32 s{sTAG+1}, v{vTG+1}")
    q(f"s_sub_u32 s63, s63, 1\ns_cbranch_scc1 .Lend\ns_cmp_eq_u32 s{sTAG+1}, 0\ns_cbranch_scc1 .Ltag")
    q.label(".Ltag2")
    q(f"v_readfirstlane_b32 s{sTAG}, v{vTG}")
    return q.l
```

```python
from g3a import *
import g3a

def g2_half(m, hf):
    g = m - 9
    if g < 5:
        ks = [4*g + 2*hf, 4*g + 2*hf + 1] if g < 4 else [16 + hf]
        return [((k - 4*g)*3 + t, AX + 8*t, k) for k in ks for t in range(3)]
    sec, j = divmod(g - 5, 3); A = AX if sec == 1 else AY
    return [((2*hf + h)*3 + i, A + 8*h, 6*j + 3*hf + i) for i in range(3) for h in range(2)]
def g2_rd(m, hf):
    return [I(f"ds_read_b128 {vr(FR + 24*hf + 4*q, 4)}, v{vL16} offset:{(m % NW)*WSL + f*1024}", f"f{m}_{hf}") for q, (f, A, k) in enumerate(g2_half(m, hf))]
def g2_mm(m, hf):
    out = []
    for q, (f, A, k) in enumerate(g2_half(m, hf)):
        for tt in range(2):
            d = vr(A + 4*tt, 4)
            out.append(I(f"{M16} {d}, {vr(FR + 24*hf + 4*q, 4)}, {ar((k*2 + tt)*4, 4)}, {d if k else 0}"))
    return out

def wsched(c):
    d = {}; m = 3
    for n in range(23):
        for h in range(2):
            l = []
            while m < 23 and m <= n - 1 + h + (NW if (n, h) <= (9, 0) else c.dep) and len(l) < (1 if m < 9 or m > 10 else 2):
                if m < 9 and (h == 0 or m > n + 3): break
                if m >= 9 and ((n, h) < (c.s_pw, 1) or c.exp & 8): break
                l.append(m); m += 1
            d[(n, h)] = l
    return d

def sep(d):
    n = 4 if len(d) == 5 and "lds" in d[4].t else 3
    return [[d[0]] + (d[1+i: 2+i] if i < n - 1 else d[1+i:]) for i in range(n)]
def pass1(a, c, extra):
    ws = wsched(c)
    PX = [int(x, 36) for x in c.px]; PW = [int(x, 36) for x in c.pw]; PW2 = [int(x, 36) for x in c.pw2]
    for s in range(9):
        dm = []
        if s + 3 < 9:
            dm += list(zip(PX, sep(dma_x(s + 3)))) + list(zip(PW, sep(dma_w(c, s + 3))))
        g = [[m for m in ws[(s, h)] if m >= 9] for h in range(2)]
        for h in range(2):
            for i, m in enumerate(g[h]):
                dm += [(10*h + p, x) for p, x in zip(PW2[:3] if len(g[h]) == 1 else PW2[3+3*i: 6+3*i], sep(dma_w(c, m)))]
        a.wait(lg=[f"f{s}_0", f"xr{s}"])
        it = [(k // 2, r) for k, r in enumerate(rd_w(s, 1))]
        it += [x for x in dm if x[0] < 10]
        it.append((c.pv, [W(vm=[f"w{s+1}", f"x{s+1}"])] + ([patch(s + 1)] if s + 1 < 9 else [])))
        it += extra.get(2*s, [])
        it.sort(key=lambda x: x[0])
        a(put(mm(s, 0), it))
        a(extra.get(("pre", s), []))
        a.wait(lg=0)
        a("s_barrier")
        if c.stp & 1: stamp(a, c)
        if s < 8:
            fc = rd_w(s + 1, 0)
            fc = fc[:4] + rd_x(s + 1)[:2] + fc[4:] + rd_x(s + 1)[2:]
        else: fc = g2_rd(9, 0)
        it = [(k // 2, r) for k, r in enumerate(fc)]
        it += [(p - 10, x) for p, x in dm if p >= 10]
        it += extra.get(2*s + 1, [])
        it.sort(key=lambda x: x[0])
        a(put(mm(s, 1), it))

def epi1():
    q = Seq()
    q(f"v_and_b32 v{vG1}, 16, v0\nv_cmp_eq_u32 vcc, 0, v{vG1}\ns_mul_i32 s63, s{sT}, 0x3f80")
    for h in range(5):
        for tt in range(2):
            d = ACC + (h*2 + tt)*4
            if h < 4:
                q(f"v_cvt_pk_bf16_f32 v{d}, v{d}, v{d+1}\nv_cvt_pk_bf16_f32 v{d+1}, v{d+2}, v{d+3}")
                q(f"ds_write_b64 v{vSA}, {vr(d, 2)} offset:{h*1280 + tt*256}")
            else:
                q(f"v_cvt_pk_bf16_f32 v{d+2}, v{d+2}, v{d+3}\nv_mov_b32 v{d+3}, s63")
                q(f"ds_write_b64 v{vST}, {vr(d+2, 2)} offset:{tt*128}")
    for i in range(5): q(f"ds_read_b128 {vr(ACC+4*i, 4)}, v{vSL} offset:{i*1024}")
    q(f"v_cndmask_b32 v{vG1}, v{ACC+36}, v{ACC+32}, vcc\nv_mul_f32 v{vG1}, 0xbfb8aa3b, v{vG1}\nv_exp_f32 v{vG1}, v{vG1}\nv_add_f32 v{vG1}, 1.0, v{vG1}\nv_rcp_f32 v{vG0}, v{vG1}\nv_sub_f32 v{vG1}, 1.0, v{vG0}")
    q(f"s_mul_i32 s63, s{sT}, {KV_KIND}\ns_mul_i32 s3, s{sG}, {2*KV_PAIR}\ns_add_u32 s63, s63, s3\ns_lshl_b32 s3, s{sR}, 2\ns_add_u32 s3, s3, s{sW}\ns_mul_i32 s3, s3, 2560\ns_add_u32 s63, s63, s3\ns_add_u32 s63, s63, {KVO}\ns_add_u32 s3, s63, {KV_PAIR+512}")
    for i in range(5):
        q(f"buffer_store_dwordx4 {vr(ACC+4*i, 4)}, v{vK2 if i == 2 else vL16}, {srd(SWS)}, {'s63' if i < 3 else 's3'} offen offset:{(i % 3)*1024} sc1", "st1")
    return q.l

def sout(A, blk, scale=False):
    q = Seq()
    for h in range(2):
        for tt in range(2):
            d = A + 8*h + 4*tt
            if scale:
                for i in (0, 2): q(f"v_pk_mul_f32 {vr(d+i, 2)}, {vr(d+i, 2)}, s[{sQS}:{sQS+1}] op_sel_hi:[1,0]")
            q(f"v_cvt_pk_bf16_f32 v{d}, v{d}, v{d+1}\nv_cvt_pk_bf16_f32 v{d+1}, v{d+2}, v{d+3}")
            q(f"ds_write_b64 v{vSA}, {vr(d, 2)} offset:{(blk + h)*1280 + tt*256}")
    return q.l
def tails():
    q = Seq()
    for tt in range(2):
        for h in range(2):
            d = AX + 16 + 4*tt + 2*h
            q(f"v_pk_mul_f32 {vr(d, 2)}, {vr(d, 2)}, {vr(vSC, 2)} op_sel_hi:[1,0]\nv_cvt_pk_bf16_f32 v{d}, v{d}, v{d+1}")
            q(f"ds_write2_b32 v{vTW+h}, v{d}, v{vONE} offset0:{32*tt} offset1:{32*tt+1}")
    return q.l

D2, D1, EM, PT = 160, 176, 192, 210
def phi(vT):
    BO = EM; T = PT
    q = Seq()
    q(f"ds_read_b128 {vr(BO, 4)}, v{vBL}\nds_read_b128 {vr(BO+4, 4)}, v{vBH}\nds_read_b64 {vr(BO+8, 2)}, v{vT}")
    q(f"v_mov_b32 v{BO+10}, 0\nv_mov_b32 v{BO+11}, 0")
    rd = q.l
    q = Seq()
    for s in range(3):
        q(f"{M32} {vr(D1, 16)}, {vr(WA1+4*s, 4)}, {vr(BO+4*s, 4)}, {vr(D1, 16) if s else 0}")
        q(f"{M32} {vr(D2, 16)}, {vr(WA2+4*s, 4)}, {vr(BO+4*s, 4)}, {vr(D2, 16) if s else 0}")
    mf = q.l
    q = Seq()
    P = [D1 + i for i in range(16)] + [D2 + 2, D2 + 3]
    E = [EM + i for i in range(18)]
    U = D2
    q(f"v_max3_f32 v{T}, v{P[0]}, v{P[1]}, v{P[2]}\nv_min3_f32 v{T+1}, v{P[0]}, v{P[1]}, v{P[2]}")
    for i in range(3, 17, 2): q(f"v_max3_f32 v{T}, v{T}, v{P[i]}, v{P[i+1]}\nv_min3_f32 v{T+1}, v{T+1}, v{P[i]}, v{P[i+1]}")
    q(f"v_max_f32 v{T}, v{T}, v{P[17]}\nv_min_f32 v{T+1}, v{T+1}, v{P[17]}")
    q(f"v_mul_f32 v{U}, s{sLE}, v{T+1}\nv_mul_f32 v{T}, s{sLE}, v{T}")
    for i in range(0, 18, 2):
        q(f"v_pk_fma_f32 {vr(E[i], 2)}, {vr(P[i], 2)}, s[{sLE}:{sLE+1}], {vr(U, 2)} op_sel_hi:[1,0,0] neg_lo:[1,0,0] neg_hi:[1,0,0]")
        q(f"v_pk_fma_f32 {vr(P[i], 2)}, {vr(P[i], 2)}, s[{sLE}:{sLE+1}], {vr(T, 2)} op_sel_hi:[1,0,0] neg_lo:[0,0,1] neg_hi:[0,0,1]")
    for R, S in ((E, T + 2), (P, T + 4)):
        for i in range(0, 18, 2):
            q(f"v_exp_f32 v{R[i]}, v{R[i]}\nv_exp_f32 v{R[i+1]}, v{R[i+1]}")
            if i == 4: q(f"v_pk_add_f32 {vr(S, 2)}, {vr(R[0], 2)}, {vr(R[2], 2)}")
            if i > 4: q(f"v_pk_add_f32 {vr(S, 2)}, {vr(S, 2)}, {vr(R[i-2], 2)}")
    for R, S in ((E, T + 2), (P, T + 4)):
        q(f"v_pk_add_f32 {vr(S, 2)}, {vr(S, 2)}, {vr(R[16], 2)}")
    for S in (T + 2, T + 4): q(f"v_add_f32 v{S}, v{S}, v{S+1}")
    for S in (T + 2, T + 4): q(f"v_rcp_f32 v{S}, v{S}")
    for sg, R, S in ((1, E, T + 2), (0, P, T + 4)):
        for i in range(9):
            q(f"v_pk_mul_f32 {vr(R[2*i], 2)}, {vr(R[2*i], 2)}, {vr(S, 2)} op_sel_hi:[1,0]\nv_cvt_pk_bf16_f32 v{R[i]}, v{R[2*i]}, v{R[2*i+1]}")
            if i == 3: q(f"ds_write_b128 v{vBL}, {vr(R[0], 4)} offset:{sg*5120}")
            if i == 7: q(f"ds_write_b128 v{vBH}, {vr(R[4], 4)} offset:{sg*5120}")
            if i == 8: q(f"ds_write_b32 v{vBT}, v{R[8]} offset:{sg*5120}")
    return rd, mf, q.l

def kvpart():
    D = D1
    rd = []; mf = []
    for b in range(4):
        for m in range(2):
            o = 144 + 8*(b*2 + m)
            for j in range(2):
                rd.append(I(f"ds_read_b64_tr_b16 {ar(o + 2*j, 2)}, v{AD + 2*m + j} offset:{b*SST}"))
                rd.append(I(f"ds_read_b64_tr_b16 {ar(o + 4 + 2*j, 2)}, v{AD + 4 + 2*m + j} offset:{b*SST}"))
            mf.append(I(f"{M32} {vr(D, 16)}, {ar(o, 4)}, {ar(o+4, 4)}, {vr(D, 16) if (b or m) else 0}"))
    q = Seq()
    for i in range(5): q(f"v_cvt_pk_bf16_f32 v{D+i}, v{D+2*i}, v{D+2*i+1}")
    g = Seq()
    g(f"s_lshl_b32 s62, s{sP}, 4\ns_add_u32 s62, s62, s{sR}\ns_lshl_b32 s62, s62, 2\ns_add_u32 s62, s62, s{sW}\ns_mul_i32 s3, s62, 768\ns_add_u32 s3, s3, {PARO}")
    g("s_mov_b32 exec_lo, 0xfffff\ns_mov_b32 exec_hi, 0xfffff")
    g(f"buffer_store_dwordx4 {vr(D, 4)}, v{vKS+1}, {srd(SWS)}, s3 offen sc1", "st2")
    g("s_mov_b32 exec_lo, -1\ns_mov_b32 exec_hi, 0")
    g(f"buffer_store_dword v{D+4}, v{vKS}, {srd(SWS)}, s3 offen offset:640 sc1", "st2")
    g("s_mov_b64 exec, -1")
    return rd, mf, q.l + [g.l]

def kv_dma(c):
    q = Seq()
    q(f"s_lshr_b32 s62, s{sW}, 1\ns_mul_i32 s62, s62, {KV_KIND}\ns_mul_i32 s63, s{sP}, {KV_PAIR}\ns_add_u32 s62, s62, s63\ns_add_u32 s62, s62, {KVO - 8*2560}")
    q(f"s_and_b32 s63, s{sW}, 1\ns_mul_i32 s63, s63, 6\ns_lshl_b32 s3, s{sR}, 2\ns_add_u32 s99, s63, s3\ns_mul_i32 s63, s99, 2560\ns_add_u32 s62, s62, s63")
    mksrd(q, SM, 52, 53, "s62", nrec=15360)
    q(f"s_mul_i32 s{sM0x}, s{sW}, 15360\ns_add_u32 s{sM0x}, s{sM0x}, {KVR}")
    pre = q.l; groups = []
    for g in range(3):
        for o, n in ((0, 2), (2048, 3)):
            q = Seq()
            if o == 0: q(f"s_cmp_ge_u32 s99, {8 - 2*g}\ns_cselect_b32 s{SM+2}, 15360, 0")
            q(f"s_add_u32 m0, s{sM0x}, {g*5120 + o}\ns_movk_i32 s19, {g*5120 + o}")
            for i in range(n):
                if i: q = Seq(); q(f"s_add_u32 m0, s{sM0x}, {g*5120 + o}")
                q(f"buffer_load_dwordx4 v{vL16}, {srd(SM)}, s19 offen offset:{i*1024} {c.ldpol} lds", "kv")
                groups.append(q.l)
    return pre, groups

def kv_ready():
    a = Seq()
    a.wait(vm="kv")
    a(f"s_cmp_ge_u32 s{sW}, 2\ns_cbranch_scc1 .Lmk2\ns_add_u32 s63, s99, 6\ns_min_u32 s63, s63, 8\ns_cmp_ge_u32 s99, 8\ns_cbranch_scc1 .Lmk2")
    a(f"v_and_b32 v60, 31, v0\nv_bfe_u32 v61, v0, 5, 1\nv_mul_u32_u24 v61, 1280, v61\nv_lshl_add_u32 v60, v60, 3, v61\nv_add_u32 v60, s{sM0x}, v60\nv_mov_b32 v61, 0xf149")
    a.label(".Lmk")
    a("ds_write_b16 v60, v61 offset:1028", "nocount")
    a("v_add_u32 v60, 2560, v60\ns_add_u32 s99, s99, 1\ns_cmp_lt_u32 s99, s63\ns_cbranch_scc1 .Lmk")
    a("s_waitcnt lgkmcnt(0)")
    a.label(".Lmk2")
    return a.l

WOE = []; WOL = []; APT = 72; KA = 128
def wo_init(c):
    global APT
    WOE[:] = [(8, ct) for ct in range(5)] + [(s, 4) for s in range(8)] + [(s, ct) for s in range(4) for ct in range(4)][:15 if c.s2 else 14]
    WOL[:] = [(s, ct) for s in range(8) for ct in range(4) if (s, ct) not in WOE]
    APT = 64 if c.s2 else 72
def awo(s, ct): return 144 + 4*WOE.index((s, ct)) if (s, ct) in WOE else KA if (APT == 64 and WOL.index((s, ct)) == 16) else 4*WOL.index((s, ct))
SLOT = [(0, 0), (1, 0), (1, 1), (0, 1)]
def wo_loads(c, lst):
    out = []; cur = None
    def ld(sb, t):
        nonlocal cur
        out.append(I(t, "wo") if sb == cur else [I(f"s_add_u32 s101, s100, {sb*WOBLK}"), I(t, "wo")]); cur = sb
    for part in range(2):
        for s, ct in lst:
            if s == 8: ld(part, f"buffer_load_dwordx2 {ar(awo(s, ct) + 2*part, 2)}, v{VT if ct < 4 else VT4}, {srd(SWS)}, s101 offen offset:{ct*128} {c.ldpol}")
    for s, ct in sorted(lst):
        if s < 8 and c.s2:
            br, hd = SLOT[s >> 1]
            ld(4*(s & 1) + br, f"buffer_load_dwordx4 {ar(awo(s, ct), 4)}, v{vWM2 if ct < 4 else V4}, {srd(SWS)}, s101 offen offset:{ct*1024 + hd*512 if ct < 4 else hd*256} {c.ldpol}")
        elif s < 8: ld(s, f"buffer_load_dwordx4 {ar(awo(s, ct), 4)}, v{vL16 if ct < 4 else V4}, {srd(SWS)}, s101 offen offset:{(ct&3)*1024} {c.ldpol}")
    return out

def g2(a, c):
    side = [[] for _ in range(29)]; side2 = [[] for _ in range(29)]
    def spread(S, items, h0, h1):
        n = len(items)
        for k, it in enumerate(items): S[h0 + k * (h1 - h0) // n].append(it)
    e1 = epi1()
    spread(side, e1[:-5], 0, c.e1n)
    side[c.h_f1].append([W(vm="st1")] + flag_store(F1, sL, False))
    rd, mf, sm = phi(vBT)
    spread(side, sout(AX, 0) + tails() + rd + mf, 10, 11)
    spread(side, sm, 11, 19)
    spread(side2, sout(AY, 2), 16, 17)
    krd, kmf, ks = kvpart()
    spread(side, krd, 19, 21); spread(side2, kmf, 20, 22); side2[21] += ks
    if c.h_f2 < 28: side[c.h_f2].append([W(vm="st2")] + flag_store(F2, sL, True))
    rd, mf, sm = phi(vBT2)
    spread(side, sout(AX, 0) + rd + mf, 22, 23)
    spread(side, sm[:len(sm) - c.phq], 23, 28)
    pre, kd = kv_dma(c)
    side2[c.h_kv - 2].append(poll_issue(vF1, F1, "f1") + pre)
    side2[c.h_kv].insert(0, poll_check(vF1, F1, "f1"))
    vm = [[] for _ in range(29)]
    ws = wsched(c)
    for m in range(9, 23):
        for hf in range(2):
            H = 2*(m - 9) + hf
            for n in ws[(m, hf)]:
                d = dma_w(c, n)
                for i in range(3): vm[H + (i + 1) // 3].append([d[0]] + d[1+i: 2+i if i < 2 else 9])
    spread(vm, kd, c.h_kv, c.h_kv + c.n_kv)
    for k, h in enumerate([int(x, 36) for x in c.e1s]): vm[h].append(e1[k-5])
    if c.s2 and c.po and c.pop >= 20:
        p1, p2 = poison(208); side2[c.pop - 20].insert(0, p1)
        for k, x in enumerate(p2): vm[c.pop - 20 + (k + 1) * c.pon // 6].append(x)
    FO = g3a.FO if c.wol == 1 else F1
    if c.wol == 1:
        d = wo_dma(SX, SW1); vm[0].append(d[0]); vm[1].append(d[1])
        p1, p2 = wo_repack(PT - 12, SW1)
        side2[9].append(p1); vm[10].append(p2[:4]); vm[10].append(p2[4:])
        side[c.h_fo].append([W(vm="stw")] + flag_store(FO, sL, False))
    side2[23].append(poll_issue(vFO, FO, "fo"))
    for m in range(9, 23):
        for hf in range(2):
            H = 2*(m - 9) + hf
            mf = g2_mm(m, hf)
            rd = g2_rd(m, 1) if hf == 0 else g2_rd(m + 1, 0) if m < 22 else []
            it = [(k, r) for k, r in enumerate(rd)] + [((2*k + 1) * len(mf) // (2*len(vm[H])), x) for k, x in enumerate(vm[H])]
            for S in (side[H], side2[H]): it += [(k * len(mf) // len(S), x) for k, x in enumerate(S)]
            it.sort(key=lambda x: x[0])
            a(put(mf, it))
            if hf == 0:
                if m < 22: a.wait(vm=[f"w{m+1}"] + (["wos"] if m == 13 else [])); a.wait(lg=0 if (m in (18, 19) or c.dep == NW) else f"f{m}_0")
                else: a(poll_check(vFO, FO, "fo")); a(kv_ready())
                a("s_barrier")
                if c.stp & 2: stamp(a, c)
    a(sout(AY, 2, True))
    for hd in range(2):
        a(f"ds_read_b128 {vr(Q0 + 4*hd, 4)}, v{vQM} offset:{hd*1280}\nds_read_b64 {vr(QT + 2 + 4*hd, 2)}, v{vQT} offset:{hd*1024}")
    for r in (QT, QT+1, QT+4, QT+5, QT+8, QT+9): a(f"v_mov_b32 v{r}, 0")
    return sm[len(sm) - c.phq:]

Q0, QT, OB0, OB1, KM, KT, VV, MX = 10, 18, 28, 44, 60, 68, 76, 92
TL = 236
def ST(i): return 96 + 16*i
ORDER = [0, 8, 1, 2, 3, 4, 5, 6, 7]
def sdst(t): return OB1 if t == 0 else ST(0) if t == 8 else ST(t)
def k_rd(hd, n):
    t = ORDER[n]; o = t*2560 + hd*1280
    return [I(f"ds_read_b128 {vr(KM + 4*(n&1), 4)}, v{vKL} offset:{o}"),
            I(f"ds_read_b64 {vr(KT + 4*((n>>1)&1) + 2*(n&1), 2)}, v{vKT} offset:{o}")]
def qk(hd, n):
    d = vr(sdst(ORDER[n]), 16)
    return [I(f"{M32} {d}, {vr(KM + 4*(n&1), 4)}, {vr(Q0 + 4*hd, 4)}, 0"),
            I(f"{M32} {d}, {vr(KT + 4*((n>>1)&1), 4)}, {vr(QT + 4*hd + (0 if n & 1 else 2), 4)}, {d}")]
def merge(): return [I(f"v_cndmask_b32 v{ST(0)+r}, v{OB1+r}, v{ST(0)+r}, s[{64+2*r}:{65+2*r}]") for r in range(16)]
def mx(i):
    out = []
    for j in range(8):
        m = MX + (j & 1); x = ST(i) + 2*j
        if i == 0 and j < 2: out.append(I(f"v_max_f32 v{m}, v{x}, v{x+1}"))
        else: out.append(I(f"v_max3_f32 v{m}, v{m}, v{x}, v{x+1}"))
    return out
def mx_fin():
    q = Seq()
    q(f"v_max_f32 v{MX}, v{MX}, v{MX+1}\nv_mov_b32 v{MX+1}, v{MX}\nv_permlane32_swap_b32 v{MX}, v{MX+1}\nv_max_f32 v{MX}, v{MX}, v{MX+1}")
    q(f"v_and_b32 v{MX+1}, 0xffff0000, v{MX}\nv_sub_f32 v{MX}, v{MX+1}, v{MX}\nv_cvt_pk_bf16_f32 v{CM}, -v{MX+1}, v{MX}")
    return q.l
def sub(i):
    d = vr(ST(i), 16)
    return I(f"{M32} {d}, {vr(CM+2, 4)}, {vr(CM, 4)}, {d}")
def ex(i):
    out = []; b = ST(i)
    for j in range(8):
        out += [I(f"v_exp_f32 v{b+2*j}, v{b+2*j}"), I(f"v_exp_f32 v{b+2*j+1}, v{b+2*j+1}")]
        if j: out.append(I(f"v_cvt_pk_bf16_f32 v{b+j-1}, v{b+2*j-2}, v{b+2*j-1}"))
    out.append(I(f"v_cvt_pk_bf16_f32 v{b+7}, v{b+14}, v{b+15}"))
    if i == 0:
        for j in range(8): out.append(I(f"v_and_b32 v{b+8+j}, v{PM+j}, v{b+j}"))
        for j in range(8): out.append(I(f"v_xor_b32 v{b+j}, v{b+8+j}, v{b+j}"))
    return out
def v_rd(hd, n):
    t = ORDER[n]
    return [I(f"ds_read_b64_tr_b16 {vr(VV + 8*(n&1) + 2*i, 2)}, v{vTR+i} offset:{t*2560 + hd*1280}") for i in range(4)]
def pv(hd, n):
    t = ORDER[n]; o = vr(OB0 if hd == 0 else OB1, 16)
    p = ST(0) if t == 0 else ST(0) + 8 if t == 8 else ST(t)
    return [I(f"{M32} {o}, {vr(VV + 8*(n&1), 4)}, {vr(p, 4)}, {o if n else 0}"),
            I(f"{M32} {o}, {vr(VV + 8*(n&1) + 4, 4)}, {vr(p + 4, 4)}, {o}")]
def fin(u, O, c):
    q = Seq(); t = O + 10
    if u >= 2: q(f"v_add_f32 v{t}, 0x358637bd, v{t}")
    q(f"v_rcp_f32 v{t}, v{t}\nv_mul_f32 v{t}, v{vG0 if u >= 2 else vG1}, v{t}")
    for i in range(5):
        q(f"v_pk_mul_f32 {vr(O+2*i, 2)}, {vr(O+2*i, 2)}, {vr(t, 2)} op_sel_hi:[1,0]\nv_cvt_pk_bf16_f32 v{O+12+i if i < 4 else TL+u}, v{O+2*i}, v{O+2*i+1}")
    sl = [0, 3, 1, 2][u]
    if c.s2: q(f"buffer_store_dwordx4 {vr(O+12, 4)}, v{vOA}, {srd(SWS)}, s{4 if sl >= 2 else sOA} offen offset:{(sl & 1)*2048} sc1", "st3b" if u == 1 else "st3a")
    else: q(f"buffer_store_dwordx4 {vr(O+12, 4)}, v{vOA}, {srd(SWS)}, s{sOA} offen offset:{u*512} sc1", "st3")
    return q.l
def par_loads(c):
    q = Seq(); VP = 245
    q(f"s_lshl_b32 s62, s{sP}, 6\ns_add_u32 s62, s62, s{sW}\ns_mul_i32 s99, s62, 768\ns_add_u32 s99, s99, {PARO}\nv_min_u32 v{VP}, {44*16}, v{vL16}")
    out = [q.l]
    for r in range(16):
        out.append([I(f"buffer_load_dwordx4 {ar(APT + 4*r, 4)}, v{VP}, {srd(SWS)}, s99 offen {c.ldpol}", "pl"), I("s_add_u32 s99, s99, 3072")])
    return out
def kvsum():
    q = Seq(); ID = Q0; t = Q0 + 4
    q(f"v_bfe_u32 v{t}, v0, 3, 2\nv_bfe_u32 v{t+1}, v0, 1, 1\nv_lshl_add_u32 v{t}, v{t}, 1, v{t+1}")
    q(f"v_and_b32 v{t+1}, 1, v0\nv_lshlrev_b32 v{t+1}, 4, v{t+1}\nv_mov_b32 v{t+2}, 0x3f80\nv_lshlrev_b32 v{t+1}, v{t+1}, v{t+2}")
    q(f"v_bfe_u32 v{t+2}, v0, 2, 1\nv_bfe_u32 v{t+3}, v0, 5, 1\nv_cmp_eq_u32 vcc, v{t+2}, v{t+3}\nv_cndmask_b32 v{t+1}, 0, v{t+1}, vcc")
    for i in range(4): q(f"v_cmp_eq_u32 vcc, {i}, v{t}\nv_cndmask_b32 v{ID+i}, 0, v{t+1}, vcc")
    pre = [q.l]
    o = vr(OB0, 16)
    mf = [I(f"{M32} {o}, {vr(ID, 4)}, {ar(APT + 4*r, 4)}, {o if r else 0}") for r in range(16)]
    q = Seq()
    q(f"s_lshl_b32 s62, s{sW}, 10\ns_add_u32 s62, s62, {KVS}\nv_add_u32 v{t}, s62, v{vL16}")
    for i in range(4): q(f"v_cvt_pk_bf16_f32 v{OB0+i}, v{OB0+2*i}, v{OB0+2*i+1}")
    q(f"ds_write_b128 v{t}, {vr(OB0, 4)}")
    return pre, mf, q.l
def a_apply(T, O):
    q = Seq(); t = Q0
    q(f"v_and_b32 v{t}, 31, v0\nv_and_b32 v{t+1}, 19, v0\nv_cmp_gt_u32 vcc, 16, v{t}\nv_cndmask_b32 v{t}, v{t+1}, v{t}, vcc\nv_bfe_u32 v{t+1}, v0, 5, 1")
    q(f"v_mul_u32_u24 v{t+2}, 320, v{t+1}\nv_lshl_add_u32 v{t+2}, v{t}, 4, v{t+2}\nv_add_u32 v{t+2}, {KVS}, v{t+2}")
    q(f"v_lshlrev_b32 v{t+3}, 11, v{t+1}\nv_lshl_add_u32 v{t+3}, v{t}, 2, v{t+3}\nv_add_u32 v{t+3}, {KVS + 640}, v{t+3}")
    q(f"s_mul_i32 s62, s{sW}, 5120\ns_add_u32 s62, s62, {STG - KVR}\nv_add_u32 v{t}, s62, v{vKL}\nv_mul_u32_u24 v{t+1}, 5120, v{t+1}\nv_add3_u32 v{t+1}, v{t+1}, s62, v{vKT}")
    for hd in range(2):
        b = T + 24*hd
        q(f"ds_read_b128 {vr(b+14, 4)}, v{t} offset:{hd*1280}\nds_read_b128 {vr(b+18, 4)}, v{t} offset:{5120 + hd*1280}\nds_read_b32 v{b+12}, v{t+1} offset:{hd*1280}")
        for r in (9, 10, 11, 13): q(f"v_mov_b32 v{b+r}, 0")
    pre = q.l
    q = Seq()
    for hd in range(2):
        b = T + 24*hd
        q(f"ds_read_b128 {vr(b, 4)}, v{t+2} offset:{hd*1024}\nds_read_b128 {vr(b+4, 4)}, v{t+2} offset:{2048 + hd*1024}\nds_read_b32 v{b+8}, v{t+3} offset:{hd*1024}")
    for hd in range(2):
        b = T + 24*hd; o = vr(O[hd], 16)
        q(f"{M32} {o}, {vr(b, 4)}, {vr(b+14, 4)}, 0\n{M32} {o}, {vr(b+4, 4)}, {vr(b+18, 4)}, {o}\n{M32} {o}, {vr(b+8, 4)}, {vr(b+12, 4)}, {o}")
    return pre, q.l

def attention(a, c, rest):
    ld = wo_loads(c, WOE[:13])
    wl = wo_loads(c, WOE[13:] + WOL)
    a(k_rd(0, 0) + k_rd(0, 1) + [k_rd(0, 2)[1], k_rd(0, 3)[1]])
    k = len(rest) // 2
    a(rest[:k]); rest = rest[k:]
    if c.stp & 4: stamp(a, c)
    for n in range(9):
        a(qk(0, n))
        if n + 2 < 9: a(k_rd(0, n + 2)[:1 if n < 2 else 2])
        for _ in range(3):
            if ld: a(ld.pop(0))
        if n < 3: a(rest[n*len(rest)//3: (n+1)*len(rest)//3])
        if n == 3: a(merge())
        if n >= 4: a(mx(n - 4))
        if n == c.h_f2 - 28: a([W(vm="st2")] + flag_store(F2, sL, True))
    a(k_rd(1, 0) + k_rd(1, 1) + v_rd(0, 0) + v_rd(0, 1))
    a(qk(1, 0))
    for i in range(5, 8): a(mx(i))
    ld = wl[:2*c.f2n - 1] + [poll_issue(vF2, F2, "f2")] + wl[2*c.f2n - 1: 2*c.f2n + 3]
    ld += [poll_check(vF2, F2, "f2")] + par_loads(c) + wl[2*c.f2n + 3:]
    stamp(a, c)
    for hd in range(2):
        a(mx_fin())
        a(sub(0)); a(sub(1))
        if hd == 1:
            kpre, kmf, kfin = kvsum()
            a(fin(0, OB0, c)); a(kpre)
        for i in range(9):
            main = ex(i) if i < 8 else []
            fill = []
            if i + 2 < 8: fill.append(sub(i + 2))
            if i >= 1:
                ns = [0, 1] if i == 1 else [i]
                for n in ns:
                    fill += pv(hd, n)
                    if n + 2 < 9: fill += v_rd(hd, n + 2)
                if hd == 0:
                    fill += qk(1, i)
                    if i + 1 < 9: fill += k_rd(1, i + 1)
                    if i == 3: main += merge()
                    if i >= 4: main += mx(i - 4)
            if hd == 1 and 2 <= i <= 5: fill += kmf[4*(i-2): 4*i-4]
            if hd == 1 and i == 7: main += kfin
            for _ in range(3 if i else 2):
                if ld: fill.append(ld.pop(0))
            if main: a(weave(main, fill))
            else: a(fill)
        if hd == 0:
            a(v_rd(1, 0) + v_rd(1, 1))
            for i in range(5, 8): a(mx(i))
        stamp(a, c)
    assert not ld
    apre, amf = a_apply(ST(2), [ST(0), ST(1)])
    a(apre)
    a.wait(lg=0); a("s_barrier")
    a(amf)
    a(fin(1, OB1, c))
    a(fin(2, ST(0), c)); a(fin(3, ST(1), c))
    a(f"s_mov_b32 exec_hi, 0\nbuffer_store_dwordx4 {vr(TL, 4)}, v{vOT}, {srd(SWS)}, s{sOT} offen sc1\ns_mov_b32 exec_hi, -1", "st3")
    a.wait(vm="st3")
    a(flag_store(F3, sL, True))

def p3(a, c):
    OP, AC = 0, 144
    V1, V2, VW, VO = 236, 237, 238, 241
    a(poll_issue(vF3, F3, "f3"))
    a(f"v_add_u32 v{V1}, 4096, v{vL16}\nv_add_u32 v{V2}, 8192, v{vL16}")
    for tt in range(4):
        a(f"s_add_u32 s62, s{sW}, {tt}\ns_and_b32 s62, s62, 3")
        if tt: a(f"s_mul_i32 s63, s62, 15360\ns_add_u32 s63, s63, {(tt-1)*5120}\nv_add_u32 v{VW+tt-1}, s63, v{vL16}")
        a(f"s_lshl_b32 s63, s{sRT}, 2\ns_add_u32 s62, s62, s63\ns_mul_i32 s62, s62, 36864\ns_mul_i32 s63, s{sW}, 9216\ns_add_u32 s62, s62, s63\ns_add_u32 s{64+tt}, s62, {OPO}")
    a(f"v_and_b32 v{VO}, 15, v0\nv_mul_u32_u24 v{VO}, 1152, v{VO}\nv_bfe_u32 v{VO+1}, v0, 4, 1\nv_lshl_add_u32 v{VO+1}, v{VO+1}, 3, v{VO}\nv_and_b32 v254, 48, v0\nv_add_u32 v{VO}, v254, v{VO}")
    a(f"s_lshl_b32 s62, s{sRT}, 2\ns_add_u32 s62, s62, s{sW}\ns_mul_i32 s62, s62, {16*1152}\ns_mul_i32 s63, s{sCB}, 144\ns_add_u32 s68, s62, s63")
    a(f"s_mul_i32 s62, s{sW}, 15360\nv_add_u32 v254, s62, v{vL16}")
    mksrd(a, SM, 48, 49, nrec=2048*1152)
    a(poll_check(vF3, F3, "f3"))
    stamp(a, c)
    for s in range(9):
        for tt in range(4):
            a(f"buffer_load_dwordx4 {vr(OP + (s*4 + tt)*4, 4)}, v{[vL16, V1, V2][s >> 2]}, {srd(SWS)}, s{64+tt} offen offset:{(s & 3)*1024} {c.ldpol}")
    for s in range(9):
        for tt in ([0, 1, 2, 3] if s < 8 else [1, 2, 3, 0]):
            for ct in range(5):
                d = vr(AC + (tt*5 + ct)*4, 4)
                a(f"{M16} {d}, {ar(awo(s, ct), 4)}, {vr(OP + (s*4 + tt)*4, 4)}, {d if s else 0}")
    stamp(a, c)
    for tt in range(1, 4):
        for ct in range(5): a(f"ds_write_b128 v{VW+tt-1}, {vr(AC + (tt*5 + ct)*4, 4)} offset:{ct*1024}")
    a.wait(lg=0); a("s_barrier")
    for ct in range(5):
        for sl in range(3): a(f"ds_read_b128 {vr((ct*3 + sl)*4, 4)}, v254 offset:{sl*5120 + ct*1024}")
    for ct in range(5):
        d = AC + ct*4; b = ct*12
        for i in (0, 2): a(f"v_pk_add_f32 {vr(d+i, 2)}, {vr(d+i, 2)}, {vr(b+i, 2)}\nv_pk_add_f32 {vr(b+4+i, 2)}, {vr(b+4+i, 2)}, {vr(b+8+i, 2)}")
        for i in (0, 2): a(f"v_pk_add_f32 {vr(d+i, 2)}, {vr(d+i, 2)}, {vr(b+4+i, 2)}")
        a(f"v_cvt_pk_bf16_f32 v{64+2*ct}, v{d}, v{d+1}\nv_cvt_pk_bf16_f32 v{65+2*ct}, v{d+2}, v{d+3}")
        if ct in (1, 3): a(f"buffer_store_dwordx4 {vr(64 + 2*(ct-1), 4)}, v{VO}, {srd(SM)}, s68 offen offset:{32*(ct-1)}")
        if ct == 4: a(f"s_mov_b32 exec_hi, 0\nbuffer_store_dwordx2 {vr(72, 2)}, v{VO+1}, {srd(SM)}, s68 offen offset:128\ns_mov_b32 exec_hi, -1")

def kvsum2():
    q = Seq(); ID = Q0; t = QT
    q(f"v_bfe_u32 v{t}, v0, 3, 2\nv_bfe_u32 v{t+1}, v0, 1, 1\nv_lshl_add_u32 v{t}, v{t}, 1, v{t+1}")
    q(f"v_and_b32 v{t+1}, 1, v0\nv_lshlrev_b32 v{t+1}, 4, v{t+1}\nv_mov_b32 v{t+2}, 0x3f80\nv_lshlrev_b32 v{t+1}, v{t+1}, v{t+2}")
    q(f"v_bfe_u32 v{t+2}, v0, 2, 1\nv_bfe_u32 v{t+3}, v0, 5, 1\nv_cmp_eq_u32 vcc, v{t+2}, v{t+3}\nv_cndmask_b32 v{t+1}, 0, v{t+1}, vcc")
    for i in range(4): q(f"v_cmp_eq_u32 vcc, {i}, v{t}\nv_cndmask_b32 v{ID+i}, 0, v{t+1}, vcc")
    q(f"s_and_b32 s62, s{sW}, 2\ns_add_u32 s62, s62, s{sW}\ns_lshl_b32 s62, s62, 10\ns_add_u32 s62, s62, {WPH + 2048}\nv_add_u32 v95, s62, v{vL16}\ns_add_u32 s4, s{sOA}, 4096")
    pre = q.l
    o = ar(KA, 16)
    mf = [I(f"{M32} {o}, {vr(ID, 4)}, {ar(APT + 4*r, 4)}, {o if r else 0}") for r in range(16)]
    q = Seq()
    R = [ID, ID+1, ID+2, ID+3, t, t+1, t+2, t+3]
    for i in range(8): q(f"v_accvgpr_read_b32 v{R[i]}, a{KA+i}")
    for i in range(4): q(f"v_cvt_pk_bf16_f32 v{ID+i}, v{R[2*i]}, v{R[2*i+1]}")
    q(f"ds_write_b128 v95, {vr(ID, 4)}")
    return pre, mf, q.l
def a_apply2(T, O):
    q = Seq(); t0, t1, t2, t3 = vBL, vBH, vBT, 94
    q(f"v_and_b32 v{t0}, 31, v0\nv_and_b32 v{t1}, 19, v0\nv_cmp_gt_u32 vcc, 16, v{t0}\nv_cndmask_b32 v{t0}, v{t1}, v{t0}, vcc\nv_bfe_u32 v{t1}, v0, 5, 1")
    q(f"v_mul_u32_u24 v{t2}, 320, v{t1}\nv_lshl_add_u32 v{t2}, v{t0}, 4, v{t2}\nv_add_u32 v{t2}, {WPH + 2048}, v{t2}")
    q(f"v_lshlrev_b32 v{t3}, 12, v{t1}\nv_lshl_add_u32 v{t3}, v{t0}, 2, v{t3}\nv_add_u32 v{t3}, {WPH + 2048 + 640}, v{t3}")
    q(f"s_mul_i32 s62, s{sW}, 5120\ns_add_u32 s62, s62, {STG - KVR}\nv_add_u32 v{t0}, s62, v{vKL}\nv_mul_u32_u24 v{t1}, 5120, v{t1}\nv_add3_u32 v{t1}, v{t1}, s62, v{vKT}")
    adr = q.l; q = Seq()
    for hd in range(2):
        b = T + 24*hd
        q(f"ds_read_b128 {ar(b+14, 4)}, v{t0} offset:{hd*1280}\nds_read_b128 {ar(b+18, 4)}, v{t0} offset:{5120 + hd*1280}\nds_read_b32 a{b+12}, v{t1} offset:{hd*1280}")
        for r in (9, 10, 11, 13): q(f"v_accvgpr_write_b32 a{b+r}, 0")
    pre = q.l
    q = Seq()
    for hd in range(2):
        b = T + 24*hd
        q(f"ds_read_b128 {ar(b, 4)}, v{t2} offset:{hd*1024}\nds_read_b128 {ar(b+4, 4)}, v{t2} offset:{4096 + hd*1024}\nds_read_b32 a{b+8}, v{t3} offset:{hd*1024}")
    for hd in range(2):
        b = T + 24*hd; o = vr(O[hd], 16)
        q(f"{M32} {o}, {ar(b, 4)}, {ar(b+14, 4)}, 0\n{M32} {o}, {ar(b+4, 4)}, {ar(b+18, 4)}, {o}\n{M32} {o}, {ar(b+8, 4)}, {ar(b+12, 4)}, {o}")
    return adr, pre, q.l

P1, P2, PW, PO, PR = 28, 29, 30, 33, 35
def p3_addr():
    a = Seq()
    a(f"v_add_u32 v{P1}, 4096, v{vL16}\nv_add_u32 v{P2}, 8192, v{vL16}")
    for tt in range(4):
        a(f"s_add_u32 s62, s{sW}, {tt}\ns_and_b32 s62, s62, 3")
        if tt: a(f"s_mul_i32 s63, s62, 15360\ns_add_u32 s63, s63, {(tt-1)*5120}\nv_add_u32 v{PW+tt-1}, s63, v{vL16}")
        a(f"s_lshl_b32 s63, s{sRT}, 2\ns_add_u32 s62, s62, s63\ns_mul_i32 s62, s62, 36864\ns_mul_i32 s63, s{sW}, 9216\ns_add_u32 s62, s62, s63\ns_add_u32 s{64+tt}, s62, {OPO}")
    a(f"v_and_b32 v{PO}, 15, v0\nv_mul_u32_u24 v{PO}, 1152, v{PO}\nv_bfe_u32 v{PO+1}, v0, 4, 1\nv_lshl_add_u32 v{PO+1}, v{PO+1}, 3, v{PO}\nv_and_b32 v{PR}, 48, v0\nv_add_u32 v{PO}, v{PR}, v{PO}")
    a(f"s_lshl_b32 s62, s{sRT}, 2\ns_add_u32 s62, s62, s{sW}\ns_mul_i32 s62, s62, {16*1152}\ns_mul_i32 s63, s{sCB}, 144\ns_add_u32 s68, s62, s63")
    a(f"s_mul_i32 s62, s{sW}, 15360\nv_add_u32 v{PR}, s62, v{vL16}")
    mksrd(a, SM, 48, 49, nrec=2048*1152)
    return a.l

def poison(T, vr=ar):
    q = Seq()
    for i in range(4): q(f"v_accvgpr_write_b32 a{T+i}, -1")
    g = []
    for sl in range(4):
        g.append([I(f"s_add_u32 s62, s{sOA}, {sl*2048}"), I(f"buffer_store_dwordx4 {vr(T, 4)}, v{vOA}, {srd(SWS)}, s62 offen sc1", "poi")])
    g.append([I("s_mov_b32 exec_hi, 0"), I(f"buffer_store_dwordx4 {vr(T, 4)}, v{vOT}, {srd(SWS)}, s{sOT} offen sc1", "poi"), I("s_mov_b32 exec_hi, -1")])
    return q.l, g

def attention2(a, c, rest):
    e = wo_loads(c, WOE[:13])
    wl = wo_loads(c, WOE[13:] + WOL[:16]); wlast = wo_loads(c, WOL[16:])
    pl = par_loads(c)
    A = [[] for _ in range(9)]; B = [[] for _ in range(18)]
    gb = c.ks0 + c.kn
    if c.a2n >= 0:
        for k, x in enumerate(e): A[k * c.a2n // len(e)].append(x)
        A[max(c.a2n - 2, 0)].append(poll_issue(vF2, F2, "f2"))
        A[c.a2n].append(poll_check(vF2, F2, "f2"))
        for k, x in enumerate(pl): A[c.a2n + k * (9 - c.a2n) // len(pl)].append(x)
    else:
        for k, x in enumerate(e): A[k // 3].append(x)
        if c.f2n >= 2: B[c.f2n - 2].append(poll_issue(vF2, F2, "f2"))
        else: A[7 + c.f2n].append(poll_issue(vF2, F2, "f2"))
        B[c.f2n].append(poll_check(vF2, F2, "f2") + pl[0])
        for k, x in enumerate(pl[1:]): B[c.f2n + k // c.npl].append(x)
    if c.po:
        for k in range(c.pe): B[min(c.peg + k // 4, 17)].append(ldo(k >> 2, k & 3))
    for g in range(18):
        while wl and len(B[g]) < c.nwl and g not in (9, gb + 1, gb + 2): B[g].append(wl.pop(0))
    assert not wl
    B[min(gb + 3, 17)] += wlast
    a(k_rd(0, 0) + k_rd(0, 1) + [k_rd(0, 2)[1], k_rd(0, 3)[1]])
    k = len(rest) // 2
    a(rest[:k]); rest = rest[k:]
    if c.stp & 4: stamp(a, c)
    for n in range(9):
        a(qk(0, n))
        if n + 2 < 9: a(k_rd(0, n + 2)[:1 if n < 2 else 2])
        a(A[n])
        if n < 3: a(rest[n*len(rest)//3: (n+1)*len(rest)//3])
        if n == 3: a(merge())
        if n >= 4: a(mx(n - 4))
        if n == c.h_f2 - 28: a([W(vm="st2")] + flag_store(F2, sL, True))
    a(k_rd(1, 0) + k_rd(1, 1) + v_rd(0, 0) + v_rd(0, 1))
    a(qk(1, 0))
    for i in range(5, 8): a(mx(i))
    stamp(a, c)
    kpre, kmf, kfin = kvsum2()
    O2, O3 = Q0, KM
    adr, apre, amf = a_apply2(APT, [O2, O3])
    assert gb >= 8
    for hd in range(2):
        a(mx_fin())
        a(sub(0)); a(sub(1))
        if hd == 1: a(fin(0, OB0, c))
        for i in range(9):
            g = 9*hd + i
            main = ex(i) if i < 8 else []
            fill = []
            if g == gb + 1: a(amf)
            if i + 2 < 8: fill.append(sub(i + 2))
            if i >= 1:
                ns = [0, 1] if i == 1 else [i]
                for n in ns:
                    fill += pv(hd, n)
                    if n + 2 < 9: fill += v_rd(hd, n + 2)
                if hd == 0:
                    fill += qk(1, i)
                    if i + 1 < 9: fill += k_rd(1, i + 1)
                    if i == 3: main += merge()
                    if i >= 4: main += mx(i - 4)
            if g == 1: main += kpre
            if g == 2: main += adr
            if c.ks0 <= g < gb: fill += kmf[16*(g-c.ks0)//c.kn: 16*(g-c.ks0+1)//c.kn]
            if g == gb: main += kfin + apre
            if g == gb + 1: main += fin(2, O2, c)
            if g == gb + 2: main = fin(3, O3, c) + main
            if g == 11: main += p3_addr()
            if c.po:
                if g == 10: fill.append(poll_issue(vF3, F1 if c.pop < 23 else F2, "f3"))
            else:
                if g == 9 + c.f3n: fill.append([W(vm="st3a")] + flag_store(F3))
                if g == 17: fill.append(poll_issue(vF3, F3, "f3"))
            fill += B[g]
            if main: a(weave(main, fill))
            else: a(fill)
            if g == 8: a(v_rd(1, 0) + v_rd(1, 1))
            if g == gb: a.wait(lg=0); a("s_barrier")
            if c.po and g == 13: a(poll_check(vF3, F1 if c.pop < 23 else F2, "f3"))
        if hd == 0:
            for i in range(5, 8): a(mx(i))
        stamp(a, c)
    a(fin(1, OB1, c))
    a(f"s_mov_b32 exec_hi, 0\nbuffer_store_dwordx4 {vr(TL, 4)}, v{vOT}, {srd(SWS)}, s{sOT} offen sc1\ns_mov_b32 exec_hi, -1", "st3b")

stubs = Seq()
OPB = [96, 112, 128, 60, 76, 10]
OP = lambda s, tt: OPB[s % 6] + 4*tt
ldo = lambda s, tt, tag=None: I(f"buffer_load_dwordx4 {vr(OP(s, tt), 4)}, v{[vL16, P1, P2][s >> 2]}, {srd(SWS)}, s{64+tt} offen offset:{(s & 3)*1024} sc1", tag)
def p3_2(a, c):
    AC = 144
    def mmo(s, tt):
        return [I(f"{M16} {vr(AC + (tt*5 + ct)*4, 4)}, {ar(awo(s, ct), 4)}, {vr(OP(s, tt), 4)}, {vr(AC + (tt*5 + ct)*4, 4) if s else 0}") for ct in range(5)]
    def chk(nm, L):
        r = [OP(*x) for x in L]
        t = f"v_max3_u32 v94, v{r[0]}, v{r[1]}, v{r[2]}\n" + (f"v_max_u32 v94, v94, v{r[3]}\n" if len(r) > 3 else "") + f"v_cmp_eq_u32 vcc, -1, v94\ns_cbranch_vccnz .Lr{nm}"
        a(t); a.label(f".Lb{nm}")
        stubs.label(f".Lr{nm}")
        stubs(f"s_cmp_eq_u32 s69, 0\ns_cbranch_scc1 .Lb{nm}\ns_sub_u32 s69, s69, 1")
        stubs([ldo(*x, "nocount") for x in L])
        stubs("s_waitcnt vmcnt(0)"); stubs(t); stubs(f"s_branch .Lb{nm}")
    wr = lambda tt: [I(f"ds_write_b128 v{PW+tt-1}, {vr(AC + (tt*5 + ct)*4, 4)} offset:{ct*1024}") for ct in range(5)]
    TO = (1, 2, 3, 0)
    if c.po:
        a("s_mov_b32 s69, 300000")
        for k in range(c.pe, 24): a(ldo(k >> 2, k & 3))
        lb = [ldo(s, tt) for tt in TO for s in (6, 7, 8)]
        for s in range(6):
            chk(f"a{s}", [(s, tt) for tt in range(4)])
            m = flat([mmo(s, tt) for tt in range(4)])
            if s == c.p3d + 1 and s >= 3: m = put(m, [(k, x) for k, x in enumerate(lb)]); lb = []
            a(m)
        a(lb)
        stamp(a, c)
    else:
        a(poll_check(vF3, F3, "f3", F3B))
        stamp(a, c)
        for k in range(24):
            if k == c.nfl: a([W(vm="st3b")] + flag_store(F3B))
            a(ldo(k >> 2, k & 3))
        if c.nfl >= 24: a([W(vm="st3b")] + flag_store(F3B))
        a(poll_issue(vF3, F3B, "f3b"))
        for k in range(24): a(mmo(k >> 2, k & 3))
        stamp(a, c)
        a(poll_check(vF3, F3B, "f3b"))
        stamp(a, c)
        for tt in TO:
            for s in (6, 7, 8): a(ldo(s, tt))
    prev = None
    for tt in TO:
        if c.po: chk(f"b{tt}", [(s, tt) for s in (6, 7, 8)])
        m = mmo(6, tt) + mmo(7, tt) + mmo(8, tt)
        a(put(m, [(2 + 2*k, x) for k, x in enumerate(wr(prev))]) if prev else m)
        prev = tt
    stamp(a, c)
    if c.po and c.stamps: a(f"v_writelane_b32 v{vSTAMP}, s69, 31\ns_mov_b32 s69, 300000\nv_writelane_b32 v{vSTAMP}, s69, 30")
    a.wait(lg=0); a("s_barrier")
    RB = 60; OC = 40
    for ct in range(5):
        for sl in range(3): a(f"ds_read_b128 {vr(RB + (ct*3 + sl)*4, 4)}, v{PR} offset:{sl*5120 + ct*1024}")
    for ct in range(5):
        d = AC + ct*4; b = RB + ct*12
        for i in (0, 2): a(f"v_pk_add_f32 {vr(d+i, 2)}, {vr(d+i, 2)}, {vr(b+i, 2)}\nv_pk_add_f32 {vr(b+4+i, 2)}, {vr(b+4+i, 2)}, {vr(b+8+i, 2)}")
        for i in (0, 2): a(f"v_pk_add_f32 {vr(d+i, 2)}, {vr(d+i, 2)}, {vr(b+4+i, 2)}")
        a(f"v_cvt_pk_bf16_f32 v{OC+2*ct}, v{d}, v{d+1}\nv_cvt_pk_bf16_f32 v{OC+1+2*ct}, v{d+2}, v{d+3}")
        if ct in (1, 3): a(f"buffer_store_dwordx4 {vr(OC + 2*(ct-1), 4)}, v{PO}, {srd(SM)}, s68 offen offset:{32*(ct-1)}")
        if ct == 4: a(f"s_mov_b32 exec_hi, 0\nbuffer_store_dwordx2 {vr(OC+8, 2)}, v{PO+1}, {srd(SM)}, s68 offen offset:128\ns_mov_b32 exec_hi, -1")

def finish(a, c):
    stamp(a, c)
    if c.stamps:
        a(f"s_cmp_lg_u32 s{sW}, 0\ns_cbranch_scc1 .Lend\ns_lshl_b32 s62, s2, 7\nv_lshrrev_b32 v4, 2, v{vL16}\ns_mov_b64 exec, 0xffffffff")
        a(f"buffer_store_dword v{vSTAMP}, v4, {srd(SWS)}, s62 offen")
    a.label(".Lend")
    a("s_endpgm")
    a(stubs)
    a("s_endpgm")
    a.label(".Lcodeend")

def build(c, path):
    a = Seq(); nst[0] = 0
    wo_init(c)
    prologue(a, c)
    setup1(a, c)
    setup2(a, c)
    issue(a, c, c.o2)
    if c.pst: stamp(a, c)
    a.wait(vm=["w0", "x0", "ga"])
    if c.pst: stamp(a, c)
    for s in range(9): a(f"ds_read_u16 v{vGA+s}, v{vMD+3} offset:{32*s}", f"g{s}")
    a(rd_x(0))
    issue(a, c, c.o2b)
    a.wait(lg="g0")
    a(patch(0)); a.wait(lg=0); a("s_barrier")
    stamp(a, c)
    a(rd_w(0, 0))
    issue(a, c, c.o3)
    ex = {}
    def add(k, v, pos=9): ex.setdefault(k, []).append(flat(v) if isinstance(k, tuple) else (pos, flat(v)))
    p1, p2 = producer(c)
    add(c.s_prod, p1, c.p_pr); add(c.s_prod + (c.p_pr + 4) // 10, p2, (c.p_pr + 4) % 10)
    add(c.s_fw, tag_check() + [W(vm="stp")] + flag_store(FW))
    add(2*c.s_pw - 1, poll_issue(vFW, FW, "fw"))
    add(("pre", c.s_pw), poll_check(vFW, FW, "fw"))
    allo = ",".join([c.o1, c.o2, c.o2b, c.o3]).split(",")
    if "wo" not in allo: add(2*c.s_wo, wo_dma())
    add(("pre", (c.s_rp - 1) // 2), [W(vm="wos")])
    p1, p2 = wo_repack()
    add(c.s_rp, p1, 7); add(c.s_rp + 1, p2, 9)
    add(c.s_rp + 2, wa_load())
    q = Seq(); setup3(q, c); add(15, q.l)
    if c.s2 and c.po and c.pop < 18:
        p1, p2 = poison(208); add(c.pop, p1, 0)
        for k, x in enumerate(p2): add(c.pop + k // 3, x, 3*(k % 3) + 2)
    pass1(a, c, ex)
    stamp(a, c)
    if c.stop == 1:
        a.wait(vm=0, lg=0); finish(a, c)
        open(path, "w").write(wrap(finalize(a.l, True), LDS_TOTAL)); return
    b = Seq()
    rest = g2(b, c)
    (attention2 if c.s2 else attention)(b, c, rest)
    a(sched(b.l, c.sch, "g2+att", c.beta / 100) if c.sch else b.l)
    stamp(a, c)
    (p3_2 if c.s2 else p3)(a, c)
    finish(a, c)
    open(path, "w").write(wrap(finalize(a.l, True), LDS_TOTAL))

if __name__ == "__main__":
    c = Cfg()
    path = sys.argv[1]
    for kv in sys.argv[2:]:
        k, v = kv.split("=")
        setattr(c, k, type(getattr(c, k))(int(v)) if not isinstance(getattr(c, k), str) else v)
    build(c, path)
```

```python
import re
KN = "gated_mix__linear_kernel_hedgehog__sliding_block__prompt_kernel"

class I:
    __slots__ = ("t", "tag", "wvm", "wlg", "kind")
    def __init__(self, t, tag=None, wvm=None, wlg=None, kind=None):
        self.t = t; self.tag = tag; self.wvm = wvm; self.wlg = wlg; self.kind = kind

def W(vm=None, lg=None):
    return I(None, wvm=vm, wlg=lg, kind="wait")

class Seq:
    def __init__(self): self.l = []
    def __call__(self, s, tag=None):
        if isinstance(s, I): self.l.append(s); return
        if isinstance(s, Seq): self.l.extend(s.l); return
        if isinstance(s, list):
            for x in s: self(x, tag)
            return
        for ln in s.split("\n"):
            ln = ln.strip()
            if ln: self.l.append(I(ln, tag))
    def wait(self, vm=None, lg=None): self.l.append(W(vm, lg))
    def label(self, n): self.l.append(I(n + ":", kind="label"))

def weave(main, fill, start=0, per=None):
    main = main.l if isinstance(main, Seq) else main
    fill = fill.l if isinstance(fill, Seq) else fill
    out = []; n = len(main) - start; k = 0
    for i, m in enumerate(main):
        out.append(m)
        if i >= start:
            tgt = len(fill) if i == len(main) - 1 else (min(len(fill), (i - start + 1) * per) if per else (len(fill) * (i - start + 1) + n - 1) // n)
            while k < tgt:
                f = fill[k]; k += 1
                if isinstance(f, list): out.extend(f)
                else: out.append(f)
    return out

_rr = re.compile(r"^(-|\|)?([vas])(\d+)\|?$"); _rs = re.compile(r"^(-|\|)?([vas])\[(\d+):(\d+)\]\|?$")
def regs(op):
    op = op.strip()
    m = _rr.match(op)
    if m: return {(m.group(2), int(m.group(3)))}
    m = _rs.match(op)
    if m: return {(m.group(2), i) for i in range(int(m.group(3)), int(m.group(4)) + 1)}
    if op == "vcc": return {("s", 106), ("s", 107)}
    if op == "exec": return {("s", 126), ("s", 127)}
    if op == "m0": return {("s", 124)}
    if op == "exec_lo": return {("s", 126)}
    if op == "exec_hi": return {("s", 127)}
    return set()

TRANS = ("v_exp_f32", "v_log_f32", "v_rcp_f32", "v_rsq_f32", "v_sqrt_f32")
SCC = ("c", 0)
SCCW = ("s_add", "s_sub", "s_cmp", "s_and", "s_or", "s_xor", "s_lshl", "s_lshr", "s_ashr", "s_bfe", "s_min", "s_max", "s_bitcmp", "s_not", "s_andn2", "s_abs")
SCCR = ("s_cselect", "s_addc", "s_subb", "s_cbranch_scc", "s_cmov")
def parse(t):
    mn, _, rest = t.partition(" ")
    ops = [o.strip().split(" ")[0] for o in rest.split(",")] if rest else []
    R = [regs(o) for o in ops]
    U = lambda xs: set().union(*xs) if xs else set()
    d = dict(mn=mn, cls="other", w=set(), r=set(), C=set(), AB=set(), passes=0, wide=set(), xr=set(), xw=set())
    if mn.startswith("v_mfma"):
        d.update(cls="mfma", w=R[0], AB=R[1] | R[2], C=R[3], r=R[1] | R[2] | R[3], passes=8 if "32x32" in mn else 4)
    elif mn.startswith("v_"):
        d["cls"] = "valu"
        if "swap" in mn: d.update(w=R[0] | R[1], r=R[0] | R[1])
        elif "_co_" in mn: d.update(w=R[0] | R[1], r=U(R[2:]))
        else:
            d.update(w=R[0], r=U(R[1:]))
            if mn.startswith(("v_fmac", "v_dot2c", "v_mac", "v_writelane")) or "dpp" in t or "row_" in t: d["r"] |= R[0]
    elif mn.startswith("ds_read"): d.update(cls="ds", w=R[0], r=U(R[1:]))
    elif mn.startswith("ds_"): d.update(cls="ds", r=U(R))
    elif mn.startswith(("buffer_", "global_")):
        d["cls"] = "vmem"
        if " lds" in t: d.update(r=U(R) | {("s", 124)}, dma=True)
        elif "load" in mn: d.update(w=R[0], r=U(R[1:]))
        else:
            d.update(r=U(R))
            if "x4" in mn or "x3" in mn: d["wide"] = R[0] if mn.startswith("buffer") else R[1]
    elif mn.startswith("s_"):
        d["cls"] = "salu"
        if R and not mn.startswith(("s_cmp", "s_cbranch", "s_bitcmp")): d["w"] = set(R[0]); d["r"] = U(R[1:])
        else: d["r"] = U(R)
        if mn.startswith(("s_bitset", "s_cmov")): d["r"] |= R[0]
        if mn.startswith(SCCW): d["xw"] = {SCC}
        if mn.startswith(SCCR): d["xr"] = {SCC}
    if d["cls"] in ("valu", "mfma", "ds", "vmem"): d["xr"] = {("s", 126), ("s", 127)}
    return d

def need(p, c):
    n = 0
    vw = {x for x in p["w"] if x[0] != "s"}; sw = {x for x in p["w"] if x[0] == "s"}
    if p["cls"] == "valu":
        if c["cls"] == "mfma" and vw & c["r"]: n = max(n, 2)
        if c["cls"] == "valu":
            if p["mn"].startswith(TRANS) and vw & c["r"]: n = max(n, 1)
            if c["mn"].startswith(("v_readlane", "v_readfirstlane")) and vw & c["r"]: n = max(n, 1)
            if (c["mn"].startswith("v_permlane") or c.get("dpp")) and vw & c["r"]: n = max(n, 2)
            if sw & c["r"]: n = max(n, 4 if c["mn"].startswith(("v_readlane", "v_writelane")) else 2)
            if p["mn"].startswith("v_dot") and vw & (c["r"] | c["w"]) and c["mn"] != p["mn"]: n = max(n, 3)
        if c["cls"] == "vmem" and sw & c["r"]: n = max(n, 5)
    if p["cls"] == "mfma":
        big = 12 if p["passes"] == 8 else 8
        if c["cls"] == "mfma":
            if p["w"] & c["AB"]: n = max(n, big)
            if p["w"] & c["C"] and not (p["w"] == c["C"] and p["passes"] == c["passes"]): n = max(n, big - 2)
            if p["w"] & c["w"] and not (p["w"] == c["w"] and p["passes"] == c["passes"]): n = max(n, big)
        elif c["cls"] in ("valu", "ds", "vmem"):
            if p["w"] & (c["r"] | c["w"]): n = max(n, big)
            if p["C"] & c["w"]: n = max(n, 7 if p["passes"] == 8 else 3)
    if p["cls"] == "vmem" and p["wide"] and p["wide"] & c["w"]: n = max(n, 2)
    if p["cls"] == "salu" and ("s", 124) in p["w"] and c.get("dma"): n = max(n, 1)
    return n

HOIST = [0, 1]
def finalize(l, verbose=False):
    out = []; vm = []; lg = []; hist = []; nnop = 0
    def cnt(q, tags, mx):
        if tags == 0: return 0
        if not isinstance(tags, (list, tuple)): tags = [tags]
        last = -1
        for i, x in enumerate(q):
            if x[0] in tags: last = i
        if last < 0: return None
        return min(len(q) - 1 - last, mx)
    def emit(t, ws=1, d=None):
        out.append(t)
        for h in hist: h[1] += ws
        hist[:] = [h for h in hist if h[1] < 14]
        if d: hist.append([d, 0])
    def hoist(k):
        if k + 1 >= len(l) or any(x[0] == "smem" for x in lg): return
        nx = l[k+1]
        if nx.kind is not None or nx.t.startswith(("s_", ".", ";")): return
        last = -1; nm = 0
        for y in l[k+1: k+12]:
            if y.kind == "wait":
                if y.wlg is not None and y.wlg != 0 and y.wvm is None:
                    tg = y.wlg if isinstance(y.wlg, (list, tuple)) else [y.wlg]
                    if any(z.kind is None and z.tag in tg for z in l[k+1: l.index(y, k)]): break
                    for i, x in enumerate(lg):
                        if x[0] in tg and len(out) - x[3] >= HOIST[0]: last = max(last, i)
                    continue
                break
            if y.kind is not None or y.t.startswith((".", ";", "s_cbranch", "s_barrier", "s_branch", "s_mem", "s_load")): break
            d = parse(y.t); rw = d["r"] | d["w"]
            for i, x in enumerate(lg):
                if x[1] & rw and not (d["cls"] == "ds" and not (x[1] & d["r"])) and len(out) - x[3] >= HOIST[0]: last = max(last, i)
            if d["cls"] == "mfma":
                nm += 1
                if nm >= HOIST[1]: break
        if last >= 0:
            n = min(len(lg) - 1 - last, 15)
            emit(f"    s_waitcnt lgkmcnt({n})"); lg[:] = lg[len(lg) - n:] if n else []
    for kk, ins in enumerate(l):
        if ins.kind == "label":
            out.append(ins.t); continue
        if ins.kind == "wait":
            parts = []
            if ins.wvm is not None:
                n = cnt(vm, ins.wvm, 63)
                if n is not None: parts.append(f"vmcnt({n})"); vm[:] = vm[len(vm) - n:] if n else []
            if ins.wlg is not None:
                n = cnt(lg, ins.wlg, 15)
                if n is not None:
                    if any(x[0] == "smem" for x in lg): n = 0
                    parts.append(f"lgkmcnt({n})"); lg[:] = lg[len(lg) - n:] if n else []
            if parts: emit("    s_waitcnt " + " ".join(parts))
            continue
        t = ins.t
        if t.startswith((".", ";")): out.append(t); continue
        d = parse(t)
        if "row_" in t or "quad_perm" in t or "_dpp" in t: d["dpp"] = True
        rw = d["r"] | d["w"]; parts = []
        for q, nm, mx in ((vm, "vmcnt", 63), (lg, "lgkmcnt", 15)):
            last = -1
            for i, x in enumerate(q):
                if x[1] & rw and not (x[2] == d["cls"] == "ds" and not (x[1] & d["r"])): last = i
            if last >= 0:
                n = min(len(q) - 1 - last, mx)
                if nm == "lgkmcnt" and any(x[0] == "smem" for x in q): n = 0
                parts.append(f"{nm}({n})"); q[:] = q[len(q) - n:] if n else []
        if parts: emit("    s_waitcnt " + " ".join(parts))
        n = max([need(h[0], d) - h[1] for h in hist] + [0])
        while n > 0:
            k = min(n, 8); emit(f"    s_nop {k-1}", k); n -= k; nnop += k
        if d["mn"] == "s_nop": emit("    " + t, int(t.split()[1]) + 1); continue
        if ins.tag == "nocount": pass
        elif d["cls"] == "vmem": vm.append((ins.tag, d["w"], "vmem"))
        elif d["cls"] == "ds": lg.append((ins.tag, d["w"], "ds", len(out)))
        elif d["mn"].startswith(("s_load", "s_memrealtime", "s_memtime")): lg.append(("smem", d["w"], "smem", len(out)))
        emit("    " + t, 1, d)
        if HOIST[0] and d["cls"] == "mfma": hoist(kk)
    if verbose: print("auto nops:", nnop, "instrs:", len(out))
    return "\n".join(out) + "\n"

class Fence(I):
    def __init__(self): I.__init__(self, ";", kind="fence")

def flat(l):
    out = []
    for x in (l.l if isinstance(l, Seq) else l):
        if isinstance(x, (list, tuple, Seq)): out.extend(flat(x))
        else: out.append(x)
    return out

LAT_DS, LAT_VM, VMC = 128, 1500, 72
def icost(d):
    if d["cls"] == "valu": return 8 if d["mn"].startswith(TRANS) else 4
    if d["cls"] == "ds" and not d["mn"].startswith("ds_read"): return 16 if "b128" in d["mn"] else 8
    if d["cls"] == "vmem" and "store" in d["mn"]: return 16 if "x4" in d["mn"] else 8
    return 4
def sched(l, win=48, rep=None, beta=0.0):
    l = flat(l); out = []; seg = []
    tot = [0]
    def hard(x):
        if x.kind in ("label", "fence"): return True
        if x.kind == "wait": return False
        return x.t.startswith(("s_cbranch", "s_branch", "s_endpgm", "s_memrealtime", "s_memtime", "s_load", "s_waitcnt", "s_getpc", ".", ";"))
    def run(seg):
        n = len(seg)
        if n == 0: return
        D = []
        for x in seg:
            if x.kind == "wait": d = dict(mn="s_waitcnt", cls="salu", w=set(), r=set(), C=set(), AB=set(), passes=0, wide=set(), xr=set(), xw=set(), fence=True)
            else:
                d = parse(x.t)
                if "row_" in x.t or "quad_perm" in x.t or "_dpp" in x.t: d["dpp"] = True
                if d["mn"] == "s_barrier": d["fence"] = True
            D.append(d)
        pred = [dict() for _ in range(n)]
        lw = {}; lr = {}; lds = lvm = -1
        for i, d in enumerate(D):
            R = d["r"] | d["xr"]; Wr = d["w"] | d["xw"]
            def dep(j, lat=0):
                if j < 0 or j == i: return
                o = pred[i].get(j, (0, 0))
                pred[i][j] = (max(o[0], lat), need(D[j], d))
            for r in R:
                j = lw.get(r, -1)
                if j >= 0: dep(j, LAT_DS if D[j]["cls"] == "ds" else LAT_VM if D[j]["cls"] == "vmem" else 0)
            for r in Wr:
                j = lw.get(r, -1)
                if j >= 0: dep(j, 0 if D[j]["cls"] == d["cls"] == "ds" else LAT_DS if D[j]["cls"] == "ds" else LAT_VM if D[j]["cls"] == "vmem" else 0)
                for j in lr.get(r, ()): dep(j)
            if d["cls"] == "ds" or d.get("fence"): dep(lds, LAT_DS if (d.get("fence") and seg[i].kind == "wait" and seg[i].wlg == 0 and lds >= 0 and D[lds]["cls"] == "ds") else 0); lds = i
            if d["cls"] == "vmem" or d.get("fence"): dep(lvm); lvm = i
            for r in R: lr.setdefault(r, []).append(i)
            for r in Wr: lw[r] = i; lr[r] = []
        done = [None] * n
        t = 0; pos = 0; pipe = 0; mft = -99; vend = -99; lo = 0; vfree = 0
        while pos < n:
            while done[lo] is not None: lo += 1
            cands = []; cnt = 0; i = lo
            while i < n and cnt < win:
                if done[i] is None:
                    cnt += 1
                    if all(done[j] is not None for j in pred[i]):
                        d = D[i]; st = t
                        for j, (lat, ws) in pred[i].items():
                            st = max(st, done[j][0] + lat, t + 4 * (ws - (pos - done[j][1] - 1)))
                        c = d["cls"]
                        if c == "mfma": st = max(st, pipe)
                        elif c in ("valu", "ds", "vmem"):
                            st = max(st, mft + 8)
                            if c != "valu": st = max(st, vend + 8)
                            if c == "vmem": st = max(st, vfree)
                        cands.append((st - t, i))
                i += 1
            mf = [x for x in cands if D[x[1]]["cls"] == "mfma"]
            mf = min(mf) if mf else None
            best = None
            for st, i in cands:
                c = D[i]["cls"]; pen = st
                if mf and c != "mfma" and i > mf[1]: pen += max(0, st + icost(D[i]) - mf[0])
                pen += beta * (i - lo)
                key = (pen, {"mfma": 0, "ds": 1, "vmem": 1, "salu": 2, "other": 2, "valu": 2}[c], i)
                if best is None or key < best[0]: best = (key, st, i)
            _, st, i = best
            d = D[i]; t += st
            done[i] = (t, pos); pos += 1; out.append(seg[i])
            if d["cls"] == "mfma": pipe = t + 4 * d["passes"]; mft = t
            if d["cls"] == "vmem": vfree = t + (VMC if "x4" in d["mn"] else VMC // 2 if seg[i].tag == "wo" else 16)
            t += icost(d)
            if d["cls"] == "valu": vend = t
        tot[0] += max(t, pipe)
    for x in l:
        if hard(x):
            run(seg); seg = []
            if x.kind != "fence": out.append(x)
        else: seg.append(x)
    run(seg)
    if rep: print(f"sched {rep}: model cycles {tot[0]}, instrs {len(out)}")
    return out

def magic_div(d, nmax):
    for s in range(6, 32):
        m = -(-(1 << s) // d)
        if m * (nmax - 1) >= (1 << 32) or m >= (1 << 24): continue
        if all(((i * m) >> s) == i // d for i in range(nmax)): return m, s
    raise ValueError

def wrap(body, lds, vgprs=512, accum=256):
    return f"""; @launch grid=(256,1,1) block=(256,1,1) lds={lds}
.amdgcn_target "amdgcn-amd-amdhsa--gfx950"
.text
.globl {KN}
.p2align 8
.type {KN},@function
{KN}:
{body}.section .rodata,"a"
.p2align 6
.amdhsa_kernel {KN}
  .amdhsa_next_free_vgpr {vgprs}
  .amdhsa_next_free_sgpr 102
  .amdhsa_accum_offset {accum}
  .amdhsa_group_segment_fixed_size 0
  .amdhsa_kernarg_size 88
  .amdhsa_user_sgpr_count 2
  .amdhsa_user_sgpr_kernarg_segment_ptr 1
  .amdhsa_system_sgpr_workgroup_id_x 1
.end_amdhsa_kernel
"""
```

```python
import sys
sys.path.insert(0, "work")
from fw import *

class Cfg:
    stop = 99
    stamps = True
    ldpol = "sc1"
    rotmod = 9
    stag = 0x7520
    o1 = 'pr'
    o2 = 'x1,w1'
    o2b = 'tag,x2'
    o3 = 'w2'
    p_pr = 0
    s_rp = 11
    fl = 1
    g3f = 1
    nwg = 256
    px = '1368'
    pw = 'cfi'
    pw2 = '258124578'
    pv = 5
    exp = 0
    m44 = 0
    wol = 0
    h_fo = 13
    s_wa = 9
    x2l = 0
    stp = 0
    pst = 0
    gx = (1, 3, 6, 8)
    gw = (2, 5, 8)
    sch = 32
    beta = 50
    s_prod = 0
    s_fw = 3
    s_pw = 6
    s_wo = 2
    h_f1 = 12
    h_kv = 17
    n_kv = 7
    h_f2 = 27
    phq = 30
    tlb = 0
    upk = 'famFAMst023'
    al = 1
    xpf = 1
    warm = 0
    hoist = 16
    hoistn = 2
    dep = 4
    f2n = 2
    s2 = 1
    a2n = -1
    npl = 5
    ks0 = 9
    kn = 4
    po = 1
    nwl = 4
    pon = 3
    e1n = 3
    e1s = '34456'
    pe = 8
    peg = 15
    pop = 16
    p3d = 3
    f3n = 7
    nfl = 12
    p3s = 0
NW = 5
F1, FW, F3, F2, FO, F3B = 0x60000, 0x80000, 0x20000, 0x40000, 0xA0000, 0xC0000
KVO, PKO, PARO, WOO, OPO = 0x100000, 0x600000, 0x8A0000, 0x960000, 0xAB0000
KV_PAIR, KV_KIND = 163840, 2621440
WOBLK = 5248
PSEC = 72 * 1152
WSL = 12416
KVR = 62080
XR = KVR
WOS = KVR + 49152
STG = KVR + 61440
SST = 7680
WPH = STG + 4 * SST
KVS = WPH + 4096
LDS_TOTAL = KVS + 4096
SX, SW1, SPK, SPS, SWS, SM = 4, 8, 12, 92, 20, 24
sW, sR, sG, sT = 28, 29, 30, 31
sKA, sKP, sLE, sQS = 32, 37, 46, 18
sL, sM0x, sM0w1, sM0w2 = 54, 55, 56, 57
sTAG = 58
sKX, sKW = 64, 73
sCB, sRT, sP = 96, 97, 98
sOA, sOT = 16, 17
def srd(n): return f"s[{n}:{n+3}]"
def vr(n, k): return f"v[{n}:{n+k-1}]"
def ar(n, k): return f"a[{n}:{n+k-1}]"
vL = 1
PM = 2
vX, vXR, vW1, vWA1, vWT1, vPAT, vGA = 10, 14, 16, 19, 20, 21, 22
vPK, vPS, vSA, vST, vSL, vK2, vF1 = 31, 34, 35, 36, 37, 38, 39
vKS = 10
AX, WA1, WA2, AD, FR, AY, ACC = 40, 64, 76, 88, 96, 144, 160
vPR1, vPR3, vPS3, vRP, vMD, vP4, vWP, vWP2, vWM = 200, 201, 203, 204, 207, 211, 212, 213, 214
vTW, vSC, V4, VT, VT4, vFW, vFO = 216, 218, 219, 220, 221, 222, 223
vL16, vG0, vG1, vTR = 224, 225, 226, 227
vBL, vBH, vBT, vKL, vKT = 231, 232, 233, 234, 235
vBT2, vQM, vQT, vONE = 236, 237, 238, 239
vOA, vOT, vF2, vF3, vPD, vTG, CM, vSTAMP = 240, 241, 242, 243, 244, 246, 248, 255
vWM2 = 254
fT, fKG, fH, fKL, fRR, fC, fC0, fC1, fQ = range(144, 153)
M32 = "v_mfma_f32_32x32x16_bf16"
M16 = "v_mfma_f32_16x16x32_bf16"

nst = [0]
def stamp(a, c):
    if not c.stamps or nst[0] >= 30: return
    a("s_memrealtime s[60:61]")
    a.wait(lg=0)
    a(f"v_writelane_b32 v{vSTAMP}, s60, {nst[0]}")
    nst[0] += 1

def lin(a, dst, terms, const=None):
    first = True
    for f, m in terms:
        if first:
            a(f"v_mul_u32_u24 v{dst}, {m}, v{f}")
            if not (const is None or const == 0): a(f"v_add_u32 v{dst}, {const}, v{dst}")
            first = False
        else:
            if 0 <= m <= 64: a(f"v_mad_u32_u24 v{dst}, v{f}, {m}, v{dst}")
            else:
                a(f"s_movk_i32 s63, {m}" if m < 32768 else f"s_mov_b32 s63, {m}")
                a(f"v_mad_u32_u24 v{dst}, v{f}, s63, v{dst}")

def mksrd(a, n, lo, hi, off=None, nrec=0x7fffffff):
    if off is None: a(f"s_mov_b32 s{n}, s{lo}\ns_mov_b32 s{n+1}, s{hi}")
    else: a(f"s_add_u32 s{n}, s{lo}, {off}\ns_addc_u32 s{n+1}, s{hi}, 0")
    a(f"s_mov_b32 s{n+2}, {nrec}\ns_mov_b32 s{n+3}, 0x20000")

def dma_x(s):
    q = Seq()
    q(f"s_add_u32 m0, s{sM0x}, {(s % 3) * 16384}")
    for i in range(4):
        q(f"buffer_load_dwordx4 v{vX+i}, {srd(SX)}, s{sKX+s} offen offset:{i*1024} lds", f"x{s}")
    return q.l
def dma_w(c, n):
    q = Seq()
    q(f"s_add_u32 m0, s{sM0w1 if n < 9 else sM0w2}, {(n % NW) * WSL}")
    for i in range(3):
        if n < 9: q(f"buffer_load_dwordx4 v{vW1+i}, {srd(SW1)}, s{sKW+n} offen offset:{i*1024} lds", f"w{n}")
        elif n < 14: q(f"buffer_load_dwordx4 v{vPK+i}, {srd(SPK)}, s{sKA+n-9} offen offset:{i*1024} {c.ldpol} lds", f"w{n}")
        else: q(f"buffer_load_dwordx4 v{vPS}, {srd(SPK)}, s{sKP+3*((n-14)%3)+i} offen offset:{i*1024} {c.ldpol} lds", f"w{n}")
    if n in (16, 19): q(f"v_add_u32 v{vPS}, {PSEC}, v{vPS}")
    return q.l
def rd_w(n, ks):
    base = (n % NW) * WSL; out = []
    for h in range(5):
        for j in range(2):
            ad = vWA1 if h < 4 else vWT1; off = base + ks * 6208 + j * 768 + (h * 48 if h < 4 else 0)
            out.append(I(f"ds_read_b64_tr_b16 {vr(FR + ks*24 + h*4 + j*2, 2)}, v{ad} offset:{off}", f"f{n}_{ks}"))
    return out
def rd_x(s):
    return [I(f"ds_read_b128 {ar((s*4 + ks*2 + tt)*4, 4)}, v{vXR+ks} offset:{(s%3)*16384 + tt*2048}", f"xr{s}") for ks in range(2) for tt in range(2)]
def mm(s, ks):
    out = []
    for h in range(5):
        for tt in range(2):
            d = vr(ACC + (h*2 + tt)*4, 4)
            out.append(I(f"{M16} {d}, {vr(FR + ks*24 + h*4, 4)}, {ar((s*4 + ks*2 + tt)*4, 4)}, {0 if (s == 0 and ks == 0) else d}"))
    return out
def patch(s): return I(f"ds_write_b16 v{vPAT}, v{vGA+s} offset:{(s % NW) * WSL}", "pat")

def pr_dma():
    q = Seq()
    q("s_mov_b32 m0, s91")
    for i in range(4): q(f"buffer_load_dwordx4 v{vW1+i if i < 3 else vP4}, {srd(SPS)}, 0 offen offset:{i*1024} lds", "pr")
    return q.l
def x_pf():
    q = Seq()
    q(f"s_and_b32 s62, s{sR}, 7\ns_add_u32 s62, s62, 4\ns_sub_u32 s63, s62, 9\ns_cselect_b32 s62, s62, s63\ns_lshl_b32 s62, s62, 7")
    q(f"s_lshr_b32 s63, s2, 6\ns_lshl2_add_u32 s63, s63, s{sW}\ns_mul_i32 s63, s63, {8*1152}\ns_add_u32 s62, s62, s63\nv_and_b32 v4, 7, v0\nv_mul_u32_u24 v4, 1152, v4")
    q(f"buffer_load_dword a255, v4, {srd(SX)}, s62 offen", "pf")
    return q.l
def issue(a, c, o):
    for t in o.split(","):
        if t == "xp": a(x_pf()); continue
        if t == "pr": a(pr_dma())
        elif t == "tag": a(tag_issue())
        elif t == "wo": a(wo_dma())
        elif t and t[0] == "x": a(dma_x(int(t[1])))
        elif t and t[0] == "w": a(dma_w(c, int(t[1])))

def prologue(a, c):
    a("s_getpc_b64 s[60:61]")
    a("s_load_dwordx16 s[32:47], s[0:1], 0\ns_load_dwordx4 s[48:51], s[0:1], 64\ns_load_dwordx2 s[52:53], s[0:1], 80")
    a(f"s_memrealtime s[{sTAG}:{sTAG+1}]")
    a(f"s_cmp_ge_u32 s2, {c.nwg}\ns_cbranch_scc1 .Lend")
    a(f"v_lshrrev_b32 v2, 6, v0\nv_and_b32 v{vL}, 63, v0")
    a(f"v_readfirstlane_b32 s{sW}, v2")
    a("s_lshr_b32 s3, s2, 3")
    a(f"s_and_b32 s62, s3, 7\ns_lshl_b32 s62, s62, 13\nv_and_b32 v{fT}, 15, v0\nv_lshlrev_b32 v3, 7, v{fT}\nv_lshl_add_u32 v3, v2, 11, v3\nv_add_u32 v3, s62, v3")
    a(f"v_min_u32 v3, .Lcodeend-{KN}-8, v3")
    a("global_load_dword v9, v3, s[60:61]", "pf")
    if c.m44:
        a(f"s_and_b32 s62, s2, 3\ns_and_b32 s63, s3, 3\ns_lshl2_add_u32 s{sR}, s62, s63")
        a(f"s_and_b32 s62, s2, 4\ns_bfe_u32 s{sG}, s3, 0x20002\ns_or_b32 s{sG}, s{sG}, s62\ns_lshr_b32 s{sT}, s3, 4")
        a(f"s_lshl_b32 s62, s63, 2\ns_lshr_b32 s62, {c.stag}, s62\ns_and_b32 s62, s62, 15\ns_lshr_b32 s63, s3, 2\ns_add_u32 s62, s62, s63\ns_sub_u32 s63, s62, 9\ns_cselect_b32 s62, s62, s63")
    else:
        a(f"s_and_b32 s62, s2, 1\ns_lshl_b32 s62, s62, 3\ns_and_b32 s{sR}, s3, 7\ns_or_b32 s{sR}, s{sR}, s62")
        a(f"s_and_b32 s62, s2, 6\ns_bfe_u32 s{sG}, s3, 0x10003\ns_or_b32 s{sG}, s{sG}, s62\ns_lshr_b32 s{sT}, s3, 4")
    if c.m44: pass
    elif c.stag == 0:
        m, sh = magic_div(c.rotmod, 32)
        a(f"s_mul_i32 s62, s3, {m}\ns_lshr_b32 s62, s62, {sh}\ns_mul_i32 s62, s62, {c.rotmod}\ns_sub_u32 s62, s3, s62")
    else:
        a(f"s_lshr_b32 s62, s3, 1\ns_and_b32 s62, s62, 12\ns_lshr_b32 s62, {c.stag}, s62\ns_and_b32 s62, s62, 15\ns_and_b32 s63, s3, 7\ns_add_u32 s62, s62, s63\ns_sub_u32 s63, s62, 9\ns_cselect_b32 s62, s62, s63")
    a(f"s_lshl_b32 s{sKX}, s62, 7\ns_mul_i32 s{sKW}, s62, 221184")
    a(f"v_lshrrev_b32 v{fKG}, 4, v{vL}\nv_and_b32 v4, 7, v0\nv_xor_b32 v4, v4, v{fKG}\nv_lshlrev_b32 v4, 4, v4\nv_xor_b32 v5, 64, v4")
    a(f"v_lshrrev_b32 v6, 3, v{vL}\nv_lshl_add_u32 v6, v2, 5, v6\nv_mul_u32_u24 v6, 1152, v6")
    a(f"v_add_u32 v{vX}, v6, v4\nv_add_u32 v5, v6, v5\nv_add_u32 v{vX+1}, 8192, v5\nv_add_u32 v{vX+2}, 16384, v{vX}\nv_add_u32 v{vX+3}, 24576, v5")
    a(f"s_lshr_b32 s62, s{sW}, 1\ns_lshl_b32 s62, s62, 2\ns_and_b32 s63, s{sW}, 1\ns_add_u32 s89, s62, s63\ns_mul_i32 s99, s89, {8*3456}")
    m12, s12 = magic_div(12, 192); m3, s3 = magic_div(3, 12)
    for i in range(3):
        a(f"v_add_u32 v4, {64*i}, v{vL}\nv_mul_u32_u24 v5, {m12}, v4\nv_lshrrev_b32 v5, {s12}, v5")
        a(f"v_mad_i32_i24 v4, v5, -12, v4\nv_mul_u32_u24 v6, {m3}, v4\nv_lshrrev_b32 v6, {s3}, v6")
        a(f"v_mad_i32_i24 v4, v6, -3, v4\nv_lshlrev_b32 v4, 4, v4\nv_min_u32 v4, 20, v4\nv_mad_u32_u24 v4, v6, 36, v4")
        a(f"v_and_b32 v6, 8, v5\nv_add_u32 v5, v5, v6\nv_mul_u32_u24 v5, 3456, v5\nv_add3_u32 v{vW1+i}, v4, v5, s99")
        if i: a(f"v_subrev_u32 v{vW1+i}, {1024*i}, v{vW1+i}")
    a(f"s_lshl_b32 s{sM0x}, s{sW}, 12\ns_add_u32 s{sM0x}, s{sM0x}, {XR}\ns_mul_i32 s{sM0w1}, s{sW}, 3104\ns_mul_i32 s{sM0w2}, s{sW}, 3072")
    a(f"s_mul_i32 s62, s{sR}, {128*1152}\ns_mul_i32 s90, s{sG}, 144\ns_mul_i32 s3, s{sT}, 1152\ns_add_u32 s63, s90, s3\ns_add_u32 s63, s63, 1152")
    a.wait(lg=0)
    mksrd(a, SX, 32, 33, "s62"); mksrd(a, SW1, 42, 43, "s63")
    if c.stamps: a(f"v_writelane_b32 v{vSTAMP}, s{sTAG}, 0"); nst[0] = 1
    a(f"s_or_b32 s62, s2, s{sW}\ns_cbranch_scc1 .Lnotag")
    a(f"s_bitset1_b32 s{sTAG+1}, 31\nv_mov_b32 v4, s{sTAG}\nv_mov_b32 v5, s{sTAG+1}\nv_lshlrev_b32 v6, 3, v{fT}")
    a("global_store_dwordx2 v6, v[4:5], s[50:51] sc1", "nocount")
    a.label(".Lnotag")
    a(dma_x(0)); a(dma_w(c, 0))
    kn = lambda s: f"s_add_u32 s{sKX+s}, s{sKX+s-1}, 128\ns_cmp_eq_u32 s{sKX+s}, 1152\ns_cselect_b32 s{sKX+s}, 0, s{sKX+s}\ns_mul_i32 s{sKW+s}, s{sKX+s}, 1728"
    a(kn(1))
    if "x1" in c.o1: a(dma_x(1))
    if c.pst: stamp(a, c)
    mksrd(a, SM, 46, 47, nrec=1152)
    a(f"s_lshr_b32 s62, s{sW}, 1\ns_lshl_b32 s62, s62, 6\ns_and_b32 s63, s{sW}, 1\ns_lshl_b32 s63, s63, 4\ns_add_u32 s62, s62, s63\ns_lshl_b32 s88, s{sW}, 10\ns_add_u32 m0, s88, {KVS}")
    a(f"v_lshrrev_b32 v4, 1, v{vL}\nv_lshl_add_u32 v4, v4, 7, s{sKX}\nv_subrev_u32 v5, 1152, v4\nv_min_u32 v4, v4, v5\nv_and_b32 v5, 1, v0\nv_lshl_add_u32 v4, v5, 5, v4")
    a(f"buffer_load_dwordx4 v4, {srd(SM)}, s62 offen lds", "ga")
    a(f"s_lshr_b32 s62, s{sR}, 1\ns_mul_i32 s62, s62, {72*3456}\ns_add_u32 s62, s62, s90\ns_add_u32 s63, s3, 1152\ns_bitcmp1_b32 s{sR}, 0\ns_cselect_b32 s63, 0, s63\ns_add_u32 s62, s62, s63")
    a(f"s_and_b32 s63, s{sR}, s{sT}\ns_cselect_b32 s100, s42, s34\ns_cselect_b32 s101, s43, s35")
    mksrd(a, SPS, 100, 101, "s62", nrec=71*3456+144)
    a(f"s_mul_i32 s91, s{sW}, {SST}\ns_add_u32 s91, s91, {STG}")
    m3b, s3b = magic_div(3, 64)
    a(f"v_mul_u32_u24 v5, {m3b}, v{vL}\nv_lshrrev_b32 v5, {s3b}, v5\nv_mad_i32_i24 v4, v5, -3, v{vL}\nv_lshlrev_b32 v4, 4, v4\nv_min_u32 v4, 20, v4\nv_mad_u32_u24 v{vMD}, v5, 36, v4")
    if "pr" in c.o1: a(pr_dma()[:4])
    a(f"s_mul_i32 s62, s{sW}, 36\ns_add_u32 s62, s62, {64*3456-3072}\nv_mul_u32_u24 v5, 3456, v5\nv_add3_u32 v{vP4}, v4, v5, s62")
    if c.g3f:
        a(f"v_bfe_u32 v5, v0, 2, 3\nv_mul_u32_u24 v5, 3456, v5\nv_and_b32 v4, 3, v0\nv_mad_u32_u24 v4, v4, 36, v5\nv_add_u32 v4, {64*3456-3072+20}, v4\nv_cmp_le_u32 vcc, 32, v{vL}\nv_cndmask_b32 v{vP4}, v{vP4}, v4, vcc")
    if "pr" in c.o1: a(pr_dma()[4:])
    if c.xpf == 1: a(x_pf())
    if c.pst: stamp(a, c)
    for s in range(2, 9): a(kn(s))
    a(f"s_lshl_b32 s{sP}, s{sG}, 1\ns_add_u32 s{sP}, s{sP}, s{sT}\ns_lshl_b32 s{sL}, s{sR}, 4\ns_add_u32 s{sL}, s{sL}, s{sP}")
    a(f"s_bfe_u32 s63, s{sL}, 0x40001\ns_mul_i32 s63, s63, {36*1152}\ns_lshr_b32 s3, s{sL}, 5\ns_mul_i32 s3, s3, 144\ns_add_u32 s63, s63, s3")
    a(f"s_bitcmp1_b32 s{sL}, 0\ns_cselect_b32 s100, s38, s44\ns_cselect_b32 s101, s39, s45")
    mksrd(a, 84, 100, 101, "s63", nrec=35*1152+144)
    m9, s9 = magic_div(9, 512)
    for i in range(2):
        a(f"v_add_u32 v4, {256*i}, v0\nv_mul_u32_u24 v5, {m9}, v4\nv_lshrrev_b32 v5, {s9}, v5\nv_mad_i32_i24 v4, v5, -9, v4\nv_lshlrev_b32 v4, 4, v4\nv_mul_u32_u24 v5, 1152, v5\nv_add_u32 v{vMD+1+i}, v4, v5")
    a(f"s_and_b32 s63, s{sW}, 1\ns_lshl_b32 s62, s{sP}, 1\ns_add_u32 s62, s62, s63\ns_mul_i32 s62, s62, 648")
    mksrd(a, SM, 36, 37, "s62", nrec=648)
    if c.wol == 1: a(wo_dma()[2])
    a(f"v_lshrrev_b32 v4, 2, v{vL}\ns_add_u32 s62, s88, {KVS}\nv_lshl_add_u32 v{vMD+3}, v4, 1, s62")
    a(f"v_and_b32 v{fC}, 3, v0\nv_mul_u32_u24 v{vPAT}, 192, v4\nv_mad_u32_u24 v{vPAT}, v{fC}, 48, v{vPAT}\nv_add3_u32 v{vPAT}, v{vPAT}, s{sM0w1}, 40")
    mksrd(a, SWS, 52, 53, nrec=0x10000000)
    if c.tlb:
        a(f"v_min_u32 v5, {(1 << (24 - c.tlb)) - 1}, v{vL}\nv_lshlrev_b32 v5, {c.tlb}, v5")
        a(f"buffer_load_dword v96, v5, {srd(SWS)}, 0 offen", "pf")
        a(f"v_min_u32 v5, {2048*1152 - 4}, v5\nglobal_load_dword v97, v5, s[48:49]", "pf")
    a(f"s_mul_i32 s62, s{sG}, {4*PSEC}\ns_add_u32 s62, s62, {PKO - 2048}")
    mksrd(a, SPK, 52, 53, "s62", nrec=4*PSEC + 2048)
    if c.m44: a(f"s_lshr_b32 s3, s2, 3\ns_lshr_b32 s{sCB}, s3, 2\ns_and_b32 s{sRT}, s3, 3\ns_and_b32 s62, s2, 3\ns_lshl3_add_u32 s{sRT}, s62, s{sRT}\ns_and_b32 s62, s2, 4\ns_add_u32 s{sRT}, s{sRT}, s62")
    else: a(f"s_lshr_b32 s3, s2, 3\ns_lshr_b32 s{sCB}, s3, 2\ns_and_b32 s{sRT}, s3, 3\ns_and_b32 s62, s2, 1\ns_lshl_b32 s62, s62, 4\ns_add_u32 s{sRT}, s{sRT}, s62\ns_and_b32 s62, s2, 6\ns_lshl_b32 s62, s62, 1\ns_add_u32 s{sRT}, s{sRT}, s62")
    a(f"v_lshrrev_b32 v{fH}, 5, v{vL}\nv_and_b32 v{fKL}, 1, v{fKG}\nv_bfe_u32 v{fRR}, v0, 2, 2\nv_and_b32 v{fC0}, 1, v0\nv_bfe_u32 v{fC1}, v0, 1, 1\nv_and_b32 v{fQ}, 31, v0")
    a(f"v_lshlrev_b32 v{vL16}, 4, v{vL}")
    a(f"v_lshrrev_b32 v4, 1, v{fT}\nv_xor_b32 v4, v4, v{fKG}\nv_lshlrev_b32 v4, 4, v4\nv_lshl_add_u32 v4, v{fT}, 7, v4\nv_add_u32 v{vXR}, s{sM0x}, v4\nv_xor_b32 v{vXR+1}, 64, v{vXR}")
    lin(a, 4, [(fKL, 3104), (fH, 1536), (fRR, 192)])
    a(f"v_lshl_add_u32 v{vWA1}, v{fC}, 3, v4\nv_mad_u32_u24 v{vWT1}, v{fC}, 48, v4\nv_add_u32 v{vWT1}, 40, v{vWT1}")

def wo_dma(S=84, s88=88):
    out = []
    for i in range(2): out.append([I(f"s_add_u32 m0, s{s88}, {WOS + 4096*i}"), I(f"buffer_load_dwordx4 v{vMD+1+i}, {srd(S)}, 0 offen lds", "wos")])
    out.append([I(f"s_and_b32 s63, s88, 1024"), I(f"s_add_u32 m0, s63, {WPH}"), I(f"buffer_load_dwordx4 v{vMD}, {srd(SM)}, 0 offen lds", "wos")])
    return out

def setup1(a, c):
    lin(a, vPR1, [(fRR, 192), (fKG, 48), (fC, 8)], "s91")
    lin(a, 4, [(fRR, 192), (fKL, 1536), (fC, 48)], 40)
    if c.g3f:
        lin(a, 5, [(fRR, 48), (fC, 8)], 3072)
        lin(a, 6, [(fT, 16)], 3072 + 512 + 8)
        a(f"v_cmp_eq_u32 vcc, 0, v{fKL}\nv_cndmask_b32 v5, v6, v5, vcc\nv_lshlrev_b32 v7, 6, v{fKL}\nv_add_u32 v7, 192, v7")
        a(f"v_cmp_eq_u32 vcc, 0, v{fH}\nv_cndmask_b32 v4, v5, v4, vcc\nv_add_u32 v{vPR3}, s91, v4\nv_mov_b32 v6, 768\nv_cndmask_b32 v5, v7, v6, vcc\nv_add_u32 v{vPR3+1}, v{vPR3}, v5")
        a(f"s_mul_i32 s62, s89, 1152\nv_mov_b32 v4, s62\nv_mov_b32 v5, {9216-2304}\nv_cndmask_b32 v4, v5, v4, vcc")
        lin(a, 4, [(4, 1), (fKL, 2304), (fRR, 32), (fC, 16)], 992)
        a(f"s_lshl_b32 s62, s{sW}, 8\ns_add_u32 s62, s62, 9216\nv_lshl_add_u32 v5, v{fT}, 4, s62")
        a(f"v_cmp_eq_u32 vcc, 2, v{fKG}\nv_cndmask_b32 v{vPS3}, v4, v5, vcc")
    else:
        lin(a, 5, [(fRR, 48)], 3072)
        a(f"v_lshlrev_b32 v6, 3, v{fC}\nv_cmp_eq_u32 vcc, 0, v{fKL}\nv_cndmask_b32 v6, 40, v6, vcc\nv_add_u32 v5, v5, v6")
        a(f"v_cmp_eq_u32 vcc, 0, v{fH}\nv_cndmask_b32 v4, v5, v4, vcc\nv_add_u32 v{vPR3}, s91, v4\nv_mov_b32 v5, 192\nv_mov_b32 v6, 768\nv_cndmask_b32 v5, v5, v6, vcc\nv_add_u32 v{vPR3+1}, v{vPR3}, v5")
        a(f"s_mul_i32 s62, s89, 1152\ns_add_u32 s62, s62, 992")
        lin(a, 4, [(fKL, 2304), (fRR, 32), (fC, 16)], "s62")
        a(f"s_lshl_b32 s62, s{sW}, 8\ns_add_u32 s62, s62, 9216\nv_lshl_add_u32 v5, v{fT}, 4, s62\ns_lshl_b32 s62, s{sW}, 5\ns_add_u32 s62, s62, {9216+992}\nv_lshl_add_u32 v6, v{fC}, 4, s62")
        a(f"v_cndmask_b32 v4, v5, v4, vcc\nv_cmp_eq_u32 vcc, 3, v{fKG}\nv_cndmask_b32 v{vPS3}, v4, v6, vcc")
    a(f"s_and_b32 s62, s{sR}, 1\ns_lshl_b32 s62, s62, 1\ns_lshl_b32 s63, s{sG}, 2\ns_add_u32 s62, s62, s63\ns_add_u32 s62, s62, s{sT}\ns_mul_i32 s62, s62, {PSEC}\ns_lshr_b32 s63, s{sR}, 1\ns_mul_i32 s63, s63, {9*1152}\ns_add_u32 s62, s62, s63\ns_add_u32 s82, s62, {PKO}")
    a(f"s_mul_i32 s63, s89, 1152\ns_add_u32 s83, s63, s82")
    lin(a, vWP2, [(fH, 1024), (fRR, 48)], WPH)
    lin(a, vWP, [(fKL, 16), (fC1, 8), (vWP2, 1)])
    a(f"v_add_u32 v{vWP2}, 40, v{vWP2}\nv_bfe_u32 v4, v0, 2, 1\nv_cmp_eq_u32 vcc, v4, v{fH}\nv_cndmask_b32 v{vWM}, 0, -1, vcc")
    lin(a, 4, [(fH, 18*144), (fKL, 4*144), (fRR, 144)], WOS)
    a(f"v_bfe_u32 v6, v0, 2, 1\nv_bfe_u32 v7, v0, 3, 1")
    lin(a, 5, [(7, 18*144), (6, 144)], WOS + 16*144)
    a(f"s_lshr_b32 s62, s{sW}, 1\ns_lshl_b32 s62, s62, 6\ns_and_b32 s3, s{sW}, 1\ns_lshl_b32 s63, s3, 3\ns_add_u32 s62, s62, s63")
    a(f"v_lshl_add_u32 v{vRP}, v{fC}, 4, v4\nv_add_u32 v{vRP}, s62, v{vRP}")
    a(f"v_lshlrev_b32 v6, 3, v{fC0}\nv_add_u32 v6, 128, v6\nv_and_b32 v7, 7, v0")
    a(f"s_cmp_ge_u32 s{sW}, 2\ns_cbranch_scc1 .Lrp2")
    a(f"v_add_u32 v{vRP+1}, v4, v6\nv_lshl_add_u32 v7, v{fKG}, 3, v7\nv_lshlrev_b32 v7, 4, v7\nv_add_u32 v{vRP+2}, 4096, v7\ns_branch .Lrp4")
    a.label(".Lrp2")
    a(f"s_cmp_eq_u32 s{sW}, 3\ns_cbranch_scc1 .Lrp3")
    lin(a, vRP+1, [(fH, 64), (fC, 16), (fKL, 8), (5, 1)])
    a(f"v_lshlrev_b32 v{vRP+2}, 3, v{vL}\nv_add_u32 v{vRP+2}, 4608, v{vRP+2}\ns_branch .Lrp4")
    a.label(".Lrp3")
    a(f"v_add_u32 v{vRP+1}, v5, v6\nv_lshlrev_b32 v{vRP+2}, 3, v{fT}\nv_add_u32 v{vRP+2}, 5120, v{vRP+2}")
    a.label(".Lrp4")

def setup2(a, c):
    a(f"s_lshl_b32 s62, s{sT}, 9\ns_add_u32 s62, s62, 2048")
    lin(a, vPK, [(fKG, 1152), (fT, 16)], "s62")
    a(f"v_subrev_u32 v{vPK+1}, 768, v{vPK}\ns_and_b32 s63, s{sW}, 1\ns_lshl_b32 s63, s63, 8\ns_add_u32 s63, s63, {PSEC - 2048}\nv_add_u32 v{vPS}, s63, v{vPK}")
    a(f"s_lshl_b32 s62, s{sT}, 6\ns_add_u32 s62, s62, 1024")
    lin(a, vPK+2, [(fKG, 1152), (fRR, PSEC), (fC, 16)], "s62")
    a(f"s_lshr_b32 s62, s{sKX}, 6\ns_add_u32 s63, s62, s{sW}\ns_mul_i32 s63, s63, 4608\ns_lshr_b32 s3, s{sW}, 1\ns_mul_i32 s3, s3, 3\ns_add_u32 s62, s62, s3\ns_mul_i32 s62, s62, 4608")
    for j in range(5):
        if j: a(f"s_add_u32 s63, s{sKA+j-1}, {4*4608}")
        a(f"s_sub_u32 s3, s63, {PSEC}\ns_cselect_b32 s{sKA+j}, s63, s3")
    for j in range(9):
        if j: a(f"s_add_u32 s62, s62, {4608*(4 if j % 3 == 0 else 1)}")
        a(f"s_sub_u32 s3, s62, {PSEC}\ns_cselect_b32 s62, s62, s3\ns_add_u32 s{sKP+j}, s62, {2048 - 1024*(j % 3)}")
    a(f"s_mov_b32 s{sLE}, 0x3fb8aa3b\ns_mov_b32 s{sQS}, 0x3eae1a93")
    a(f"v_lshlrev_b32 v4, 2, v{fH}\nv_xor_b32 v4, v4, v{fT}")
    lin(a, vSA, [(fH, 512), (4, 16), (fKL, 8)], "s91")
    lin(a, vST, [(fKG, 1280), (fT, 8)], "s91"); a(f"v_add_u32 v{vST}, 1024, v{vST}")
    a(f"v_add_u32 v{vSL}, s91, v{vL16}")
    lin(a, vK2, [(fH, KV_PAIR - 2560), (vL16, 1)])
    lin(a, vBL, [(fH, 1280), (fQ, 16)], "s91")
    a(f"v_xor_b32 v{vBH}, 64, v{vBL}\nv_add_u32 v{vBH}, 512, v{vBH}")
    lin(a, vBT, [(fH, 1280), (fQ, 8)], "s91"); a(f"v_add_u32 v{vBT}, 1024, v{vBT}")
    a(f"s_lshl_b32 s62, s{sW}, 8\ns_add_u32 s62, s62, {WPH + 2048}")
    lin(a, vBT2, [(fH, 1024), (fQ, 8)], "s62")
    a(f"s_add_u32 s3, s91, 1024\nv_mov_b32 v4, s3\nv_mov_b32 v5, s62\nv_cmp_eq_u32 vcc, 0, v{fH}\nv_cndmask_b32 v4, v5, v4, vcc\nv_mov_b32 v5, 2048\nv_mov_b32 v6, 2560\nv_cndmask_b32 v5, v5, v6, vcc")
    a(f"v_mad_u32_u24 v4, v5, v{fKL}, v4\nv_lshl_add_u32 v{vTW}, v{fT}, 3, v4\nv_lshrrev_b32 v5, 1, v5\nv_add_u32 v{vTW+1}, v{vTW}, v5")
    a(f"s_add_u32 s62, s62, 2048\nv_lshl_add_u32 v4, v{fQ}, 3, s62\nv_mov_b32 v5, {WPH + 896}\nv_cndmask_b32 v{vQT}, v5, v4, vcc")
    a(f"v_mov_b32 v4, 0x3f803f80\nv_cndmask_b32 v{CM+2}, 0, v4, vcc\nv_mov_b32 v{vONE}, 0x3f80")
    for r in (CM+1, CM+3, CM+4, CM+5): a(f"v_mov_b32 v{r}, 0")
    a(f"v_mov_b32 v4, s{sQS}\nv_cmp_eq_u32 vcc, 3, v{fKG}\nv_cndmask_b32 v{vSC}, 1.0, v4, vcc")
    a(f"v_lshl_add_u32 v4, v{fH}, 2, v{fRR}\nv_lshlrev_b32 v5, 2, v{fC1}\nv_xor_b32 v5, v5, v4")
    lin(a, 6, [(fC1, 512), (5, 16), (fC0, 8)])
    lin(a, 7, [(4, 8)], 1024)
    a(f"v_lshlrev_b32 v5, 2, v{fC0}\nv_xor_b32 v5, v5, v4")
    lin(a, 8, [(fC0, 512), (5, 16), (fC1, 8)])
    a(f"s_mul_i32 s62, s{sW}, 2560\ns_add_u32 s62, s62, {KVR}\ns_add_u32 s3, s62, 30720")
    a(f"v_cmp_eq_u32 vcc, 0, v{fKL}\nv_cndmask_b32 v6, v7, v6, vcc\nv_cndmask_b32 v{AD}, v7, v8, vcc\nv_mov_b32 v4, 64\nv_mov_b32 v5, 128\nv_cndmask_b32 v7, v4, v5, vcc")
    a(f"v_add_u32 v{vTR}, s3, v6")
    a(f"v_lshlrev_b32 v4, 2, v{fH}\nv_xor_b32 v4, v4, v{fQ}")
    lin(a, vKL, [(fH, 512), (4, 16)], "s62")
    lin(a, vKT, [(fQ, 8)], "s62"); a(f"v_add_u32 v{vKT}, 1024, v{vKT}")
    a(f"s_sub_u32 s62, s91, s62\ns_add_u32 s62, s62, 2560\nv_add_u32 v{vQM}, s62, v{vKL}")
    a(f"s_and_b32 s62, s{sW}, 1\ns_mul_i32 s62, s62, 1280\ns_lshr_b32 s3, s{sW}, 1\ns_mul_i32 s3, s3, 5120\ns_add_u32 s3, s62, s3\ns_add_u32 s3, s3, {STG}\nv_add_u32 v{AD}, s3, v{AD}")
    a(f"s_add_u32 s62, s62, {STG + 2560}\nv_add_u32 v{AD+4}, s62, v6")
    for i in range(1, 4): a(f"v_add_u32 v{vTR+i}, v{vTR+i-1}, v7\nv_add_u32 v{AD+i}, v{AD+i-1}, v7\nv_add_u32 v{AD+4+i}, v{AD+3+i}, v7")
    a(f"v_bfe_u32 v4, v0, 2, 3\ns_lshl_b32 s62, s{sW}, 3\nv_add_u32 v4, s62, v4\nv_lshrrev_b32 v5, 1, v4\nv_and_b32 v6, 1, v4\nv_lshl_add_u32 v5, v5, 4, v6\ns_lshl_b32 s62, s{sG}, 1\nv_add_u32 v5, s62, v5")
    a(f"s_lshl_b32 s63, s{sCB}, 5\nv_add_u32 v4, s63, v4\nv_lshlrev_b32 v6, 7, v{fC}\nv_lshl_add_u32 v{vFO}, v4, 9, v6\nv_lshl_add_u32 v{vFW}, v5, 9, v6")
    a(f"s_and_b32 s63, s{sW}, 1\ns_mul_i32 s63, s63, 6\ns_lshl_b32 s3, s{sR}, 2\ns_add_u32 s63, s63, s3\ns_sub_u32 s63, s63, 8\nv_min_u32 v4, 5, v{vL}\nv_add_u32 v4, s63, v4\nv_max_i32 v4, 0, v4")
    a(f"s_lshr_b32 s63, s{sW}, 1\ns_add_u32 s62, s62, s63\nv_lshrrev_b32 v5, 2, v4\nv_lshl_add_u32 v5, v5, 4, s62\nv_and_b32 v4, 3, v4\nv_lshlrev_b32 v4, 7, v4\nv_lshl_add_u32 v{vF1}, v5, 9, v4")
    a(f"s_lshl2_add_u32 s62, s{sL}, s{sW}\ns_lshl_b32 s62, s62, 7\nv_lshl_add_u32 v{vL}, v{fT}, {3 if c.fl else 31}, s62")
    if not c.fl: a(f"v_mov_b32 v{vL}, s62")
    a(f"s_lshl_b32 s62, s{sP}, 2\ns_add_u32 s62, s62, s{sW}\nv_lshl_add_u32 v4, v{fT}, 6, s62\nv_lshlrev_b32 v{vF2}, 7, v4")
    a(f"s_lshr_b32 s62, s{sRT}, 1\ns_lshl_b32 s62, s62, 6\ns_lshl_b32 s3, s{sW}, 4\ns_add_u32 s62, s62, s3\ns_and_b32 s3, s{sRT}, 1\ns_lshl_b32 s3, s3, 1\ns_add_u32 s62, s62, s3")
    a(f"v_bfe_u32 v4, v0, 1, 2\nv_lshl_add_u32 v4, v4, 2, v{fC0}\nv_add_u32 v4, s62, v4\nv_lshlrev_b32 v{vF3}, 7, v4")
    a(f"s_lshl_b32 s62, s{sCB}, 2\ns_add_u32 s62, s62, s{sW}\ns_mul_i32 s100, s62, {8*WOBLK}\ns_add_u32 s100, s100, {WOO}")
    if c.s2:
        a(f"v_and_b32 v{VT4}, 7, v0\nv_lshl_add_u32 v{V4}, v{fKL}, 3, v{VT4}\nv_mul_u32_u24 v{vWM2}, {2*WOBLK}, v{fH}\nv_lshl_add_u32 v{V4}, v{V4}, 4, v{vWM2}\nv_add_u32 v{V4}, 4096, v{V4}\nv_lshl_add_u32 v{vWM2}, v{fQ}, 4, v{vWM2}")
    else: a(f"v_and_b32 v{VT4}, 7, v0\nv_lshl_add_u32 v{V4}, v{fKG}, 3, v{VT4}\nv_lshlrev_b32 v{V4}, 4, v{V4}\nv_add_u32 v{V4}, 4096, v{V4}")
    a(f"v_mul_u32_u24 v{VT}, {2*WOBLK}, v{fKG}\nv_add_u32 v{VT}, 4608, v{VT}\nv_lshl_add_u32 v{VT4}, v{VT4}, 3, v{VT}\nv_lshl_add_u32 v{VT}, v{fT}, 3, v{VT}")
    a(f"v_mul_u32_u24 v{vOT}, 36864, v{fKL}\nv_lshl_add_u32 v{vOT}, v{fT}, 4, v{vOT}\nv_lshl_add_u32 v{vOA}, v{fH}, 8, v{vOT}")
    a(f"s_lshl_b32 s62, s{sR}, 2\ns_add_u32 s62, s62, s{sW}\ns_mul_i32 s62, s62, {2*36864}\ns_lshr_b32 s63, s{sP}, 2\ns_mul_i32 s63, s63, 9216\ns_add_u32 s62, s62, s63\ns_add_u32 s62, s62, {OPO}")
    a(f"s_and_b32 s63, s{sP}, 3\ns_lshl_b32 s3, s63, {9 if c.s2 else 11}\ns_add_u32 s{sOA}, s62, s3\ns_lshl_b32 s3, s63, 8\ns_add_u32 s{sOT}, s62, s3\ns_add_u32 s{sOT}, s{sOT}, 8192")

def setup3(a, c):
    if c.wol == 1: a(f"s_mov_b64 s[{SX}:{SX+1}], s[84:85]\ns_mov_b32 s{SX+2}, {35*1152+144}\ns_mov_b32 s{SW1}, s88")
    a(f"v_mul_u32_u24 v{vKS+1}, 320, v{fH}\nv_lshl_add_u32 v{vKS+1}, v{fQ}, 4, v{vKS+1}\nv_lshlrev_b32 v{vKS}, 2, v{fQ}")
    a(f"v_mad_i32_i24 v12, v{fH}, -4, v{fQ}\nv_mov_b32 v13, 0xffff")
    for r in range(16): a(f"v_cmp_le_i32 s[{64+2*r}:{65+2*r}], {8*(r>>2) + (r&3)}, v12")
    for j in range(8): a(f"v_cndmask_b32 v{PM+j}, 0, v13, s[{64+4*j}:{65+4*j}]")
    for j in range(8): a(f"v_cndmask_b32 v{PM+j}, v{PM+j}, -1, s[{66+4*j}:{67+4*j}]")

def producer(c):
    q = Seq(); T = AX
    q.wait(vm="pr")
    for k in range(2):
        for j in range(2): q(f"ds_read_b64_tr_b16 {vr(T + 4*k + 2*j, 2)}, v{vPR1} offset:{k*1536 + j*768}")
    for j in range(2): q(f"ds_read_b64_tr_b16 {vr(T + 8 + 2*j, 2)}, v{vPR3+j}")
    g = Seq()
    for k in range(2): g(f"buffer_store_dwordx4 {vr(T + 4*k, 4)}, v{vL16}, {srd(SWS)}, s83 offen offset:{2304*k} sc1", "stp")
    if c.g3f: g(f"s_cmp_eq_u32 s{sW}, 0\ns_mov_b32 s62, 0xffff\ns_cselect_b32 exec_hi, 0xccccffff, s62\ns_mov_b32 exec_lo, 0xcccccccc")
    else: g("s_mov_b32 exec_lo, 0xcccccccc\ns_mov_b32 exec_hi, 0xcffff")
    g(f"buffer_store_dwordx4 {vr(T+8, 4)}, v{vPS3}, {srd(SWS)}, s82 offen sc1", "stp")
    g("s_mov_b64 exec, -1")
    return q.l, g.l
def wo_repack(T=AX, s88=88):
    q = Seq()
    q(f"ds_read_b64_tr_b16 {vr(T+12, 2)}, v{vRP}\nds_read_b64_tr_b16 {vr(T+14, 2)}, v{vRP} offset:1152\nds_read_b64_tr_b16 {vr(T+16, 2)}, v{vRP+1}\nds_read_b64_tr_b16 {vr(T+18, 2)}, v{vRP+1} offset:1152", "rp")
    r = Seq()
    r(f"s_mul_i32 s63, s{sL}, {WOBLK}\ns_add_u32 s63, s63, {WOO}\ns_add_u32 s3, s{s88}, s63")
    r(f"buffer_store_dwordx4 {vr(T+12, 4)}, v{vL16}, {srd(SWS)}, s3 offen sc1", "stw")
    r.wait(lg="rp")
    r(f"s_cmp_ge_u32 s{sW}, 2\ns_cbranch_scc1 .Lw2\ns_cmp_eq_u32 s{sW}, 0\ns_cselect_b32 exec_lo, -1, 0\ns_cselect_b32 exec_hi, 0, -1")
    r(f"buffer_store_dwordx4 {vr(T+16, 4)}, v{vRP+2}, {srd(SWS)}, s63 offen sc1", "nocount")
    r("s_mov_b64 exec, -1\ns_branch .Lw3")
    r.label(".Lw2")
    r(f"buffer_store_dwordx2 {vr(T+16, 2)}, v{vRP+2}, {srd(SWS)}, s63 offen sc1", "stw")
    r.label(".Lw3")
    r("s_nop 1")
    return q.l, r.l
def wa_load():
    q = Seq()
    for i in range(5):
        q(f"ds_read_b64_tr_b16 {vr(WA1 + 2*i, 2)}, v{vWP} offset:{192*i}\nds_read_b64_tr_b16 {vr(WA2 + 2*i, 2)}, v{vWP2} offset:{192*i}")
    for r in (WA1 + 10, WA1 + 11, WA2 + 10, WA2 + 11): q(f"v_mov_b32 v{r}, 0")
    for i in range(10): q(f"v_and_b32 v{WA1+i}, v{vWM}, v{WA1+i}\nv_and_b32 v{WA2+i}, v{vWM}, v{WA2+i}")
    return q.l

def put(mf, items):
    out = []
    for g, m in enumerate(mf):
        out.append(m)
        for gg, it in items:
            if gg == g or (g == len(mf) - 1 and gg > g):
                out.extend(it if isinstance(it, list) else [it])
    return out
def grp(q): return [q[:2]] + q[2:]

def poll_issue(voff, base, name):
    q = Seq()
    q(f"s_mov_b32 s62, {base}")
    q(f"buffer_load_dwordx2 {vr(vPD, 2)}, v{voff}, {srd(SWS)}, s62 offen sc1", name)
    return q.l
def poll_check(voff, base, name, slowflag=None):
    q = Seq()
    q.wait(vm=name)
    q(f"v_cmp_ne_u64 vcc, s[{sTAG}:{sTAG+1}], {vr(vPD, 2)}\ns_cbranch_vccz .Lq{name}")
    if slowflag is not None:
        q(f"s_waitcnt vmcnt(0)\ns_mov_b32 s62, {slowflag}")
        q(f"buffer_store_dwordx2 {vr(vTG, 2)}, v{vL}, {srd(SWS)}, s62 offen sc1", "nocount")
    q(f"s_mov_b32 s62, {base}\ns_mov_b32 s63, 300000")
    q.label(f".Lp{name}")
    q(f"buffer_load_dwordx2 {vr(vPD, 2)}, v{voff}, {srd(SWS)}, s62 offen sc1", "nocount")
    q("s_waitcnt vmcnt(0)")
    q(f"v_cmp_ne_u64 vcc, s[{sTAG}:{sTAG+1}], {vr(vPD, 2)}")
    q(f"s_sub_u32 s63, s63, 1\ns_cbranch_scc1 .Lend\ns_cbranch_vccnz .Lp{name}")
    q.label(f".Lq{name}")
    return q.l
def flag_store(base, sidx=None, line=None):
    q = Seq()
    q(f"s_mov_b32 s62, {base}")
    q(f"buffer_store_dwordx2 {vr(vTG, 2)}, v{vL}, {srd(SWS)}, s62 offen sc1", "flag")
    return q.l
def tag_issue():
    q = Seq()
    q(f"v_mov_b32 v{vTG}, 0")
    q(f"global_load_dwordx2 {vr(vTG, 2)}, v{vTG}, s[50:51] sc1", "tag")
    return q.l
def tag_check():
    q = Seq()
    q.wait(vm="tag")
    q(f"v_readfirstlane_b32 s{sTAG+1}, v{vTG+1}\ns_mov_b32 s63, 300000\ns_cmp_lg_u32 s{sTAG+1}, 0\ns_cbranch_scc1 .Ltag2")
    q.label(".Ltag")
    q(f"v_mov_b32 v{vTG}, 0")
    q(f"global_load_dwordx2 {vr(vTG, 2)}, v{vTG}, s[50:51] sc1", "nocount")
    q("s_waitcnt vmcnt(0)")
    q(f"v_readfirstlane_b32 s{sTAG+1}, v{vTG+1}")
    q(f"s_sub_u32 s63, s63, 1\ns_cbranch_scc1 .Lend\ns_cmp_eq_u32 s{sTAG+1}, 0\ns_cbranch_scc1 .Ltag")
    q.label(".Ltag2")
    q(f"v_readfirstlane_b32 s{sTAG}, v{vTG}")
    return q.l
```

```python
import re
from pgs import add_stubs, warm
from g3a import *
import g3a

def g2_half(m, hf):
    g = m - 9
    if g < 5:
        ks = [4*g + 2*hf, 4*g + 2*hf + 1] if g < 4 else [16 + hf]
        return [((k - 4*g)*3 + t, AX + 8*t, k) for k in ks for t in range(3)]
    sec, j = divmod(g - 5, 3); A = AX if sec == 1 else AY
    return [((2*hf + h)*3 + i, A + 8*h, 6*j + 3*hf + i) for i in range(3) for h in range(2)]
def g2_rd(m, hf):
    return [I(f"ds_read_b128 {vr(FR + 24*hf + 4*q, 4)}, v{vL16} offset:{(m % NW)*WSL + f*1024}", f"f{m}_{hf}") for q, (f, A, k) in enumerate(g2_half(m, hf))]
def g2_mm(m, hf):
    out = []
    for q, (f, A, k) in enumerate(g2_half(m, hf)):
        for tt in range(2):
            d = vr(A + 4*tt, 4)
            out.append(I(f"{M16} {d}, {vr(FR + 24*hf + 4*q, 4)}, {ar((k*2 + tt)*4, 4)}, {d if k else 0}"))
    return out

def wsched(c):
    d = {}; m = 3
    for n in range(23):
        for h in range(2):
            l = []
            while m < 23 and m <= n - 1 + h + (NW if (n, h) <= (9, 0) else c.dep) and len(l) < (1 if m < 9 or m > 10 else 2):
                if m < 9 and (h == 0 or m > n + 3): break
                if m >= 9 and ((n, h) < (c.s_pw, 1) or c.exp & 8): break
                l.append(m); m += 1
            d[(n, h)] = l
    return d

def sep(d):
    n = 4 if len(d) == 5 and "lds" in d[4].t else 3
    return [[d[0]] + (d[1+i: 2+i] if i < n - 1 else d[1+i:]) for i in range(n)]
def pass1(a, c, extra):
    ws = wsched(c)
    PX = [int(x, 36) for x in c.px]; PW = [int(x, 36) for x in c.pw]; PW2 = [int(x, 36) for x in c.pw2]
    for s in range(9):
        dm = []
        if s + 3 < 9:
            dm += list(zip(PX, sep(dma_x(s + 3)))) + list(zip(PW, sep(dma_w(c, s + 3))))
        g = [[m for m in ws[(s, h)] if m >= 9] for h in range(2)]
        for h in range(2):
            for i, m in enumerate(g[h]):
                dm += [(10*h + p, x) for p, x in zip(PW2[:3] if len(g[h]) == 1 else PW2[3+3*i: 6+3*i], sep(dma_w(c, m)))]
        a.wait(lg=[f"f{s}_0", f"xr{s}"])
        it = [(k // 2, r) for k, r in enumerate(rd_w(s, 1))]
        it += [x for x in dm if x[0] < 10]
        it.append((c.pv, [W(vm=[f"w{s+1}", f"x{s+1}"])] + ([patch(s + 1)] if s + 1 < 9 else [])))
        it += extra.get(2*s, [])
        it.sort(key=lambda x: x[0])
        a(put(mm(s, 0), it))
        a(extra.get(("pre", s), []))
        a.wait(lg=0)
        a("s_barrier")
        if c.stp & 1: stamp(a, c)
        if s < 8:
            fc = rd_w(s + 1, 0)
            fc = fc[:4] + rd_x(s + 1)[:2] + fc[4:] + rd_x(s + 1)[2:]
        else: fc = g2_rd(9, 0)
        it = [(k // 2, r) for k, r in enumerate(fc)]
        it += [(p - 10, x) for p, x in dm if p >= 10]
        it += extra.get(2*s + 1, [])
        it.sort(key=lambda x: x[0])
        a(put(mm(s, 1), it))

UPK = [""]
def unpk(t, key):
    if key not in UPK[0]: return t
    out = []
    for l in t.split("\n"):
        m = re.match(r"v_pk_(mul|add|fma)_f32 (.*)", l)
        if not m: out.append(l); continue
        op = m.group(1); rest = m.group(2)
        ops = re.findall(r"([vs])\[(\d+):\d+\]", rest)
        g = lambda k, d: [int(x) for x in re.search(k + r":\[([\d,]+)\]", rest).group(1).split(",")] if k + ":" in rest else d
        n = len(ops) - 1
        hi = g("op_sel_hi", [1]*n); ng = g("neg_lo", [0]*n); assert ng == g("neg_hi", [0]*n) and "op_sel:" not in rest
        for h in range(2):
            src = [("-" if ng[k] else "") + ops[1+k][0] + str(int(ops[1+k][1]) + (h if hi[k] else 0)) for k in range(n)]
            if op != "fma" and src[1][0] == "s": src = src[::-1]
            out.append(f"v_{op}_f32 v{int(ops[0][1]) + h}, " + ", ".join(src))
    return "\n".join(out)

def epi1():
    q = Seq()
    q(f"v_and_b32 v{vG1}, 16, v0\nv_cmp_eq_u32 vcc, 0, v{vG1}\ns_mul_i32 s63, s{sT}, 0x3f80")
    for h in range(5):
        for tt in range(2):
            d = ACC + (h*2 + tt)*4
            if h < 4:
                q(f"v_cvt_pk_bf16_f32 v{d}, v{d}, v{d+1}\nv_cvt_pk_bf16_f32 v{d+1}, v{d+2}, v{d+3}")
                q(f"ds_write_b64 v{vSA}, {vr(d, 2)} offset:{h*1280 + tt*256}")
            else:
                q(f"v_cvt_pk_bf16_f32 v{d+2}, v{d+2}, v{d+3}\nv_mov_b32 v{d+3}, s63")
                q(f"ds_write_b64 v{vST}, {vr(d+2, 2)} offset:{tt*128}")
    for i in range(5): q(f"ds_read_b128 {vr(ACC+4*i, 4)}, v{vSL} offset:{i*1024}")
    q(f"v_cndmask_b32 v{vG1}, v{ACC+36}, v{ACC+32}, vcc\nv_mul_f32 v{vG1}, 0xbfb8aa3b, v{vG1}\nv_exp_f32 v{vG1}, v{vG1}\nv_add_f32 v{vG1}, 1.0, v{vG1}\nv_rcp_f32 v{vG0}, v{vG1}\nv_sub_f32 v{vG1}, 1.0, v{vG0}")
    q(f"s_mul_i32 s63, s{sT}, {KV_KIND}\ns_mul_i32 s3, s{sG}, {2*KV_PAIR}\ns_add_u32 s63, s63, s3\ns_lshl_b32 s3, s{sR}, 2\ns_add_u32 s3, s3, s{sW}\ns_mul_i32 s3, s3, 2560\ns_add_u32 s63, s63, s3\ns_add_u32 s63, s63, {KVO}\ns_add_u32 s3, s63, {KV_PAIR+512}")
    for i in range(5):
        q(f"buffer_store_dwordx4 {vr(ACC+4*i, 4)}, v{vK2 if i == 2 else vL16}, {srd(SWS)}, {'s63' if i < 3 else 's3'} offen offset:{(i % 3)*1024} sc1", "st1")
    return q.l

def sout(A, blk, scale=False):
    q = Seq()
    for h in range(2):
        for tt in range(2):
            d = A + 8*h + 4*tt
            if scale:
                for i in (0, 2): q(unpk(f"v_pk_mul_f32 {vr(d+i, 2)}, {vr(d+i, 2)}, s[{sQS}:{sQS+1}] op_sel_hi:[1,0]", "s"))
            q(f"v_cvt_pk_bf16_f32 v{d}, v{d}, v{d+1}\nv_cvt_pk_bf16_f32 v{d+1}, v{d+2}, v{d+3}")
            q(f"ds_write_b64 v{vSA}, {vr(d, 2)} offset:{(blk + h)*1280 + tt*256}")
    return q.l
def tails():
    q = Seq()
    for tt in range(2):
        for h in range(2):
            d = AX + 16 + 4*tt + 2*h
            q(unpk(f"v_pk_mul_f32 {vr(d, 2)}, {vr(d, 2)}, {vr(vSC, 2)} op_sel_hi:[1,0]\nv_cvt_pk_bf16_f32 v{d}, v{d}, v{d+1}", "t"))
            q(f"ds_write2_b32 v{vTW+h}, v{d}, v{vONE} offset0:{32*tt} offset1:{32*tt+1}")
    return q.l

D2, D1, EM, PT = 160, 176, 192, 210
def phi(vT, kf, ka, km):
    BO = EM; T = PT
    q = Seq()
    q(f"ds_read_b128 {vr(BO, 4)}, v{vBL}\nds_read_b128 {vr(BO+4, 4)}, v{vBH}\nds_read_b64 {vr(BO+8, 2)}, v{vT}")
    q(f"v_mov_b32 v{BO+10}, 0\nv_mov_b32 v{BO+11}, 0")
    rd = q.l
    q = Seq()
    for s in range(3):
        q(f"{M32} {vr(D1, 16)}, {vr(WA1+4*s, 4)}, {vr(BO+4*s, 4)}, {vr(D1, 16) if s else 0}")
        q(f"{M32} {vr(D2, 16)}, {vr(WA2+4*s, 4)}, {vr(BO+4*s, 4)}, {vr(D2, 16) if s else 0}")
    mf = q.l
    q = Seq()
    P = [D1 + i for i in range(16)] + [D2 + 2, D2 + 3]
    E = [EM + i for i in range(18)]
    U = D2
    q(f"v_max3_f32 v{T}, v{P[0]}, v{P[1]}, v{P[2]}\nv_min3_f32 v{T+1}, v{P[0]}, v{P[1]}, v{P[2]}")
    for i in range(3, 17, 2): q(f"v_max3_f32 v{T}, v{T}, v{P[i]}, v{P[i+1]}\nv_min3_f32 v{T+1}, v{T+1}, v{P[i]}, v{P[i+1]}")
    q(f"v_max_f32 v{T}, v{T}, v{P[17]}\nv_min_f32 v{T+1}, v{T+1}, v{P[17]}")
    q(f"v_mul_f32 v{U}, s{sLE}, v{T+1}\nv_mul_f32 v{T}, s{sLE}, v{T}")
    for i in range(0, 18, 2):
        q(unpk(f"v_pk_fma_f32 {vr(E[i], 2)}, {vr(P[i], 2)}, s[{sLE}:{sLE+1}], {vr(U, 2)} op_sel_hi:[1,0,0] neg_lo:[1,0,0] neg_hi:[1,0,0]", kf))
        q(unpk(f"v_pk_fma_f32 {vr(P[i], 2)}, {vr(P[i], 2)}, s[{sLE}:{sLE+1}], {vr(T, 2)} op_sel_hi:[1,0,0] neg_lo:[0,0,1] neg_hi:[0,0,1]", kf))
    for R, S in ((E, T + 2), (P, T + 4)):
        for i in range(0, 18, 2):
            q(f"v_exp_f32 v{R[i]}, v{R[i]}\nv_exp_f32 v{R[i+1]}, v{R[i+1]}")
            if i == 4: q(unpk(f"v_pk_add_f32 {vr(S, 2)}, {vr(R[0], 2)}, {vr(R[2], 2)}", ka))
            if i > 4: q(unpk(f"v_pk_add_f32 {vr(S, 2)}, {vr(S, 2)}, {vr(R[i-2], 2)}", ka))
    for R, S in ((E, T + 2), (P, T + 4)):
        q(unpk(f"v_pk_add_f32 {vr(S, 2)}, {vr(S, 2)}, {vr(R[16], 2)}", ka))
    for S in (T + 2, T + 4): q(f"v_add_f32 v{S}, v{S}, v{S+1}")
    for S in (T + 2, T + 4): q(f"v_rcp_f32 v{S}, v{S}")
    for sg, R, S in ((1, E, T + 2), (0, P, T + 4)):
        for i in range(9):
            q(unpk(f"v_pk_mul_f32 {vr(R[2*i], 2)}, {vr(R[2*i], 2)}, {vr(S, 2)} op_sel_hi:[1,0]\nv_cvt_pk_bf16_f32 v{R[i]}, v{R[2*i]}, v{R[2*i+1]}", km))
            if i == 3: q(f"ds_write_b128 v{vBL}, {vr(R[0], 4)} offset:{sg*5120}")
            if i == 7: q(f"ds_write_b128 v{vBH}, {vr(R[4], 4)} offset:{sg*5120}")
            if i == 8: q(f"ds_write_b32 v{vBT}, v{R[8]} offset:{sg*5120}")
    return rd, mf, q.l

def kvpart():
    D = D1
    rd = []; mf = []
    for b in range(4):
        for m in range(2):
            o = 144 + 8*(b*2 + m)
            for j in range(2):
                rd.append(I(f"ds_read_b64_tr_b16 {ar(o + 2*j, 2)}, v{AD + 2*m + j} offset:{b*SST}"))
                rd.append(I(f"ds_read_b64_tr_b16 {ar(o + 4 + 2*j, 2)}, v{AD + 4 + 2*m + j} offset:{b*SST}"))
            mf.append(I(f"{M32} {vr(D, 16)}, {ar(o, 4)}, {ar(o+4, 4)}, {vr(D, 16) if (b or m) else 0}"))
    q = Seq()
    for i in range(5): q(f"v_cvt_pk_bf16_f32 v{D+i}, v{D+2*i}, v{D+2*i+1}")
    g = Seq()
    g(f"s_lshl_b32 s62, s{sP}, 4\ns_add_u32 s62, s62, s{sR}\ns_lshl_b32 s62, s62, 2\ns_add_u32 s62, s62, s{sW}\ns_mul_i32 s3, s62, 768\ns_add_u32 s3, s3, {PARO}")
    g("s_mov_b32 exec_lo, 0xfffff\ns_mov_b32 exec_hi, 0xfffff")
    g(f"buffer_store_dwordx4 {vr(D, 4)}, v{vKS+1}, {srd(SWS)}, s3 offen sc1", "st2")
    g("s_mov_b32 exec_lo, -1\ns_mov_b32 exec_hi, 0")
    g(f"buffer_store_dword v{D+4}, v{vKS}, {srd(SWS)}, s3 offen offset:640 sc1", "st2")
    g("s_mov_b64 exec, -1")
    return rd, mf, q.l + [g.l]

def kv_dma(c):
    q = Seq()
    q(f"s_lshr_b32 s62, s{sW}, 1\ns_mul_i32 s62, s62, {KV_KIND}\ns_mul_i32 s63, s{sP}, {KV_PAIR}\ns_add_u32 s62, s62, s63\ns_add_u32 s62, s62, {KVO - 8*2560}")
    q(f"s_and_b32 s63, s{sW}, 1\ns_mul_i32 s63, s63, 6\ns_lshl_b32 s3, s{sR}, 2\ns_add_u32 s99, s63, s3\ns_mul_i32 s63, s99, 2560\ns_add_u32 s62, s62, s63")
    mksrd(q, SM, 52, 53, "s62", nrec=15360)
    q(f"s_mul_i32 s{sM0x}, s{sW}, 15360\ns_add_u32 s{sM0x}, s{sM0x}, {KVR}")
    pre = q.l; groups = []
    for g in range(3):
        for o, n in ((0, 2), (2048, 3)):
            q = Seq()
            if o == 0: q(f"s_cmp_ge_u32 s99, {8 - 2*g}\ns_cselect_b32 s{SM+2}, 15360, 0")
            q(f"s_add_u32 m0, s{sM0x}, {g*5120 + o}\ns_movk_i32 s19, {g*5120 + o}")
            for i in range(n):
                if i: q = Seq(); q(f"s_add_u32 m0, s{sM0x}, {g*5120 + o}")
                q(f"buffer_load_dwordx4 v{vL16}, {srd(SM)}, s19 offen offset:{i*1024} {c.ldpol} lds", "kv")
                groups.append(q.l)
    return pre, groups

def kv_ready():
    a = Seq()
    a.wait(vm="kv")
    a(f"s_cmp_ge_u32 s{sW}, 2\ns_cbranch_scc1 .Lmk2\ns_add_u32 s63, s99, 6\ns_min_u32 s63, s63, 8\ns_cmp_ge_u32 s99, 8\ns_cbranch_scc1 .Lmk2")
    a(f"v_and_b32 v60, 31, v0\nv_bfe_u32 v61, v0, 5, 1\nv_mul_u32_u24 v61, 1280, v61\nv_lshl_add_u32 v60, v60, 3, v61\nv_add_u32 v60, s{sM0x}, v60\nv_mov_b32 v61, 0xf149")
    a.label(".Lmk")
    a("ds_write_b16 v60, v61 offset:1028", "nocount")
    a("v_add_u32 v60, 2560, v60\ns_add_u32 s99, s99, 1\ns_cmp_lt_u32 s99, s63\ns_cbranch_scc1 .Lmk")
    a("s_waitcnt lgkmcnt(0)")
    a.label(".Lmk2")
    return a.l

WOE = []; WOL = []; APT = 72; KA = 128
def wo_init(c):
    global APT
    WOE[:] = [(8, ct) for ct in range(5)] + [(s, 4) for s in range(8)] + [(s, ct) for s in range(4) for ct in range(4)][:15 if c.s2 else 14]
    WOL[:] = [(s, ct) for s in range(8) for ct in range(4) if (s, ct) not in WOE]
    APT = 64 if c.s2 else 72
def awo(s, ct): return 144 + 4*WOE.index((s, ct)) if (s, ct) in WOE else KA if (APT == 64 and WOL.index((s, ct)) == 16) else 4*WOL.index((s, ct))
SLOT = [(0, 0), (1, 0), (1, 1), (0, 1)]
def wo_loads(c, lst):
    out = []; cur = None
    def ld(sb, t):
        nonlocal cur
        out.append(I(t, "wo") if sb == cur else [I(f"s_add_u32 s101, s100, {sb*WOBLK}"), I(t, "wo")]); cur = sb
    for part in range(2):
        for s, ct in lst:
            if s == 8: ld(part, f"buffer_load_dwordx2 {ar(awo(s, ct) + 2*part, 2)}, v{VT if ct < 4 else VT4}, {srd(SWS)}, s101 offen offset:{ct*128} {c.ldpol}")
    for s, ct in sorted(lst):
        if s < 8 and c.s2:
            br, hd = SLOT[s >> 1]
            ld(4*(s & 1) + br, f"buffer_load_dwordx4 {ar(awo(s, ct), 4)}, v{vWM2 if ct < 4 else V4}, {srd(SWS)}, s101 offen offset:{ct*1024 + hd*512 if ct < 4 else hd*256} {c.ldpol}")
        elif s < 8: ld(s, f"buffer_load_dwordx4 {ar(awo(s, ct), 4)}, v{vL16 if ct < 4 else V4}, {srd(SWS)}, s101 offen offset:{(ct&3)*1024} {c.ldpol}")
    return out

def g2(a, c):
    side = [[] for _ in range(29)]; side2 = [[] for _ in range(29)]
    def spread(S, items, h0, h1):
        n = len(items)
        for k, it in enumerate(items): S[h0 + k * (h1 - h0) // n].append(it)
    e1 = epi1()
    spread(side, e1[:-5], 0, c.e1n)
    side[c.h_f1].append([W(vm="st1")] + flag_store(F1, sL, False))
    rd, mf, sm = phi(vBT, 'f', 'a', 'm')
    spread(side, sout(AX, 0) + tails() + rd + mf, 10, 11)
    spread(side, sm, 11, 19)
    spread(side2, sout(AY, 2), 16, 17)
    krd, kmf, ks = kvpart()
    spread(side, krd, 19, 21); spread(side2, kmf, 20, 22); side2[21] += ks
    if c.h_f2 < 28: side[c.h_f2].append([W(vm="st2")] + flag_store(F2, sL, True))
    rd, mf, sm = phi(vBT2, 'F', 'A', 'M')
    spread(side, sout(AX, 0) + rd + mf, 22, 23)
    spread(side, sm[:len(sm) - c.phq], 23, 28)
    pre, kd = kv_dma(c)
    side2[c.h_kv - 2].append(poll_issue(vF1, F1, "f1") + pre)
    side2[c.h_kv].insert(0, poll_check(vF1, F1, "f1"))
    vm = [[] for _ in range(29)]
    ws = wsched(c)
    for m in range(9, 23):
        for hf in range(2):
            H = 2*(m - 9) + hf
            for n in ws[(m, hf)]:
                d = dma_w(c, n)
                for i in range(3): vm[H + (i + 1) // 3].append([d[0]] + d[1+i: 2+i if i < 2 else 9])
    spread(vm, kd, c.h_kv, c.h_kv + c.n_kv)
    for k, h in enumerate([int(x, 36) for x in c.e1s]): vm[h].append(e1[k-5])
    if c.s2 and c.po and c.pop >= 20:
        p1, p2 = poison(208); side2[c.pop - 20].insert(0, p1)
        for k, x in enumerate(p2): vm[c.pop - 20 + (k + 1) * c.pon // 6].append(x)
    FO = g3a.FO if c.wol == 1 else F1
    if c.wol == 1:
        d = wo_dma(SX, SW1); vm[0].append(d[0]); vm[1].append(d[1])
        p1, p2 = wo_repack(PT - 12, SW1)
        side2[9].append(p1); vm[10].append(p2[:4]); vm[10].append(p2[4:])
        side[c.h_fo].append([W(vm="stw")] + flag_store(FO, sL, False))
    side2[23].append(poll_issue(vFO, FO, "fo"))
    for m in range(9, 23):
        for hf in range(2):
            H = 2*(m - 9) + hf
            mf = g2_mm(m, hf)
            rd = g2_rd(m, 1) if hf == 0 else g2_rd(m + 1, 0) if m < 22 else []
            it = [(k, r) for k, r in enumerate(rd)] + [((2*k + 1) * len(mf) // (2*len(vm[H])), x) for k, x in enumerate(vm[H])]
            for S in (side[H], side2[H]): it += [(k * len(mf) // len(S), x) for k, x in enumerate(S)]
            it.sort(key=lambda x: x[0])
            a(put(mf, it))
            if hf == 0:
                if c.stp & 8: stamp(a, c)
                if m < 22: a.wait(vm=[f"w{m+1}"] + (["wos"] if m == 13 else [])); a.wait(lg=0 if (m in (18, 19) or c.dep == NW) else f"f{m}_0")
                else: a(poll_check(vFO, FO, "fo")); a(kv_ready())
                a("s_barrier")
                if c.stp & 2: stamp(a, c)
    a(sout(AY, 2, True))
    for hd in range(2):
        a(f"ds_read_b128 {vr(Q0 + 4*hd, 4)}, v{vQM} offset:{hd*1280}\nds_read_b64 {vr(QT + 2 + 4*hd, 2)}, v{vQT} offset:{hd*1024}")
    for r in (QT, QT+1, QT+4, QT+5, QT+8, QT+9): a(f"v_mov_b32 v{r}, 0")
    return sm[len(sm) - c.phq:]

Q0, QT, OB0, OB1, KM, KT, VV, MX = 10, 18, 28, 44, 60, 68, 76, 92
TL = 236
def ST(i): return 96 + 16*i
ORDER = [0, 8, 1, 2, 3, 4, 5, 6, 7]
def sdst(t): return OB1 if t == 0 else ST(0) if t == 8 else ST(t)
def k_rd(hd, n):
    t = ORDER[n]; o = t*2560 + hd*1280
    return [I(f"ds_read_b128 {vr(KM + 4*(n&1), 4)}, v{vKL} offset:{o}"),
            I(f"ds_read_b64 {vr(KT + 4*((n>>1)&1) + 2*(n&1), 2)}, v{vKT} offset:{o}")]
def qk(hd, n):
    d = vr(sdst(ORDER[n]), 16)
    return [I(f"{M32} {d}, {vr(KM + 4*(n&1), 4)}, {vr(Q0 + 4*hd, 4)}, 0"),
            I(f"{M32} {d}, {vr(KT + 4*((n>>1)&1), 4)}, {vr(QT + 4*hd + (0 if n & 1 else 2), 4)}, {d}")]
def merge(): return [I(f"v_cndmask_b32 v{ST(0)+r}, v{OB1+r}, v{ST(0)+r}, s[{64+2*r}:{65+2*r}]") for r in range(16)]
def mx(i):
    out = []
    for j in range(8):
        m = MX + (j & 1); x = ST(i) + 2*j
        if i == 0 and j < 2: out.append(I(f"v_max_f32 v{m}, v{x}, v{x+1}"))
        else: out.append(I(f"v_max3_f32 v{m}, v{m}, v{x}, v{x+1}"))
    return out
def mx_fin():
    q = Seq()
    q(f"v_max_f32 v{MX}, v{MX}, v{MX+1}\nv_mov_b32 v{MX+1}, v{MX}\nv_permlane32_swap_b32 v{MX}, v{MX+1}\nv_max_f32 v{MX}, v{MX}, v{MX+1}")
    q(f"v_and_b32 v{MX+1}, 0xffff0000, v{MX}\nv_sub_f32 v{MX}, v{MX+1}, v{MX}\nv_cvt_pk_bf16_f32 v{CM}, -v{MX+1}, v{MX}")
    return q.l
def sub(i):
    d = vr(ST(i), 16)
    return I(f"{M32} {d}, {vr(CM+2, 4)}, {vr(CM, 4)}, {d}")
def ex(i):
    out = []; b = ST(i)
    for j in range(8):
        out += [I(f"v_exp_f32 v{b+2*j}, v{b+2*j}"), I(f"v_exp_f32 v{b+2*j+1}, v{b+2*j+1}")]
        if j: out.append(I(f"v_cvt_pk_bf16_f32 v{b+j-1}, v{b+2*j-2}, v{b+2*j-1}"))
    out.append(I(f"v_cvt_pk_bf16_f32 v{b+7}, v{b+14}, v{b+15}"))
    if i == 0:
        for j in range(8): out.append(I(f"v_and_b32 v{b+8+j}, v{PM+j}, v{b+j}"))
        for j in range(8): out.append(I(f"v_xor_b32 v{b+j}, v{b+8+j}, v{b+j}"))
    return out
def v_rd(hd, n):
    t = ORDER[n]
    return [I(f"ds_read_b64_tr_b16 {vr(VV + 8*(n&1) + 2*i, 2)}, v{vTR+i} offset:{t*2560 + hd*1280}") for i in range(4)]
def pv(hd, n):
    t = ORDER[n]; o = vr(OB0 if hd == 0 else OB1, 16)
    p = ST(0) if t == 0 else ST(0) + 8 if t == 8 else ST(t)
    return [I(f"{M32} {o}, {vr(VV + 8*(n&1), 4)}, {vr(p, 4)}, {o if n else 0}"),
            I(f"{M32} {o}, {vr(VV + 8*(n&1) + 4, 4)}, {vr(p + 4, 4)}, {o}")]
def fin(u, O, c):
    q = Seq(); t = O + 10
    if u >= 2: q(f"v_add_f32 v{t}, 0x358637bd, v{t}")
    q(f"v_rcp_f32 v{t}, v{t}\nv_mul_f32 v{t}, v{vG0 if u >= 2 else vG1}, v{t}")
    for i in range(5):
        q(unpk(f"v_pk_mul_f32 {vr(O+2*i, 2)}, {vr(O+2*i, 2)}, {vr(t, 2)} op_sel_hi:[1,0]\nv_cvt_pk_bf16_f32 v{O+12+i if i < 4 else TL+u}, v{O+2*i}, v{O+2*i+1}", str(u)))
    sl = [0, 3, 1, 2][u]
    if c.s2: q(f"buffer_store_dwordx4 {vr(O+12, 4)}, v{vOA}, {srd(SWS)}, s{4 if sl >= 2 else sOA} offen offset:{(sl & 1)*2048} sc1", "st3b" if u == 1 else "st3a")
    else: q(f"buffer_store_dwordx4 {vr(O+12, 4)}, v{vOA}, {srd(SWS)}, s{sOA} offen offset:{u*512} sc1", "st3")
    return q.l
def par_loads(c):
    q = Seq(); VP = 245
    q(f"s_lshl_b32 s62, s{sP}, 6\ns_add_u32 s62, s62, s{sW}\ns_mul_i32 s99, s62, 768\ns_add_u32 s99, s99, {PARO}\nv_min_u32 v{VP}, {44*16}, v{vL16}")
    out = [q.l]
    for r in range(16):
        out.append([I(f"buffer_load_dwordx4 {ar(APT + 4*r, 4)}, v{VP}, {srd(SWS)}, s99 offen {c.ldpol}", "pl"), I("s_add_u32 s99, s99, 3072")])
    return out
def kvsum():
    q = Seq(); ID = Q0; t = Q0 + 4
    q(f"v_bfe_u32 v{t}, v0, 3, 2\nv_bfe_u32 v{t+1}, v0, 1, 1\nv_lshl_add_u32 v{t}, v{t}, 1, v{t+1}")
    q(f"v_and_b32 v{t+1}, 1, v0\nv_lshlrev_b32 v{t+1}, 4, v{t+1}\nv_mov_b32 v{t+2}, 0x3f80\nv_lshlrev_b32 v{t+1}, v{t+1}, v{t+2}")
    q(f"v_bfe_u32 v{t+2}, v0, 2, 1\nv_bfe_u32 v{t+3}, v0, 5, 1\nv_cmp_eq_u32 vcc, v{t+2}, v{t+3}\nv_cndmask_b32 v{t+1}, 0, v{t+1}, vcc")
    for i in range(4): q(f"v_cmp_eq_u32 vcc, {i}, v{t}\nv_cndmask_b32 v{ID+i}, 0, v{t+1}, vcc")
    pre = [q.l]
    o = vr(OB0, 16)
    mf = [I(f"{M32} {o}, {vr(ID, 4)}, {ar(APT + 4*r, 4)}, {o if r else 0}") for r in range(16)]
    q = Seq()
    q(f"s_lshl_b32 s62, s{sW}, 10\ns_add_u32 s62, s62, {KVS}\nv_add_u32 v{t}, s62, v{vL16}")
    for i in range(4): q(f"v_cvt_pk_bf16_f32 v{OB0+i}, v{OB0+2*i}, v{OB0+2*i+1}")
    q(f"ds_write_b128 v{t}, {vr(OB0, 4)}")
    return pre, mf, q.l
def a_apply(T, O):
    q = Seq(); t = Q0
    q(f"v_and_b32 v{t}, 31, v0\nv_and_b32 v{t+1}, 19, v0\nv_cmp_gt_u32 vcc, 16, v{t}\nv_cndmask_b32 v{t}, v{t+1}, v{t}, vcc\nv_bfe_u32 v{t+1}, v0, 5, 1")
    q(f"v_mul_u32_u24 v{t+2}, 320, v{t+1}\nv_lshl_add_u32 v{t+2}, v{t}, 4, v{t+2}\nv_add_u32 v{t+2}, {KVS}, v{t+2}")
    q(f"v_lshlrev_b32 v{t+3}, 11, v{t+1}\nv_lshl_add_u32 v{t+3}, v{t}, 2, v{t+3}\nv_add_u32 v{t+3}, {KVS + 640}, v{t+3}")
    q(f"s_mul_i32 s62, s{sW}, 5120\ns_add_u32 s62, s62, {STG - KVR}\nv_add_u32 v{t}, s62, v{vKL}\nv_mul_u32_u24 v{t+1}, 5120, v{t+1}\nv_add3_u32 v{t+1}, v{t+1}, s62, v{vKT}")
    for hd in range(2):
        b = T + 24*hd
        q(f"ds_read_b128 {vr(b+14, 4)}, v{t} offset:{hd*1280}\nds_read_b128 {vr(b+18, 4)}, v{t} offset:{5120 + hd*1280}\nds_read_b32 v{b+12}, v{t+1} offset:{hd*1280}")
        for r in (9, 10, 11, 13): q(f"v_mov_b32 v{b+r}, 0")
    pre = q.l
    q = Seq()
    for hd in range(2):
        b = T + 24*hd
        q(f"ds_read_b128 {vr(b, 4)}, v{t+2} offset:{hd*1024}\nds_read_b128 {vr(b+4, 4)}, v{t+2} offset:{2048 + hd*1024}\nds_read_b32 v{b+8}, v{t+3} offset:{hd*1024}")
    for hd in range(2):
        b = T + 24*hd; o = vr(O[hd], 16)
        q(f"{M32} {o}, {vr(b, 4)}, {vr(b+14, 4)}, 0\n{M32} {o}, {vr(b+4, 4)}, {vr(b+18, 4)}, {o}\n{M32} {o}, {vr(b+8, 4)}, {vr(b+12, 4)}, {o}")
    return pre, q.l

def attention(a, c, rest):
    ld = wo_loads(c, WOE[:13])
    wl = wo_loads(c, WOE[13:] + WOL)
    a(k_rd(0, 0) + k_rd(0, 1) + [k_rd(0, 2)[1], k_rd(0, 3)[1]])
    k = len(rest) // 2
    a(rest[:k]); rest = rest[k:]
    if c.stp & 4: stamp(a, c)
    for n in range(9):
        a(qk(0, n))
        if n + 2 < 9: a(k_rd(0, n + 2)[:1 if n < 2 else 2])
        for _ in range(3):
            if ld: a(ld.pop(0))
        if n < 3: a(rest[n*len(rest)//3: (n+1)*len(rest)//3])
        if n == 3: a(merge())
        if n >= 4: a(mx(n - 4))
        if n == c.h_f2 - 28: a([W(vm="st2")] + flag_store(F2, sL, True))
    a(k_rd(1, 0) + k_rd(1, 1) + v_rd(0, 0) + v_rd(0, 1))
    a(qk(1, 0))
    for i in range(5, 8): a(mx(i))
    ld = wl[:2*c.f2n - 1] + [poll_issue(vF2, F2, "f2")] + wl[2*c.f2n - 1: 2*c.f2n + 3]
    ld += [poll_check(vF2, F2, "f2")] + par_loads(c) + wl[2*c.f2n + 3:]
    stamp(a, c)
    for hd in range(2):
        a(mx_fin())
        a(sub(0)); a(sub(1))
        if hd == 1:
            kpre, kmf, kfin = kvsum()
            a(fin(0, OB0, c)); a(kpre)
        for i in range(9):
            main = ex(i) if i < 8 else []
            fill = []
            if i + 2 < 8: fill.append(sub(i + 2))
            if i >= 1:
                ns = [0, 1] if i == 1 else [i]
                for n in ns:
                    fill += pv(hd, n)
                    if n + 2 < 9: fill += v_rd(hd, n + 2)
                if hd == 0:
                    fill += qk(1, i)
                    if i + 1 < 9: fill += k_rd(1, i + 1)
                    if i == 3: main += merge()
                    if i >= 4: main += mx(i - 4)
            if hd == 1 and 2 <= i <= 5: fill += kmf[4*(i-2): 4*i-4]
            if hd == 1 and i == 7: main += kfin
            for _ in range(3 if i else 2):
                if ld: fill.append(ld.pop(0))
            if main: a(weave(main, fill))
            else: a(fill)
        if hd == 0:
            a(v_rd(1, 0) + v_rd(1, 1))
            for i in range(5, 8): a(mx(i))
        stamp(a, c)
    assert not ld
    apre, amf = a_apply(ST(2), [ST(0), ST(1)])
    a(apre)
    a.wait(lg=0); a("s_barrier")
    a(amf)
    a(fin(1, OB1, c))
    a(fin(2, ST(0), c)); a(fin(3, ST(1), c))
    a(f"s_mov_b32 exec_hi, 0\nbuffer_store_dwordx4 {vr(TL, 4)}, v{vOT}, {srd(SWS)}, s{sOT} offen sc1\ns_mov_b32 exec_hi, -1", "st3")
    a.wait(vm="st3")
    a(flag_store(F3, sL, True))

def p3(a, c):
    OP, AC = 0, 144
    V1, V2, VW, VO = 236, 237, 238, 241
    a(poll_issue(vF3, F3, "f3"))
    a(f"v_add_u32 v{V1}, 4096, v{vL16}\nv_add_u32 v{V2}, 8192, v{vL16}")
    for tt in range(4):
        a(f"s_add_u32 s62, s{sW}, {tt}\ns_and_b32 s62, s62, 3")
        if tt: a(f"s_mul_i32 s63, s62, 15360\ns_add_u32 s63, s63, {(tt-1)*5120}\nv_add_u32 v{VW+tt-1}, s63, v{vL16}")
        a(f"s_lshl_b32 s63, s{sRT}, 2\ns_add_u32 s62, s62, s63\ns_mul_i32 s62, s62, 36864\ns_mul_i32 s63, s{sW}, 9216\ns_add_u32 s62, s62, s63\ns_add_u32 s{64+tt}, s62, {OPO}")
    a(f"v_and_b32 v{VO}, 15, v0\nv_mul_u32_u24 v{VO}, 1152, v{VO}\nv_bfe_u32 v{VO+1}, v0, 4, 1\nv_lshl_add_u32 v{VO+1}, v{VO+1}, 3, v{VO}\nv_and_b32 v254, 48, v0\nv_add_u32 v{VO}, v254, v{VO}")
    a(f"s_lshl_b32 s62, s{sRT}, 2\ns_add_u32 s62, s62, s{sW}\ns_mul_i32 s62, s62, {16*1152}\ns_mul_i32 s63, s{sCB}, 144\ns_add_u32 s68, s62, s63")
    a(f"s_mul_i32 s62, s{sW}, 15360\nv_add_u32 v254, s62, v{vL16}")
    mksrd(a, SM, 48, 49, nrec=2048*1152)
    a(poll_check(vF3, F3, "f3"))
    stamp(a, c)
    for s in range(9):
        for tt in range(4):
            a(f"buffer_load_dwordx4 {vr(OP + (s*4 + tt)*4, 4)}, v{[vL16, V1, V2][s >> 2]}, {srd(SWS)}, s{64+tt} offen offset:{(s & 3)*1024} {c.ldpol}")
    for s in range(9):
        for tt in ([0, 1, 2, 3] if s < 8 else [1, 2, 3, 0]):
            for ct in range(5):
                d = vr(AC + (tt*5 + ct)*4, 4)
                a(f"{M16} {d}, {ar(awo(s, ct), 4)}, {vr(OP + (s*4 + tt)*4, 4)}, {d if s else 0}")
    stamp(a, c)
    for tt in range(1, 4):
        for ct in range(5): a(f"ds_write_b128 v{VW+tt-1}, {vr(AC + (tt*5 + ct)*4, 4)} offset:{ct*1024}")
    a.wait(lg=0); a("s_barrier")
    for ct in range(5):
        for sl in range(3): a(f"ds_read_b128 {vr((ct*3 + sl)*4, 4)}, v254 offset:{sl*5120 + ct*1024}")
    for ct in range(5):
        d = AC + ct*4; b = ct*12
        for i in (0, 2): a(f"v_pk_add_f32 {vr(d+i, 2)}, {vr(d+i, 2)}, {vr(b+i, 2)}\nv_pk_add_f32 {vr(b+4+i, 2)}, {vr(b+4+i, 2)}, {vr(b+8+i, 2)}")
        for i in (0, 2): a(f"v_pk_add_f32 {vr(d+i, 2)}, {vr(d+i, 2)}, {vr(b+4+i, 2)}")
        a(f"v_cvt_pk_bf16_f32 v{64+2*ct}, v{d}, v{d+1}\nv_cvt_pk_bf16_f32 v{65+2*ct}, v{d+2}, v{d+3}")
        if ct in (1, 3): a(f"buffer_store_dwordx4 {vr(64 + 2*(ct-1), 4)}, v{VO}, {srd(SM)}, s68 offen offset:{32*(ct-1)}")
        if ct == 4: a(f"s_mov_b32 exec_hi, 0\nbuffer_store_dwordx2 {vr(72, 2)}, v{VO+1}, {srd(SM)}, s68 offen offset:128\ns_mov_b32 exec_hi, -1")

def kvsum2():
    q = Seq(); ID = Q0; t = QT
    q(f"v_bfe_u32 v{t}, v0, 3, 2\nv_bfe_u32 v{t+1}, v0, 1, 1\nv_lshl_add_u32 v{t}, v{t}, 1, v{t+1}")
    q(f"v_and_b32 v{t+1}, 1, v0\nv_lshlrev_b32 v{t+1}, 4, v{t+1}\nv_mov_b32 v{t+2}, 0x3f80\nv_lshlrev_b32 v{t+1}, v{t+1}, v{t+2}")
    q(f"v_bfe_u32 v{t+2}, v0, 2, 1\nv_bfe_u32 v{t+3}, v0, 5, 1\nv_cmp_eq_u32 vcc, v{t+2}, v{t+3}\nv_cndmask_b32 v{t+1}, 0, v{t+1}, vcc")
    for i in range(4): q(f"v_cmp_eq_u32 vcc, {i}, v{t}\nv_cndmask_b32 v{ID+i}, 0, v{t+1}, vcc")
    q(f"s_and_b32 s62, s{sW}, 2\ns_add_u32 s62, s62, s{sW}\ns_lshl_b32 s62, s62, 10\ns_add_u32 s62, s62, {WPH + 2048}\nv_add_u32 v95, s62, v{vL16}\ns_add_u32 s4, s{sOA}, 4096")
    pre = q.l
    o = ar(KA, 16)
    mf = [I(f"{M32} {o}, {vr(ID, 4)}, {ar(APT + 4*r, 4)}, {o if r else 0}") for r in range(16)]
    q = Seq()
    R = [ID, ID+1, ID+2, ID+3, t, t+1, t+2, t+3]
    for i in range(8): q(f"v_accvgpr_read_b32 v{R[i]}, a{KA+i}")
    for i in range(4): q(f"v_cvt_pk_bf16_f32 v{ID+i}, v{R[2*i]}, v{R[2*i+1]}")
    q(f"ds_write_b128 v95, {vr(ID, 4)}")
    return pre, mf, q.l
def a_apply2(T, O):
    q = Seq(); t0, t1, t2, t3 = vBL, vBH, vBT, 94
    q(f"v_and_b32 v{t0}, 31, v0\nv_and_b32 v{t1}, 19, v0\nv_cmp_gt_u32 vcc, 16, v{t0}\nv_cndmask_b32 v{t0}, v{t1}, v{t0}, vcc\nv_bfe_u32 v{t1}, v0, 5, 1")
    q(f"v_mul_u32_u24 v{t2}, 320, v{t1}\nv_lshl_add_u32 v{t2}, v{t0}, 4, v{t2}\nv_add_u32 v{t2}, {WPH + 2048}, v{t2}")
    q(f"v_lshlrev_b32 v{t3}, 12, v{t1}\nv_lshl_add_u32 v{t3}, v{t0}, 2, v{t3}\nv_add_u32 v{t3}, {WPH + 2048 + 640}, v{t3}")
    q(f"s_mul_i32 s62, s{sW}, 5120\ns_add_u32 s62, s62, {STG - KVR}\nv_add_u32 v{t0}, s62, v{vKL}\nv_mul_u32_u24 v{t1}, 5120, v{t1}\nv_add3_u32 v{t1}, v{t1}, s62, v{vKT}")
    adr = q.l; q = Seq()
    for hd in range(2):
        b = T + 24*hd
        q(f"ds_read_b128 {ar(b+14, 4)}, v{t0} offset:{hd*1280}\nds_read_b128 {ar(b+18, 4)}, v{t0} offset:{5120 + hd*1280}\nds_read_b32 a{b+12}, v{t1} offset:{hd*1280}")
        for r in (9, 10, 11, 13): q(f"v_accvgpr_write_b32 a{b+r}, 0")
    pre = q.l
    q = Seq()
    for hd in range(2):
        b = T + 24*hd
        q(f"ds_read_b128 {ar(b, 4)}, v{t2} offset:{hd*1024}\nds_read_b128 {ar(b+4, 4)}, v{t2} offset:{4096 + hd*1024}\nds_read_b32 a{b+8}, v{t3} offset:{hd*1024}")
    for hd in range(2):
        b = T + 24*hd; o = vr(O[hd], 16)
        q(f"{M32} {o}, {ar(b, 4)}, {ar(b+14, 4)}, 0\n{M32} {o}, {ar(b+4, 4)}, {ar(b+18, 4)}, {o}\n{M32} {o}, {ar(b+8, 4)}, {ar(b+12, 4)}, {o}")
    return adr, pre, q.l

P1, P2, PW, PO, PR = 28, 29, 30, 33, 35
def p3_addr():
    a = Seq()
    a(f"v_add_u32 v{P1}, 4096, v{vL16}\nv_add_u32 v{P2}, 8192, v{vL16}")
    for tt in range(4):
        a(f"s_add_u32 s62, s{sW}, {tt}\ns_and_b32 s62, s62, 3")
        if tt: a(f"s_mul_i32 s63, s62, 15360\ns_add_u32 s63, s63, {(tt-1)*5120}\nv_add_u32 v{PW+tt-1}, s63, v{vL16}")
        a(f"s_lshl_b32 s63, s{sRT}, 2\ns_add_u32 s62, s62, s63\ns_mul_i32 s62, s62, 36864\ns_mul_i32 s63, s{sW}, 9216\ns_add_u32 s62, s62, s63\ns_add_u32 s{64+tt}, s62, {OPO}")
    a(f"v_and_b32 v{PO}, 15, v0\nv_mul_u32_u24 v{PO}, 1152, v{PO}\nv_bfe_u32 v{PO+1}, v0, 4, 1\nv_lshl_add_u32 v{PO+1}, v{PO+1}, 3, v{PO}\nv_and_b32 v{PR}, 48, v0\nv_add_u32 v{PO}, v{PR}, v{PO}")
    a(f"s_lshl_b32 s62, s{sRT}, 2\ns_add_u32 s62, s62, s{sW}\ns_mul_i32 s62, s62, {16*1152}\ns_mul_i32 s63, s{sCB}, 144\ns_add_u32 s68, s62, s63")
    a(f"s_mul_i32 s62, s{sW}, 15360\nv_add_u32 v{PR}, s62, v{vL16}")
    mksrd(a, SM, 48, 49, nrec=2048*1152)
    return a.l

def poison(T, vr=ar):
    q = Seq()
    for i in range(4): q(f"v_accvgpr_write_b32 a{T+i}, -1")
    g = []
    for sl in range(4):
        g.append([I(f"s_add_u32 s62, s{sOA}, {sl*2048}"), I(f"buffer_store_dwordx4 {vr(T, 4)}, v{vOA}, {srd(SWS)}, s62 offen sc1", "poi")])
    g.append([I("s_mov_b32 exec_hi, 0"), I(f"buffer_store_dwordx4 {vr(T, 4)}, v{vOT}, {srd(SWS)}, s{sOT} offen sc1", "poi"), I("s_mov_b32 exec_hi, -1")])
    return q.l, g

def attention2(a, c, rest):
    e = wo_loads(c, WOE[:13])
    wl = wo_loads(c, WOE[13:] + WOL[:16]); wlast = wo_loads(c, WOL[16:])
    pl = par_loads(c)
    A = [[] for _ in range(9)]; B = [[] for _ in range(18)]
    gb = c.ks0 + c.kn
    if c.a2n >= 0:
        for k, x in enumerate(e): A[k * c.a2n // len(e)].append(x)
        A[max(c.a2n - 2, 0)].append(poll_issue(vF2, F2, "f2"))
        A[c.a2n].append(poll_check(vF2, F2, "f2"))
        for k, x in enumerate(pl): A[c.a2n + k * (9 - c.a2n) // len(pl)].append(x)
    else:
        for k, x in enumerate(e): A[k // 3].append(x)
        if c.f2n >= 2: B[c.f2n - 2].append(poll_issue(vF2, F2, "f2"))
        else: A[7 + c.f2n].append(poll_issue(vF2, F2, "f2"))
        B[c.f2n].append(poll_check(vF2, F2, "f2") + pl[0])
        for k, x in enumerate(pl[1:]): B[c.f2n + k // c.npl].append(x)
    if c.po:
        for k in range(c.pe): B[min(c.peg + k // 4, 17)].append(ldo(k >> 2, k & 3))
    for g in range(18):
        while wl and len(B[g]) < c.nwl and g not in (9, gb + 1, gb + 2): B[g].append(wl.pop(0))
    assert not wl
    B[min(gb + 3, 17)] += wlast
    a(k_rd(0, 0) + k_rd(0, 1) + [k_rd(0, 2)[1], k_rd(0, 3)[1]])
    k = len(rest) // 2
    a(rest[:k]); rest = rest[k:]
    if c.stp & 4: stamp(a, c)
    for n in range(9):
        a(qk(0, n))
        if n + 2 < 9: a(k_rd(0, n + 2)[:1 if n < 2 else 2])
        a(A[n])
        if n < 3: a(rest[n*len(rest)//3: (n+1)*len(rest)//3])
        if n == 3: a(merge())
        if n >= 4: a(mx(n - 4))
        if n == c.h_f2 - 28: a([W(vm="st2")] + flag_store(F2, sL, True))
    a(k_rd(1, 0) + k_rd(1, 1) + v_rd(0, 0) + v_rd(0, 1))
    a(qk(1, 0))
    for i in range(5, 8): a(mx(i))
    stamp(a, c)
    kpre, kmf, kfin = kvsum2()
    O2, O3 = Q0, KM
    adr, apre, amf = a_apply2(APT, [O2, O3])
    assert gb >= 8
    for hd in range(2):
        a(mx_fin())
        a(sub(0)); a(sub(1))
        if hd == 1: a(fin(0, OB0, c))
        for i in range(9):
            g = 9*hd + i
            main = ex(i) if i < 8 else []
            fill = []
            if g == gb + 1: a(amf)
            if i + 2 < 8: fill.append(sub(i + 2))
            if i >= 1:
                ns = [0, 1] if i == 1 else [i]
                for n in ns:
                    fill += pv(hd, n)
                    if n + 2 < 9: fill += v_rd(hd, n + 2)
                if hd == 0:
                    fill += qk(1, i)
                    if i + 1 < 9: fill += k_rd(1, i + 1)
                    if i == 3: main += merge()
                    if i >= 4: main += mx(i - 4)
            if g == 1: main += kpre
            if g == 2: main += adr
            if c.ks0 <= g < gb: fill += kmf[16*(g-c.ks0)//c.kn: 16*(g-c.ks0+1)//c.kn]
            if g == gb: main += kfin + apre
            if g == gb + 1: main += fin(2, O2, c)
            if g == gb + 2: main = fin(3, O3, c) + main
            if g == 11: main += p3_addr()
            if c.po:
                if g == 10: fill.append(poll_issue(vF3, F1 if c.pop < 23 else F2, "f3"))
            else:
                if g == 9 + c.f3n: fill.append([W(vm="st3a")] + flag_store(F3))
                if g == 17: fill.append(poll_issue(vF3, F3, "f3"))
            fill += B[g]
            if main: a(weave(main, fill))
            else: a(fill)
            if g == 8: a(v_rd(1, 0) + v_rd(1, 1))
            if g == gb: a.wait(lg=0); a("s_barrier")
            if c.po and g == 13: a(poll_check(vF3, F1 if c.pop < 23 else F2, "f3"))
        if hd == 0:
            for i in range(5, 8): a(mx(i))
        stamp(a, c)
    a(fin(1, OB1, c))
    a(f"s_mov_b32 exec_hi, 0\nbuffer_store_dwordx4 {vr(TL, 4)}, v{vOT}, {srd(SWS)}, s{sOT} offen sc1\ns_mov_b32 exec_hi, -1", "st3b")

stubs = Seq()
OPB = [96, 112, 128, 60, 76, 10]
OP = lambda s, tt: OPB[s % 6] + 4*tt
ldo = lambda s, tt, tag=None: I(f"buffer_load_dwordx4 {vr(OP(s, tt), 4)}, v{[vL16, P1, P2][s >> 2]}, {srd(SWS)}, s{64+tt} offen offset:{(s & 3)*1024} sc1", tag)
def p3_2(a, c):
    AC = 144
    def mmo(s, tt):
        return [I(f"{M16} {vr(AC + (tt*5 + ct)*4, 4)}, {ar(awo(s, ct), 4)}, {vr(OP(s, tt), 4)}, {vr(AC + (tt*5 + ct)*4, 4) if s else 0}") for ct in range(5)]
    def chk(nm, L):
        r = [OP(*x) for x in L]
        t = f"v_max3_u32 v94, v{r[0]}, v{r[1]}, v{r[2]}\n" + (f"v_max_u32 v94, v94, v{r[3]}\n" if len(r) > 3 else "") + f"v_cmp_eq_u32 vcc, -1, v94\ns_cbranch_vccnz .Lr{nm}"
        a(t); a.label(f".Lb{nm}")
        stubs.label(f".Lr{nm}")
        stubs(f"s_cmp_eq_u32 s69, 0\ns_cbranch_scc1 .Lb{nm}\ns_sub_u32 s69, s69, 1")
        stubs([ldo(*x, "nocount") for x in L])
        stubs("s_waitcnt vmcnt(0)"); stubs(t); stubs(f"s_branch .Lb{nm}")
    wr = lambda tt: [I(f"ds_write_b128 v{PW+tt-1}, {vr(AC + (tt*5 + ct)*4, 4)} offset:{ct*1024}") for ct in range(5)]
    TO = (1, 2, 3, 0)
    if c.po:
        a("s_mov_b32 s69, 300000")
        for k in range(c.pe, 24): a(ldo(k >> 2, k & 3))
        lb = [ldo(s, tt) for tt in TO for s in (6, 7, 8)]
        for s in range(6):
            chk(f"a{s}", [(s, tt) for tt in range(4)])
            m = flat([mmo(s, tt) for tt in range(4)])
            if s == c.p3d + 1 and s >= 3: m = put(m, [(k, x) for k, x in enumerate(lb)]); lb = []
            a(m)
        a(lb)
        stamp(a, c)
    else:
        a(poll_check(vF3, F3, "f3", F3B))
        stamp(a, c)
        for k in range(24):
            if k == c.nfl: a([W(vm="st3b")] + flag_store(F3B))
            a(ldo(k >> 2, k & 3))
        if c.nfl >= 24: a([W(vm="st3b")] + flag_store(F3B))
        a(poll_issue(vF3, F3B, "f3b"))
        for k in range(24): a(mmo(k >> 2, k & 3))
        stamp(a, c)
        a(poll_check(vF3, F3B, "f3b"))
        stamp(a, c)
        for tt in TO:
            for s in (6, 7, 8): a(ldo(s, tt))
    prev = None
    for tt in TO:
        if c.po: chk(f"b{tt}", [(s, tt) for s in (6, 7, 8)])
        m = mmo(6, tt) + mmo(7, tt) + mmo(8, tt)
        a(put(m, [(2 + 2*k, x) for k, x in enumerate(wr(prev))]) if prev else m)
        prev = tt
    stamp(a, c)
    if c.po and c.stamps: a(f"v_writelane_b32 v{vSTAMP}, s69, 31\ns_mov_b32 s69, 300000\nv_writelane_b32 v{vSTAMP}, s69, 30")
    a.wait(lg=0); a("s_barrier")
    RB = 60; OC = 40
    for ct in range(5):
        for sl in range(3): a(f"ds_read_b128 {vr(RB + (ct*3 + sl)*4, 4)}, v{PR} offset:{sl*5120 + ct*1024}")
    for ct in range(5):
        d = AC + ct*4; b = RB + ct*12
        for i in (0, 2): a(f"v_pk_add_f32 {vr(d+i, 2)}, {vr(d+i, 2)}, {vr(b+i, 2)}\nv_pk_add_f32 {vr(b+4+i, 2)}, {vr(b+4+i, 2)}, {vr(b+8+i, 2)}")
        for i in (0, 2): a(f"v_pk_add_f32 {vr(d+i, 2)}, {vr(d+i, 2)}, {vr(b+4+i, 2)}")
        a(f"v_cvt_pk_bf16_f32 v{OC+2*ct}, v{d}, v{d+1}\nv_cvt_pk_bf16_f32 v{OC+1+2*ct}, v{d+2}, v{d+3}")
        if ct in (1, 3): a(f"buffer_store_dwordx4 {vr(OC + 2*(ct-1), 4)}, v{PO}, {srd(SM)}, s68 offen offset:{32*(ct-1)}")
        if ct == 4: a(f"s_mov_b32 exec_hi, 0\nbuffer_store_dwordx2 {vr(OC+8, 2)}, v{PO+1}, {srd(SM)}, s68 offen offset:128\ns_mov_b32 exec_hi, -1")

def finish(a, c):
    stamp(a, c)
    if c.stamps:
        a(f"s_cmp_lg_u32 s{sW}, 0\ns_cbranch_scc1 .Lend\ns_lshl_b32 s62, s2, 7\nv_lshrrev_b32 v4, 2, v{vL16}\ns_mov_b64 exec, 0xffffffff")
        a(f"buffer_store_dword v{vSTAMP}, v4, {srd(SWS)}, s62 offen")
    a.label(".Lend")
    a("s_endpgm")
    a(stubs)
    a("s_endpgm")
    a.label(".Lcodeend")

def build(c, path):
    a = Seq(); nst[0] = 0; UPK[0] = c.upk; HOIST[:] = [c.hoist, c.hoistn]
    wo_init(c)
    prologue(a, c)
    setup1(a, c)
    setup2(a, c)
    issue(a, c, c.o2)
    if c.pst: stamp(a, c)
    if c.warm == 1:
        for t in warm(sW): a.label(t[:-1]) if t.endswith(':') else a(t)
        if c.pst: stamp(a, c)
    a.wait(vm=["w0", "x0", "ga"])
    if c.pst: stamp(a, c)
    for s in range(9): a(f"ds_read_u16 v{vGA+s}, v{vMD+3} offset:{32*s}", f"g{s}")
    a(rd_x(0))
    issue(a, c, c.o2b)
    a.wait(lg="g0")
    a(patch(0)); a.wait(lg=0); a("s_barrier")
    stamp(a, c)
    a(rd_w(0, 0))
    issue(a, c, c.o3)
    ex = {}
    def add(k, v, pos=9): ex.setdefault(k, []).append(flat(v) if isinstance(k, tuple) else (pos, flat(v)))
    p1, p2 = producer(c)
    add(c.s_prod, p1, c.p_pr); add(c.s_prod + (c.p_pr + 4) // 10, p2, (c.p_pr + 4) % 10)
    add(c.s_fw, tag_check() + [W(vm="stp")] + flag_store(FW))
    add(2*c.s_pw - 1, poll_issue(vFW, FW, "fw"))
    add(("pre", c.s_pw), poll_check(vFW, FW, "fw"))
    allo = ",".join([c.o1, c.o2, c.o2b, c.o3]).split(",")
    if "wo" not in allo: add(2*c.s_wo, wo_dma())
    add(("pre", (c.s_rp - 1) // 2), [W(vm="wos")])
    p1, p2 = wo_repack()
    add(c.s_rp, p1, 7); add(c.s_rp + 1, p2, 9)
    add(c.s_rp + 2, wa_load())
    q = Seq(); setup3(q, c); add(15, q.l)
    if c.s2 and c.po and c.pop < 18:
        p1, p2 = poison(208); add(c.pop, p1, 0)
        for k, x in enumerate(p2): add(c.pop + k // 3, x, 3*(k % 3) + 2)
    pass1(a, c, ex)
    stamp(a, c)
    if c.stop == 1:
        a.wait(vm=0, lg=0); finish(a, c)
        open(path, "w").write(wrap(finalize(a.l, True), LDS_TOTAL)); return
    b = Seq()
    rest = g2(b, c)
    (attention2 if c.s2 else attention)(b, c, rest)
    a(sched(b.l, c.sch, "g2+att", c.beta / 100) if c.sch else b.l)
    stamp(a, c)
    (p3_2 if c.s2 else p3)(a, c)
    finish(a, c)
    txt = wrap(finalize(a.l, True), LDS_TOTAL)
    if c.al: txt = txt.replace('.p2align 8', '.p2align 12')
    if c.warm: txt, n = add_stubs(txt, -0x300); print('stubs', n)
    open(path, "w").write(txt)

if __name__ == "__main__":
    c = Cfg()
    path = sys.argv[1]
    for kv in sys.argv[2:]:
        k, v = kv.split("=")
        setattr(c, k, type(getattr(c, k))(int(v)) if not isinstance(getattr(c, k), str) else v)
    build(c, path)
```

```python
import re
KN = "gated_mix__linear_kernel_hedgehog__sliding_block__prompt_kernel"

class I:
    __slots__ = ("t", "tag", "wvm", "wlg", "kind")
    def __init__(self, t, tag=None, wvm=None, wlg=None, kind=None):
        self.t = t; self.tag = tag; self.wvm = wvm; self.wlg = wlg; self.kind = kind

def W(vm=None, lg=None):
    return I(None, wvm=vm, wlg=lg, kind="wait")

class Seq:
    def __init__(self): self.l = []
    def __call__(self, s, tag=None):
        if isinstance(s, I): self.l.append(s); return
        if isinstance(s, Seq): self.l.extend(s.l); return
        if isinstance(s, list):
            for x in s: self(x, tag)
            return
        for ln in s.split("\n"):
            ln = ln.strip()
            if ln: self.l.append(I(ln, tag))
    def wait(self, vm=None, lg=None): self.l.append(W(vm, lg))
    def label(self, n): self.l.append(I(n + ":", kind="label"))

def weave(main, fill, start=0, per=None):
    main = main.l if isinstance(main, Seq) else main
    fill = fill.l if isinstance(fill, Seq) else fill
    out = []; n = len(main) - start; k = 0
    for i, m in enumerate(main):
        out.append(m)
        if i >= start:
            tgt = len(fill) if i == len(main) - 1 else (min(len(fill), (i - start + 1) * per) if per else (len(fill) * (i - start + 1) + n - 1) // n)
            while k < tgt:
                f = fill[k]; k += 1
                if isinstance(f, list): out.extend(f)
                else: out.append(f)
    return out

_rr = re.compile(r"^(-|\|)?([vas])(\d+)\|?$"); _rs = re.compile(r"^(-|\|)?([vas])\[(\d+):(\d+)\]\|?$")
def regs(op):
    op = op.strip()
    m = _rr.match(op)
    if m: return {(m.group(2), int(m.group(3)))}
    m = _rs.match(op)
    if m: return {(m.group(2), i) for i in range(int(m.group(3)), int(m.group(4)) + 1)}
    if op == "vcc": return {("s", 106), ("s", 107)}
    if op == "exec": return {("s", 126), ("s", 127)}
    if op == "m0": return {("s", 124)}
    if op == "exec_lo": return {("s", 126)}
    if op == "exec_hi": return {("s", 127)}
    return set()

TRANS = ("v_exp_f32", "v_log_f32", "v_rcp_f32", "v_rsq_f32", "v_sqrt_f32")
SCC = ("c", 0)
SCCW = ("s_add", "s_sub", "s_cmp", "s_and", "s_or", "s_xor", "s_lshl", "s_lshr", "s_ashr", "s_bfe", "s_min", "s_max", "s_bitcmp", "s_not", "s_andn2", "s_abs")
SCCR = ("s_cselect", "s_addc", "s_subb", "s_cbranch_scc", "s_cmov")
def parse(t):
    mn, _, rest = t.partition(" ")
    ops = [o.strip().split(" ")[0] for o in rest.split(",")] if rest else []
    R = [regs(o) for o in ops]
    U = lambda xs: set().union(*xs) if xs else set()
    d = dict(mn=mn, cls="other", w=set(), r=set(), C=set(), AB=set(), passes=0, wide=set(), xr=set(), xw=set())
    if mn.startswith("v_mfma"):
        d.update(cls="mfma", w=R[0], AB=R[1] | R[2], C=R[3], r=R[1] | R[2] | R[3], passes=8 if "32x32" in mn else 4)
    elif mn.startswith("v_"):
        d["cls"] = "valu"
        if "swap" in mn: d.update(w=R[0] | R[1], r=R[0] | R[1])
        elif "_co_" in mn: d.update(w=R[0] | R[1], r=U(R[2:]))
        else:
            d.update(w=R[0], r=U(R[1:]))
            if mn.startswith(("v_fmac", "v_dot2c", "v_mac", "v_writelane")) or "dpp" in t or "row_" in t: d["r"] |= R[0]
    elif mn.startswith("ds_read"): d.update(cls="ds", w=R[0], r=U(R[1:]))
    elif mn.startswith("ds_"): d.update(cls="ds", r=U(R))
    elif mn.startswith(("buffer_", "global_")):
        d["cls"] = "vmem"
        if " lds" in t: d.update(r=U(R) | {("s", 124)}, dma=True)
        elif "load" in mn: d.update(w=R[0], r=U(R[1:]))
        else:
            d.update(r=U(R))
            if "x4" in mn or "x3" in mn: d["wide"] = R[0] if mn.startswith("buffer") else R[1]
    elif mn.startswith("s_"):
        d["cls"] = "salu"
        if R and not mn.startswith(("s_cmp", "s_cbranch", "s_bitcmp")): d["w"] = set(R[0]); d["r"] = U(R[1:])
        else: d["r"] = U(R)
        if mn.startswith(("s_bitset", "s_cmov")): d["r"] |= R[0]
        if mn.startswith(SCCW): d["xw"] = {SCC}
        if mn.startswith(SCCR): d["xr"] = {SCC}
    if d["cls"] in ("valu", "mfma", "ds", "vmem"): d["xr"] = {("s", 126), ("s", 127)}
    return d

def need(p, c):
    n = 0
    vw = {x for x in p["w"] if x[0] != "s"}; sw = {x for x in p["w"] if x[0] == "s"}
    if p["cls"] == "valu":
        if c["cls"] == "mfma" and vw & c["r"]: n = max(n, 2)
        if c["cls"] == "valu":
            if p["mn"].startswith(TRANS) and vw & c["r"]: n = max(n, 1)
            if c["mn"].startswith(("v_readlane", "v_readfirstlane")) and vw & c["r"]: n = max(n, 1)
            if (c["mn"].startswith("v_permlane") or c.get("dpp")) and vw & c["r"]: n = max(n, 2)
            if sw & c["r"]: n = max(n, 4 if c["mn"].startswith(("v_readlane", "v_writelane")) else 2)
            if p["mn"].startswith("v_dot") and vw & (c["r"] | c["w"]) and c["mn"] != p["mn"]: n = max(n, 3)
        if c["cls"] == "vmem" and sw & c["r"]: n = max(n, 5)
    if p["cls"] == "mfma":
        big = 12 if p["passes"] == 8 else 8
        if c["cls"] == "mfma":
            if p["w"] & c["AB"]: n = max(n, big)
            if p["w"] & c["C"] and not (p["w"] == c["C"] and p["passes"] == c["passes"]): n = max(n, big - 2)
            if p["w"] & c["w"] and not (p["w"] == c["w"] and p["passes"] == c["passes"]): n = max(n, big)
        elif c["cls"] in ("valu", "ds", "vmem"):
            if p["w"] & (c["r"] | c["w"]): n = max(n, big)
            if p["C"] & c["w"]: n = max(n, 7 if p["passes"] == 8 else 3)
    if p["cls"] == "vmem" and p["wide"] and p["wide"] & c["w"]: n = max(n, 2)
    if p["cls"] == "salu" and ("s", 124) in p["w"] and c.get("dma"): n = max(n, 1)
    return n

HOIST = [0, 1]
def finalize(l, verbose=False):
    out = []; vm = []; lg = []; hist = []; nnop = 0
    def cnt(q, tags, mx):
        if tags == 0: return 0
        if not isinstance(tags, (list, tuple)): tags = [tags]
        last = -1
        for i, x in enumerate(q):
            if x[0] in tags: last = i
        if last < 0: return None
        return min(len(q) - 1 - last, mx)
    def emit(t, ws=1, d=None):
        out.append(t)
        for h in hist: h[1] += ws
        hist[:] = [h for h in hist if h[1] < 14]
        if d: hist.append([d, 0])
    def hoist(k):
        if k + 1 >= len(l) or any(x[0] == "smem" for x in lg): return
        nx = l[k+1]
        if nx.kind is not None or nx.t.startswith(("s_", ".", ";")): return
        last = -1; nm = 0
        for y in l[k+1: k+12]:
            if y.kind == "wait":
                if y.wlg is not None and y.wlg != 0 and y.wvm is None:
                    tg = y.wlg if isinstance(y.wlg, (list, tuple)) else [y.wlg]
                    if any(z.kind is None and z.tag in tg for z in l[k+1: l.index(y, k)]): break
                    for i, x in enumerate(lg):
                        if x[0] in tg and len(out) - x[3] >= HOIST[0]: last = max(last, i)
                    continue
                break
            if y.kind is not None or y.t.startswith((".", ";", "s_cbranch", "s_barrier", "s_branch", "s_mem", "s_load")): break
            d = parse(y.t); rw = d["r"] | d["w"]
            for i, x in enumerate(lg):
                if x[1] & rw and not (d["cls"] == "ds" and not (x[1] & d["r"])) and len(out) - x[3] >= HOIST[0]: last = max(last, i)
            if d["cls"] == "mfma":
                nm += 1
                if nm >= HOIST[1]: break
        if last >= 0:
            n = min(len(lg) - 1 - last, 15)
            emit(f"    s_waitcnt lgkmcnt({n})"); lg[:] = lg[len(lg) - n:] if n else []
    for kk, ins in enumerate(l):
        if ins.kind == "label":
            out.append(ins.t); continue
        if ins.kind == "wait":
            parts = []
            if ins.wvm is not None:
                n = cnt(vm, ins.wvm, 63)
                if n is not None: parts.append(f"vmcnt({n})"); vm[:] = vm[len(vm) - n:] if n else []
            if ins.wlg is not None:
                n = cnt(lg, ins.wlg, 15)
                if n is not None:
                    if any(x[0] == "smem" for x in lg): n = 0
                    parts.append(f"lgkmcnt({n})"); lg[:] = lg[len(lg) - n:] if n else []
            if parts: emit("    s_waitcnt " + " ".join(parts))
            continue
        t = ins.t
        if t.startswith((".", ";")): out.append(t); continue
        d = parse(t)
        if "row_" in t or "quad_perm" in t or "_dpp" in t: d["dpp"] = True
        rw = d["r"] | d["w"]; parts = []
        for q, nm, mx in ((vm, "vmcnt", 63), (lg, "lgkmcnt", 15)):
            last = -1
            for i, x in enumerate(q):
                if x[1] & rw and not (x[2] == d["cls"] == "ds" and not (x[1] & d["r"])): last = i
            if last >= 0:
                n = min(len(q) - 1 - last, mx)
                if nm == "lgkmcnt" and any(x[0] == "smem" for x in q): n = 0
                parts.append(f"{nm}({n})"); q[:] = q[len(q) - n:] if n else []
        if parts: emit("    s_waitcnt " + " ".join(parts))
        n = max([need(h[0], d) - h[1] for h in hist] + [0])
        while n > 0:
            k = min(n, 8); emit(f"    s_nop {k-1}", k); n -= k; nnop += k
        if d["mn"] == "s_nop": emit("    " + t, int(t.split()[1]) + 1); continue
        if ins.tag == "nocount": pass
        elif d["cls"] == "vmem": vm.append((ins.tag, d["w"], "vmem"))
        elif d["cls"] == "ds": lg.append((ins.tag, d["w"], "ds", len(out)))
        elif d["mn"].startswith(("s_load", "s_memrealtime", "s_memtime")): lg.append(("smem", set() if "s19, s[" in t else d["w"], "smem", len(out)))
        emit("    " + t, 1, d)
        if HOIST[0] and d["cls"] == "mfma": hoist(kk)
    if verbose: print("auto nops:", nnop, "instrs:", len(out))
    return "\n".join(out) + "\n"

class Fence(I):
    def __init__(self): I.__init__(self, ";", kind="fence")

def flat(l):
    out = []
    for x in (l.l if isinstance(l, Seq) else l):
        if isinstance(x, (list, tuple, Seq)): out.extend(flat(x))
        else: out.append(x)
    return out

LAT_DS, LAT_VM, VMC = 128, 1500, 72
def icost(d):
    if d["cls"] == "valu": return 8 if d["mn"].startswith(TRANS) else 4
    if d["cls"] == "ds" and not d["mn"].startswith("ds_read"): return 16 if "b128" in d["mn"] else 8
    if d["cls"] == "vmem" and "store" in d["mn"]: return 16 if "x4" in d["mn"] else 8
    return 4
PEN = [8, 8, 64, 8]
def sched(l, win=48, rep=None, beta=0.0):
    l = flat(l); out = []; seg = []
    tot = [0]
    def hard(x):
        if x.kind in ("label", "fence"): return True
        if x.kind == "wait": return False
        return x.t.startswith(("s_cbranch", "s_branch", "s_endpgm", "s_memrealtime", "s_memtime", "s_load", "s_waitcnt", "s_getpc", ".", ";"))
    def run(seg):
        n = len(seg)
        if n == 0: return
        D = []
        for x in seg:
            if x.kind == "wait": d = dict(mn="s_waitcnt", cls="salu", w=set(), r=set(), C=set(), AB=set(), passes=0, wide=set(), xr=set(), xw=set(), fence=True)
            else:
                d = parse(x.t)
                if "row_" in x.t or "quad_perm" in x.t or "_dpp" in x.t: d["dpp"] = True
                if d["mn"] == "s_barrier": d["fence"] = True
            D.append(d)
        pred = [dict() for _ in range(n)]
        lw = {}; lr = {}; lds = lvm = -1
        for i, d in enumerate(D):
            R = d["r"] | d["xr"]; Wr = d["w"] | d["xw"]
            def dep(j, lat=0):
                if j < 0 or j == i: return
                o = pred[i].get(j, (0, 0))
                pred[i][j] = (max(o[0], lat), need(D[j], d))
            for r in R:
                j = lw.get(r, -1)
                if j >= 0: dep(j, LAT_DS if D[j]["cls"] == "ds" else LAT_VM if D[j]["cls"] == "vmem" else 0)
            for r in Wr:
                j = lw.get(r, -1)
                if j >= 0: dep(j, 0 if D[j]["cls"] == d["cls"] == "ds" else LAT_DS if D[j]["cls"] == "ds" else LAT_VM if D[j]["cls"] == "vmem" else 0)
                for j in lr.get(r, ()): dep(j)
            if d["cls"] == "ds" or d.get("fence"): dep(lds, LAT_DS if (d.get("fence") and seg[i].kind == "wait" and seg[i].wlg == 0 and lds >= 0 and D[lds]["cls"] == "ds") else 0); lds = i
            if d["cls"] == "vmem" or d.get("fence"): dep(lvm); lvm = i
            for r in R: lr.setdefault(r, []).append(i)
            for r in Wr: lw[r] = i; lr[r] = []
        done = [None] * n
        t = 0; pos = 0; pipe = 0; mft = -99; vend = -99; lo = 0; vfree = 0
        while pos < n:
            while done[lo] is not None: lo += 1
            cands = []; cnt = 0; i = lo
            while i < n and cnt < win:
                if done[i] is None:
                    cnt += 1
                    if all(done[j] is not None for j in pred[i]):
                        d = D[i]; st = t
                        for j, (lat, ws) in pred[i].items():
                            st = max(st, done[j][0] + lat, t + 4 * (ws - (pos - done[j][1] - 1)))
                        c = d["cls"]
                        if c == "mfma": st = max(st, pipe)
                        elif c in ("valu", "ds", "vmem"):
                            st = max(st, mft + 8)
                            if c != "valu": st = max(st, vend + (PEN[3] if seg[i].tag in ("pe", "st3a", "st3b") else PEN[0] if c == "vmem" else PEN[1])) if vend > mft else st
                            if c == "vmem": st = max(st, vfree)
                        cands.append((st - t, i))
                i += 1
            mf = [x for x in cands if D[x[1]]["cls"] == "mfma"]
            mf = min(mf) if mf else None
            best = None
            for st, i in cands:
                c = D[i]["cls"]; pen = st
                if mf and c != "mfma" and i > mf[1]: pen += max(0, st + icost(D[i]) - mf[0])
                pen += beta * (i - lo)
                key = (pen, {"mfma": 0, "ds": 1, "vmem": 1, "salu": 2, "other": 2, "valu": 2}[c], i)
                if best is None or key < best[0]: best = (key, st, i)
            _, st, i = best
            d = D[i]; t += st
            done[i] = (t, pos); pos += 1; out.append(seg[i])
            if d["cls"] == "mfma": pipe = t + 4 * d["passes"]; mft = t
            if d["cls"] == "vmem": vfree = t + (PEN[2] if "x4" in d["mn"] else PEN[2] // 2 if seg[i].tag == "wo" else 16)
            t += icost(d)
            if d["cls"] == "valu": vend = t
        tot[0] += max(t, pipe)
    for x in l:
        if hard(x):
            run(seg); seg = []
            if x.kind != "fence": out.append(x)
        else: seg.append(x)
    run(seg)
    if rep: print(f"sched {rep}: model cycles {tot[0]}, instrs {len(out)}")
    return out

def magic_div(d, nmax):
    for s in range(6, 32):
        m = -(-(1 << s) // d)
        if m * (nmax - 1) >= (1 << 32) or m >= (1 << 24): continue
        if all(((i * m) >> s) == i // d for i in range(nmax)): return m, s
    raise ValueError

def wrap(body, lds, vgprs=512, accum=256):
    return f"""; @launch grid=(256,1,1) block=(256,1,1) lds={lds}
.amdgcn_target "amdgcn-amd-amdhsa--gfx950"
.text
.globl {KN}
.p2align 8
.type {KN},@function
{KN}:
{body}.section .rodata,"a"
.p2align 6
.amdhsa_kernel {KN}
  .amdhsa_next_free_vgpr {vgprs}
  .amdhsa_next_free_sgpr 102
  .amdhsa_accum_offset {accum}
  .amdhsa_group_segment_fixed_size 0
  .amdhsa_kernarg_size 88
  .amdhsa_user_sgpr_count 2
  .amdhsa_user_sgpr_kernarg_segment_ptr 1
  .amdhsa_system_sgpr_workgroup_id_x 1
.end_amdhsa_kernel
"""
```

```python
import sys
sys.path.insert(0, "work")
from fw import *

class Cfg:
    stop = 99
    stamps = True
    ldpol = "sc1"
    rotmod = 9
    stag = 0x7520
    o1 = 'pr'
    o2 = 'x1,w1'
    o2b = 'tag,x2'
    o3 = 'w2'
    p_pr = 0
    s_rp = 11
    fl = 1
    g3f = 1
    nwg = 256
    px = '1368'
    pw = 'cfi'
    pw2 = '258124578'
    pv = 5
    exp = 0
    m44 = 0
    wol = 0
    h_fo = 13
    s_wa = 9
    x2l = 0
    stp = 0
    pst = 0
    gx = (1, 3, 6, 8)
    gw = (2, 5, 8)
    sch = 32
    beta = 50
    s_prod = 0
    s_fw = 3
    s_pw = 6
    s_wo = 2
    h_f1 = 12
    h_kv = 17
    n_kv = 7
    h_f2 = 27
    phq = 30
    tlb = 0
    upk = 'famFAMst023'
    al = 1
    xpf = 1
    warm = 0
    hoist = 16
    hoistn = 3
    s3g = 1
    wpf = 0
    ppen = 4
    pen = 8
    wlg = 1
    p33 = 1
    pu = 2
    pr = 7
    pb0 = 68
    pr2 = 6
    pc = 3
    pra = 1
    per = 172
    h_ea = 3
    n_ea = 2
    pd = 0
    vpen = 32
    dpen = 12
    vmc = 56
    dep = 4
    f2n = 2
    s2 = 1
    a2n = -1
    npl = 5
    ks0 = 9
    kn = 4
    po = 1
    nwl = 4
    pon = 3
    e1n = 3
    e1s = '34456'
    pe = 8
    peg = 15
    pop = 16
    p3d = 3
    f3n = 7
    nfl = 12
    p3s = 0
NW = 5
F1, FW, F3, F2, FO, F3B = 0x60000, 0x80000, 0x20000, 0x40000, 0xA0000, 0xC0000
KVO, PKO, PARO, WOO, OPO = 0x100000, 0x600000, 0x8A0000, 0x960000, 0xAB0000
KV_PAIR, KV_KIND = 163840, 2621440
WOBLK = 5248
PSEC = 72 * 1152
WSL = 12416
KVR = 62080
XR = KVR
WOS = KVR + 49152
STG = KVR + 61440
SST = 7680
WPH = STG + 4 * SST
KVS = WPH + 4096
LDS_TOTAL = KVS + 4096
SX, SW1, SPK, SPS, SWS, SM = 4, 8, 12, 92, 20, 24
sW, sR, sG, sT = 28, 29, 30, 31
sKA, sKP, sLE, sQS = 32, 37, 46, 18
sL, sM0x, sM0w1, sM0w2 = 54, 55, 56, 57
sTAG = 58
sKX, sKW = 64, 73
sCB, sRT, sP = 96, 97, 98
sOA, sOT = 16, 17
def srd(n): return f"s[{n}:{n+3}]"
def vr(n, k): return f"v[{n}:{n+k-1}]"
def ar(n, k): return f"a[{n}:{n+k-1}]"
vL = 1
PM = 2
vX, vXR, vW1, vWA1, vWT1, vPAT, vGA = 10, 14, 16, 19, 20, 21, 22
vPK, vPS, vSA, vST, vSL, vK2, vF1 = 31, 34, 35, 36, 37, 38, 39
vKS = 10
AX, WA1, WA2, AD, FR, AY, ACC = 40, 64, 76, 88, 96, 144, 160
vPR1, vPR3, vPS3, vRP, vMD, vP4, vWP, vWP2, vWM = 200, 201, 203, 204, 207, 211, 212, 213, 214
vTW, vSC, V4, VT, VT4, vFW, vFO = 216, 218, 219, 220, 221, 222, 223
vL16, vG0, vG1, vTR = 224, 225, 226, 227
vBL, vBH, vBT, vKL, vKT = 231, 232, 233, 234, 235
vBT2, vQM, vQT, vONE = 236, 237, 238, 239
vOA, vOT, vF2, vF3, vPD, vTG, CM, vSTAMP = 240, 241, 242, 243, 244, 246, 248, 255
vWM2 = 254
fT, fKG, fH, fKL, fRR, fC, fC0, fC1, fQ = range(144, 153)
M32 = "v_mfma_f32_32x32x16_bf16"
M16 = "v_mfma_f32_16x16x32_bf16"

nst = [0]
def stamp(a, c):
    if not c.stamps or nst[0] >= 30: return
    a("s_memrealtime s[60:61]")
    a.wait(lg=0)
    a(f"v_writelane_b32 v{vSTAMP}, s60, {nst[0]}")
    nst[0] += 1

def lin(a, dst, terms, const=None):
    first = True
    for f, m in terms:
        if first:
            a(f"v_mul_u32_u24 v{dst}, {m}, v{f}")
            if not (const is None or const == 0): a(f"v_add_u32 v{dst}, {const}, v{dst}")
            first = False
        else:
            if 0 <= m <= 64: a(f"v_mad_u32_u24 v{dst}, v{f}, {m}, v{dst}")
            else:
                a(f"s_movk_i32 s63, {m}" if m < 32768 else f"s_mov_b32 s63, {m}")
                a(f"v_mad_u32_u24 v{dst}, v{f}, s63, v{dst}")

def mksrd(a, n, lo, hi, off=None, nrec=0x7fffffff):
    if off is None: a(f"s_mov_b32 s{n}, s{lo}\ns_mov_b32 s{n+1}, s{hi}")
    else: a(f"s_add_u32 s{n}, s{lo}, {off}\ns_addc_u32 s{n+1}, s{hi}, 0")
    a(f"s_mov_b32 s{n+2}, {nrec}\ns_mov_b32 s{n+3}, 0x20000")

def dma_x(s):
    q = Seq()
    q(f"s_add_u32 m0, s{sM0x}, {(s % 3) * 16384}")
    for i in range(4):
        q(f"buffer_load_dwordx4 v{vX+i}, {srd(SX)}, s{sKX+s} offen offset:{i*1024} lds", f"x{s}")
    return q.l
def dma_w(c, n):
    q = Seq()
    q(f"s_add_u32 m0, s{sM0w1 if n < 9 else sM0w2}, {(n % NW) * WSL}")
    for i in range(3):
        if n < 9: q(f"buffer_load_dwordx4 v{vW1+i}, {srd(SW1)}, s{sKW+n} offen offset:{i*1024} lds", f"w{n}")
        elif n < 14: q(f"buffer_load_dwordx4 v{vPK+i}, {srd(SPK)}, s{sKA+n-9} offen offset:{i*1024} {c.ldpol} lds", f"w{n}")
        else: q(f"buffer_load_dwordx4 v{vPS}, {srd(SPK)}, s{sKP+3*((n-14)%3)+i} offen offset:{i*1024} {c.ldpol} lds", f"w{n}")
    if n in (16, 19): q(f"v_add_u32 v{vPS}, {PSEC}, v{vPS}")
    return q.l
def rd_w(n, ks):
    base = (n % NW) * WSL; out = []
    for h in range(5):
        for j in range(2):
            ad = vWA1 if h < 4 else vWT1; off = base + ks * 6208 + j * 768 + (h * 48 if h < 4 else 0)
            out.append(I(f"ds_read_b64_tr_b16 {vr(FR + ks*24 + h*4 + j*2, 2)}, v{ad} offset:{off}", f"f{n}_{ks}"))
    return out
def rd_x(s):
    return [I(f"ds_read_b128 {ar((s*4 + ks*2 + tt)*4, 4)}, v{vXR+ks} offset:{(s%3)*16384 + tt*2048}", f"xr{s}") for ks in range(2) for tt in range(2)]
def mm(s, ks):
    out = []
    for h in range(5):
        for tt in range(2):
            d = vr(ACC + (h*2 + tt)*4, 4)
            out.append(I(f"{M16} {d}, {vr(FR + ks*24 + h*4, 4)}, {ar((s*4 + ks*2 + tt)*4, 4)}, {0 if (s == 0 and ks == 0) else d}"))
    return out
def patch(s): return I(f"ds_write_b16 v{vPAT}, v{vGA+s} offset:{(s % NW) * WSL}", "pat")

def pr_dma():
    q = Seq()
    q("s_mov_b32 m0, s91")
    for i in range(4): q(f"buffer_load_dwordx4 v{vW1+i if i < 3 else vP4}, {srd(SPS)}, 0 offen offset:{i*1024} lds", "pr")
    return q.l
def x_pf():
    q = Seq()
    q(f"s_and_b32 s62, s{sR}, 7\ns_add_u32 s62, s62, 4\ns_sub_u32 s63, s62, 9\ns_cselect_b32 s62, s62, s63\ns_lshl_b32 s62, s62, 7")
    q(f"s_lshr_b32 s63, s2, 6\ns_lshl2_add_u32 s63, s63, s{sW}\ns_mul_i32 s63, s63, {8*1152}\ns_add_u32 s62, s62, s63\nv_and_b32 v4, 7, v0\nv_mul_u32_u24 v4, 1152, v4")
    q(f"buffer_load_dword a255, v4, {srd(SX)}, s62 offen", "pf")
    return q.l
def issue(a, c, o):
    for t in o.split(","):
        if t == "xp": a(x_pf()); continue
        if t == "pr": a(pr_dma())
        elif t == "tag": a(tag_issue())
        elif t == "wo": a(wo_dma())
        elif t and t[0] == "x": a(dma_x(int(t[1])))
        elif t and t[0] == "w": a(dma_w(c, int(t[1])))

def prologue(a, c):
    a("s_getpc_b64 s[60:61]")
    a("s_load_dwordx16 s[32:47], s[0:1], 0\ns_load_dwordx4 s[48:51], s[0:1], 64\ns_load_dwordx2 s[52:53], s[0:1], 80")
    a(f"s_memrealtime s[{sTAG}:{sTAG+1}]")
    a(f"s_cmp_ge_u32 s2, {c.nwg}\ns_cbranch_scc1 .Lend")
    a(f"v_lshrrev_b32 v2, 6, v0\nv_and_b32 v{vL}, 63, v0")
    a(f"v_readfirstlane_b32 s{sW}, v2")
    a("s_lshr_b32 s3, s2, 3")
    a(f"s_and_b32 s62, s3, 7\ns_lshl_b32 s62, s62, 13\nv_and_b32 v{fT}, 15, v0\nv_lshlrev_b32 v3, 7, v{fT}\nv_lshl_add_u32 v3, v2, 11, v3\nv_add_u32 v3, s62, v3")
    a(f"v_min_u32 v3, .Lcodeend-{KN}-8, v3")
    a("global_load_dword v9, v3, s[60:61]", "pf")
    if c.m44:
        a(f"s_and_b32 s62, s2, 3\ns_and_b32 s63, s3, 3\ns_lshl2_add_u32 s{sR}, s62, s63")
        a(f"s_and_b32 s62, s2, 4\ns_bfe_u32 s{sG}, s3, 0x20002\ns_or_b32 s{sG}, s{sG}, s62\ns_lshr_b32 s{sT}, s3, 4")
        a(f"s_lshl_b32 s62, s63, 2\ns_lshr_b32 s62, {c.stag}, s62\ns_and_b32 s62, s62, 15\ns_lshr_b32 s63, s3, 2\ns_add_u32 s62, s62, s63\ns_sub_u32 s63, s62, 9\ns_cselect_b32 s62, s62, s63")
    else:
        a(f"s_and_b32 s62, s2, 1\ns_lshl_b32 s62, s62, 3\ns_and_b32 s{sR}, s3, 7\ns_or_b32 s{sR}, s{sR}, s62")
        a(f"s_and_b32 s62, s2, 6\ns_bfe_u32 s{sG}, s3, 0x10003\ns_or_b32 s{sG}, s{sG}, s62\ns_lshr_b32 s{sT}, s3, 4")
    if c.m44: pass
    elif c.stag == 0:
        m, sh = magic_div(c.rotmod, 32)
        a(f"s_mul_i32 s62, s3, {m}\ns_lshr_b32 s62, s62, {sh}\ns_mul_i32 s62, s62, {c.rotmod}\ns_sub_u32 s62, s3, s62")
    else:
        a(f"s_lshr_b32 s62, s3, 1\ns_and_b32 s62, s62, 12\ns_lshr_b32 s62, {c.stag}, s62\ns_and_b32 s62, s62, 15\ns_and_b32 s63, s3, 7\ns_add_u32 s62, s62, s63\ns_sub_u32 s63, s62, 9\ns_cselect_b32 s62, s62, s63")
    a(f"s_lshl_b32 s{sKX}, s62, 7\ns_mul_i32 s{sKW}, s62, 221184")
    a(f"v_lshrrev_b32 v{fKG}, 4, v{vL}\nv_and_b32 v4, 7, v0\nv_xor_b32 v4, v4, v{fKG}\nv_lshlrev_b32 v4, 4, v4\nv_xor_b32 v5, 64, v4")
    a(f"v_lshrrev_b32 v6, 3, v{vL}\nv_lshl_add_u32 v6, v2, 5, v6\nv_mul_u32_u24 v6, 1152, v6")
    a(f"v_add_u32 v{vX}, v6, v4\nv_add_u32 v5, v6, v5\nv_add_u32 v{vX+1}, 8192, v5\nv_add_u32 v{vX+2}, 16384, v{vX}\nv_add_u32 v{vX+3}, 24576, v5")
    a(f"s_lshr_b32 s62, s{sW}, 1\ns_lshl_b32 s62, s62, 2\ns_and_b32 s63, s{sW}, 1\ns_add_u32 s89, s62, s63\ns_mul_i32 s99, s89, {8*3456}")
    m12, s12 = magic_div(12, 192); m3, s3 = magic_div(3, 12)
    for i in range(3):
        a(f"v_add_u32 v4, {64*i}, v{vL}\nv_mul_u32_u24 v5, {m12}, v4\nv_lshrrev_b32 v5, {s12}, v5")
        a(f"v_mad_i32_i24 v4, v5, -12, v4\nv_mul_u32_u24 v6, {m3}, v4\nv_lshrrev_b32 v6, {s3}, v6")
        a(f"v_mad_i32_i24 v4, v6, -3, v4\nv_lshlrev_b32 v4, 4, v4\nv_min_u32 v4, 20, v4\nv_mad_u32_u24 v4, v6, 36, v4")
        a(f"v_and_b32 v6, 8, v5\nv_add_u32 v5, v5, v6\nv_mul_u32_u24 v5, 3456, v5\nv_add3_u32 v{vW1+i}, v4, v5, s99")
        if i: a(f"v_subrev_u32 v{vW1+i}, {1024*i}, v{vW1+i}")
    a(f"s_lshl_b32 s{sM0x}, s{sW}, 12\ns_add_u32 s{sM0x}, s{sM0x}, {XR}\ns_mul_i32 s{sM0w1}, s{sW}, 3104\ns_mul_i32 s{sM0w2}, s{sW}, 3072")
    a(f"s_mul_i32 s62, s{sR}, {128*1152}\ns_mul_i32 s90, s{sG}, 144\ns_mul_i32 s3, s{sT}, 1152\ns_add_u32 s63, s90, s3\ns_add_u32 s63, s63, 1152")
    a.wait(lg=0)
    mksrd(a, SX, 32, 33, "s62"); mksrd(a, SW1, 42, 43, "s63")
    if c.stamps: a(f"v_writelane_b32 v{vSTAMP}, s{sTAG}, 0"); nst[0] = 1
    a(f"s_or_b32 s62, s2, s{sW}\ns_cbranch_scc1 .Lnotag")
    a(f"s_bitset1_b32 s{sTAG+1}, 31\nv_mov_b32 v4, s{sTAG}\nv_mov_b32 v5, s{sTAG+1}\nv_lshlrev_b32 v6, 3, v{fT}")
    a("global_store_dwordx2 v6, v[4:5], s[50:51] sc1", "nocount")
    a.label(".Lnotag")
    a(dma_x(0)); a(dma_w(c, 0))
    kn = lambda s: f"s_add_u32 s{sKX+s}, s{sKX+s-1}, 128\ns_cmp_eq_u32 s{sKX+s}, 1152\ns_cselect_b32 s{sKX+s}, 0, s{sKX+s}\ns_mul_i32 s{sKW+s}, s{sKX+s}, 1728"
    a(kn(1))
    if "x1" in c.o1: a(dma_x(1))
    if c.pst: stamp(a, c)
    mksrd(a, SM, 46, 47, nrec=1152)
    a(f"s_lshr_b32 s62, s{sW}, 1\ns_lshl_b32 s62, s62, 6\ns_and_b32 s63, s{sW}, 1\ns_lshl_b32 s63, s63, 4\ns_add_u32 s62, s62, s63\ns_lshl_b32 s88, s{sW}, 10\ns_add_u32 m0, s88, {KVS}")
    a(f"v_lshrrev_b32 v4, 1, v{vL}\nv_lshl_add_u32 v4, v4, 7, s{sKX}\nv_subrev_u32 v5, 1152, v4\nv_min_u32 v4, v4, v5\nv_and_b32 v5, 1, v0\nv_lshl_add_u32 v4, v5, 5, v4")
    a(f"buffer_load_dwordx4 v4, {srd(SM)}, s62 offen lds", "ga")
    a(f"s_lshr_b32 s62, s{sR}, 1\ns_mul_i32 s62, s62, {72*3456}\ns_add_u32 s62, s62, s90\ns_add_u32 s63, s3, 1152\ns_bitcmp1_b32 s{sR}, 0\ns_cselect_b32 s63, 0, s63\ns_add_u32 s62, s62, s63")
    a(f"s_and_b32 s63, s{sR}, s{sT}\ns_cselect_b32 s100, s42, s34\ns_cselect_b32 s101, s43, s35")
    mksrd(a, SPS, 100, 101, "s62", nrec=71*3456+144)
    a(f"s_mul_i32 s91, s{sW}, {SST}\ns_add_u32 s91, s91, {STG}")
    m3b, s3b = magic_div(3, 64)
    a(f"v_mul_u32_u24 v5, {m3b}, v{vL}\nv_lshrrev_b32 v5, {s3b}, v5\nv_mad_i32_i24 v4, v5, -3, v{vL}\nv_lshlrev_b32 v4, 4, v4\nv_min_u32 v4, 20, v4\nv_mad_u32_u24 v{vMD}, v5, 36, v4")
    if "pr" in c.o1: a(pr_dma()[:4])
    a(f"s_mul_i32 s62, s{sW}, 36\ns_add_u32 s62, s62, {64*3456-3072}\nv_mul_u32_u24 v5, 3456, v5\nv_add3_u32 v{vP4}, v4, v5, s62")
    if c.g3f:
        a(f"v_bfe_u32 v5, v0, 2, 3\nv_mul_u32_u24 v5, 3456, v5\nv_and_b32 v4, 3, v0\nv_mad_u32_u24 v4, v4, 36, v5\nv_add_u32 v4, {64*3456-3072+20}, v4\nv_cmp_le_u32 vcc, 32, v{vL}\nv_cndmask_b32 v{vP4}, v{vP4}, v4, vcc")
    if "pr" in c.o1: a(pr_dma()[4:])
    if c.xpf == 1: a(x_pf())
    if c.pst: stamp(a, c)
    for s in range(2, 9): a(kn(s))
    a(f"s_lshl_b32 s{sP}, s{sG}, 1\ns_add_u32 s{sP}, s{sP}, s{sT}\ns_lshl_b32 s{sL}, s{sR}, 4\ns_add_u32 s{sL}, s{sL}, s{sP}")
    a(f"s_bfe_u32 s63, s{sL}, 0x40001\ns_mul_i32 s63, s63, {36*1152}\ns_lshr_b32 s3, s{sL}, 5\ns_mul_i32 s3, s3, 144\ns_add_u32 s63, s63, s3")
    a(f"s_bitcmp1_b32 s{sL}, 0\ns_cselect_b32 s100, s38, s44\ns_cselect_b32 s101, s39, s45")
    mksrd(a, 84, 100, 101, "s63", nrec=35*1152+144)
    if c.wpf == 1: a("s_load_dword s19, s[84:85], 0")
    if c.wpf >= 2:
        a(f"s_mul_i32 s62, s{sW}, {9*1152}\ns_add_u32 s100, s84, s62\ns_addc_u32 s101, s85, 0")
        for r in range(9):
            for o in ((0, 64, 140) if c.wpf == 2 else (0, 140)): a(f"s_load_dword s19, s[100:101], {r*1152 + o}")
    m9, s9 = magic_div(9, 512)
    for i in range(2):
        a(f"v_add_u32 v4, {256*i}, v0\nv_mul_u32_u24 v5, {m9}, v4\nv_lshrrev_b32 v5, {s9}, v5\nv_mad_i32_i24 v4, v5, -9, v4\nv_lshlrev_b32 v4, 4, v4\nv_mul_u32_u24 v5, 1152, v5\nv_add_u32 v{vMD+1+i}, v4, v5")
    a(f"s_and_b32 s63, s{sW}, 1\ns_lshl_b32 s62, s{sP}, 1\ns_add_u32 s62, s62, s63\ns_mul_i32 s62, s62, 648")
    mksrd(a, SM, 36, 37, "s62", nrec=648)
    if c.wpf == 1: a(f"s_load_dword s19, s[{SM}:{SM+1}], 0")
    if c.wpf >= 2:
        for o in list(range(0, 640, 64 if c.wpf == 2 else 128)) + [644]: a(f"s_load_dword s19, s[{SM}:{SM+1}], {o}")
    if c.wol == 1: a(wo_dma()[2])
    a(f"v_lshrrev_b32 v4, 2, v{vL}\ns_add_u32 s62, s88, {KVS}\nv_lshl_add_u32 v{vMD+3}, v4, 1, s62")
    a(f"v_and_b32 v{fC}, 3, v0\nv_mul_u32_u24 v{vPAT}, 192, v4\nv_mad_u32_u24 v{vPAT}, v{fC}, 48, v{vPAT}\nv_add3_u32 v{vPAT}, v{vPAT}, s{sM0w1}, 40")
    mksrd(a, SWS, 52, 53, nrec=0x10000000)
    if c.tlb:
        a(f"v_min_u32 v5, {(1 << (24 - c.tlb)) - 1}, v{vL}\nv_lshlrev_b32 v5, {c.tlb}, v5")
        a(f"buffer_load_dword v96, v5, {srd(SWS)}, 0 offen", "pf")
        a(f"v_min_u32 v5, {2048*1152 - 4}, v5\nglobal_load_dword v97, v5, s[48:49]", "pf")
    a(f"s_mul_i32 s62, s{sG}, {4*PSEC}\ns_add_u32 s62, s62, {PKO - 2048}")
    mksrd(a, SPK, 52, 53, "s62", nrec=4*PSEC + 2048)
    if c.m44: a(f"s_lshr_b32 s3, s2, 3\ns_lshr_b32 s{sCB}, s3, 2\ns_and_b32 s{sRT}, s3, 3\ns_and_b32 s62, s2, 3\ns_lshl3_add_u32 s{sRT}, s62, s{sRT}\ns_and_b32 s62, s2, 4\ns_add_u32 s{sRT}, s{sRT}, s62")
    else: a(f"s_lshr_b32 s3, s2, 3\ns_lshr_b32 s{sCB}, s3, 2\ns_and_b32 s{sRT}, s3, 3\ns_and_b32 s62, s2, 1\ns_lshl_b32 s62, s62, 4\ns_add_u32 s{sRT}, s{sRT}, s62\ns_and_b32 s62, s2, 6\ns_lshl_b32 s62, s62, 1\ns_add_u32 s{sRT}, s{sRT}, s62")
    a(f"v_lshrrev_b32 v{fH}, 5, v{vL}\nv_and_b32 v{fKL}, 1, v{fKG}\nv_bfe_u32 v{fRR}, v0, 2, 2\nv_and_b32 v{fC0}, 1, v0\nv_bfe_u32 v{fC1}, v0, 1, 1\nv_and_b32 v{fQ}, 31, v0")
    a(f"v_lshlrev_b32 v{vL16}, 4, v{vL}")
    a(f"v_lshrrev_b32 v4, 1, v{fT}\nv_xor_b32 v4, v4, v{fKG}\nv_lshlrev_b32 v4, 4, v4\nv_lshl_add_u32 v4, v{fT}, 7, v4\nv_add_u32 v{vXR}, s{sM0x}, v4\nv_xor_b32 v{vXR+1}, 64, v{vXR}")
    lin(a, 4, [(fKL, 3104), (fH, 1536), (fRR, 192)])
    a(f"v_lshl_add_u32 v{vWA1}, v{fC}, 3, v4\nv_mad_u32_u24 v{vWT1}, v{fC}, 48, v4\nv_add_u32 v{vWT1}, 40, v{vWT1}")

def wo_dma(S=84, s88=88):
    out = []
    for i in range(2): out.append([I(f"s_add_u32 m0, s{s88}, {WOS + 4096*i}"), I(f"buffer_load_dwordx4 v{vMD+1+i}, {srd(S)}, 0 offen lds", "wos")])
    out.append([I(f"s_and_b32 s63, s88, 1024"), I(f"s_add_u32 m0, s63, {WPH}"), I(f"buffer_load_dwordx4 v{vMD}, {srd(SM)}, 0 offen lds", "wos")])
    return out

def setup1(a, c):
    lin(a, vPR1, [(fRR, 192), (fKG, 48), (fC, 8)], "s91")
    lin(a, 4, [(fRR, 192), (fKL, 1536), (fC, 48)], 40)
    if c.g3f:
        lin(a, 5, [(fRR, 48), (fC, 8)], 3072)
        lin(a, 6, [(fT, 16)], 3072 + 512 + 8)
        a(f"v_cmp_eq_u32 vcc, 0, v{fKL}\nv_cndmask_b32 v5, v6, v5, vcc\nv_lshlrev_b32 v7, 6, v{fKL}\nv_add_u32 v7, 192, v7")
        a(f"v_cmp_eq_u32 vcc, 0, v{fH}\nv_cndmask_b32 v4, v5, v4, vcc\nv_add_u32 v{vPR3}, s91, v4\nv_mov_b32 v6, 768\nv_cndmask_b32 v5, v7, v6, vcc\nv_add_u32 v{vPR3+1}, v{vPR3}, v5")
        a(f"s_mul_i32 s62, s89, 1152\nv_mov_b32 v4, s62\nv_mov_b32 v5, {9216-2304}\nv_cndmask_b32 v4, v5, v4, vcc")
        lin(a, 4, [(4, 1), (fKL, 2304), (fRR, 32), (fC, 16)], 992)
        a(f"s_lshl_b32 s62, s{sW}, 8\ns_add_u32 s62, s62, 9216\nv_lshl_add_u32 v5, v{fT}, 4, s62")
        a(f"v_cmp_eq_u32 vcc, 2, v{fKG}\nv_cndmask_b32 v{vPS3}, v4, v5, vcc")
    else:
        lin(a, 5, [(fRR, 48)], 3072)
        a(f"v_lshlrev_b32 v6, 3, v{fC}\nv_cmp_eq_u32 vcc, 0, v{fKL}\nv_cndmask_b32 v6, 40, v6, vcc\nv_add_u32 v5, v5, v6")
        a(f"v_cmp_eq_u32 vcc, 0, v{fH}\nv_cndmask_b32 v4, v5, v4, vcc\nv_add_u32 v{vPR3}, s91, v4\nv_mov_b32 v5, 192\nv_mov_b32 v6, 768\nv_cndmask_b32 v5, v5, v6, vcc\nv_add_u32 v{vPR3+1}, v{vPR3}, v5")
        a(f"s_mul_i32 s62, s89, 1152\ns_add_u32 s62, s62, 992")
        lin(a, 4, [(fKL, 2304), (fRR, 32), (fC, 16)], "s62")
        a(f"s_lshl_b32 s62, s{sW}, 8\ns_add_u32 s62, s62, 9216\nv_lshl_add_u32 v5, v{fT}, 4, s62\ns_lshl_b32 s62, s{sW}, 5\ns_add_u32 s62, s62, {9216+992}\nv_lshl_add_u32 v6, v{fC}, 4, s62")
        a(f"v_cndmask_b32 v4, v5, v4, vcc\nv_cmp_eq_u32 vcc, 3, v{fKG}\nv_cndmask_b32 v{vPS3}, v4, v6, vcc")
    a(f"s_and_b32 s62, s{sR}, 1\ns_lshl_b32 s62, s62, 1\ns_lshl_b32 s63, s{sG}, 2\ns_add_u32 s62, s62, s63\ns_add_u32 s62, s62, s{sT}\ns_mul_i32 s62, s62, {PSEC}\ns_lshr_b32 s63, s{sR}, 1\ns_mul_i32 s63, s63, {9*1152}\ns_add_u32 s62, s62, s63\ns_add_u32 s82, s62, {PKO}")
    a(f"s_mul_i32 s63, s89, 1152\ns_add_u32 s83, s63, s82")
    lin(a, vWP2, [(fH, 1024), (fRR, 48)], WPH)
    lin(a, vWP, [(fKL, 16), (fC1, 8), (vWP2, 1)])
    a(f"v_add_u32 v{vWP2}, 40, v{vWP2}\nv_bfe_u32 v4, v0, 2, 1\nv_cmp_eq_u32 vcc, v4, v{fH}\nv_cndmask_b32 v{vWM}, 0, -1, vcc")
    lin(a, 4, [(fH, 18*144), (fKL, 4*144), (fRR, 144)], WOS)
    a(f"v_bfe_u32 v6, v0, 2, 1\nv_bfe_u32 v7, v0, 3, 1")
    lin(a, 5, [(7, 18*144), (6, 144)], WOS + 16*144)
    a(f"s_lshr_b32 s62, s{sW}, 1\ns_lshl_b32 s62, s62, 6\ns_and_b32 s3, s{sW}, 1\ns_lshl_b32 s63, s3, 3\ns_add_u32 s62, s62, s63")
    a(f"v_lshl_add_u32 v{vRP}, v{fC}, 4, v4\nv_add_u32 v{vRP}, s62, v{vRP}")
    a(f"v_lshlrev_b32 v6, 3, v{fC0}\nv_add_u32 v6, 128, v6\nv_and_b32 v7, 7, v0")
    a(f"s_cmp_ge_u32 s{sW}, 2\ns_cbranch_scc1 .Lrp2")
    a(f"v_add_u32 v{vRP+1}, v4, v6\nv_lshl_add_u32 v7, v{fKG}, 3, v7\nv_lshlrev_b32 v7, 4, v7\nv_add_u32 v{vRP+2}, 4096, v7\ns_branch .Lrp4")
    a.label(".Lrp2")
    a(f"s_cmp_eq_u32 s{sW}, 3\ns_cbranch_scc1 .Lrp3")
    lin(a, vRP+1, [(fH, 64), (fC, 16), (fKL, 8), (5, 1)])
    a(f"v_lshlrev_b32 v{vRP+2}, 3, v{vL}\nv_add_u32 v{vRP+2}, 4608, v{vRP+2}\ns_branch .Lrp4")
    a.label(".Lrp3")
    a(f"v_add_u32 v{vRP+1}, v5, v6\nv_lshlrev_b32 v{vRP+2}, 3, v{fT}\nv_add_u32 v{vRP+2}, 5120, v{vRP+2}")
    a.label(".Lrp4")

def setup2(a, c):
    a(f"s_lshl_b32 s62, s{sT}, 9\ns_add_u32 s62, s62, 2048")
    lin(a, vPK, [(fKG, 1152), (fT, 16)], "s62")
    a(f"v_subrev_u32 v{vPK+1}, 768, v{vPK}\ns_and_b32 s63, s{sW}, 1\ns_lshl_b32 s63, s63, 8\ns_add_u32 s63, s63, {PSEC - 2048}\nv_add_u32 v{vPS}, s63, v{vPK}")
    a(f"s_lshl_b32 s62, s{sT}, 6\ns_add_u32 s62, s62, 1024")
    lin(a, vPK+2, [(fKG, 1152), (fRR, PSEC), (fC, 16)], "s62")
    a(f"s_lshr_b32 s62, s{sKX}, 6\ns_add_u32 s63, s62, s{sW}\ns_mul_i32 s63, s63, 4608\ns_lshr_b32 s3, s{sW}, 1\ns_mul_i32 s3, s3, 3\ns_add_u32 s62, s62, s3\ns_mul_i32 s62, s62, 4608")
    for j in range(5):
        if j: a(f"s_add_u32 s63, s{sKA+j-1}, {4*4608}")
        a(f"s_sub_u32 s3, s63, {PSEC}\ns_cselect_b32 s{sKA+j}, s63, s3")
    for j in range(9):
        if j: a(f"s_add_u32 s62, s62, {4608*(4 if j % 3 == 0 else 1)}")
        a(f"s_sub_u32 s3, s62, {PSEC}\ns_cselect_b32 s62, s62, s3\ns_add_u32 s{sKP+j}, s62, {2048 - 1024*(j % 3)}")
    a(f"s_mov_b32 s{sLE}, 0x3fb8aa3b\ns_mov_b32 s{sQS}, 0x3eae1a93")
    a(f"v_lshlrev_b32 v4, 2, v{fH}\nv_xor_b32 v4, v4, v{fT}")
    lin(a, vSA, [(fH, 512), (4, 16), (fKL, 8)], "s91")
    lin(a, vST, [(fKG, 1280), (fT, 8)], "s91"); a(f"v_add_u32 v{vST}, 1024, v{vST}")
    a(f"v_add_u32 v{vSL}, s91, v{vL16}")
    lin(a, vK2, [(fH, KV_PAIR - 2560), (vL16, 1)])
    lin(a, vBL, [(fH, 1280), (fQ, 16)], "s91")
    a(f"v_xor_b32 v{vBH}, 64, v{vBL}\nv_add_u32 v{vBH}, 512, v{vBH}")
    lin(a, vBT, [(fH, 1280), (fQ, 8)], "s91"); a(f"v_add_u32 v{vBT}, 1024, v{vBT}")
    a(f"s_lshl_b32 s62, s{sW}, 8\ns_add_u32 s62, s62, {WPH + 2048}")
    lin(a, vBT2, [(fH, 1024), (fQ, 8)], "s62")
    a(f"s_add_u32 s3, s91, 1024\nv_mov_b32 v4, s3\nv_mov_b32 v5, s62\nv_cmp_eq_u32 vcc, 0, v{fH}\nv_cndmask_b32 v4, v5, v4, vcc\nv_mov_b32 v5, 2048\nv_mov_b32 v6, 2560\nv_cndmask_b32 v5, v5, v6, vcc")
    a(f"v_mad_u32_u24 v4, v5, v{fKL}, v4\nv_lshl_add_u32 v{vTW}, v{fT}, 3, v4\nv_lshrrev_b32 v5, 1, v5\nv_add_u32 v{vTW+1}, v{vTW}, v5")
    a(f"s_add_u32 s62, s62, 2048\nv_lshl_add_u32 v4, v{fQ}, 3, s62\nv_mov_b32 v5, {WPH + 896}\nv_cndmask_b32 v{vQT}, v5, v4, vcc")
    a(f"v_mov_b32 v4, 0x3f803f80\nv_cndmask_b32 v{CM+2}, 0, v4, vcc\nv_mov_b32 v{vONE}, 0x3f80")
    for r in (CM+1, CM+3, CM+4, CM+5): a(f"v_mov_b32 v{r}, 0")
    a(f"v_mov_b32 v4, s{sQS}\nv_cmp_eq_u32 vcc, 3, v{fKG}\nv_cndmask_b32 v{vSC}, 1.0, v4, vcc")
    a(f"v_lshl_add_u32 v4, v{fH}, 2, v{fRR}\nv_lshlrev_b32 v5, 2, v{fC1}\nv_xor_b32 v5, v5, v4")
    lin(a, 6, [(fC1, 512), (5, 16), (fC0, 8)])
    lin(a, 7, [(4, 8)], 1024)
    a(f"v_lshlrev_b32 v5, 2, v{fC0}\nv_xor_b32 v5, v5, v4")
    lin(a, 8, [(fC0, 512), (5, 16), (fC1, 8)])
    a(f"s_mul_i32 s62, s{sW}, 2560\ns_add_u32 s62, s62, {KVR}\ns_add_u32 s3, s62, 30720")
    a(f"v_cmp_eq_u32 vcc, 0, v{fKL}\nv_cndmask_b32 v6, v7, v6, vcc\nv_cndmask_b32 v{AD}, v7, v8, vcc\nv_mov_b32 v4, 64\nv_mov_b32 v5, 128\nv_cndmask_b32 v7, v4, v5, vcc")
    a(f"v_add_u32 v{vTR}, s3, v6")
    a(f"v_lshlrev_b32 v4, 2, v{fH}\nv_xor_b32 v4, v4, v{fQ}")
    lin(a, vKL, [(fH, 512), (4, 16)], "s62")
    lin(a, vKT, [(fQ, 8)], "s62"); a(f"v_add_u32 v{vKT}, 1024, v{vKT}")
    a(f"s_sub_u32 s62, s91, s62\nv_add_u32 v{vQM}, s62, v{vKL}")
    a(f"s_and_b32 s62, s{sW}, 1\ns_mul_i32 s62, s62, 1280\ns_lshr_b32 s3, s{sW}, 1\ns_mul_i32 s3, s3, 5120\ns_add_u32 s3, s62, s3\ns_add_u32 s3, s3, {STG}\nv_add_u32 v{AD}, s3, v{AD}")
    a(f"s_add_u32 s62, s62, {STG + 2560}\nv_add_u32 v{AD+4}, s62, v6")
    for i in range(1, 4): a(f"v_add_u32 v{vTR+i}, v{vTR+i-1}, v7\nv_add_u32 v{AD+i}, v{AD+i-1}, v7\nv_add_u32 v{AD+4+i}, v{AD+3+i}, v7")
    a(f"v_bfe_u32 v4, v0, 2, 3\ns_lshl_b32 s62, s{sW}, 3\nv_add_u32 v4, s62, v4\nv_lshrrev_b32 v5, 1, v4\nv_and_b32 v6, 1, v4\nv_lshl_add_u32 v5, v5, 4, v6\ns_lshl_b32 s62, s{sG}, 1\nv_add_u32 v5, s62, v5")
    a(f"s_lshl_b32 s63, s{sCB}, 5\nv_add_u32 v4, s63, v4\nv_lshlrev_b32 v6, 7, v{fC}\nv_lshl_add_u32 v{vFO}, v4, 9, v6\nv_lshl_add_u32 v{vFW}, v5, 9, v6")
    a(f"s_and_b32 s63, s{sW}, 1\ns_mul_i32 s63, s63, 6\ns_lshl_b32 s3, s{sR}, 2\ns_add_u32 s63, s63, s3\ns_sub_u32 s63, s63, 8\nv_min_u32 v4, 5, v{vL}\nv_add_u32 v4, s63, v4\nv_max_i32 v4, 0, v4")
    a(f"s_lshr_b32 s63, s{sW}, 1\ns_add_u32 s62, s62, s63\nv_lshrrev_b32 v5, 2, v4\nv_lshl_add_u32 v5, v5, 4, s62\nv_and_b32 v4, 3, v4\nv_lshlrev_b32 v4, 7, v4\nv_lshl_add_u32 v{vF1}, v5, 9, v4")
    a(f"s_lshl2_add_u32 s62, s{sL}, s{sW}\ns_lshl_b32 s62, s62, 7\nv_lshl_add_u32 v{vL}, v{fT}, {3 if c.fl else 31}, s62")
    if not c.fl: a(f"v_mov_b32 v{vL}, s62")
    a(f"s_lshl_b32 s62, s{sP}, 2\ns_add_u32 s62, s62, s{sW}\nv_lshl_add_u32 v4, v{fT}, 6, s62\nv_lshlrev_b32 v{vF2}, 7, v4")
    a(f"s_lshr_b32 s62, s{sRT}, 1\ns_lshl_b32 s62, s62, 6\ns_lshl_b32 s3, s{sW}, 4\ns_add_u32 s62, s62, s3\ns_and_b32 s3, s{sRT}, 1\ns_lshl_b32 s3, s3, 1\ns_add_u32 s62, s62, s3")
    a(f"v_bfe_u32 v4, v0, 1, 2\nv_lshl_add_u32 v4, v4, 2, v{fC0}\nv_add_u32 v4, s62, v4\nv_lshlrev_b32 v{vF3}, 7, v4")
    a(f"s_lshl_b32 s62, s{sCB}, 2\ns_add_u32 s62, s62, s{sW}\ns_mul_i32 s100, s62, {8*WOBLK}\ns_add_u32 s100, s100, {WOO}")
    if c.s2:
        a(f"v_and_b32 v{VT4}, 7, v0\nv_lshl_add_u32 v{V4}, v{fKL}, 3, v{VT4}\nv_mul_u32_u24 v{vWM2}, {2*WOBLK}, v{fH}\nv_lshl_add_u32 v{V4}, v{V4}, 4, v{vWM2}\nv_add_u32 v{V4}, 4096, v{V4}\nv_lshl_add_u32 v{vWM2}, v{fQ}, 4, v{vWM2}")
    else: a(f"v_and_b32 v{VT4}, 7, v0\nv_lshl_add_u32 v{V4}, v{fKG}, 3, v{VT4}\nv_lshlrev_b32 v{V4}, 4, v{V4}\nv_add_u32 v{V4}, 4096, v{V4}")
    a(f"v_mul_u32_u24 v{VT}, {2*WOBLK}, v{fKG}\nv_add_u32 v{VT}, 4608, v{VT}\nv_lshl_add_u32 v{VT4}, v{VT4}, 3, v{VT}\nv_lshl_add_u32 v{VT}, v{fT}, 3, v{VT}")
    a(f"v_mul_u32_u24 v{vOT}, 36864, v{fKL}\nv_lshl_add_u32 v{vOT}, v{fT}, 4, v{vOT}\nv_lshl_add_u32 v{vOA}, v{fH}, 8, v{vOT}")
    a(f"s_lshl_b32 s62, s{sR}, 2\ns_add_u32 s62, s62, s{sW}\ns_mul_i32 s62, s62, {2*36864}\ns_lshr_b32 s63, s{sP}, 2\ns_mul_i32 s63, s63, 9216\ns_add_u32 s62, s62, s63\ns_add_u32 s62, s62, {OPO}")
    a(f"s_and_b32 s63, s{sP}, 3\ns_lshl_b32 s3, s63, {9 if c.s2 else 11}\ns_add_u32 s{sOA}, s62, s3\ns_lshl_b32 s3, s63, 8\ns_add_u32 s{sOT}, s62, s3\ns_add_u32 s{sOT}, s{sOT}, 8192")

def setup3(a, c):
    if c.wol == 1: a(f"s_mov_b64 s[{SX}:{SX+1}], s[84:85]\ns_mov_b32 s{SX+2}, {35*1152+144}\ns_mov_b32 s{SW1}, s88")
    a(f"v_mul_u32_u24 v{vKS+1}, 320, v{fH}\nv_lshl_add_u32 v{vKS+1}, v{fQ}, 4, v{vKS+1}\nv_lshlrev_b32 v{vKS}, 2, v{fQ}")
    a(f"v_mad_i32_i24 v12, v{fH}, -4, v{fQ}\nv_mov_b32 v13, 0xffff")
    for r in range(16): a(f"v_cmp_le_i32 s[{64+2*r}:{65+2*r}], {8*(r>>2) + (r&3)}, v12")
    for j in range(8): a(f"v_cndmask_b32 v{PM+j}, 0, v13, s[{64+4*j}:{65+4*j}]")
    for j in range(8): a(f"v_cndmask_b32 v{PM+j}, v{PM+j}, -1, s[{66+4*j}:{67+4*j}]")

def producer(c):
    q = Seq(); T = AX
    q.wait(vm="pr")
    for k in range(2):
        for j in range(2): q(f"ds_read_b64_tr_b16 {vr(T + 4*k + 2*j, 2)}, v{vPR1} offset:{k*1536 + j*768}")
    for j in range(2): q(f"ds_read_b64_tr_b16 {vr(T + 8 + 2*j, 2)}, v{vPR3+j}")
    g = Seq()
    for k in range(2): g(f"buffer_store_dwordx4 {vr(T + 4*k, 4)}, v{vL16}, {srd(SWS)}, s83 offen offset:{2304*k} sc1", "stp")
    if c.g3f: g(f"s_cmp_eq_u32 s{sW}, 0\ns_mov_b32 s62, 0xffff\ns_cselect_b32 exec_hi, 0xccccffff, s62\ns_mov_b32 exec_lo, 0xcccccccc")
    else: g("s_mov_b32 exec_lo, 0xcccccccc\ns_mov_b32 exec_hi, 0xcffff")
    g(f"buffer_store_dwordx4 {vr(T+8, 4)}, v{vPS3}, {srd(SWS)}, s82 offen sc1", "stp")
    g("s_mov_b64 exec, -1")
    return q.l, g.l
def wo_repack(T=AX, s88=88):
    q = Seq()
    q(f"ds_read_b64_tr_b16 {vr(T+12, 2)}, v{vRP}\nds_read_b64_tr_b16 {vr(T+14, 2)}, v{vRP} offset:1152\nds_read_b64_tr_b16 {vr(T+16, 2)}, v{vRP+1}\nds_read_b64_tr_b16 {vr(T+18, 2)}, v{vRP+1} offset:1152", "rp")
    r = Seq()
    r(f"s_mul_i32 s63, s{sL}, {WOBLK}\ns_add_u32 s63, s63, {WOO}\ns_add_u32 s3, s{s88}, s63")
    r(f"buffer_store_dwordx4 {vr(T+12, 4)}, v{vL16}, {srd(SWS)}, s3 offen sc1", "stw")
    r.wait(lg="rp")
    r(f"s_cmp_ge_u32 s{sW}, 2\ns_cbranch_scc1 .Lw2\ns_cmp_eq_u32 s{sW}, 0\ns_cselect_b32 exec_lo, -1, 0\ns_cselect_b32 exec_hi, 0, -1")
    r(f"buffer_store_dwordx4 {vr(T+16, 4)}, v{vRP+2}, {srd(SWS)}, s63 offen sc1", "nocount")
    r("s_mov_b64 exec, -1\ns_branch .Lw3")
    r.label(".Lw2")
    r(f"buffer_store_dwordx2 {vr(T+16, 2)}, v{vRP+2}, {srd(SWS)}, s63 offen sc1", "stw")
    r.label(".Lw3")
    r("s_nop 1")
    return q.l, r.l
def wa_load():
    q = Seq()
    for i in range(5):
        q(f"ds_read_b64_tr_b16 {vr(WA1 + 2*i, 2)}, v{vWP} offset:{192*i}\nds_read_b64_tr_b16 {vr(WA2 + 2*i, 2)}, v{vWP2} offset:{192*i}")
    for r in (WA1 + 10, WA1 + 11, WA2 + 10, WA2 + 11): q(f"v_mov_b32 v{r}, 0")
    for i in range(10): q(f"v_and_b32 v{WA1+i}, v{vWM}, v{WA1+i}\nv_and_b32 v{WA2+i}, v{vWM}, v{WA2+i}")
    return q.l

def put(mf, items):
    out = []
    for g, m in enumerate(mf):
        out.append(m)
        for gg, it in items:
            if gg == g or (g == len(mf) - 1 and gg > g):
                out.extend(it if isinstance(it, list) else [it])
    return out
def grp(q): return [q[:2]] + q[2:]

def poll_issue(voff, base, name):
    q = Seq()
    q(f"s_mov_b32 s62, {base}")
    q(f"buffer_load_dwordx2 {vr(vPD, 2)}, v{voff}, {srd(SWS)}, s62 offen sc1", name)
    return q.l
def poll_check(voff, base, name, slowflag=None):
    q = Seq()
    q.wait(vm=name)
    q(f"v_cmp_ne_u64 vcc, s[{sTAG}:{sTAG+1}], {vr(vPD, 2)}\ns_cbranch_vccz .Lq{name}")
    if slowflag is not None:
        q(f"s_waitcnt vmcnt(0)\ns_mov_b32 s62, {slowflag}")
        q(f"buffer_store_dwordx2 {vr(vTG, 2)}, v{vL}, {srd(SWS)}, s62 offen sc1", "nocount")
    q(f"s_mov_b32 s62, {base}\ns_mov_b32 s63, 300000")
    q.label(f".Lp{name}")
    q(f"buffer_load_dwordx2 {vr(vPD, 2)}, v{voff}, {srd(SWS)}, s62 offen sc1", "nocount")
    q("s_waitcnt vmcnt(0)")
    q(f"v_cmp_ne_u64 vcc, s[{sTAG}:{sTAG+1}], {vr(vPD, 2)}")
    q(f"s_sub_u32 s63, s63, 1\ns_cbranch_scc1 .Lend\ns_cbranch_vccnz .Lp{name}")
    q.label(f".Lq{name}")
    return q.l
def flag_store(base, sidx=None, line=None):
    q = Seq()
    q(f"s_mov_b32 s62, {base}")
    q(f"buffer_store_dwordx2 {vr(vTG, 2)}, v{vL}, {srd(SWS)}, s62 offen sc1", "flag")
    return q.l
def tag_issue():
    q = Seq()
    q(f"v_mov_b32 v{vTG}, 0")
    q(f"global_load_dwordx2 {vr(vTG, 2)}, v{vTG}, s[50:51] sc1", "tag")
    return q.l
def tag_check():
    q = Seq()
    q.wait(vm="tag")
    q(f"v_readfirstlane_b32 s{sTAG+1}, v{vTG+1}\ns_mov_b32 s63, 300000\ns_cmp_lg_u32 s{sTAG+1}, 0\ns_cbranch_scc1 .Ltag2")
    q.label(".Ltag")
    q(f"v_mov_b32 v{vTG}, 0")
    q(f"global_load_dwordx2 {vr(vTG, 2)}, v{vTG}, s[50:51] sc1", "nocount")
    q("s_waitcnt vmcnt(0)")
    q(f"v_readfirstlane_b32 s{sTAG+1}, v{vTG+1}")
    q(f"s_sub_u32 s63, s63, 1\ns_cbranch_scc1 .Lend\ns_cmp_eq_u32 s{sTAG+1}, 0\ns_cbranch_scc1 .Ltag")
    q.label(".Ltag2")
    q(f"v_readfirstlane_b32 s{sTAG}, v{vTG}")
    return q.l
```

```python
import re
from pgs import add_stubs, warm
from g3a import *
import g3a

def g2_half(m, hf):
    g = m - 9
    if g < 5:
        ks = [4*g + 2*hf, 4*g + 2*hf + 1] if g < 4 else [16 + hf]
        return [((k - 4*g)*3 + t, AX + 8*t, k) for k in ks for t in range(3)]
    sec, j = divmod(g - 5, 3); A = AX if sec == 1 else AY
    return [((2*hf + h)*3 + i, A + 8*h, 6*j + 3*hf + i) for i in range(3) for h in range(2)]
def g2_rd(m, hf):
    return [I(f"ds_read_b128 {vr(FR + 24*hf + 4*q, 4)}, v{vL16} offset:{(m % NW)*WSL + f*1024}", f"f{m}_{hf}") for q, (f, A, k) in enumerate(g2_half(m, hf))]
def g2_mm(m, hf):
    out = []
    for q, (f, A, k) in enumerate(g2_half(m, hf)):
        for tt in range(2):
            d = vr(A + 4*tt, 4)
            out.append(I(f"{M16} {d}, {vr(FR + 24*hf + 4*q, 4)}, {ar((k*2 + tt)*4, 4)}, {d if k else 0}"))
    return out

def wsched(c):
    d = {}; m = 3
    for n in range(23):
        for h in range(2):
            l = []
            while m < 23 and m <= n - 1 + h + (NW if (n, h) <= (9, 0) else c.dep) and len(l) < (1 if m < 9 or m > 10 else 2):
                if m < 9 and (h == 0 or m > n + 3): break
                if m >= 9 and ((n, h) < (c.s_pw, 1) or c.exp & 8): break
                l.append(m); m += 1
            d[(n, h)] = l
    return d

def sep(d):
    n = 4 if len(d) == 5 and "lds" in d[4].t else 3
    return [[d[0]] + (d[1+i: 2+i] if i < n - 1 else d[1+i:]) for i in range(n)]
def pass1(a, c, extra):
    ws = wsched(c)
    PX = [int(x, 36) for x in c.px]; PW = [int(x, 36) for x in c.pw]; PW2 = [int(x, 36) for x in c.pw2]
    for s in range(9):
        dm = []
        if s + 3 < 9:
            dm += list(zip(PX, sep(dma_x(s + 3)))) + list(zip(PW, sep(dma_w(c, s + 3))))
        g = [[m for m in ws[(s, h)] if m >= 9] for h in range(2)]
        for h in range(2):
            for i, m in enumerate(g[h]):
                dm += [(10*h + p, x) for p, x in zip(PW2[:3] if len(g[h]) == 1 else PW2[3+3*i: 6+3*i], sep(dma_w(c, m)))]
        a.wait(lg=[f"f{s}_0", f"xr{s}"])
        it = [(k // 2, r) for k, r in enumerate(rd_w(s, 1))]
        it += [x for x in dm if x[0] < 10]
        it.append((c.pv, [W(vm=[f"w{s+1}", f"x{s+1}"])] + ([patch(s + 1)] if s + 1 < 9 else [])))
        it += extra.get(2*s, [])
        it.sort(key=lambda x: x[0])
        a(put(mm(s, 0), it))
        a(extra.get(("pre", s), []))
        a.wait(lg=0)
        a("s_barrier")
        if c.stp & 1: stamp(a, c)
        if s < 8:
            fc = rd_w(s + 1, 0)
            fc = fc[:4] + rd_x(s + 1)[:2] + fc[4:] + rd_x(s + 1)[2:]
        else: fc = g2_rd(9, 0)
        it = [(k // 2, r) for k, r in enumerate(fc)]
        it += [(p - 10, x) for p, x in dm if p >= 10]
        it += extra.get(2*s + 1, [])
        it.sort(key=lambda x: x[0])
        a(put(mm(s, 1), it))

UPK = [""]
def unpk(t, key):
    if key not in UPK[0]: return t
    out = []
    for l in t.split("\n"):
        m = re.match(r"v_pk_(mul|add|fma)_f32 (.*)", l)
        if not m: out.append(l); continue
        op = m.group(1); rest = m.group(2)
        ops = re.findall(r"([vs])\[(\d+):\d+\]", rest)
        g = lambda k, d: [int(x) for x in re.search(k + r":\[([\d,]+)\]", rest).group(1).split(",")] if k + ":" in rest else d
        n = len(ops) - 1
        hi = g("op_sel_hi", [1]*n); ng = g("neg_lo", [0]*n); assert ng == g("neg_hi", [0]*n) and "op_sel:" not in rest
        for h in range(2):
            src = [("-" if ng[k] else "") + ops[1+k][0] + str(int(ops[1+k][1]) + (h if hi[k] else 0)) for k in range(n)]
            if op != "fma" and src[1][0] == "s": src = src[::-1]
            out.append(f"v_{op}_f32 v{int(ops[0][1]) + h}, " + ", ".join(src))
    return "\n".join(out)

def epi1():
    q = Seq()
    q(f"v_and_b32 v{vG1}, 16, v0\nv_cmp_eq_u32 vcc, 0, v{vG1}\ns_mul_i32 s63, s{sT}, 0x3f80")
    for h in range(5):
        for tt in range(2):
            d = ACC + (h*2 + tt)*4
            if h < 4:
                q(f"v_cvt_pk_bf16_f32 v{d}, v{d}, v{d+1}\nv_cvt_pk_bf16_f32 v{d+1}, v{d+2}, v{d+3}")
                q(f"ds_write_b64 v{vSA}, {vr(d, 2)} offset:{h*1280 + tt*256}")
            else:
                q(f"v_cvt_pk_bf16_f32 v{d+2}, v{d+2}, v{d+3}\nv_mov_b32 v{d+3}, s63")
                q(f"ds_write_b64 v{vST}, {vr(d+2, 2)} offset:{tt*128}")
    for i in range(5): q(f"ds_read_b128 {vr(ACC+4*i, 4)}, v{vSL} offset:{i*1024}")
    q(f"v_cndmask_b32 v{vG1}, v{ACC+36}, v{ACC+32}, vcc\nv_mul_f32 v{vG1}, 0xbfb8aa3b, v{vG1}\nv_exp_f32 v{vG1}, v{vG1}\nv_add_f32 v{vG1}, 1.0, v{vG1}\nv_rcp_f32 v{vG0}, v{vG1}\nv_sub_f32 v{vG1}, 1.0, v{vG0}")
    q(f"s_mul_i32 s63, s{sT}, {KV_KIND}\ns_mul_i32 s3, s{sG}, {2*KV_PAIR}\ns_add_u32 s63, s63, s3\ns_lshl_b32 s3, s{sR}, 2\ns_add_u32 s3, s3, s{sW}\ns_mul_i32 s3, s3, 2560\ns_add_u32 s63, s63, s3\ns_add_u32 s63, s63, {KVO}\ns_add_u32 s3, s63, {KV_PAIR+512}")
    for i in range(5):
        q(f"buffer_store_dwordx4 {vr(ACC+4*i, 4)}, v{vK2 if i == 2 else vL16}, {srd(SWS)}, {'s63' if i < 3 else 's3'} offen offset:{(i % 3)*1024} sc1", "st1")
    return q.l

def sout(A, blk, scale=False):
    q = Seq()
    for h in range(2):
        for tt in range(2):
            d = A + 8*h + 4*tt
            if scale:
                for i in (0, 2): q(unpk(f"v_pk_mul_f32 {vr(d+i, 2)}, {vr(d+i, 2)}, s[{sQS}:{sQS+1}] op_sel_hi:[1,0]", "s"))
            q(f"v_cvt_pk_bf16_f32 v{d}, v{d}, v{d+1}\nv_cvt_pk_bf16_f32 v{d+1}, v{d+2}, v{d+3}")
            q(f"ds_write_b64 v{vSA}, {vr(d, 2)} offset:{(blk + h)*1280 + tt*256}")
    return q.l
def tails():
    q = Seq()
    for tt in range(2):
        for h in range(2):
            d = AX + 16 + 4*tt + 2*h
            q(unpk(f"v_pk_mul_f32 {vr(d, 2)}, {vr(d, 2)}, {vr(vSC, 2)} op_sel_hi:[1,0]\nv_cvt_pk_bf16_f32 v{d}, v{d}, v{d+1}", "t"))
            q(f"ds_write2_b32 v{vTW+h}, v{d}, v{vONE} offset0:{32*tt} offset1:{32*tt+1}")
    return q.l

D2, D1, EM, PT = 160, 176, 192, 210
def phi(vT, kf, ka, km):
    BO = EM; T = PT
    q = Seq()
    q(f"ds_read_b128 {vr(BO, 4)}, v{vBL}\nds_read_b128 {vr(BO+4, 4)}, v{vBH}\nds_read_b64 {vr(BO+8, 2)}, v{vT}")
    q(f"v_mov_b32 v{BO+10}, 0\nv_mov_b32 v{BO+11}, 0")
    rd = q.l
    q = Seq()
    for s in range(3):
        q(f"{M32} {vr(D1, 16)}, {vr(WA1+4*s, 4)}, {vr(BO+4*s, 4)}, {vr(D1, 16) if s else 0}")
        q(f"{M32} {vr(D2, 16)}, {vr(WA2+4*s, 4)}, {vr(BO+4*s, 4)}, {vr(D2, 16) if s else 0}")
    mf = q.l
    q = Seq()
    P = [D1 + i for i in range(16)] + [D2 + 2, D2 + 3]
    E = [EM + i for i in range(18)]
    U = D2
    q(f"v_max3_f32 v{T}, v{P[0]}, v{P[1]}, v{P[2]}\nv_min3_f32 v{T+1}, v{P[0]}, v{P[1]}, v{P[2]}")
    for i in range(3, 17, 2): q(f"v_max3_f32 v{T}, v{T}, v{P[i]}, v{P[i+1]}\nv_min3_f32 v{T+1}, v{T+1}, v{P[i]}, v{P[i+1]}")
    q(f"v_max_f32 v{T}, v{T}, v{P[17]}\nv_min_f32 v{T+1}, v{T+1}, v{P[17]}")
    q(f"v_mul_f32 v{U}, s{sLE}, v{T+1}\nv_mul_f32 v{T}, s{sLE}, v{T}")
    for i in range(0, 18, 2):
        q(unpk(f"v_pk_fma_f32 {vr(E[i], 2)}, {vr(P[i], 2)}, s[{sLE}:{sLE+1}], {vr(U, 2)} op_sel_hi:[1,0,0] neg_lo:[1,0,0] neg_hi:[1,0,0]", kf))
        q(unpk(f"v_pk_fma_f32 {vr(P[i], 2)}, {vr(P[i], 2)}, s[{sLE}:{sLE+1}], {vr(T, 2)} op_sel_hi:[1,0,0] neg_lo:[0,0,1] neg_hi:[0,0,1]", kf))
    for R, S in ((E, T + 2), (P, T + 4)):
        for i in range(0, 18, 2):
            q(f"v_exp_f32 v{R[i]}, v{R[i]}\nv_exp_f32 v{R[i+1]}, v{R[i+1]}")
            if i == 4: q(unpk(f"v_pk_add_f32 {vr(S, 2)}, {vr(R[0], 2)}, {vr(R[2], 2)}", ka))
            if i > 4: q(unpk(f"v_pk_add_f32 {vr(S, 2)}, {vr(S, 2)}, {vr(R[i-2], 2)}", ka))
    for R, S in ((E, T + 2), (P, T + 4)):
        q(unpk(f"v_pk_add_f32 {vr(S, 2)}, {vr(S, 2)}, {vr(R[16], 2)}", ka))
    for S in (T + 2, T + 4): q(f"v_add_f32 v{S}, v{S}, v{S+1}")
    for S in (T + 2, T + 4): q(f"v_rcp_f32 v{S}, v{S}")
    for sg, R, S in ((1, E, T + 2), (0, P, T + 4)):
        for i in range(9):
            q(unpk(f"v_pk_mul_f32 {vr(R[2*i], 2)}, {vr(R[2*i], 2)}, {vr(S, 2)} op_sel_hi:[1,0]\nv_cvt_pk_bf16_f32 v{R[i]}, v{R[2*i]}, v{R[2*i+1]}", km))
            if i == 3: q(f"ds_write_b128 v{vBL}, {vr(R[0], 4)} offset:{sg*5120}")
            if i == 7: q(f"ds_write_b128 v{vBH}, {vr(R[4], 4)} offset:{sg*5120}")
            if i == 8: q(f"ds_write_b32 v{vBT}, v{R[8]} offset:{sg*5120}")
    return rd, mf, q.l

def kvpart():
    D = D1
    rd = []; mf = []
    for b in range(4):
        for m in range(2):
            o = 144 + 8*(b*2 + m)
            for j in range(2):
                rd.append(I(f"ds_read_b64_tr_b16 {ar(o + 2*j, 2)}, v{AD + 2*m + j} offset:{b*SST}"))
                rd.append(I(f"ds_read_b64_tr_b16 {ar(o + 4 + 2*j, 2)}, v{AD + 4 + 2*m + j} offset:{b*SST}"))
            mf.append(I(f"{M32} {vr(D, 16)}, {ar(o, 4)}, {ar(o+4, 4)}, {vr(D, 16) if (b or m) else 0}"))
    q = Seq()
    for i in range(5): q(f"v_cvt_pk_bf16_f32 v{D+i}, v{D+2*i}, v{D+2*i+1}")
    g = Seq()
    g("s_mov_b32 exec_lo, 0xfffff\ns_mov_b32 exec_hi, 0xfffff")
    g(f"buffer_store_dwordx4 {vr(D, 4)}, v{vKS+1}, {srd(SWS)}, s5 offen sc1", "st2")
    g("s_mov_b32 exec_lo, -1\ns_mov_b32 exec_hi, 0")
    g(f"buffer_store_dword v{D+4}, v{vKS}, {srd(SWS)}, s5 offen offset:640 sc1", "st2")
    g("s_mov_b64 exec, -1")
    return rd, mf, q.l + [g.l]

def kv_dma(c):
    q = Seq()
    q(f"s_lshr_b32 s62, s{sW}, 1\ns_mul_i32 s62, s62, {KV_KIND}\ns_mul_i32 s63, s{sP}, {KV_PAIR}\ns_add_u32 s62, s62, s63\ns_add_u32 s62, s62, {KVO - 8*2560}")
    q(f"s_and_b32 s63, s{sW}, 1\ns_mul_i32 s63, s63, 6\ns_lshl_b32 s3, s{sR}, 2\ns_add_u32 s99, s63, s3\ns_mul_i32 s63, s99, 2560\ns_add_u32 s62, s62, s63")
    mksrd(q, SM, 52, 53, "s62", nrec=15360)
    q(f"s_mul_i32 s{sM0x}, s{sW}, 15360\ns_add_u32 s{sM0x}, s{sM0x}, {KVR}")
    pre = q.l; groups = []
    for g in range(3):
        for o, n in ((0, 2), (2048, 3)):
            q = Seq()
            if o == 0: q(f"s_cmp_ge_u32 s99, {8 - 2*g}\ns_cselect_b32 s{SM+2}, 15360, 0")
            q(f"s_add_u32 m0, s{sM0x}, {g*5120 + o}\ns_movk_i32 s19, {g*5120 + o}")
            for i in range(n):
                if i: q = Seq(); q(f"s_add_u32 m0, s{sM0x}, {g*5120 + o}")
                q(f"buffer_load_dwordx4 v{vL16}, {srd(SM)}, s19 offen offset:{i*1024} {c.ldpol} lds", "kv")
                groups.append(q.l)
    return pre, groups

def kv_ready():
    a = Seq()
    a.wait(vm="kv")
    a(f"s_cmp_ge_u32 s{sW}, 2\ns_cbranch_scc1 .Lmk2\ns_add_u32 s63, s99, 6\ns_min_u32 s63, s63, 8\ns_cmp_ge_u32 s99, 8\ns_cbranch_scc1 .Lmk2")
    a(f"v_and_b32 v60, 31, v0\nv_bfe_u32 v61, v0, 5, 1\nv_mul_u32_u24 v61, 1280, v61\nv_lshl_add_u32 v60, v60, 3, v61\nv_add_u32 v60, s{sM0x}, v60\nv_mov_b32 v61, 0xf149")
    a.label(".Lmk")
    a("ds_write_b16 v60, v61 offset:1028", "nocount")
    a("v_add_u32 v60, 2560, v60\ns_add_u32 s99, s99, 1\ns_cmp_lt_u32 s99, s63\ns_cbranch_scc1 .Lmk")
    a("s_waitcnt lgkmcnt(0)")
    a.label(".Lmk2")
    return a.l

WOE = []; WOL = []; APT = 72; KA = 128
def wo_init(c):
    global APT
    WOE[:] = [(8, ct) for ct in range(5)] + [(s, 4) for s in range(8)] + [(s, ct) for s in range(4) for ct in range(4)][:15 if c.s2 else 14]
    WOL[:] = [(s, ct) for s in range(8) for ct in range(4) if (s, ct) not in WOE]
    APT = 64 if c.s2 else 72
def awo(s, ct): return 144 + 4*WOE.index((s, ct)) if (s, ct) in WOE else KA if (APT == 64 and WOL.index((s, ct)) == 16) else 4*WOL.index((s, ct))
SLOT = [(0, 0), (1, 0), (1, 1), (0, 1)]
def wo_loads(c, lst):
    out = []; cur = None
    def ld(sb, t):
        nonlocal cur
        out.append(I(t, "wo") if sb == cur else [I(f"s_add_u32 s101, s100, {sb*WOBLK}"), I(t, "wo")]); cur = sb
    for part in range(2):
        for s, ct in lst:
            if s == 8: ld(part, f"buffer_load_dwordx2 {ar(awo(s, ct) + 2*part, 2)}, v{VT if ct < 4 else VT4}, {srd(SWS)}, s101 offen offset:{ct*128} {c.ldpol}")
    for s, ct in sorted(lst):
        if s < 8 and c.s2:
            br, hd = SLOT[s >> 1]
            ld(4*(s & 1) + br, f"buffer_load_dwordx4 {ar(awo(s, ct), 4)}, v{vWM2 if ct < 4 else V4}, {srd(SWS)}, s101 offen offset:{ct*1024 + hd*512 if ct < 4 else hd*256} {c.ldpol}")
        elif s < 8: ld(s, f"buffer_load_dwordx4 {ar(awo(s, ct), 4)}, v{vL16 if ct < 4 else V4}, {srd(SWS)}, s101 offen offset:{(ct&3)*1024} {c.ldpol}")
    return out

IDS = LDS_TOTAL
def early():
    q = Seq()
    q(f"s_add_u32 s4, s{sOA}, 4096\ns_lshl2_add_u32 s47, s{sP}, s{sW}\ns_mul_i32 s6, s47, 12288\ns_add_u32 s6, s6, {PARO}\ns_mul_i32 s47, s{sR}, 768\ns_add_u32 s5, s6, s47")
    q(f"s_mul_i32 s11, s{sW}, 9216\ns_add_u32 s11, s11, {OPO}")
    for tt in range(4): q(f"s_xor_b32 s47, s{sW}, {tt}\ns_lshl2_add_u32 s47, s{sRT}, s47\ns_mul_i32 s47, s47, 36864\ns_add_u32 s{7+tt}, s47, s11")
    q(f"s_and_b32 s47, s{sW}, 2\ns_add_u32 s47, s47, s{sW}\ns_lshl_b32 s47, s47, 10\ns_add_u32 s11, s47, {WPH + 2048}")
    sa = q.l; q = Seq(); ID = 200; t = 204
    q(f"v_bfe_u32 v{t}, v0, 3, 2\nv_bfe_u32 v{t+1}, v0, 1, 1\nv_lshl_add_u32 v{t}, v{t}, 1, v{t+1}")
    q(f"v_and_b32 v{t+1}, 1, v0\nv_lshlrev_b32 v{t+1}, 4, v{t+1}\nv_lshlrev_b32 v{t+1}, v{t+1}, v{vONE}")
    q(f"v_bfe_u32 v{t+2}, v0, 2, 1\nv_bfe_u32 v{t+3}, v0, 5, 1\nv_cmp_eq_u32 vcc, v{t+2}, v{t+3}\nv_cndmask_b32 v{t+1}, 0, v{t+1}, vcc")
    for i in range(4): q(f"v_cmp_eq_u32 vcc, {i}, v{t}\nv_cndmask_b32 v{ID+i}, 0, v{t+1}, vcc")
    q(f"v_add_u32 v{t}, {IDS}, v{vL16}\nds_write_b128 v{t}, {vr(ID, 4)}")
    for r in (QT, QT+1, QT+4, QT+5, QT+8, QT+9): q(f"v_mov_b32 v{r}, 0")
    return sa, q.l

def g2(a, c):
    side = [[] for _ in range(29)]; side2 = [[] for _ in range(29)]
    def spread(S, items, h0, h1):
        n = len(items)
        for k, it in enumerate(items): S[h0 + k * (h1 - h0) // n].append(it)
    e1 = epi1()
    spread(side, e1[:-5], 0, c.e1n)
    side[c.h_f1].append([W(vm="st1")] + flag_store(F1, sL, False))
    rd, mf, sm = phi(vBT, 'f', 'a', 'm')
    spread(side, sout(AX, 0) + tails() + rd + mf, 10, 11)
    spread(side, sm, 11, 19)
    spread(side2, sout(AY, 2), 16, 17)
    krd, kmf, ks = kvpart()
    spread(side, krd, 19, 21); spread(side2, kmf, 20, 22); side2[21] += ks
    if c.h_f2 < 28: side[c.h_f2].append([W(vm="st2")] + flag_store(F2, sL, True))
    rd, mf, sm = phi(vBT2, 'F', 'A', 'M')
    spread(side, sout(AX, 0) + rd + mf, 22, 23)
    spread(side, sm[:len(sm) - c.phq], 23, 28)
    pre, kd = kv_dma(c)
    side2[c.h_kv - 2].append(poll_issue(vF1, F1, "f1"))
    sa, va = early()
    k = [i for i, x in enumerate(pre) if x.t.startswith("s_addc")][0]
    pre = pre[:k-1] + [pre[k-1:k+1]] + pre[k+1:]
    if c.s3g:
        q = Seq(); setup3(q, c); spread(side, va + q.l, c.h_ea, 10); spread(side2, sa, c.h_ea, 7); spread(side2, pre, 7, 10)
    elif c.h_ea >= 0: spread(side2, sa, c.h_ea, c.h_ea + 3); spread(side, va, c.h_ea, c.h_ea + 3); spread(side, pre, 7, 10)
    else: spread(side, va[-6:], 5, 9)
    side2[c.h_kv].insert(0, poll_check(vF1, F1, "f1"))
    vm = [[] for _ in range(29)]
    ws = wsched(c)
    for m in range(9, 23):
        for hf in range(2):
            H = 2*(m - 9) + hf
            for n in ws[(m, hf)]:
                d = dma_w(c, n)
                for i in range(3): vm[H + (i + 1) // 3].append([d[0]] + d[1+i: 2+i if i < 2 else 9])
    spread(vm, kd, c.h_kv, c.h_kv + c.n_kv)
    for k, h in enumerate([int(x, 36) for x in c.e1s]): vm[h].append(e1[k-5])
    if c.s2 and c.po and c.pop >= 20:
        p1, p2 = poison(208); side2[c.pop - 20].insert(0, p1)
        for k, x in enumerate(p2): vm[c.pop - 20 + (k + 1) * c.pon // 6].append(x)
    FO = g3a.FO if c.wol == 1 else F1
    if c.wol == 1:
        d = wo_dma(SX, SW1); vm[0].append(d[0]); vm[1].append(d[1])
        p1, p2 = wo_repack(PT - 12, SW1)
        side2[9].append(p1); vm[10].append(p2[:4]); vm[10].append(p2[4:])
        side[c.h_fo].append([W(vm="stw")] + flag_store(FO, sL, False))
    side2[23].append(poll_issue(vFO, FO, "fo"))
    for m in range(9, 23):
        for hf in range(2):
            H = 2*(m - 9) + hf
            mf = g2_mm(m, hf)
            rd = g2_rd(m, 1) if hf == 0 else g2_rd(m + 1, 0) if m < 22 else []
            it = [(k, r) for k, r in enumerate(rd)] + [((2*k + 1) * len(mf) // (2*len(vm[H])), x) for k, x in enumerate(vm[H])]
            for S in (side[H], side2[H]): it += [(k * len(mf) // len(S), x) for k, x in enumerate(S)]
            it.sort(key=lambda x: x[0])
            a(put(mf, it))
            if hf == 0:
                if c.stp & 8: stamp(a, c)
                if m < 22: a.wait(vm=[f"w{m+1}"] + (["wos"] if m == 13 else [])); a.wait(lg=0 if (m in (18, 19) or c.dep == NW) else f"f{m}_0")
                else: a(poll_check(vFO, FO, "fo")); a(kv_ready())
                a("s_barrier")
                if c.stp & 2: stamp(a, c)
    a(sout(AY, 2, True))
    for hd in range(2):
        a(f"ds_read_b128 {vr(Q0 + 4*hd, 4)}, v{vQM} offset:{2560 + hd*1280}\nds_read_b64 {vr(QT + 2 + 4*hd, 2)}, v{vQT} offset:{hd*1024}")
    return sm[len(sm) - c.phq:]

Q0, QT, OB0, OB1, KM, KT, VV, MX = 10, 18, 28, 44, 60, 68, 76, 92
TL = 236
def ST(i): return 96 + 16*i
ORDER = [0, 8, 1, 2, 3, 4, 5, 6, 7]
def sdst(t): return OB1 if t == 0 else ST(0) if t == 8 else ST(t)
def k_rd(hd, n):
    t = ORDER[n]; o = t*2560 + hd*1280
    return [I(f"ds_read_b128 {vr(KM + 4*(n&1), 4)}, v{vKL} offset:{o}"),
            I(f"ds_read_b64 {vr(KT + 4*((n>>1)&1) + 2*(n&1), 2)}, v{vKT} offset:{o}")]
def qk(hd, n):
    d = vr(sdst(ORDER[n]), 16)
    return [I(f"{M32} {d}, {vr(KM + 4*(n&1), 4)}, {vr(Q0 + 4*hd, 4)}, 0"),
            I(f"{M32} {d}, {vr(KT + 4*((n>>1)&1), 4)}, {vr(QT + 4*hd + (0 if n & 1 else 2), 4)}, {d}")]
def merge(): return [I(f"v_cndmask_b32 v{ST(0)+r}, v{OB1+r}, v{ST(0)+r}, s[{64+2*r}:{65+2*r}]") for r in range(16)]
def mx(i):
    out = []
    for j in range(8):
        m = MX + (j & 1); x = ST(i) + 2*j
        if i == 0 and j < 2: out.append(I(f"v_max_f32 v{m}, v{x}, v{x+1}"))
        else: out.append(I(f"v_max3_f32 v{m}, v{m}, v{x}, v{x+1}"))
    return out
def mx_fin():
    q = Seq()
    q(f"v_max_f32 v{MX}, v{MX}, v{MX+1}\nv_mov_b32 v{MX+1}, v{MX}\nv_permlane32_swap_b32 v{MX}, v{MX+1}\nv_max_f32 v{MX}, v{MX}, v{MX+1}")
    q(f"v_and_b32 v{MX+1}, 0xffff0000, v{MX}\nv_sub_f32 v{MX}, v{MX+1}, v{MX}\nv_cvt_pk_bf16_f32 v{CM}, -v{MX+1}, v{MX}")
    return q.l
def sub(i):
    d = vr(ST(i), 16)
    return I(f"{M32} {d}, {vr(CM+2, 4)}, {vr(CM, 4)}, {d}")
def ex(i):
    out = []; b = ST(i)
    for j in range(8):
        out += [I(f"v_exp_f32 v{b+2*j}, v{b+2*j}"), I(f"v_exp_f32 v{b+2*j+1}, v{b+2*j+1}")]
        if j: out.append(I(f"v_cvt_pk_bf16_f32 v{b+j-1}, v{b+2*j-2}, v{b+2*j-1}"))
    out.append(I(f"v_cvt_pk_bf16_f32 v{b+7}, v{b+14}, v{b+15}"))
    if i == 0:
        for j in range(8): out.append(I(f"v_and_b32 v{b+8+j}, v{PM+j}, v{b+j}"))
        for j in range(8): out.append(I(f"v_xor_b32 v{b+j}, v{b+8+j}, v{b+j}"))
    return out
def v_rd(hd, n):
    t = ORDER[n]
    return [I(f"ds_read_b64_tr_b16 {vr(VV + 8*(n&1) + 2*i, 2)}, v{vTR+i} offset:{t*2560 + hd*1280}") for i in range(4)]
def pv(hd, n):
    t = ORDER[n]; o = vr(OB0 if hd == 0 else OB1, 16)
    p = ST(0) if t == 0 else ST(0) + 8 if t == 8 else ST(t)
    return [I(f"{M32} {o}, {vr(VV + 8*(n&1), 4)}, {vr(p, 4)}, {o if n else 0}"),
            I(f"{M32} {o}, {vr(VV + 8*(n&1) + 4, 4)}, {vr(p + 4, 4)}, {o}")]
def fin(u, O, c):
    q = Seq(); t = O + 10
    if u >= 2: q(f"v_add_f32 v{t}, 0x358637bd, v{t}")
    q(f"v_rcp_f32 v{t}, v{t}\nv_mul_f32 v{t}, v{vG0 if u >= 2 else vG1}, v{t}")
    for i in range(5):
        q(unpk(f"v_pk_mul_f32 {vr(O+2*i, 2)}, {vr(O+2*i, 2)}, {vr(t, 2)} op_sel_hi:[1,0]\nv_cvt_pk_bf16_f32 v{O+12+i if i < 4 else TL+u}, v{O+2*i}, v{O+2*i+1}", str(u)))
    sl = [0, 3, 1, 2][u]
    if c.s2: q(f"buffer_store_dwordx4 {vr(O+12, 4)}, v{vOA}, {srd(SWS)}, s{4 if sl >= 2 else sOA} offen offset:{(sl & 1)*2048} sc1", "st3b" if u == 1 else "st3a")
    else: q(f"buffer_store_dwordx4 {vr(O+12, 4)}, v{vOA}, {srd(SWS)}, s{sOA} offen offset:{u*512} sc1", "st3")
    return q.l
def par_loads(c):
    q = Seq(); VP = 245
    q(f"v_min_u32 v{VP}, {44*16}, v{vL16}")
    out = [q.l]
    for r in range(16):
        out.append([I(f"buffer_load_dwordx4 {ar(APT + 4*r, 4)}, v{VP}, {srd(SWS)}, s6 offen offset:{(r % 6)*768} {c.ldpol}", "pl")] + ([I("s_add_u32 s6, s6, 4608")] if r % 6 == 5 else []))
    return out
def kvsum():
    q = Seq(); ID = Q0; t = Q0 + 4
    q(f"v_bfe_u32 v{t}, v0, 3, 2\nv_bfe_u32 v{t+1}, v0, 1, 1\nv_lshl_add_u32 v{t}, v{t}, 1, v{t+1}")
    q(f"v_and_b32 v{t+1}, 1, v0\nv_lshlrev_b32 v{t+1}, 4, v{t+1}\nv_mov_b32 v{t+2}, 0x3f80\nv_lshlrev_b32 v{t+1}, v{t+1}, v{t+2}")
    q(f"v_bfe_u32 v{t+2}, v0, 2, 1\nv_bfe_u32 v{t+3}, v0, 5, 1\nv_cmp_eq_u32 vcc, v{t+2}, v{t+3}\nv_cndmask_b32 v{t+1}, 0, v{t+1}, vcc")
    for i in range(4): q(f"v_cmp_eq_u32 vcc, {i}, v{t}\nv_cndmask_b32 v{ID+i}, 0, v{t+1}, vcc")
    pre = [q.l]
    o = vr(OB0, 16)
    mf = [I(f"{M32} {o}, {vr(ID, 4)}, {ar(APT + 4*r, 4)}, {o if r else 0}") for r in range(16)]
    q = Seq()
    q(f"s_lshl_b32 s62, s{sW}, 10\ns_add_u32 s62, s62, {KVS}\nv_add_u32 v{t}, s62, v{vL16}")
    for i in range(4): q(f"v_cvt_pk_bf16_f32 v{OB0+i}, v{OB0+2*i}, v{OB0+2*i+1}")
    q(f"ds_write_b128 v{t}, {vr(OB0, 4)}")
    return pre, mf, q.l
def a_apply(T, O):
    q = Seq(); t = Q0
    q(f"v_and_b32 v{t}, 31, v0\nv_and_b32 v{t+1}, 19, v0\nv_cmp_gt_u32 vcc, 16, v{t}\nv_cndmask_b32 v{t}, v{t+1}, v{t}, vcc\nv_bfe_u32 v{t+1}, v0, 5, 1")
    q(f"v_mul_u32_u24 v{t+2}, 320, v{t+1}\nv_lshl_add_u32 v{t+2}, v{t}, 4, v{t+2}\nv_add_u32 v{t+2}, {KVS}, v{t+2}")
    q(f"v_lshlrev_b32 v{t+3}, 11, v{t+1}\nv_lshl_add_u32 v{t+3}, v{t}, 2, v{t+3}\nv_add_u32 v{t+3}, {KVS + 640}, v{t+3}")
    q(f"s_mul_i32 s62, s{sW}, 5120\ns_add_u32 s62, s62, {STG - KVR}\nv_add_u32 v{t}, s62, v{vKL}\nv_mul_u32_u24 v{t+1}, 5120, v{t+1}\nv_add3_u32 v{t+1}, v{t+1}, s62, v{vKT}")
    for hd in range(2):
        b = T + 24*hd
        q(f"ds_read_b128 {vr(b+14, 4)}, v{t} offset:{hd*1280}\nds_read_b128 {vr(b+18, 4)}, v{t} offset:{5120 + hd*1280}\nds_read_b32 v{b+12}, v{t+1} offset:{hd*1280}")
        for r in (9, 10, 11, 13): q(f"v_mov_b32 v{b+r}, 0")
    pre = q.l
    q = Seq()
    for hd in range(2):
        b = T + 24*hd
        q(f"ds_read_b128 {vr(b, 4)}, v{t+2} offset:{hd*1024}\nds_read_b128 {vr(b+4, 4)}, v{t+2} offset:{2048 + hd*1024}\nds_read_b32 v{b+8}, v{t+3} offset:{hd*1024}")
    for hd in range(2):
        b = T + 24*hd; o = vr(O[hd], 16)
        q(f"{M32} {o}, {vr(b, 4)}, {vr(b+14, 4)}, 0\n{M32} {o}, {vr(b+4, 4)}, {vr(b+18, 4)}, {o}\n{M32} {o}, {vr(b+8, 4)}, {vr(b+12, 4)}, {o}")
    return pre, q.l

def attention(a, c, rest):
    ld = wo_loads(c, WOE[:13])
    wl = wo_loads(c, WOE[13:] + WOL)
    a(k_rd(0, 0) + k_rd(0, 1) + [k_rd(0, 2)[1], k_rd(0, 3)[1]])
    k = len(rest) // 2
    a(rest[:k]); rest = rest[k:]
    if c.stp & 4: stamp(a, c)
    for n in range(9):
        a(qk(0, n))
        if n + 2 < 9: a(k_rd(0, n + 2)[:1 if n < 2 else 2])
        for _ in range(3):
            if ld: a(ld.pop(0))
        if n < 3: a(rest[n*len(rest)//3: (n+1)*len(rest)//3])
        if n == 3: a(merge())
        if n >= 4: a(mx(n - 4))
        if n == c.h_f2 - 28: a([W(vm="st2")] + flag_store(F2, sL, True))
    a(k_rd(1, 0) + k_rd(1, 1) + v_rd(0, 0) + v_rd(0, 1))
    a(qk(1, 0))
    for i in range(5, 8): a(mx(i))
    ld = wl[:2*c.f2n - 1] + [poll_issue(vF2, F2, "f2")] + wl[2*c.f2n - 1: 2*c.f2n + 3]
    ld += [poll_check(vF2, F2, "f2")] + par_loads(c) + wl[2*c.f2n + 3:]
    stamp(a, c)
    for hd in range(2):
        a(mx_fin())
        a(sub(0)); a(sub(1))
        if hd == 1:
            kpre, kmf, kfin = kvsum()
            a(fin(0, OB0, c)); a(kpre)
        for i in range(9):
            main = ex(i) if i < 8 else []
            fill = []
            if i + 2 < 8: fill.append(sub(i + 2))
            if i >= 1:
                ns = [0, 1] if i == 1 else [i]
                for n in ns:
                    fill += pv(hd, n)
                    if n + 2 < 9: fill += v_rd(hd, n + 2)
                if hd == 0:
                    fill += qk(1, i)
                    if i + 1 < 9: fill += k_rd(1, i + 1)
                    if i == 3: main += merge()
                    if i >= 4: main += mx(i - 4)
            if hd == 1 and 2 <= i <= 5: fill += kmf[4*(i-2): 4*i-4]
            if hd == 1 and i == 7: main += kfin
            for _ in range(3 if i else 2):
                if ld: fill.append(ld.pop(0))
            if main: a(weave(main, fill))
            else: a(fill)
        if hd == 0:
            a(v_rd(1, 0) + v_rd(1, 1))
            for i in range(5, 8): a(mx(i))
        stamp(a, c)
    assert not ld
    apre, amf = a_apply(ST(2), [ST(0), ST(1)])
    a(apre)
    a.wait(lg=0); a("s_barrier")
    a(amf)
    a(fin(1, OB1, c))
    a(fin(2, ST(0), c)); a(fin(3, ST(1), c))
    a(f"s_mov_b32 exec_hi, 0\nbuffer_store_dwordx4 {vr(TL, 4)}, v{vOT}, {srd(SWS)}, s{sOT} offen sc1\ns_mov_b32 exec_hi, -1", "st3")
    a.wait(vm="st3")
    a(flag_store(F3, sL, True))

def p3(a, c):
    OP, AC = 0, 144
    V1, V2, VW, VO = 236, 237, 238, 241
    a(poll_issue(vF3, F3, "f3"))
    a(f"v_add_u32 v{V1}, 4096, v{vL16}\nv_add_u32 v{V2}, 8192, v{vL16}")
    for tt in range(4):
        a(f"s_add_u32 s62, s{sW}, {tt}\ns_and_b32 s62, s62, 3")
        if tt: a(f"s_mul_i32 s63, s62, 15360\ns_add_u32 s63, s63, {(tt-1)*5120}\nv_add_u32 v{VW+tt-1}, s63, v{vL16}")
        a(f"s_lshl_b32 s63, s{sRT}, 2\ns_add_u32 s62, s62, s63\ns_mul_i32 s62, s62, 36864\ns_mul_i32 s63, s{sW}, 9216\ns_add_u32 s62, s62, s63\ns_add_u32 s{64+tt}, s62, {OPO}")
    a(f"v_and_b32 v{VO}, 15, v0\nv_mul_u32_u24 v{VO}, 1152, v{VO}\nv_bfe_u32 v{VO+1}, v0, 4, 1\nv_lshl_add_u32 v{VO+1}, v{VO+1}, 3, v{VO}\nv_and_b32 v254, 48, v0\nv_add_u32 v{VO}, v254, v{VO}")
    a(f"s_lshl_b32 s62, s{sRT}, 2\ns_add_u32 s62, s62, s{sW}\ns_mul_i32 s62, s62, {16*1152}\ns_mul_i32 s63, s{sCB}, 144\ns_add_u32 s68, s62, s63")
    a(f"s_mul_i32 s62, s{sW}, 15360\nv_add_u32 v254, s62, v{vL16}")
    mksrd(a, SM, 48, 49, nrec=2048*1152)
    a(poll_check(vF3, F3, "f3"))
    stamp(a, c)
    for s in range(9):
        for tt in range(4):
            a(f"buffer_load_dwordx4 {vr(OP + (s*4 + tt)*4, 4)}, v{[vL16, V1, V2][s >> 2]}, {srd(SWS)}, s{64+tt} offen offset:{(s & 3)*1024} {c.ldpol}")
    for s in range(9):
        for tt in ([0, 1, 2, 3] if s < 8 else [1, 2, 3, 0]):
            for ct in range(5):
                d = vr(AC + (tt*5 + ct)*4, 4)
                a(f"{M16} {d}, {ar(awo(s, ct), 4)}, {vr(OP + (s*4 + tt)*4, 4)}, {d if s else 0}")
    stamp(a, c)
    for tt in range(1, 4):
        for ct in range(5): a(f"ds_write_b128 v{VW+tt-1}, {vr(AC + (tt*5 + ct)*4, 4)} offset:{ct*1024}")
    a.wait(lg=0); a("s_barrier")
    for ct in range(5):
        for sl in range(3): a(f"ds_read_b128 {vr((ct*3 + sl)*4, 4)}, v254 offset:{sl*5120 + ct*1024}")
    for ct in range(5):
        d = AC + ct*4; b = ct*12
        for i in (0, 2): a(f"v_pk_add_f32 {vr(d+i, 2)}, {vr(d+i, 2)}, {vr(b+i, 2)}\nv_pk_add_f32 {vr(b+4+i, 2)}, {vr(b+4+i, 2)}, {vr(b+8+i, 2)}")
        for i in (0, 2): a(f"v_pk_add_f32 {vr(d+i, 2)}, {vr(d+i, 2)}, {vr(b+4+i, 2)}")
        a(f"v_cvt_pk_bf16_f32 v{64+2*ct}, v{d}, v{d+1}\nv_cvt_pk_bf16_f32 v{65+2*ct}, v{d+2}, v{d+3}")
        if ct in (1, 3): a(f"buffer_store_dwordx4 {vr(64 + 2*(ct-1), 4)}, v{VO}, {srd(SM)}, s68 offen offset:{32*(ct-1)}")
        if ct == 4: a(f"s_mov_b32 exec_hi, 0\nbuffer_store_dwordx2 {vr(72, 2)}, v{VO+1}, {srd(SM)}, s68 offen offset:128\ns_mov_b32 exec_hi, -1")

def kvsum2():
    q = Seq(); ID = Q0; t = QT
    q(f"v_add_u32 v{ID}, {IDS}, v{vL16}\nv_add_u32 v95, s11, v{vL16}\nds_read_b128 {vr(ID, 4)}, v{ID}")
    pre = q.l
    o = ar(KA, 16)
    mf = [I(f"{M32} {o}, {vr(ID, 4)}, {ar(APT + 4*r, 4)}, {o if r else 0}") for r in range(16)]
    q = Seq()
    R = [ID, ID+1, ID+2, ID+3, t, t+1, t+2, t+3]
    for i in range(8): q(f"v_accvgpr_read_b32 v{R[i]}, a{KA+i}")
    for i in range(4): q(f"v_cvt_pk_bf16_f32 v{ID+i}, v{R[2*i]}, v{R[2*i+1]}")
    q(f"ds_write_b128 v95, {vr(ID, 4)}")
    return pre, mf, q.l
def a_apply2(T, O):
    q = Seq(); t0, t1, t2, t3 = 94, vBH, vBL, 94
    q(f"v_and_b32 v{t0}, 31, v0\nv_and_b32 v{t1}, 19, v0\nv_cmp_gt_u32 vcc, 16, v{t0}\nv_cndmask_b32 v{t0}, v{t1}, v{t0}, vcc\nv_bfe_u32 v{t1}, v0, 5, 1")
    q(f"v_mul_u32_u24 v{t2}, 320, v{t1}\nv_lshl_add_u32 v{t2}, v{t0}, 4, v{t2}\nv_add_u32 v{t2}, {WPH + 2048}, v{t2}")
    q(f"v_lshl_add_u32 v{t3}, v{t1}, 10, v{t0}\nv_lshlrev_b32 v{t3}, 2, v{t3}\nv_add_u32 v{t3}, {WPH + 2048 + 640}, v{t3}")
    q(f"v_mul_u32_u24 v{t1}, 3840, v{t1}\nv_add_u32 v{t1}, v{t1}, v{vBT}")
    adr = q.l; q = Seq(); t0 = vQM
    for hd in range(2):
        b = T + 24*hd
        q(f"ds_read_b128 {ar(b+14, 4)}, v{t0} offset:{hd*1280}\nds_read_b128 {ar(b+18, 4)}, v{t0} offset:{5120 + hd*1280}\nds_read_b32 a{b+12}, v{t1} offset:{hd*1280}")
    pre = q.l
    q = Seq()
    for hd in range(2):
        b = T + 24*hd
        q(f"ds_read_b128 {ar(b, 4)}, v{t2} offset:{hd*1024}\nds_read_b128 {ar(b+4, 4)}, v{t2} offset:{4096 + hd*1024}\nds_read_b32 a{KA+8+4*hd}, v{t3} offset:{hd*1024}")
    for hd in range(2):
        b = T + 24*hd; o = vr(O[hd], 16)
        q(f"{M32} {o}, {ar(b, 4)}, {ar(b+14, 4)}, 0\n{M32} {o}, {ar(b+4, 4)}, {ar(b+18, 4)}, {o}\n{M32} {o}, {ar(KA+8+4*hd, 4)}, {ar(b+12, 4)}, {o}")
    return adr, pre, q.l

P1, P2, PW, PO, PR = 28, 29, 30, 33, 35
def p3_addr():
    a = Seq()
    a(f"v_add_u32 v{P1}, 4096, v{vL16}\nv_add_u32 v{P2}, 8192, v{vL16}\nv_lshl_add_u32 v{PR}, s{sW}, 14, v{vL16}")
    for tt in range(1, 4): a(f"v_xor_b32 v{PW+tt-1}, {tt << 14}, v{PR}")
    a(f"v_and_b32 v{PO}, 15, v0\nv_mul_u32_u24 v{PO}, 1152, v{PO}\nv_bfe_u32 v{PO+1}, v0, 4, 1\nv_lshl_add_u32 v{PO+1}, v{PO+1}, 3, v{PO}\nv_and_b32 v36, 48, v0\nv_add_u32 v{PO}, v36, v{PO}")
    a(f"s_lshl2_add_u32 s62, s{sRT}, s{sW}\ns_mul_i32 s62, s62, {16*1152}\ns_mul_i32 s63, s{sCB}, 144\ns_add_u32 s68, s62, s63")
    mksrd(a, SM, 48, 49, nrec=2048*1152)
    return a.l

def poison(T, vr=ar):
    q = Seq()
    for i in range(4): q(f"v_accvgpr_write_b32 a{T+i}, -1")
    g = []
    for sl in range(4):
        g.append([I(f"s_add_u32 s62, s{sOA}, {sl*2048}"), I(f"buffer_store_dwordx4 {vr(T, 4)}, v{vOA}, {srd(SWS)}, s62 offen sc1", "poi")])
    g.append([I("s_mov_b32 exec_hi, 0"), I(f"buffer_store_dwordx4 {vr(T, 4)}, v{vOT}, {srd(SWS)}, s{sOT} offen sc1", "poi"), I("s_mov_b32 exec_hi, -1")])
    return q.l, g

def attention2(a, c, rest):
    e = wo_loads(c, WOE[:13])
    wl = wo_loads(c, WOE[13:] + WOL[:16]); wlast = wo_loads(c, WOL[16:])
    for x in flat(wlast):
        if x.tag == "wo": x.tag = "pe"
    pl = par_loads(c)
    A = [[] for _ in range(9)]; B = [[] for _ in range(18)]
    gb = c.ks0 + c.kn
    if c.a2n >= 0:
        for k, x in enumerate(e): A[k * c.a2n // len(e)].append(x)
        A[max(c.a2n - 2, 0)].append(poll_issue(vF2, F2, "f2"))
        A[c.a2n].append(poll_check(vF2, F2, "f2"))
        for k, x in enumerate(pl): A[c.a2n + k * (9 - c.a2n) // len(pl)].append(x)
    else:
        for k, x in enumerate(e): A[k // 3].append(x)
        if c.f2n >= 2: B[c.f2n - 2].append(poll_issue(vF2, F2, "f2"))
        else: A[7 + c.f2n].append(poll_issue(vF2, F2, "f2"))
        B[c.f2n].append(poll_check(vF2, F2, "f2") + pl[0])
        for k, x in enumerate(pl[1:]): B[c.f2n + k // c.npl].append(x)
    if c.po:
        for k in range(c.pe): B[min(c.peg + k // c.pen, 17)].append(ldo(k >> 2, k & 3, "pe"))
    for g in range(18):
        while wl and len(B[g]) < c.nwl and g not in (9, gb + 1, gb + 2): B[g].append(wl.pop(0))
    assert not wl
    B[min(gb + c.wlg, 17)][:0] = wlast
    a(k_rd(0, 0) + k_rd(0, 1) + [k_rd(0, 2)[1], k_rd(0, 3)[1]])
    k = len(rest) // 2
    a(rest[:k]); rest = rest[k:]
    if c.stp & 4: stamp(a, c)
    for n in range(9):
        a(qk(0, n))
        if n + 2 < 9: a(k_rd(0, n + 2)[:1 if n < 2 else 2])
        a(A[n])
        if n < 3: a(rest[n*len(rest)//3: (n+1)*len(rest)//3])
        if n == 3: a(merge())
        if n >= 4: a(mx(n - 4))
        if n == c.h_f2 - 28: a([W(vm="st2")] + flag_store(F2, sL, True))
    a(k_rd(1, 0) + k_rd(1, 1) + v_rd(0, 0) + v_rd(0, 1))
    a(qk(1, 0))
    for i in range(5, 8): a(mx(i))
    stamp(a, c)
    kpre, kmf, kfin = kvsum2()
    O2, O3 = Q0, KM
    adr, apre, amf = a_apply2(APT, [O2, O3])
    assert gb >= 8
    for hd in range(2):
        a(mx_fin())
        a(sub(0)); a(sub(1))
        if hd == 1: a(fin(0, OB0, c))
        for i in range(9):
            g = 9*hd + i
            main = ex(i) if i < 8 else []
            fill = []
            if g == gb + 1: a(amf)
            if i + 2 < 8: fill.append(sub(i + 2))
            if i >= 1:
                ns = [0, 1] if i == 1 else [i]
                for n in ns:
                    fill += pv(hd, n)
                    if n + 2 < 9: fill += v_rd(hd, n + 2)
                if hd == 0:
                    fill += qk(1, i)
                    if i + 1 < 9: fill += k_rd(1, i + 1)
                    if i == 3: main += merge()
                    if i >= 4: main += mx(i - 4)
            if g == 1: main += kpre
            if g == 2: main += adr
            if c.ks0 <= g < gb: fill += kmf[16*(g-c.ks0)//c.kn: 16*(g-c.ks0+1)//c.kn]
            if g == gb: main += kfin + apre
            if g == gb + 1: main += fin(2, O2, c)
            if g == gb + 2: main = fin(3, O3, c) + main
            if c.po:
                if g == 10: fill.append(poll_issue(vF3, F1 if c.pop < 23 else F2, "f3"))
            else:
                if g == 9 + c.f3n: fill.append([W(vm="st3a")] + flag_store(F3))
                if g == 17: fill.append(poll_issue(vF3, F3, "f3"))
            fill += B[g]
            if main: a(weave(main, fill))
            else: a(fill)
            if g == 8: a(v_rd(1, 0) + v_rd(1, 1))
            if g == gb: a.wait(lg=0); a("s_barrier")
            if c.po and g == 13: a(poll_check(vF3, F1 if c.pop < 23 else F2, "f3"))
        if hd == 0:
            for i in range(5, 8): a(mx(i))
        stamp(a, c)
    a(fin(1, OB1, c))
    a(f"s_mov_b32 exec_hi, 0\nbuffer_store_dwordx4 {vr(TL, 4)}, v{vOT}, {srd(SWS)}, s{sOT} offen sc1\ns_mov_b32 exec_hi, -1", "st3b")

stubs = Seq()
OPB = [96, 112, 128, 60, 76, 10]
OP = lambda s, tt: OPB[s % 6] + 4*tt
ldo = lambda s, tt, tag=None: I(f"buffer_load_dwordx4 {vr(OP(s, tt), 4)}, v{[vL16, P1, P2][s >> 2]}, {srd(SWS)}, s{7+tt} offen offset:{(s & 3)*1024} sc1", tag)
def p3_2(a, c):
    AC = 144
    def mmo(s, tt):
        return [I(f"{M16} {vr(AC + (tt*5 + ct)*4, 4)}, {ar(awo(s, ct), 4)}, {vr(OP(s, tt), 4)}, {vr(AC + (tt*5 + ct)*4, 4) if s else 0}") for ct in range(5)]
    def chk(nm, L):
        r = [OP(*x) for x in L]
        t = f"v_max3_u32 v94, v{r[0]}, v{r[1]}, v{r[2]}\n" + (f"v_max_u32 v94, v94, v{r[3]}\n" if len(r) > 3 else "") + f"v_cmp_eq_u32 vcc, -1, v94\ns_cbranch_vccnz .Lr{nm}"
        a(t); a.label(f".Lb{nm}")
        stubs.label(f".Lr{nm}")
        stubs(f"s_cmp_eq_u32 s69, 0\ns_cbranch_scc1 .Lb{nm}\ns_sub_u32 s69, s69, 1")
        stubs([ldo(*x, "nocount") for x in L])
        stubs("s_waitcnt vmcnt(0)"); stubs(t); stubs(f"s_branch .Lb{nm}")
    wr = lambda tt: [I(f"ds_write_b128 v{PW+tt-1}, {vr(AC + (tt*5 + ct)*4, 4)} offset:{ct*1024}") for ct in range(5)]
    TO = (1, 2, 3, 0)
    if c.po:
        a("s_mov_b32 s69, 300000")
        for k in range(c.pe, 24): a(ldo(k >> 2, k & 3))
        lb = [ldo(s, tt) for tt in TO for s in (6, 7, 8)]
        for s in range(6):
            chk(f"a{s}", [(s, tt) for tt in range(4)])
            if c.stp & 16: stamp(a, c)
            m = flat([mmo(s, tt) for tt in range(4)])
            if s == c.p3d + 1 and s >= 3: m = put(m, [(k, x) for k, x in enumerate(lb)]); lb = []
            a(m)
        a(lb)
        stamp(a, c)
    else:
        a(poll_check(vF3, F3, "f3", F3B))
        stamp(a, c)
        for k in range(24):
            if k == c.nfl: a([W(vm="st3b")] + flag_store(F3B))
            a(ldo(k >> 2, k & 3))
        if c.nfl >= 24: a([W(vm="st3b")] + flag_store(F3B))
        a(poll_issue(vF3, F3B, "f3b"))
        for k in range(24): a(mmo(k >> 2, k & 3))
        stamp(a, c)
        a(poll_check(vF3, F3B, "f3b"))
        stamp(a, c)
        for tt in TO:
            for s in (6, 7, 8): a(ldo(s, tt))
    prev = None
    for tt in TO:
        if c.po: chk(f"b{tt}", [(s, tt) for s in (6, 7, 8)])
        if c.stp & 16: stamp(a, c)
        m = mmo(6, tt) + mmo(7, tt) + mmo(8, tt)
        a(put(m, [(2 + 2*k, x) for k, x in enumerate(wr(prev))]) if prev else m)
        prev = tt
    stamp(a, c)
    if c.po and c.stamps: a(f"v_writelane_b32 v{vSTAMP}, s69, 31\ns_mov_b32 s69, 300000\nv_writelane_b32 v{vSTAMP}, s69, 30")
    a.wait(lg=0); a("s_barrier")
    if c.stp & 16: stamp(a, c)
    RB = 60; OC = 40
    for ct in range(5):
        for sl in range(3): a(f"ds_read_b128 {vr(RB + (ct*3 + sl)*4, 4)}, v{PR} offset:{sl*5120 + ct*1024}")
    for ct in range(5):
        d = AC + ct*4; b = RB + ct*12
        for i in (0, 2): a(f"v_pk_add_f32 {vr(d+i, 2)}, {vr(d+i, 2)}, {vr(b+i, 2)}\nv_pk_add_f32 {vr(b+4+i, 2)}, {vr(b+4+i, 2)}, {vr(b+8+i, 2)}")
        for i in (0, 2): a(f"v_pk_add_f32 {vr(d+i, 2)}, {vr(d+i, 2)}, {vr(b+4+i, 2)}")
        a(f"v_cvt_pk_bf16_f32 v{OC+2*ct}, v{d}, v{d+1}\nv_cvt_pk_bf16_f32 v{OC+1+2*ct}, v{d+2}, v{d+3}")
        if ct in (1, 3): a(f"buffer_store_dwordx4 {vr(OC + 2*(ct-1), 4)}, v{PO}, {srd(SM)}, s68 offen offset:{32*(ct-1)}")
        if ct == 4: a(f"s_mov_b32 exec_hi, 0\nbuffer_store_dwordx2 {vr(OC+8, 2)}, v{PO+1}, {srd(SM)}, s68 offen offset:128\ns_mov_b32 exec_hi, -1")

def p3_3(a, c):
    AC = 144; RB = 60; OC = 40; TO = (1, 2, 3, 0)
    acc = lambda tt, ct: vr(AC + (tt*5 + ct)*4, 4)
    mmo = lambda s, tt: [I(f"{M16} {acc(tt, ct)}, {ar(awo(s, ct), 4)}, {vr(OP(s, tt), 4)}, {acc(tt, ct) if s else 0}") for ct in range(5)]
    GB = [[(s, tt) for s in (6, 7, 8)] for tt in TO]
    def chk(nm, L, R):
        r = [OP(*x) for x in L]
        t = [f"v_max3_u32 v94, v{r[0]}, v{r[1]}, v{r[2]}", (f"v_max_u32 v94, v94, v{r[3]}\n" if len(r) > 3 else "") + "v_cmp_eq_u32 vcc, -1, v94", f"s_cbranch_vccnz .Lr{nm}"]
        o = [Seq(), Seq(), Seq()]
        for q, x in zip(o, t): q(x)
        o[2].label(f".Lb{nm}")
        if c.stp & 16: stamp(o[2], c)
        stubs.label(f".Lr{nm}")
        stubs(f"s_cmp_eq_u32 s69, 0\ns_cbranch_scc1 .Lb{nm}\ns_sub_u32 s69, s69, 1")
        stubs([ldo(*x, "nocount") for x in R])
        stubs("s_waitcnt vmcnt(0)"); stubs("\n".join(t)); stubs(f"s_branch .Lb{nm}")
        return [q.l for q in o]
    a("s_mov_b32 s69, 300000")
    la = [ldo(k >> 2, k & 3) for k in range(c.pe, 24)]
    a(la[:c.pu]); la = la[c.pu:]
    mf = flat([mmo(s, tt) for s in range(6) for tt in range(4)] + [mmo(*x) for g in GB for x in g])
    it = [(c.pr * k // 2, x) for k, x in enumerate(la)] + [(c.pb0 + c.pr2 * k // 2, ldo(*x)) for k, x in enumerate(sum(GB, []))]
    it = [(1 + k, x) for k, x in enumerate(p3_addr())] + it
    assert c.pb0 >= 60 and it[-1][0] < 115
    for s in range(6):
        L = [(s, tt) for tt in range(4)]
        o = chk(f"a{s}", L, L)
        if s == 0: a(o)
        else: it += [(20*s - c.pc + min(k, c.pc - 1), x) for k, x in enumerate(o)]
    if c.pd:
        L = sum(GB, []); r = [OP(*x) for x in L]
        t = [f"v_max3_u32 v94, v{r[0]}, v{r[1]}, v{r[2]}"] + [f"v_max3_u32 v94, v94, v{r[k]}, v{r[k+1]}" for k in (3, 5, 7, 9)] + [f"v_max_u32 v94, v94, v{r[11]}", "v_cmp_eq_u32 vcc, -1, v94"]
        it += [(115 + (k + 1) // 2, I(x)) for k, x in enumerate(t)]
        q = Seq(); q("s_cbranch_vccnz .Lrb"); q.label(".Lbb")
        if c.stp & 16: stamp(q, c)
        it.append((119, q.l))
        stubs.label(".Lrb")
        for k in range(c.pd - 1): stubs([ldo(*x, "nocount") for x in L])
        stubs.label(".Lrc")
        stubs("s_cmp_eq_u32 s69, 0\ns_cbranch_scc1 .Lbb\ns_sub_u32 s69, s69, 1")
        stubs([ldo(*x, "nocount") for x in L])
        if c.pd > 1: t = ["v_max_u32 v94, v96, v97"] + [f"v_max3_u32 v94, v94, v{k}, v{k+1}" for k in range(98, 144, 2)] + t[-1:]
        stubs(f"s_waitcnt vmcnt({12*(c.pd - 1)})"); stubs("\n".join(t)); stubs("s_cbranch_vccnz .Lrc\ns_branch .Lbb")
    for j in range(4):
        if not c.pd:
            o = chk(f"b{j}", GB[j], sum(GB[j:], []) if c.pra else GB[j])
            it += [(120 + 15*j - c.pc + min(k, c.pc - 1), x) for k, x in enumerate(o)]
        if j: it += [(120 + 15*j + (2 + 2*ct if j < 3 or not c.per else ct - 1), I(f"ds_write_b128 v{PW+j-1}, {acc(j, ct)} offset:{(j-1)*5120 + ct*1024}")) for ct in range(5)]
    RB = 164
    rd = [I(f"ds_read_b128 {vr(RB + (ct*3 + sl)*4, 4)}, v{PR} offset:{sl*5120 + ct*1024}") for ct in range(5) for sl in range(3)]
    if c.per:
        it.append((c.per, [W(lg=0), I("s_barrier")]))
        it += [(c.per + (k + 1) // 2, x) for k, x in enumerate(rd)]
    it.sort(key=lambda x: x[0])
    a(put(mf, it))
    stamp(a, c)
    if c.stamps: a(f"v_writelane_b32 v{vSTAMP}, s69, 31\ns_mov_b32 s69, 300000\nv_writelane_b32 v{vSTAMP}, s69, 30")
    if not c.per:
        a.wait(lg=0); a("s_barrier")
        if c.stp & 16: stamp(a, c)
        a(rd)
    for ct in range(5):
        d = AC + ct*4; b = RB + ct*12
        for i in (0, 2): a(f"v_pk_add_f32 {vr(b+i, 2)}, {vr(b+i, 2)}, {vr(b+4+i, 2)}\nv_pk_add_f32 {vr(d+i, 2)}, {vr(d+i, 2)}, {vr(b+8+i, 2)}")
        for i in (0, 2): a(f"v_pk_add_f32 {vr(d+i, 2)}, {vr(d+i, 2)}, {vr(b+i, 2)}")
        a(f"v_cvt_pk_bf16_f32 v{OC+2*ct}, v{d}, v{d+1}\nv_cvt_pk_bf16_f32 v{OC+1+2*ct}, v{d+2}, v{d+3}")
        if ct in (1, 3): a(f"buffer_store_dwordx4 {vr(OC + 2*(ct-1), 4)}, v{PO}, {srd(SM)}, s68 offen offset:{32*(ct-1)}")
        if ct == 4: a(f"s_mov_b32 exec_hi, 0\nbuffer_store_dwordx2 {vr(OC+8, 2)}, v{PO+1}, {srd(SM)}, s68 offen offset:128\ns_mov_b32 exec_hi, -1")

def finish(a, c):
    stamp(a, c)
    if c.stamps:
        a(f"s_cmp_lg_u32 s{sW}, 0\ns_cbranch_scc1 .Lend\ns_lshl_b32 s62, s2, 7\nv_lshrrev_b32 v4, 2, v{vL16}\ns_mov_b64 exec, 0xffffffff")
        a(f"buffer_store_dword v{vSTAMP}, v4, {srd(SWS)}, s62 offen")
    a.label(".Lend")
    a("s_endpgm")
    a(stubs)
    a("s_endpgm")
    a.label(".Lcodeend")

def build(c, path):
    a = Seq(); nst[0] = 0; UPK[0] = c.upk; HOIST[:] = [c.hoist, c.hoistn]; PEN[:] = [c.vpen, c.dpen, c.vmc, c.ppen]
    wo_init(c)
    prologue(a, c)
    setup1(a, c)
    setup2(a, c)
    issue(a, c, c.o2)
    if c.pst: stamp(a, c)
    if c.warm == 1:
        for t in warm(sW): a.label(t[:-1]) if t.endswith(':') else a(t)
        if c.pst: stamp(a, c)
    a.wait(vm=["w0", "x0", "ga"])
    if c.pst: stamp(a, c)
    for s in range(9): a(f"ds_read_u16 v{vGA+s}, v{vMD+3} offset:{32*s}", f"g{s}")
    a(rd_x(0))
    issue(a, c, c.o2b)
    a.wait(lg="g0")
    a(patch(0)); a.wait(lg=0); a("s_barrier")
    stamp(a, c)
    a(rd_w(0, 0))
    issue(a, c, c.o3)
    ex = {}
    def add(k, v, pos=9): ex.setdefault(k, []).append(flat(v) if isinstance(k, tuple) else (pos, flat(v)))
    p1, p2 = producer(c)
    add(c.s_prod, p1, c.p_pr); add(c.s_prod + (c.p_pr + 4) // 10, p2, (c.p_pr + 4) % 10)
    add(c.s_fw, tag_check() + [W(vm="stp")] + flag_store(FW))
    add(2*c.s_pw - 1, poll_issue(vFW, FW, "fw"))
    add(("pre", c.s_pw), poll_check(vFW, FW, "fw"))
    allo = ",".join([c.o1, c.o2, c.o2b, c.o3]).split(",")
    if "wo" not in allo: add(2*c.s_wo, wo_dma())
    add(("pre", (c.s_rp - 1) // 2), [W(vm="wos")])
    p1, p2 = wo_repack()
    add(c.s_rp, p1, 7); add(c.s_rp + 1, p2, 9)
    add(c.s_rp + 2, wa_load())
    if not c.s3g: q = Seq(); setup3(q, c); add(15, q.l)
    if c.h_ea < 0:
        sa, va = early(); L = [kv_dma(c)[0]] + sa + [va[:-6]]
        for k, x in enumerate(L): add(-c.h_ea + 10*c.n_ea*k // len(L) // 10, [x], 10*c.n_ea*k // len(L) % 10)
    if c.s2 and c.po and c.pop < 18:
        p1, p2 = poison(208); add(c.pop, p1, 0)
        for k, x in enumerate(p2): add(c.pop + k // 3, x, 3*(k % 3) + 2)
    pass1(a, c, ex)
    stamp(a, c)
    if c.stop == 1:
        a.wait(vm=0, lg=0); finish(a, c)
        open(path, "w").write(wrap(finalize(a.l, True), LDS_TOTAL + 1024)); return
    b = Seq()
    rest = g2(b, c)
    (attention2 if c.s2 else attention)(b, c, rest)
    a(sched(b.l, c.sch, "g2+att", c.beta / 100) if c.sch else b.l)
    stamp(a, c)
    (p3_3 if c.p33 else p3_2 if c.s2 else p3)(a, c)
    finish(a, c)
    txt = wrap(finalize(a.l, True), LDS_TOTAL + 1024)
    if c.al: txt = txt.replace('.p2align 8', '.p2align 12')
    if c.warm: txt, n = add_stubs(txt, -0x300); print('stubs', n)
    open(path, "w").write(txt)

if __name__ == "__main__":
    c = Cfg()
    path = sys.argv[1]
    for kv in sys.argv[2:]:
        k, v = kv.split("=")
        setattr(c, k, type(getattr(c, k))(int(v)) if not isinstance(getattr(c, k), str) else v)
    build(c, path)
```

```python
import sys
sys.path.insert(0, "work")
from fw import *

class Cfg:
    stop = 99
    stamps = True
    ldpol = "sc1"
    rotmod = 9
    stag = 0x7520
    o1 = 'pr'
    o2 = 'x1,w1'
    o2b = 'tag,x2'
    o3 = 'w2'
    p_pr = 0
    s_rp = 11
    fl = 1
    g3f = 1
    nwg = 256
    px = '1368'
    pw = 'cfi'
    pw2 = '258124578'
    pv = 5
    exp = 0
    m44 = 0
    wol = 0
    h_fo = 13
    s_wa = 9
    x2l = 0
    stp = 0
    pst = 0
    gx = (1, 3, 6, 8)
    gw = (2, 5, 8)
    sch = 32
    beta = 50
    s_prod = 0
    s_fw = 3
    s_pw = 6
    s_wo = 2
    h_f1 = 11
    h_kv = 17
    n_kv = 7
    h_f2 = 27
    phq = 30
    tlb = 0
    upk = 'famFAMst023'
    al = 1
    xpf = 1
    warm = 0
    hoist = 16
    hoistn = 3
    s3g = 1
    wc = '33000033314443'
    wci = 0
    na = 3
    a0 = 0
    ne = 13
    pf1 = 2
    f1l = 0
    sfo = 0
    h_pfo = 23
    pdw = 0
    bsk = ''
    w3l = 1
    ful = 99
    fus = ''
    m0h = 0
    wpf = 0
    ppen = 4
    pen = 8
    wlg = 1
    p33 = 1
    pu = 2
    pr = 7
    pb0 = 68
    pr2 = 6
    pc = 3
    pra = 1
    per = 172
    h_ea = 3
    n_ea = 2
    pd = 0
    vpen = 32
    dpen = 12
    vmc = 56
    dep = 4
    f2n = 2
    s2 = 1
    a2n = -1
    npl = 4
    ks0 = 9
    kn = 4
    po = 1
    nwl = 4
    pon = 1
    e1n = 3
    e1s = '34456'
    pe = 8
    peg = 15
    pop = 20
    p3d = 3
    f3n = 7
    nfl = 12
    p3s = 0
NW = 5
F1, FW, F3, F2, FO, F3B = 0x60000, 0x80000, 0x20000, 0x40000, 0xA0000, 0xC0000
KVO, PKO, PARO, WOO, OPO = 0x100000, 0x600000, 0x8A0000, 0x960000, 0xAB0000
KV_PAIR, KV_KIND = 163840, 2621440
WOBLK = 5248
PSEC = 72 * 1152
WSL = 12416
KVR = 62080
XR = KVR
WOS = KVR + 49152
STG = KVR + 61440
SST = 7680
WPH = STG + 4 * SST
KVS = WPH + 4096
LDS_TOTAL = KVS + 4096
SX, SW1, SPK, SPS, SWS, SM = 4, 8, 12, 92, 20, 24
sW, sR, sG, sT = 28, 29, 30, 31
sKA, sKP, sLE, sQS = 32, 37, 46, 18
sL, sM0x, sM0w1, sM0w2 = 54, 55, 56, 57
sTAG = 58
sKX, sKW = 64, 73
sCB, sRT, sP = 96, 97, 98
sOA, sOT = 16, 17
def srd(n): return f"s[{n}:{n+3}]"
def vr(n, k): return f"v[{n}:{n+k-1}]"
def ar(n, k): return f"a[{n}:{n+k-1}]"
vL = 1
PM = 2
vX, vXR, vW1, vWA1, vWT1, vPAT, vGA = 10, 14, 16, 19, 20, 21, 22
vPK, vPS, vSA, vST, vSL, vK2, vF1 = 31, 34, 35, 36, 37, 38, 39
vKS = 10
AX, WA1, WA2, AD, FR, AY, ACC = 40, 64, 76, 88, 96, 144, 160
vPR1, vPR3, vPS3, vRP, vMD, vP4, vWP, vWP2, vWM = 200, 201, 203, 204, 207, 211, 212, 213, 214
vTW, vSC, V4, VT, VT4, vFW, vFO = 216, 218, 219, 220, 221, 222, 223
vL16, vG0, vG1, vTR = 224, 225, 226, 227
vBL, vBH, vBT, vKL, vKT = 231, 232, 233, 234, 235
vBT2, vQM, vQT, vONE = 236, 237, 238, 239
vOA, vOT, vF2, vF3, vPD, vTG, CM, vSTAMP = 240, 241, 242, 243, 244, 246, 248, 255
vWM2 = 254
fT, fKG, fH, fKL, fRR, fC, fC0, fC1, fQ = range(144, 153)
M32 = "v_mfma_f32_32x32x16_bf16"
M16 = "v_mfma_f32_16x16x32_bf16"

nst = [0]
def stamp(a, c):
    if not c.stamps or nst[0] >= 30: return
    a("s_memrealtime s[60:61]")
    a.wait(lg=0)
    a(f"v_writelane_b32 v{vSTAMP}, s60, {nst[0]}")
    nst[0] += 1

def lin(a, dst, terms, const=None):
    first = True
    for f, m in terms:
        if first:
            a(f"v_mul_u32_u24 v{dst}, {m}, v{f}")
            if not (const is None or const == 0): a(f"v_add_u32 v{dst}, {const}, v{dst}")
            first = False
        else:
            if 0 <= m <= 64: a(f"v_mad_u32_u24 v{dst}, v{f}, {m}, v{dst}")
            else:
                a(f"s_movk_i32 s63, {m}" if m < 32768 else f"s_mov_b32 s63, {m}")
                a(f"v_mad_u32_u24 v{dst}, v{f}, s63, v{dst}")

def mksrd(a, n, lo, hi, off=None, nrec=0x7fffffff):
    if off is None: a(f"s_mov_b32 s{n}, s{lo}\ns_mov_b32 s{n+1}, s{hi}")
    else: a(f"s_add_u32 s{n}, s{lo}, {off}\ns_addc_u32 s{n+1}, s{hi}, 0")
    a(f"s_mov_b32 s{n+2}, {nrec}\ns_mov_b32 s{n+3}, 0x20000")

def dma_x(s):
    q = Seq()
    q(f"s_add_u32 m0, s{sM0x}, {(s % 3) * 16384}")
    for i in range(4):
        q(f"buffer_load_dwordx4 v{vX+i}, {srd(SX)}, s{sKX+s} offen offset:{i*1024} lds", f"x{s}")
    return q.l
def dma_w(c, n):
    q = Seq()
    q(f"s_add_u32 m0, s{sM0w1 if n < 9 else sM0w2}, {(n % NW) * WSL}")
    for i in range(3):
        if n < 9: q(f"buffer_load_dwordx4 v{vW1+i}, {srd(SW1)}, s{sKW+n} offen offset:{i*1024} lds", f"w{n}")
        elif n < 14: q(f"buffer_load_dwordx4 v{vPK+i}, {srd(SPK)}, s{sKA+n-9} offen offset:{i*1024} {c.ldpol} lds", f"w{n}")
        else: q(f"buffer_load_dwordx4 v{vPS}, {srd(SPK)}, s{sKP+3*((n-14)%3)+i} offen offset:{i*1024} {c.ldpol} lds", f"w{n}")
    if n in (16, 19): q(f"v_add_u32 v{vPS}, {PSEC}, v{vPS}")
    return q.l
def rd_w(n, ks):
    base = (n % NW) * WSL; out = []
    for h in range(5):
        for j in range(2):
            ad = vWA1 if h < 4 else vWT1; off = base + ks * 6208 + j * 768 + (h * 48 if h < 4 else 0)
            out.append(I(f"ds_read_b64_tr_b16 {vr(FR + ks*24 + h*4 + j*2, 2)}, v{ad} offset:{off}", f"f{n}_{ks}"))
    return out
def rd_x(s):
    return [I(f"ds_read_b128 {ar((s*4 + ks*2 + tt)*4, 4)}, v{vXR+ks} offset:{(s%3)*16384 + tt*2048}", f"xr{s}") for ks in range(2) for tt in range(2)]
def mm(s, ks):
    out = []
    for h in range(5):
        for tt in range(2):
            d = vr(ACC + (h*2 + tt)*4, 4)
            out.append(I(f"{M16} {d}, {vr(FR + ks*24 + h*4, 4)}, {ar((s*4 + ks*2 + tt)*4, 4)}, {0 if (s == 0 and ks == 0) else d}"))
    return out
def patch(s): return I(f"ds_write_b16 v{vPAT}, v{vGA+s} offset:{(s % NW) * WSL}", "pat")

def pr_dma():
    q = Seq()
    q("s_mov_b32 m0, s91")
    for i in range(4): q(f"buffer_load_dwordx4 v{vW1+i if i < 3 else vP4}, {srd(SPS)}, 0 offen offset:{i*1024} lds", "pr")
    return q.l
def x_pf():
    q = Seq()
    q(f"s_and_b32 s62, s{sR}, 7\ns_add_u32 s62, s62, 4\ns_sub_u32 s63, s62, 9\ns_cselect_b32 s62, s62, s63\ns_lshl_b32 s62, s62, 7")
    q(f"s_lshr_b32 s63, s2, 6\ns_lshl2_add_u32 s63, s63, s{sW}\ns_mul_i32 s63, s63, {8*1152}\ns_add_u32 s62, s62, s63\nv_and_b32 v4, 7, v0\nv_mul_u32_u24 v4, 1152, v4")
    q(f"buffer_load_dword a255, v4, {srd(SX)}, s62 offen", "pf")
    return q.l
def issue(a, c, o):
    for t in o.split(","):
        if t == "xp": a(x_pf()); continue
        if t == "pr": a(pr_dma())
        elif t == "tag": a(tag_issue())
        elif t == "wo": a(wo_dma())
        elif t and t[0] == "x": a(dma_x(int(t[1])))
        elif t and t[0] == "w": a(dma_w(c, int(t[1])))

def prologue(a, c):
    a("s_getpc_b64 s[60:61]")
    a("s_load_dwordx16 s[32:47], s[0:1], 0\ns_load_dwordx4 s[48:51], s[0:1], 64\ns_load_dwordx2 s[52:53], s[0:1], 80")
    a(f"s_memrealtime s[{sTAG}:{sTAG+1}]")
    a(f"s_cmp_ge_u32 s2, {c.nwg}\ns_cbranch_scc1 .Lend")
    a(f"v_lshrrev_b32 v2, 6, v0\nv_and_b32 v{vL}, 63, v0")
    a(f"v_readfirstlane_b32 s{sW}, v2")
    a("s_lshr_b32 s3, s2, 3")
    a(f"s_and_b32 s62, s3, 7\ns_lshl_b32 s62, s62, 13\nv_and_b32 v{fT}, 15, v0\nv_lshlrev_b32 v3, 7, v{fT}\nv_lshl_add_u32 v3, v2, 11, v3\nv_add_u32 v3, s62, v3")
    a(f"v_min_u32 v3, .Lcodeend-{KN}-8, v3")
    a("global_load_dword v9, v3, s[60:61]", "pf")
    if c.m44:
        a(f"s_and_b32 s62, s2, 3\ns_and_b32 s63, s3, 3\ns_lshl2_add_u32 s{sR}, s62, s63")
        a(f"s_and_b32 s62, s2, 4\ns_bfe_u32 s{sG}, s3, 0x20002\ns_or_b32 s{sG}, s{sG}, s62\ns_lshr_b32 s{sT}, s3, 4")
        a(f"s_lshl_b32 s62, s63, 2\ns_lshr_b32 s62, {c.stag}, s62\ns_and_b32 s62, s62, 15\ns_lshr_b32 s63, s3, 2\ns_add_u32 s62, s62, s63\ns_sub_u32 s63, s62, 9\ns_cselect_b32 s62, s62, s63")
    else:
        a(f"s_and_b32 s62, s2, 1\ns_lshl_b32 s62, s62, 3\ns_and_b32 s{sR}, s3, 7\ns_or_b32 s{sR}, s{sR}, s62")
        a(f"s_and_b32 s62, s2, 6\ns_bfe_u32 s{sG}, s3, 0x10003\ns_or_b32 s{sG}, s{sG}, s62\ns_lshr_b32 s{sT}, s3, 4")
    if c.m44: pass
    elif c.stag == 0:
        m, sh = magic_div(c.rotmod, 32)
        a(f"s_mul_i32 s62, s3, {m}\ns_lshr_b32 s62, s62, {sh}\ns_mul_i32 s62, s62, {c.rotmod}\ns_sub_u32 s62, s3, s62")
    else:
        a(f"s_lshr_b32 s62, s3, 1\ns_and_b32 s62, s62, 12\ns_lshr_b32 s62, {c.stag}, s62\ns_and_b32 s62, s62, 15\ns_and_b32 s63, s3, 7\ns_add_u32 s62, s62, s63\ns_sub_u32 s63, s62, 9\ns_cselect_b32 s62, s62, s63")
    a(f"s_lshl_b32 s{sKX}, s62, 7\ns_mul_i32 s{sKW}, s62, 221184")
    a(f"v_lshrrev_b32 v{fKG}, 4, v{vL}\nv_and_b32 v4, 7, v0\nv_xor_b32 v4, v4, v{fKG}\nv_lshlrev_b32 v4, 4, v4\nv_xor_b32 v5, 64, v4")
    a(f"v_lshrrev_b32 v6, 3, v{vL}\nv_lshl_add_u32 v6, v2, 5, v6\nv_mul_u32_u24 v6, 1152, v6")
    a(f"v_add_u32 v{vX}, v6, v4\nv_add_u32 v5, v6, v5\nv_add_u32 v{vX+1}, 8192, v5\nv_add_u32 v{vX+2}, 16384, v{vX}\nv_add_u32 v{vX+3}, 24576, v5")
    a(f"s_lshr_b32 s62, s{sW}, 1\ns_lshl_b32 s62, s62, 2\ns_and_b32 s63, s{sW}, 1\ns_add_u32 s89, s62, s63\ns_mul_i32 s99, s89, {8*3456}")
    m12, s12 = magic_div(12, 192); m3, s3 = magic_div(3, 12)
    for i in range(3):
        a(f"v_add_u32 v4, {64*i}, v{vL}\nv_mul_u32_u24 v5, {m12}, v4\nv_lshrrev_b32 v5, {s12}, v5")
        a(f"v_mad_i32_i24 v4, v5, -12, v4\nv_mul_u32_u24 v6, {m3}, v4\nv_lshrrev_b32 v6, {s3}, v6")
        a(f"v_mad_i32_i24 v4, v6, -3, v4\nv_lshlrev_b32 v4, 4, v4\nv_min_u32 v4, 20, v4\nv_mad_u32_u24 v4, v6, 36, v4")
        a(f"v_and_b32 v6, 8, v5\nv_add_u32 v5, v5, v6\nv_mul_u32_u24 v5, 3456, v5\nv_add3_u32 v{vW1+i}, v4, v5, s99")
        if i: a(f"v_subrev_u32 v{vW1+i}, {1024*i}, v{vW1+i}")
    a(f"s_lshl_b32 s{sM0x}, s{sW}, 12\ns_add_u32 s{sM0x}, s{sM0x}, {XR}\ns_mul_i32 s{sM0w1}, s{sW}, 3104\ns_mul_i32 s{sM0w2}, s{sW}, 3072")
    a(f"s_mul_i32 s62, s{sR}, {128*1152}\ns_mul_i32 s90, s{sG}, 144\ns_mul_i32 s3, s{sT}, 1152\ns_add_u32 s63, s90, s3\ns_add_u32 s63, s63, 1152")
    a.wait(lg=0)
    mksrd(a, SX, 32, 33, "s62"); mksrd(a, SW1, 42, 43, "s63")
    if c.stamps: a(f"v_writelane_b32 v{vSTAMP}, s{sTAG}, 0"); nst[0] = 1
    a(f"s_or_b32 s62, s2, s{sW}\ns_cbranch_scc1 .Lnotag")
    a(f"s_bitset1_b32 s{sTAG+1}, 31\nv_mov_b32 v4, s{sTAG}\nv_mov_b32 v5, s{sTAG+1}\nv_lshlrev_b32 v6, 3, v{fT}")
    a("global_store_dwordx2 v6, v[4:5], s[50:51] sc1", "nocount")
    a.label(".Lnotag")
    a(dma_x(0)); a(dma_w(c, 0))
    kn = lambda s: f"s_add_u32 s{sKX+s}, s{sKX+s-1}, 128\ns_cmp_eq_u32 s{sKX+s}, 1152\ns_cselect_b32 s{sKX+s}, 0, s{sKX+s}\ns_mul_i32 s{sKW+s}, s{sKX+s}, 1728"
    a(kn(1))
    if "x1" in c.o1: a(dma_x(1))
    if c.pst: stamp(a, c)
    mksrd(a, SM, 46, 47, nrec=1152)
    a(f"s_lshr_b32 s62, s{sW}, 1\ns_lshl_b32 s62, s62, 6\ns_and_b32 s63, s{sW}, 1\ns_lshl_b32 s63, s63, 4\ns_add_u32 s62, s62, s63\ns_lshl_b32 s88, s{sW}, 10\ns_add_u32 m0, s88, {KVS}")
    a(f"v_lshrrev_b32 v4, 1, v{vL}\nv_lshl_add_u32 v4, v4, 7, s{sKX}\nv_subrev_u32 v5, 1152, v4\nv_min_u32 v4, v4, v5\nv_and_b32 v5, 1, v0\nv_lshl_add_u32 v4, v5, 5, v4")
    a(f"buffer_load_dwordx4 v4, {srd(SM)}, s62 offen lds", "ga")
    a(f"s_lshr_b32 s62, s{sR}, 1\ns_mul_i32 s62, s62, {72*3456}\ns_add_u32 s62, s62, s90\ns_add_u32 s63, s3, 1152\ns_bitcmp1_b32 s{sR}, 0\ns_cselect_b32 s63, 0, s63\ns_add_u32 s62, s62, s63")
    a(f"s_and_b32 s63, s{sR}, s{sT}\ns_cselect_b32 s100, s42, s34\ns_cselect_b32 s101, s43, s35")
    mksrd(a, SPS, 100, 101, "s62", nrec=71*3456+144)
    a(f"s_mul_i32 s91, s{sW}, {SST}\ns_add_u32 s91, s91, {STG}")
    m3b, s3b = magic_div(3, 64)
    a(f"v_mul_u32_u24 v5, {m3b}, v{vL}\nv_lshrrev_b32 v5, {s3b}, v5\nv_mad_i32_i24 v4, v5, -3, v{vL}\nv_lshlrev_b32 v4, 4, v4\nv_min_u32 v4, 20, v4\nv_mad_u32_u24 v{vMD}, v5, 36, v4")
    if "pr" in c.o1: a(pr_dma()[:4])
    a(f"s_mul_i32 s62, s{sW}, 36\ns_add_u32 s62, s62, {64*3456-3072}\nv_mul_u32_u24 v5, 3456, v5\nv_add3_u32 v{vP4}, v4, v5, s62")
    if c.g3f:
        a(f"v_bfe_u32 v5, v0, 2, 3\nv_mul_u32_u24 v5, 3456, v5\nv_and_b32 v4, 3, v0\nv_mad_u32_u24 v4, v4, 36, v5\nv_add_u32 v4, {64*3456-3072+20}, v4\nv_cmp_le_u32 vcc, 32, v{vL}\nv_cndmask_b32 v{vP4}, v{vP4}, v4, vcc")
    if "pr" in c.o1: a(pr_dma()[4:])
    if c.xpf == 1: a(x_pf())
    if c.pst: stamp(a, c)
    for s in range(2, 9): a(kn(s))
    a(f"s_lshl_b32 s{sP}, s{sG}, 1\ns_add_u32 s{sP}, s{sP}, s{sT}\ns_lshl_b32 s{sL}, s{sR}, 4\ns_add_u32 s{sL}, s{sL}, s{sP}")
    a(f"s_bfe_u32 s63, s{sL}, 0x40001\ns_mul_i32 s63, s63, {36*1152}\ns_lshr_b32 s3, s{sL}, 5\ns_mul_i32 s3, s3, 144\ns_add_u32 s63, s63, s3")
    a(f"s_bitcmp1_b32 s{sL}, 0\ns_cselect_b32 s100, s38, s44\ns_cselect_b32 s101, s39, s45")
    mksrd(a, 84, 100, 101, "s63", nrec=35*1152+144)
    if c.wpf == 1: a("s_load_dword s19, s[84:85], 0")
    if c.wpf >= 2:
        a(f"s_mul_i32 s62, s{sW}, {9*1152}\ns_add_u32 s100, s84, s62\ns_addc_u32 s101, s85, 0")
        for r in range(9):
            for o in ((0, 64, 140) if c.wpf == 2 else (0, 140)): a(f"s_load_dword s19, s[100:101], {r*1152 + o}")
    m9, s9 = magic_div(9, 512)
    for i in range(2):
        a(f"v_add_u32 v4, {256*i}, v0\nv_mul_u32_u24 v5, {m9}, v4\nv_lshrrev_b32 v5, {s9}, v5\nv_mad_i32_i24 v4, v5, -9, v4\nv_lshlrev_b32 v4, 4, v4\nv_mul_u32_u24 v5, 1152, v5\nv_add_u32 v{vMD+1+i}, v4, v5")
    a(f"s_and_b32 s63, s{sW}, 1\ns_lshl_b32 s62, s{sP}, 1\ns_add_u32 s62, s62, s63\ns_mul_i32 s62, s62, 648")
    mksrd(a, SM, 36, 37, "s62", nrec=648)
    if c.wpf == 1: a(f"s_load_dword s19, s[{SM}:{SM+1}], 0")
    if c.wpf >= 2:
        for o in list(range(0, 640, 64 if c.wpf == 2 else 128)) + [644]: a(f"s_load_dword s19, s[{SM}:{SM+1}], {o}")
    if c.wol == 1: a(wo_dma()[2])
    a(f"v_lshrrev_b32 v4, 2, v{vL}\ns_add_u32 s62, s88, {KVS}\nv_lshl_add_u32 v{vMD+3}, v4, 1, s62")
    a(f"v_and_b32 v{fC}, 3, v0\nv_mul_u32_u24 v{vPAT}, 192, v4\nv_mad_u32_u24 v{vPAT}, v{fC}, 48, v{vPAT}\nv_add3_u32 v{vPAT}, v{vPAT}, s{sM0w1}, 40")
    mksrd(a, SWS, 52, 53, nrec=0x10000000)
    if c.tlb:
        a(f"v_min_u32 v5, {(1 << (24 - c.tlb)) - 1}, v{vL}\nv_lshlrev_b32 v5, {c.tlb}, v5")
        a(f"buffer_load_dword v96, v5, {srd(SWS)}, 0 offen", "pf")
        a(f"v_min_u32 v5, {2048*1152 - 4}, v5\nglobal_load_dword v97, v5, s[48:49]", "pf")
    a(f"s_mul_i32 s62, s{sG}, {4*PSEC}\ns_add_u32 s62, s62, {PKO - 2048}")
    mksrd(a, SPK, 52, 53, "s62", nrec=4*PSEC + 2048)
    if c.m44: a(f"s_lshr_b32 s3, s2, 3\ns_lshr_b32 s{sCB}, s3, 2\ns_and_b32 s{sRT}, s3, 3\ns_and_b32 s62, s2, 3\ns_lshl3_add_u32 s{sRT}, s62, s{sRT}\ns_and_b32 s62, s2, 4\ns_add_u32 s{sRT}, s{sRT}, s62")
    else: a(f"s_lshr_b32 s3, s2, 3\ns_lshr_b32 s{sCB}, s3, 2\ns_and_b32 s{sRT}, s3, 3\ns_and_b32 s62, s2, 1\ns_lshl_b32 s62, s62, 4\ns_add_u32 s{sRT}, s{sRT}, s62\ns_and_b32 s62, s2, 6\ns_lshl_b32 s62, s62, 1\ns_add_u32 s{sRT}, s{sRT}, s62")
    a(f"v_lshrrev_b32 v{fH}, 5, v{vL}\nv_and_b32 v{fKL}, 1, v{fKG}\nv_bfe_u32 v{fRR}, v0, 2, 2\nv_and_b32 v{fC0}, 1, v0\nv_bfe_u32 v{fC1}, v0, 1, 1\nv_and_b32 v{fQ}, 31, v0")
    a(f"v_lshlrev_b32 v{vL16}, 4, v{vL}")
    a(f"v_lshrrev_b32 v4, 1, v{fT}\nv_xor_b32 v4, v4, v{fKG}\nv_lshlrev_b32 v4, 4, v4\nv_lshl_add_u32 v4, v{fT}, 7, v4\nv_add_u32 v{vXR}, s{sM0x}, v4\nv_xor_b32 v{vXR+1}, 64, v{vXR}")
    lin(a, 4, [(fKL, 3104), (fH, 1536), (fRR, 192)])
    a(f"v_lshl_add_u32 v{vWA1}, v{fC}, 3, v4\nv_mad_u32_u24 v{vWT1}, v{fC}, 48, v4\nv_add_u32 v{vWT1}, 40, v{vWT1}")

def wo_dma(S=84, s88=88):
    out = []
    for i in range(2): out.append([I(f"s_add_u32 m0, s{s88}, {WOS + 4096*i}"), I(f"buffer_load_dwordx4 v{vMD+1+i}, {srd(S)}, 0 offen lds", "wos")])
    out.append([I(f"s_and_b32 s63, s88, 1024"), I(f"s_add_u32 m0, s63, {WPH}"), I(f"buffer_load_dwordx4 v{vMD}, {srd(SM)}, 0 offen lds", "wos")])
    return out

def setup1(a, c):
    lin(a, vPR1, [(fRR, 192), (fKG, 48), (fC, 8)], "s91")
    lin(a, 4, [(fRR, 192), (fKL, 1536), (fC, 48)], 40)
    if c.g3f:
        lin(a, 5, [(fRR, 48), (fC, 8)], 3072)
        lin(a, 6, [(fT, 16)], 3072 + 512 + 8)
        a(f"v_cmp_eq_u32 vcc, 0, v{fKL}\nv_cndmask_b32 v5, v6, v5, vcc\nv_lshlrev_b32 v7, 6, v{fKL}\nv_add_u32 v7, 192, v7")
        a(f"v_cmp_eq_u32 vcc, 0, v{fH}\nv_cndmask_b32 v4, v5, v4, vcc\nv_add_u32 v{vPR3}, s91, v4\nv_mov_b32 v6, 768\nv_cndmask_b32 v5, v7, v6, vcc\nv_add_u32 v{vPR3+1}, v{vPR3}, v5")
        a(f"s_mul_i32 s62, s89, 1152\nv_mov_b32 v4, s62\nv_mov_b32 v5, {9216-2304}\nv_cndmask_b32 v4, v5, v4, vcc")
        lin(a, 4, [(4, 1), (fKL, 2304), (fRR, 32), (fC, 16)], 992)
        a(f"s_lshl_b32 s62, s{sW}, 8\ns_add_u32 s62, s62, 9216\nv_lshl_add_u32 v5, v{fT}, 4, s62")
        a(f"v_cmp_eq_u32 vcc, 2, v{fKG}\nv_cndmask_b32 v{vPS3}, v4, v5, vcc")
    else:
        lin(a, 5, [(fRR, 48)], 3072)
        a(f"v_lshlrev_b32 v6, 3, v{fC}\nv_cmp_eq_u32 vcc, 0, v{fKL}\nv_cndmask_b32 v6, 40, v6, vcc\nv_add_u32 v5, v5, v6")
        a(f"v_cmp_eq_u32 vcc, 0, v{fH}\nv_cndmask_b32 v4, v5, v4, vcc\nv_add_u32 v{vPR3}, s91, v4\nv_mov_b32 v5, 192\nv_mov_b32 v6, 768\nv_cndmask_b32 v5, v5, v6, vcc\nv_add_u32 v{vPR3+1}, v{vPR3}, v5")
        a(f"s_mul_i32 s62, s89, 1152\ns_add_u32 s62, s62, 992")
        lin(a, 4, [(fKL, 2304), (fRR, 32), (fC, 16)], "s62")
        a(f"s_lshl_b32 s62, s{sW}, 8\ns_add_u32 s62, s62, 9216\nv_lshl_add_u32 v5, v{fT}, 4, s62\ns_lshl_b32 s62, s{sW}, 5\ns_add_u32 s62, s62, {9216+992}\nv_lshl_add_u32 v6, v{fC}, 4, s62")
        a(f"v_cndmask_b32 v4, v5, v4, vcc\nv_cmp_eq_u32 vcc, 3, v{fKG}\nv_cndmask_b32 v{vPS3}, v4, v6, vcc")
    a(f"s_and_b32 s62, s{sR}, 1\ns_lshl_b32 s62, s62, 1\ns_lshl_b32 s63, s{sG}, 2\ns_add_u32 s62, s62, s63\ns_add_u32 s62, s62, s{sT}\ns_mul_i32 s62, s62, {PSEC}\ns_lshr_b32 s63, s{sR}, 1\ns_mul_i32 s63, s63, {9*1152}\ns_add_u32 s62, s62, s63\ns_add_u32 s82, s62, {PKO}")
    a(f"s_mul_i32 s63, s89, 1152\ns_add_u32 s83, s63, s82")
    lin(a, vWP2, [(fH, 1024), (fRR, 48)], WPH)
    lin(a, vWP, [(fKL, 16), (fC1, 8), (vWP2, 1)])
    a(f"v_add_u32 v{vWP2}, 40, v{vWP2}\nv_bfe_u32 v4, v0, 2, 1\nv_cmp_eq_u32 vcc, v4, v{fH}\nv_cndmask_b32 v{vWM}, 0, -1, vcc")
    lin(a, 4, [(fH, 18*144), (fKL, 4*144), (fRR, 144)], WOS)
    a(f"v_bfe_u32 v6, v0, 2, 1\nv_bfe_u32 v7, v0, 3, 1")
    lin(a, 5, [(7, 18*144), (6, 144)], WOS + 16*144)
    a(f"s_lshr_b32 s62, s{sW}, 1\ns_lshl_b32 s62, s62, 6\ns_and_b32 s3, s{sW}, 1\ns_lshl_b32 s63, s3, 3\ns_add_u32 s62, s62, s63")
    a(f"v_lshl_add_u32 v{vRP}, v{fC}, 4, v4\nv_add_u32 v{vRP}, s62, v{vRP}")
    a(f"v_lshlrev_b32 v6, 3, v{fC0}\nv_add_u32 v6, 128, v6\nv_and_b32 v7, 7, v0")
    a(f"s_cmp_ge_u32 s{sW}, 2\ns_cbranch_scc1 .Lrp2")
    a(f"v_add_u32 v{vRP+1}, v4, v6\nv_lshl_add_u32 v7, v{fKG}, 3, v7\nv_lshlrev_b32 v7, 4, v7\nv_add_u32 v{vRP+2}, 4096, v7\ns_branch .Lrp4")
    a.label(".Lrp2")
    a(f"s_cmp_eq_u32 s{sW}, 3\ns_cbranch_scc1 .Lrp3")
    lin(a, vRP+1, [(fH, 64), (fC, 16), (fKL, 8), (5, 1)])
    a(f"v_lshlrev_b32 v{vRP+2}, 3, v{vL}\nv_add_u32 v{vRP+2}, 4608, v{vRP+2}\ns_branch .Lrp4")
    a.label(".Lrp3")
    a(f"v_add_u32 v{vRP+1}, v5, v6\nv_lshlrev_b32 v{vRP+2}, 3, v{fT}\nv_add_u32 v{vRP+2}, 5120, v{vRP+2}")
    a.label(".Lrp4")

def setup2(a, c):
    a(f"s_lshl_b32 s62, s{sT}, 9\ns_add_u32 s62, s62, 2048")
    lin(a, vPK, [(fKG, 1152), (fT, 16)], "s62")
    a(f"v_subrev_u32 v{vPK+1}, 768, v{vPK}\ns_and_b32 s63, s{sW}, 1\ns_lshl_b32 s63, s63, 8\ns_add_u32 s63, s63, {PSEC - 2048}\nv_add_u32 v{vPS}, s63, v{vPK}")
    a(f"s_lshl_b32 s62, s{sT}, 6\ns_add_u32 s62, s62, 1024")
    lin(a, vPK+2, [(fKG, 1152), (fRR, PSEC), (fC, 16)], "s62")
    a(f"s_lshr_b32 s62, s{sKX}, 6\ns_add_u32 s63, s62, s{sW}\ns_mul_i32 s63, s63, 4608\ns_lshr_b32 s3, s{sW}, 1\ns_mul_i32 s3, s3, 3\ns_add_u32 s62, s62, s3\ns_mul_i32 s62, s62, 4608")
    for j in range(5):
        if j: a(f"s_add_u32 s63, s{sKA+j-1}, {4*4608}")
        a(f"s_sub_u32 s3, s63, {PSEC}\ns_cselect_b32 s{sKA+j}, s63, s3")
    for j in range(9):
        if j: a(f"s_add_u32 s62, s62, {4608*(4 if j % 3 == 0 else 1)}")
        a(f"s_sub_u32 s3, s62, {PSEC}\ns_cselect_b32 s62, s62, s3\ns_add_u32 s{sKP+j}, s62, {2048 - 1024*(j % 3)}")
    a(f"s_mov_b32 s{sLE}, 0x3fb8aa3b\ns_mov_b32 s{sQS}, 0x3eae1a93")
    a(f"v_lshlrev_b32 v4, 2, v{fH}\nv_xor_b32 v4, v4, v{fT}")
    lin(a, vSA, [(fH, 512), (4, 16), (fKL, 8)], "s91")
    lin(a, vST, [(fKG, 1280), (fT, 8)], "s91"); a(f"v_add_u32 v{vST}, 1024, v{vST}")
    a(f"v_add_u32 v{vSL}, s91, v{vL16}")
    lin(a, vK2, [(fH, KV_PAIR - 2560), (vL16, 1)])
    lin(a, vBL, [(fH, 1280), (fQ, 16)], "s91")
    a(f"v_xor_b32 v{vBH}, 64, v{vBL}\nv_add_u32 v{vBH}, 512, v{vBH}")
    lin(a, vBT, [(fH, 1280), (fQ, 8)], "s91"); a(f"v_add_u32 v{vBT}, 1024, v{vBT}")
    a(f"s_lshl_b32 s62, s{sW}, 8\ns_add_u32 s62, s62, {WPH + 2048}")
    lin(a, vBT2, [(fH, 1024), (fQ, 8)], "s62")
    a(f"s_add_u32 s3, s91, 1024\nv_mov_b32 v4, s3\nv_mov_b32 v5, s62\nv_cmp_eq_u32 vcc, 0, v{fH}\nv_cndmask_b32 v4, v5, v4, vcc\nv_mov_b32 v5, 2048\nv_mov_b32 v6, 2560\nv_cndmask_b32 v5, v5, v6, vcc")
    a(f"v_mad_u32_u24 v4, v5, v{fKL}, v4\nv_lshl_add_u32 v{vTW}, v{fT}, 3, v4\nv_lshrrev_b32 v5, 1, v5\nv_add_u32 v{vTW+1}, v{vTW}, v5")
    a(f"s_add_u32 s62, s62, 2048\nv_lshl_add_u32 v4, v{fQ}, 3, s62\nv_mov_b32 v5, {WPH + 896}\nv_cndmask_b32 v{vQT}, v5, v4, vcc")
    a(f"v_mov_b32 v4, 0x3f803f80\nv_cndmask_b32 v{CM+2}, 0, v4, vcc\nv_mov_b32 v{vONE}, 0x3f80")
    for r in (CM+1, CM+3, CM+4, CM+5): a(f"v_mov_b32 v{r}, 0")
    a(f"v_mov_b32 v4, s{sQS}\nv_cmp_eq_u32 vcc, 3, v{fKG}\nv_cndmask_b32 v{vSC}, 1.0, v4, vcc")
    a(f"v_lshl_add_u32 v4, v{fH}, 2, v{fRR}\nv_lshlrev_b32 v5, 2, v{fC1}\nv_xor_b32 v5, v5, v4")
    lin(a, 6, [(fC1, 512), (5, 16), (fC0, 8)])
    lin(a, 7, [(4, 8)], 1024)
    a(f"v_lshlrev_b32 v5, 2, v{fC0}\nv_xor_b32 v5, v5, v4")
    lin(a, 8, [(fC0, 512), (5, 16), (fC1, 8)])
    a(f"s_mul_i32 s62, s{sW}, 2560\ns_add_u32 s62, s62, {KVR}\ns_add_u32 s3, s62, 30720")
    a(f"v_cmp_eq_u32 vcc, 0, v{fKL}\nv_cndmask_b32 v6, v7, v6, vcc\nv_cndmask_b32 v{AD}, v7, v8, vcc\nv_mov_b32 v4, 64\nv_mov_b32 v5, 128\nv_cndmask_b32 v7, v4, v5, vcc")
    a(f"v_add_u32 v{vTR}, s3, v6")
    a(f"v_lshlrev_b32 v4, 2, v{fH}\nv_xor_b32 v4, v4, v{fQ}")
    lin(a, vKL, [(fH, 512), (4, 16)], "s62")
    lin(a, vKT, [(fQ, 8)], "s62"); a(f"v_add_u32 v{vKT}, 1024, v{vKT}")
    a(f"s_sub_u32 s62, s91, s62\nv_add_u32 v{vQM}, s62, v{vKL}")
    a(f"s_and_b32 s62, s{sW}, 1\ns_mul_i32 s62, s62, 1280\ns_lshr_b32 s3, s{sW}, 1\ns_mul_i32 s3, s3, 5120\ns_add_u32 s3, s62, s3\ns_add_u32 s3, s3, {STG}\nv_add_u32 v{AD}, s3, v{AD}")
    a(f"s_add_u32 s62, s62, {STG + 2560}\nv_add_u32 v{AD+4}, s62, v6")
    for i in range(1, 4): a(f"v_add_u32 v{vTR+i}, v{vTR+i-1}, v7\nv_add_u32 v{AD+i}, v{AD+i-1}, v7\nv_add_u32 v{AD+4+i}, v{AD+3+i}, v7")
    a(f"v_bfe_u32 v4, v0, 2, 3\ns_lshl_b32 s62, s{sW}, 3\nv_add_u32 v4, s62, v4\nv_lshrrev_b32 v5, 1, v4\nv_and_b32 v6, 1, v4\nv_lshl_add_u32 v5, v5, 4, v6\ns_lshl_b32 s62, s{sG}, 1\nv_add_u32 v5, s62, v5")
    a(f"s_lshl_b32 s63, s{sCB}, 5\nv_add_u32 v4, s63, v4\nv_lshlrev_b32 v6, 7, v{fC}\nv_lshl_add_u32 v{vFO}, v4, 9, v6\nv_lshl_add_u32 v{vFW}, v5, 9, v6")
    a(f"s_and_b32 s63, s{sW}, 1\ns_mul_i32 s63, s63, 6\ns_lshl_b32 s3, s{sR}, 2\ns_add_u32 s63, s63, s3\ns_sub_u32 s63, s63, 8\nv_min_u32 v4, 5, v{vL}\nv_add_u32 v4, s63, v4\nv_max_i32 v4, 0, v4")
    a(f"s_lshr_b32 s63, s{sW}, 1\ns_add_u32 s62, s62, s63\nv_lshrrev_b32 v5, 2, v4\nv_lshl_add_u32 v5, v5, 4, s62\nv_and_b32 v4, 3, v4\nv_lshlrev_b32 v4, 7, v4\nv_lshl_add_u32 v{vF1}, v5, 9, v4")
    a(f"s_lshl2_add_u32 s62, s{sL}, s{sW}\ns_lshl_b32 s62, s62, 7\nv_lshl_add_u32 v{vL}, v{fT}, {3 if c.fl else 31}, s62")
    if not c.fl: a(f"v_mov_b32 v{vL}, s62")
    a(f"s_lshl_b32 s62, s{sP}, 2\ns_add_u32 s62, s62, s{sW}\nv_lshl_add_u32 v4, v{fT}, 6, s62\nv_lshlrev_b32 v{vF2}, 7, v4")
    a(f"s_lshr_b32 s62, s{sRT}, 1\ns_lshl_b32 s62, s62, 6\ns_lshl_b32 s3, s{sW}, 4\ns_add_u32 s62, s62, s3\ns_and_b32 s3, s{sRT}, 1\ns_lshl_b32 s3, s3, 1\ns_add_u32 s62, s62, s3")
    a(f"v_bfe_u32 v4, v0, 1, 2\nv_lshl_add_u32 v4, v4, 2, v{fC0}\nv_add_u32 v4, s62, v4\nv_lshlrev_b32 v{vF3}, 7, v4")
    a(f"s_lshl_b32 s62, s{sCB}, 2\ns_add_u32 s62, s62, s{sW}\ns_mul_i32 s100, s62, {8*WOBLK}\ns_add_u32 s100, s100, {WOO}")
    if c.s2:
        a(f"v_and_b32 v{VT4}, 7, v0\nv_lshl_add_u32 v{V4}, v{fKL}, 3, v{VT4}\nv_mul_u32_u24 v{vWM2}, {2*WOBLK}, v{fH}\nv_lshl_add_u32 v{V4}, v{V4}, 4, v{vWM2}\nv_add_u32 v{V4}, 4096, v{V4}\nv_lshl_add_u32 v{vWM2}, v{fQ}, 4, v{vWM2}")
    else: a(f"v_and_b32 v{VT4}, 7, v0\nv_lshl_add_u32 v{V4}, v{fKG}, 3, v{VT4}\nv_lshlrev_b32 v{V4}, 4, v{V4}\nv_add_u32 v{V4}, 4096, v{V4}")
    a(f"v_mul_u32_u24 v{VT}, {2*WOBLK}, v{fKG}\nv_add_u32 v{VT}, 4608, v{VT}\nv_lshl_add_u32 v{VT4}, v{VT4}, 3, v{VT}\nv_lshl_add_u32 v{VT}, v{fT}, 3, v{VT}")
    a(f"v_mul_u32_u24 v{vOT}, 36864, v{fKL}\nv_lshl_add_u32 v{vOT}, v{fT}, 4, v{vOT}\nv_lshl_add_u32 v{vOA}, v{fH}, 8, v{vOT}")
    a(f"s_lshl_b32 s62, s{sR}, 2\ns_add_u32 s62, s62, s{sW}\ns_mul_i32 s62, s62, {2*36864}\ns_lshr_b32 s63, s{sP}, 2\ns_mul_i32 s63, s63, 9216\ns_add_u32 s62, s62, s63\ns_add_u32 s62, s62, {OPO}")
    a(f"s_and_b32 s63, s{sP}, 3\ns_lshl_b32 s3, s63, {9 if c.s2 else 11}\ns_add_u32 s{sOA}, s62, s3\ns_lshl_b32 s3, s63, 8\ns_add_u32 s{sOT}, s62, s3\ns_add_u32 s{sOT}, s{sOT}, 8192")

def setup3(a, c):
    if c.wol == 1: a(f"s_mov_b64 s[{SX}:{SX+1}], s[84:85]\ns_mov_b32 s{SX+2}, {35*1152+144}\ns_mov_b32 s{SW1}, s88")
    a(f"v_mul_u32_u24 v{vKS+1}, 320, v{fH}\nv_lshl_add_u32 v{vKS+1}, v{fQ}, 4, v{vKS+1}\nv_lshlrev_b32 v{vKS}, 2, v{fQ}")
    a(f"v_mad_i32_i24 v12, v{fH}, -4, v{fQ}\nv_mov_b32 v13, 0xffff")
    for r in range(16): a(f"v_cmp_le_i32 s[{64+2*r}:{65+2*r}], {8*(r>>2) + (r&3)}, v12")
    for j in range(8): a(f"v_cndmask_b32 v{PM+j}, 0, v13, s[{64+4*j}:{65+4*j}]")
    for j in range(8): a(f"v_cndmask_b32 v{PM+j}, v{PM+j}, -1, s[{66+4*j}:{67+4*j}]")

def producer(c):
    q = Seq(); T = AX
    q.wait(vm="pr")
    for k in range(2):
        for j in range(2): q(f"ds_read_b64_tr_b16 {vr(T + 4*k + 2*j, 2)}, v{vPR1} offset:{k*1536 + j*768}")
    for j in range(2): q(f"ds_read_b64_tr_b16 {vr(T + 8 + 2*j, 2)}, v{vPR3+j}")
    g = Seq()
    for k in range(2): g(f"buffer_store_dwordx4 {vr(T + 4*k, 4)}, v{vL16}, {srd(SWS)}, s83 offen offset:{2304*k} sc1", "stp")
    if c.g3f: g(f"s_cmp_eq_u32 s{sW}, 0\ns_mov_b32 s62, 0xffff\ns_cselect_b32 exec_hi, 0xccccffff, s62\ns_mov_b32 exec_lo, 0xcccccccc")
    else: g("s_mov_b32 exec_lo, 0xcccccccc\ns_mov_b32 exec_hi, 0xcffff")
    g(f"buffer_store_dwordx4 {vr(T+8, 4)}, v{vPS3}, {srd(SWS)}, s82 offen sc1", "stp")
    g("s_mov_b64 exec, -1")
    return q.l, g.l
def wo_repack(T=AX, s88=88):
    q = Seq()
    q(f"ds_read_b64_tr_b16 {vr(T+12, 2)}, v{vRP}\nds_read_b64_tr_b16 {vr(T+14, 2)}, v{vRP} offset:1152\nds_read_b64_tr_b16 {vr(T+16, 2)}, v{vRP+1}\nds_read_b64_tr_b16 {vr(T+18, 2)}, v{vRP+1} offset:1152", "rp")
    r = Seq()
    r(f"s_mul_i32 s63, s{sL}, {WOBLK}\ns_add_u32 s63, s63, {WOO}\ns_add_u32 s3, s{s88}, s63")
    r(f"buffer_store_dwordx4 {vr(T+12, 4)}, v{vL16}, {srd(SWS)}, s3 offen sc1", "stw")
    r.wait(lg="rp")
    r(f"s_cmp_ge_u32 s{sW}, 2\ns_cbranch_scc1 .Lw2\ns_cmp_eq_u32 s{sW}, 0\ns_cselect_b32 exec_lo, -1, 0\ns_cselect_b32 exec_hi, 0, -1")
    r(f"buffer_store_dwordx4 {vr(T+16, 4)}, v{vRP+2}, {srd(SWS)}, s63 offen sc1", "nocount")
    r("s_mov_b64 exec, -1\ns_branch .Lw3")
    r.label(".Lw2")
    r(f"buffer_store_dwordx2 {vr(T+16, 2)}, v{vRP+2}, {srd(SWS)}, s63 offen sc1", "stw")
    r.label(".Lw3")
    r("s_nop 1")
    return q.l, r.l
def wa_load():
    q = Seq()
    for i in range(5):
        q(f"ds_read_b64_tr_b16 {vr(WA1 + 2*i, 2)}, v{vWP} offset:{192*i}\nds_read_b64_tr_b16 {vr(WA2 + 2*i, 2)}, v{vWP2} offset:{192*i}")
    for r in (WA1 + 10, WA1 + 11, WA2 + 10, WA2 + 11): q(f"v_mov_b32 v{r}, 0")
    for i in range(10): q(f"v_and_b32 v{WA1+i}, v{vWM}, v{WA1+i}\nv_and_b32 v{WA2+i}, v{vWM}, v{WA2+i}")
    return q.l

def put(mf, items):
    out = []
    for g, m in enumerate(mf):
        out.append(m)
        for gg, it in items:
            if gg == g or (g == len(mf) - 1 and gg > g):
                out.extend(it if isinstance(it, list) else [it])
    return out
def grp(q): return [q[:2]] + q[2:]

def poll_issue(voff, base, name):
    q = Seq()
    q(f"s_mov_b32 s62, {base}")
    q(f"buffer_load_dwordx2 {vr(vPD, 2)}, v{voff}, {srd(SWS)}, s62 offen sc1", name)
    return q.l
def poll_check(voff, base, name, slowflag=None):
    q = Seq()
    q.wait(vm=name)
    q(f"v_cmp_ne_u64 vcc, s[{sTAG}:{sTAG+1}], {vr(vPD, 2)}\ns_cbranch_vccz .Lq{name}")
    if slowflag is not None:
        q(f"s_waitcnt vmcnt(0)\ns_mov_b32 s62, {slowflag}")
        q(f"buffer_store_dwordx2 {vr(vTG, 2)}, v{vL}, {srd(SWS)}, s62 offen sc1", "nocount")
    q(f"s_mov_b32 s62, {base}\ns_mov_b32 s63, 300000")
    q.label(f".Lp{name}")
    q(f"buffer_load_dwordx2 {vr(vPD, 2)}, v{voff}, {srd(SWS)}, s62 offen sc1", "nocount")
    q("s_waitcnt vmcnt(0)")
    q(f"v_cmp_ne_u64 vcc, s[{sTAG}:{sTAG+1}], {vr(vPD, 2)}")
    q(f"s_sub_u32 s63, s63, 1\ns_cbranch_scc1 .Lend\ns_cbranch_vccnz .Lp{name}")
    q.label(f".Lq{name}")
    return q.l
def flag_store(base, sidx=None, line=None):
    q = Seq()
    q(f"s_mov_b32 s62, {base}")
    q(f"buffer_store_dwordx2 {vr(vTG, 2)}, v{vL}, {srd(SWS)}, s62 offen sc1", "flag")
    return q.l
def tag_issue():
    q = Seq()
    q(f"v_mov_b32 v{vTG}, 0")
    q(f"global_load_dwordx2 {vr(vTG, 2)}, v{vTG}, s[50:51] sc1", "tag")
    return q.l
def tag_check():
    q = Seq()
    q.wait(vm="tag")
    q(f"v_readfirstlane_b32 s{sTAG+1}, v{vTG+1}\ns_mov_b32 s63, 300000\ns_cmp_lg_u32 s{sTAG+1}, 0\ns_cbranch_scc1 .Ltag2")
    q.label(".Ltag")
    q(f"v_mov_b32 v{vTG}, 0")
    q(f"global_load_dwordx2 {vr(vTG, 2)}, v{vTG}, s[50:51] sc1", "nocount")
    q("s_waitcnt vmcnt(0)")
    q(f"v_readfirstlane_b32 s{sTAG+1}, v{vTG+1}")
    q(f"s_sub_u32 s63, s63, 1\ns_cbranch_scc1 .Lend\ns_cmp_eq_u32 s{sTAG+1}, 0\ns_cbranch_scc1 .Ltag")
    q.label(".Ltag2")
    q(f"v_readfirstlane_b32 s{sTAG}, v{vTG}")
    return q.l
```

```python
import re
from pgs import add_stubs, warm
from g3a import *
import g3a

def g2_half(m, hf):
    g = m - 9
    if g < 5:
        ks = [4*g + 2*hf, 4*g + 2*hf + 1] if g < 4 else [16 + hf]
        return [((k - 4*g)*3 + t, AX + 8*t, k) for k in ks for t in range(3)]
    sec, j = divmod(g - 5, 3); A = AX if sec == 1 else AY
    return [((2*hf + h)*3 + i, A + 8*h, 6*j + 3*hf + i) for i in range(3) for h in range(2)]
def g2_rd(m, hf):
    return [I(f"ds_read_b128 {vr(FR + 24*hf + 4*q, 4)}, v{vL16} offset:{(m % NW)*WSL + f*1024}", f"f{m}_{hf}") for q, (f, A, k) in enumerate(g2_half(m, hf))]
def g2_mm(m, hf):
    out = []
    for q, (f, A, k) in enumerate(g2_half(m, hf)):
        for tt in range(2):
            d = vr(A + 4*tt, 4)
            out.append(I(f"{M16} {d}, {vr(FR + 24*hf + 4*q, 4)}, {ar((k*2 + tt)*4, 4)}, {d if k else 0}"))
    return out

def wsched(c):
    d = {}; m = 3
    for n in range(23):
        for h in range(2):
            l = []
            SK = [int(x, 36) for x in c.bsk]
            B = n - 1 + h
            while B in SK: B -= 1
            nk = B + 1
            while nk in SK: nk += 1
            full = (B + 1 in SK) or (nk + 1 in SK) or B >= c.ful or B in [int(x, 36) for x in c.fus]
            while m < 23 and m <= (n - 1 + h + NW if (n, h) <= (9, 0) else B + (NW if full else c.dep)) and len(l) < (1 if m < 9 or m > 10 else 2):
                if m < 9 and (h == 0 or m > n + 3): break
                if m >= 9 and ((n, h) < (c.s_pw, 1) or c.exp & 8): break
                l.append(m); m += 1
            d[(n, h)] = l
    return d

def sep(d):
    n = 4 if len(d) == 5 and "lds" in d[4].t else 3
    return [[d[0]] + (d[1+i: 2+i] if i < n - 1 else d[1+i:]) for i in range(n)]
def pass1(a, c, extra):
    ws = wsched(c)
    PX = [int(x, 36) for x in c.px]; PW = [int(x, 36) for x in c.pw]; PW2 = [int(x, 36) for x in c.pw2]
    for s in range(9):
        dm = []
        if s + 3 < 9:
            dm += list(zip(PX, sep(dma_x(s + 3)))) + list(zip(PW, sep(dma_w(c, s + 3))))
        g = [[m for m in ws[(s, h)] if m >= 9] for h in range(2)]
        for h in range(2):
            for i, m in enumerate(g[h]):
                dm += [(10*h + p, x) for p, x in zip(PW2[:3] if len(g[h]) == 1 else PW2[3+3*i: 6+3*i], sep(dma_w(c, m)))]
        a.wait(lg=[f"f{s}_0", f"xr{s}"])
        it = [(k // 2, r) for k, r in enumerate(rd_w(s, 1))]
        it += [x for x in dm if x[0] < 10]
        it.append((c.pv, [W(vm=[f"w{s+1}", f"x{s+1}"])] + ([patch(s + 1)] if s + 1 < 9 else [])))
        it += extra.get(2*s, [])
        it.sort(key=lambda x: x[0])
        a(put(mm(s, 0), it))
        a(extra.get(("pre", s), []))
        a.wait(lg=0)
        a("s_barrier")
        if c.stp & 1: stamp(a, c)
        if s < 8:
            fc = rd_w(s + 1, 0)
            fc = fc[:4] + rd_x(s + 1)[:2] + fc[4:] + rd_x(s + 1)[2:]
        else: fc = g2_rd(9, 0)
        it = [(k // 2, r) for k, r in enumerate(fc)]
        it += [(p - 10, x) for p, x in dm if p >= 10]
        it += extra.get(2*s + 1, [])
        it.sort(key=lambda x: x[0])
        a(put(mm(s, 1), it))

def m0hoist(l, mode):
    l = list(l); i = 0
    T = lambda x: getattr(x, "t", "") or ""
    while i < len(l) - 1:
        if T(l[i]).startswith("s_add_u32 m0") and T(l[i+1]).startswith("buffer_load"):
            j = i - 1
            while j >= 0 and T(l[j]).startswith("ds_read"): j -= 1
            if j >= 0 and T(l[j]).startswith("v_mfma"):
                s = l.pop(i)
                if j == i - 1: l.insert(j, s)
                elif mode == 1: l.insert(j + 1, s)
                else:
                    L = l.pop(i); l.insert(j + 1, L); l.insert(j, s)
        i += 1
    return l

UPK = [""]
def unpk(t, key):
    if key not in UPK[0]: return t
    out = []
    for l in t.split("\n"):
        m = re.match(r"v_pk_(mul|add|fma)_f32 (.*)", l)
        if not m: out.append(l); continue
        op = m.group(1); rest = m.group(2)
        ops = re.findall(r"([vs])\[(\d+):\d+\]", rest)
        g = lambda k, d: [int(x) for x in re.search(k + r":\[([\d,]+)\]", rest).group(1).split(",")] if k + ":" in rest else d
        n = len(ops) - 1
        hi = g("op_sel_hi", [1]*n); ng = g("neg_lo", [0]*n); assert ng == g("neg_hi", [0]*n) and "op_sel:" not in rest
        for h in range(2):
            src = [("-" if ng[k] else "") + ops[1+k][0] + str(int(ops[1+k][1]) + (h if hi[k] else 0)) for k in range(n)]
            if op != "fma" and src[1][0] == "s": src = src[::-1]
            out.append(f"v_{op}_f32 v{int(ops[0][1]) + h}, " + ", ".join(src))
    return "\n".join(out)

def epi1():
    q = Seq()
    q(f"v_and_b32 v{vG1}, 16, v0\nv_cmp_eq_u32 vcc, 0, v{vG1}\ns_mul_i32 s63, s{sT}, 0x3f80")
    for h in range(5):
        for tt in range(2):
            d = ACC + (h*2 + tt)*4
            if h < 4:
                q(f"v_cvt_pk_bf16_f32 v{d}, v{d}, v{d+1}\nv_cvt_pk_bf16_f32 v{d+1}, v{d+2}, v{d+3}")
                q(f"ds_write_b64 v{vSA}, {vr(d, 2)} offset:{h*1280 + tt*256}")
            else:
                q(f"v_cvt_pk_bf16_f32 v{d+2}, v{d+2}, v{d+3}\nv_mov_b32 v{d+3}, s63")
                q(f"ds_write_b64 v{vST}, {vr(d+2, 2)} offset:{tt*128}")
    for i in range(5): q(f"ds_read_b128 {vr(ACC+4*i, 4)}, v{vSL} offset:{i*1024}")
    q(f"v_cndmask_b32 v{vG1}, v{ACC+36}, v{ACC+32}, vcc\nv_mul_f32 v{vG1}, 0xbfb8aa3b, v{vG1}\nv_exp_f32 v{vG1}, v{vG1}\nv_add_f32 v{vG1}, 1.0, v{vG1}\nv_rcp_f32 v{vG0}, v{vG1}\nv_sub_f32 v{vG1}, 1.0, v{vG0}")
    q(f"s_mul_i32 s63, s{sT}, {KV_KIND}\ns_mul_i32 s3, s{sG}, {2*KV_PAIR}\ns_add_u32 s63, s63, s3\ns_lshl_b32 s3, s{sR}, 2\ns_add_u32 s3, s3, s{sW}\ns_mul_i32 s3, s3, 2560\ns_add_u32 s63, s63, s3\ns_add_u32 s63, s63, {KVO}\ns_add_u32 s3, s63, {KV_PAIR+512}")
    for i in range(5):
        q(f"buffer_store_dwordx4 {vr(ACC+4*i, 4)}, v{vK2 if i == 2 else vL16}, {srd(SWS)}, {'s63' if i < 3 else 's3'} offen offset:{(i % 3)*1024} sc1", "st1")
    return q.l

def sout(A, blk, scale=False):
    q = Seq()
    for h in range(2):
        for tt in range(2):
            d = A + 8*h + 4*tt
            if scale:
                for i in (0, 2): q(unpk(f"v_pk_mul_f32 {vr(d+i, 2)}, {vr(d+i, 2)}, s[{sQS}:{sQS+1}] op_sel_hi:[1,0]", "s"))
            q(f"v_cvt_pk_bf16_f32 v{d}, v{d}, v{d+1}\nv_cvt_pk_bf16_f32 v{d+1}, v{d+2}, v{d+3}")
            q(f"ds_write_b64 v{vSA}, {vr(d, 2)} offset:{(blk + h)*1280 + tt*256}")
    return q.l
def tails():
    q = Seq()
    for tt in range(2):
        for h in range(2):
            d = AX + 16 + 4*tt + 2*h
            q(unpk(f"v_pk_mul_f32 {vr(d, 2)}, {vr(d, 2)}, {vr(vSC, 2)} op_sel_hi:[1,0]\nv_cvt_pk_bf16_f32 v{d}, v{d}, v{d+1}", "t"))
            q(f"ds_write2_b32 v{vTW+h}, v{d}, v{vONE} offset0:{32*tt} offset1:{32*tt+1}")
    return q.l

D2, D1, EM, PT = 160, 176, 192, 210
def phi(vT, kf, ka, km):
    BO = EM; T = PT
    q = Seq()
    q(f"ds_read_b128 {vr(BO, 4)}, v{vBL}\nds_read_b128 {vr(BO+4, 4)}, v{vBH}\nds_read_b64 {vr(BO+8, 2)}, v{vT}")
    q(f"v_mov_b32 v{BO+10}, 0\nv_mov_b32 v{BO+11}, 0")
    rd = q.l
    q = Seq()
    for s in range(3):
        q(f"{M32} {vr(D1, 16)}, {vr(WA1+4*s, 4)}, {vr(BO+4*s, 4)}, {vr(D1, 16) if s else 0}")
        q(f"{M32} {vr(D2, 16)}, {vr(WA2+4*s, 4)}, {vr(BO+4*s, 4)}, {vr(D2, 16) if s else 0}")
    mf = q.l
    q = Seq()
    P = [D1 + i for i in range(16)] + [D2 + 2, D2 + 3]
    E = [EM + i for i in range(18)]
    U = D2
    q(f"v_max3_f32 v{T}, v{P[0]}, v{P[1]}, v{P[2]}\nv_min3_f32 v{T+1}, v{P[0]}, v{P[1]}, v{P[2]}")
    for i in range(3, 17, 2): q(f"v_max3_f32 v{T}, v{T}, v{P[i]}, v{P[i+1]}\nv_min3_f32 v{T+1}, v{T+1}, v{P[i]}, v{P[i+1]}")
    q(f"v_max_f32 v{T}, v{T}, v{P[17]}\nv_min_f32 v{T+1}, v{T+1}, v{P[17]}")
    q(f"v_mul_f32 v{U}, s{sLE}, v{T+1}\nv_mul_f32 v{T}, s{sLE}, v{T}")
    for i in range(0, 18, 2):
        q(unpk(f"v_pk_fma_f32 {vr(E[i], 2)}, {vr(P[i], 2)}, s[{sLE}:{sLE+1}], {vr(U, 2)} op_sel_hi:[1,0,0] neg_lo:[1,0,0] neg_hi:[1,0,0]", kf))
        q(unpk(f"v_pk_fma_f32 {vr(P[i], 2)}, {vr(P[i], 2)}, s[{sLE}:{sLE+1}], {vr(T, 2)} op_sel_hi:[1,0,0] neg_lo:[0,0,1] neg_hi:[0,0,1]", kf))
    for R, S in ((E, T + 2), (P, T + 4)):
        for i in range(0, 18, 2):
            q(f"v_exp_f32 v{R[i]}, v{R[i]}\nv_exp_f32 v{R[i+1]}, v{R[i+1]}")
            if i == 4: q(unpk(f"v_pk_add_f32 {vr(S, 2)}, {vr(R[0], 2)}, {vr(R[2], 2)}", ka))
            if i > 4: q(unpk(f"v_pk_add_f32 {vr(S, 2)}, {vr(S, 2)}, {vr(R[i-2], 2)}", ka))
    for R, S in ((E, T + 2), (P, T + 4)):
        q(unpk(f"v_pk_add_f32 {vr(S, 2)}, {vr(S, 2)}, {vr(R[16], 2)}", ka))
    for S in (T + 2, T + 4): q(f"v_add_f32 v{S}, v{S}, v{S+1}")
    for S in (T + 2, T + 4): q(f"v_rcp_f32 v{S}, v{S}")
    for sg, R, S in ((1, E, T + 2), (0, P, T + 4)):
        for i in range(9):
            q(unpk(f"v_pk_mul_f32 {vr(R[2*i], 2)}, {vr(R[2*i], 2)}, {vr(S, 2)} op_sel_hi:[1,0]\nv_cvt_pk_bf16_f32 v{R[i]}, v{R[2*i]}, v{R[2*i+1]}", km))
            if i == 3: q(f"ds_write_b128 v{vBL}, {vr(R[0], 4)} offset:{sg*5120}")
            if i == 7: q(f"ds_write_b128 v{vBH}, {vr(R[4], 4)} offset:{sg*5120}")
            if i == 8: q(f"ds_write_b32 v{vBT}, v{R[8]} offset:{sg*5120}")
    return rd, mf, q.l

def kvpart():
    D = D1
    rd = []; mf = []
    for b in range(4):
        for m in range(2):
            o = 144 + 8*(b*2 + m)
            for j in range(2):
                rd.append(I(f"ds_read_b64_tr_b16 {ar(o + 2*j, 2)}, v{AD + 2*m + j} offset:{b*SST}"))
                rd.append(I(f"ds_read_b64_tr_b16 {ar(o + 4 + 2*j, 2)}, v{AD + 4 + 2*m + j} offset:{b*SST}"))
            mf.append(I(f"{M32} {vr(D, 16)}, {ar(o, 4)}, {ar(o+4, 4)}, {vr(D, 16) if (b or m) else 0}"))
    q = Seq()
    for i in range(5): q(f"v_cvt_pk_bf16_f32 v{D+i}, v{D+2*i}, v{D+2*i+1}")
    g = Seq()
    g("s_mov_b32 exec_lo, 0xfffff\ns_mov_b32 exec_hi, 0xfffff")
    g(f"buffer_store_dwordx4 {vr(D, 4)}, v{vKS+1}, {srd(SWS)}, s5 offen sc1", "st2")
    g("s_mov_b32 exec_lo, -1\ns_mov_b32 exec_hi, 0")
    g(f"buffer_store_dword v{D+4}, v{vKS}, {srd(SWS)}, s5 offen offset:640 sc1", "st2")
    g("s_mov_b64 exec, -1")
    return rd, mf, q.l + [g.l]

def kv_dma(c):
    q = Seq()
    q(f"s_lshr_b32 s62, s{sW}, 1\ns_mul_i32 s62, s62, {KV_KIND}\ns_mul_i32 s63, s{sP}, {KV_PAIR}\ns_add_u32 s62, s62, s63\ns_add_u32 s62, s62, {KVO - 8*2560}")
    q(f"s_and_b32 s63, s{sW}, 1\ns_mul_i32 s63, s63, 6\ns_lshl_b32 s3, s{sR}, 2\ns_add_u32 s99, s63, s3\ns_mul_i32 s63, s99, 2560\ns_add_u32 s62, s62, s63")
    mksrd(q, SM, 52, 53, "s62", nrec=15360)
    q(f"s_mul_i32 s{sM0x}, s{sW}, 15360\ns_add_u32 s{sM0x}, s{sM0x}, {KVR}")
    pre = q.l; groups = []
    for g in range(3):
        for o, n in ((0, 2), (2048, 3)):
            q = Seq()
            if o == 0: q(f"s_cmp_ge_u32 s99, {8 - 2*g}\ns_cselect_b32 s{SM+2}, 15360, 0")
            q(f"s_add_u32 m0, s{sM0x}, {g*5120 + o}\ns_movk_i32 s19, {g*5120 + o}")
            for i in range(n):
                if i: q = Seq(); q(f"s_add_u32 m0, s{sM0x}, {g*5120 + o}")
                q(f"buffer_load_dwordx4 v{vL16}, {srd(SM)}, s19 offen offset:{i*1024} {c.ldpol} lds", "kv")
                groups.append(q.l)
    return pre, groups

def kv_ready():
    a = Seq()
    a.wait(vm="kv")
    a(f"s_cmp_ge_u32 s{sW}, 2\ns_cbranch_scc1 .Lmk2\ns_add_u32 s63, s99, 6\ns_min_u32 s63, s63, 8\ns_cmp_ge_u32 s99, 8\ns_cbranch_scc1 .Lmk2")
    a(f"v_and_b32 v60, 31, v0\nv_bfe_u32 v61, v0, 5, 1\nv_mul_u32_u24 v61, 1280, v61\nv_lshl_add_u32 v60, v60, 3, v61\nv_add_u32 v60, s{sM0x}, v60\nv_mov_b32 v61, 0xf149")
    a.label(".Lmk")
    a("ds_write_b16 v60, v61 offset:1028", "nocount")
    a("v_add_u32 v60, 2560, v60\ns_add_u32 s99, s99, 1\ns_cmp_lt_u32 s99, s63\ns_cbranch_scc1 .Lmk")
    a("s_waitcnt lgkmcnt(0)")
    a.label(".Lmk2")
    return a.l

WOE = []; WOL = []; APT = 72; KA = 128
def wo_init(c):
    global APT
    WOE[:] = [(8, ct) for ct in range(5)] + [(s, 4) for s in range(8)] + [(s, ct) for s in range(4) for ct in range(4)][:15 if c.s2 else 14]
    WOL[:] = [(s, ct) for s in range(8) for ct in range(4) if (s, ct) not in WOE]
    APT = 64 if c.s2 else 72
def awo(s, ct): return 144 + 4*WOE.index((s, ct)) if (s, ct) in WOE else KA if (APT == 64 and WOL.index((s, ct)) == 16) else 4*WOL.index((s, ct))
SLOT = [(0, 0), (1, 0), (1, 1), (0, 1)]
def wo_loads(c, lst):
    out = []; cur = None
    def ld(sb, t):
        nonlocal cur
        out.append(I(t, "wo") if sb == cur else [I(f"s_add_u32 s101, s100, {sb*WOBLK}"), I(t, "wo")]); cur = sb
    for part in range(2):
        for s, ct in lst:
            if s == 8: ld(part, f"buffer_load_dwordx2 {ar(awo(s, ct) + 2*part, 2)}, v{VT if ct < 4 else VT4}, {srd(SWS)}, s101 offen offset:{ct*128} {c.ldpol}")
    for s, ct in sorted(lst):
        if s < 8 and c.s2:
            br, hd = SLOT[s >> 1]
            ld(4*(s & 1) + br, f"buffer_load_dwordx4 {ar(awo(s, ct), 4)}, v{vWM2 if ct < 4 else V4}, {srd(SWS)}, s101 offen offset:{ct*1024 + hd*512 if ct < 4 else hd*256} {c.ldpol}")
        elif s < 8: ld(s, f"buffer_load_dwordx4 {ar(awo(s, ct), 4)}, v{vL16 if ct < 4 else V4}, {srd(SWS)}, s101 offen offset:{(ct&3)*1024} {c.ldpol}")
    return out

IDS = LDS_TOTAL
def early():
    q = Seq()
    q(f"s_add_u32 s4, s{sOA}, 4096\ns_lshl2_add_u32 s47, s{sP}, s{sW}\ns_mul_i32 s6, s47, 12288\ns_add_u32 s6, s6, {PARO}\ns_mul_i32 s47, s{sR}, 768\ns_add_u32 s5, s6, s47")
    q(f"s_mul_i32 s11, s{sW}, 9216\ns_add_u32 s11, s11, {OPO}")
    for tt in range(4): q(f"s_xor_b32 s47, s{sW}, {tt}\ns_lshl2_add_u32 s47, s{sRT}, s47\ns_mul_i32 s47, s47, 36864\ns_add_u32 s{7+tt}, s47, s11")
    q(f"s_and_b32 s47, s{sW}, 2\ns_add_u32 s47, s47, s{sW}\ns_lshl_b32 s47, s47, 10\ns_add_u32 s11, s47, {WPH + 2048}")
    sa = q.l; q = Seq(); ID = 200; t = 204
    q(f"v_bfe_u32 v{t}, v0, 3, 2\nv_bfe_u32 v{t+1}, v0, 1, 1\nv_lshl_add_u32 v{t}, v{t}, 1, v{t+1}")
    q(f"v_and_b32 v{t+1}, 1, v0\nv_lshlrev_b32 v{t+1}, 4, v{t+1}\nv_lshlrev_b32 v{t+1}, v{t+1}, v{vONE}")
    q(f"v_bfe_u32 v{t+2}, v0, 2, 1\nv_bfe_u32 v{t+3}, v0, 5, 1\nv_cmp_eq_u32 vcc, v{t+2}, v{t+3}\nv_cndmask_b32 v{t+1}, 0, v{t+1}, vcc")
    for i in range(4): q(f"v_cmp_eq_u32 vcc, {i}, v{t}\nv_cndmask_b32 v{ID+i}, 0, v{t+1}, vcc")
    q(f"v_add_u32 v{t}, {IDS}, v{vL16}\nds_write_b128 v{t}, {vr(ID, 4)}")
    for r in (QT, QT+1, QT+4, QT+5, QT+8, QT+9): q(f"v_mov_b32 v{r}, 0")
    return sa, q.l

def g2(a, c):
    side = [[] for _ in range(29)]; side2 = [[] for _ in range(29)]
    def spread(S, items, h0, h1):
        n = len(items)
        for k, it in enumerate(items): S[h0 + k * (h1 - h0) // n].append(it)
    e1 = epi1()
    spread(side, e1[:-5], 0, c.e1n)
    F1S = [W(vm="st1")] + flag_store(F1, sL, False)
    if not c.f1l: side[c.h_f1].append(F1S)
    rd, mf, sm = phi(vBT, 'f', 'a', 'm')
    spread(side, sout(AX, 0) + tails() + rd + mf, 10, 11)
    spread(side, sm, 11, 19)
    if c.f1l: side[c.h_f1].insert(len(side[c.h_f1]) * c.f1l // 4, F1S)
    spread(side2, sout(AY, 2), 16, 17)
    krd, kmf, ks = kvpart()
    spread(side, krd, 19, 21); spread(side2, kmf, 20, 22); side2[21] += ks
    if c.h_f2 < 28: side[c.h_f2].append([W(vm="st2")] + flag_store(F2, sL, True))
    rd, mf, sm = phi(vBT2, 'F', 'A', 'M')
    spread(side, sout(AX, 0) + rd + mf, 22, 23)
    spread(side, sm[:len(sm) - c.phq], 23, 28)
    pre, kd = kv_dma(c)
    side2[c.h_kv - c.pf1].append(poll_issue(vF1, F1, "f1"))
    sa, va = early()
    k = [i for i, x in enumerate(pre) if x.t.startswith("s_addc")][0]
    pre = pre[:k-1] + [pre[k-1:k+1]] + pre[k+1:]
    if c.s3g:
        q = Seq(); setup3(q, c); spread(side, va + q.l, c.h_ea, 10); spread(side2, sa, c.h_ea, 7); spread(side2, pre, 7, 10)
    elif c.h_ea >= 0: spread(side2, sa, c.h_ea, c.h_ea + 3); spread(side, va, c.h_ea, c.h_ea + 3); spread(side, pre, 7, 10)
    else: spread(side, va[-6:], 5, 9)
    side2[c.h_kv].insert(0, poll_check(vF1, F1, "f1"))
    vm = [[] for _ in range(29)]
    ws = wsched(c); wl = {}; SK = [int(x, 36) for x in c.bsk]
    assert not set(SK) & {9, 18, 19, 22}
    for m in range(9, 23):
        for hf in range(2):
            H = 2*(m - 9) + hf
            for n in ws[(m, hf)]:
                d = dma_w(c, n)
                wl[n] = H + (1 if c.w3l else 0)
                for i in range(3): vm[H + ((i + 1) // 3 if c.w3l else 0)].append([d[0]] + d[1+i: 2+i if i < 2 else 9])
    spread(vm, kd, c.h_kv, c.h_kv + c.n_kv)
    for k, h in enumerate([int(x, 36) for x in c.e1s]): vm[h].append(e1[k-5])
    if c.s2 and c.po and c.pop >= 20:
        p1, p2 = poison(208); side2[c.pop - 20].insert(0, p1)
        for k, x in enumerate(p2): vm[c.pop - 20 + (k + 1) * c.pon // 6].append(x)
    FO = g3a.FO if (c.wol == 1 or c.sfo) else F1
    if c.sfo:
        assert c.pop >= 20 and c.pop - 20 + 5 * c.pon // 6 < c.h_fo < c.h_pfo
        side[c.h_fo].append([W(vm=["poi", "stw"])] + flag_store(FO, sL, False))
    else: assert c.pop - 20 + 5 * c.pon // 6 < int(c.e1s[-1], 36)
    if c.wol == 1:
        d = wo_dma(SX, SW1); vm[0].append(d[0]); vm[1].append(d[1])
        p1, p2 = wo_repack(PT - 12, SW1)
        side2[9].append(p1); vm[10].append(p2[:4]); vm[10].append(p2[4:])
        side[c.h_fo].append([W(vm="stw")] + flag_store(FO, sL, False))
    side2[c.h_pfo].append(poll_issue(vFO, FO, "fo"))
    for m in range(9, 23):
        for hf in range(2):
            H = 2*(m - 9) + hf
            mf = g2_mm(m, hf)
            rd = g2_rd(m, 1) if hf == 0 else g2_rd(m + 1, 0) if m < 22 else []
            it = [(k, r) for k, r in enumerate(rd)] + [((2*k + 1) * len(mf) // (2*len(vm[H])), x) for k, x in enumerate(vm[H])]
            for S in (side[H], side2[H]): it += [(k * len(mf) // len(S), x) for k, x in enumerate(S)]
            it.sort(key=lambda x: x[0])
            a(put(mf, it))
            if hf == 0 and m not in SK:
                if c.stp & 8: stamp(a, c)
                nk = m + 1
                while nk in SK: nk += 1
                full = (m + 1 in SK) or (nk + 1 in SK) or m >= c.ful or m in [int(x, 36) for x in c.fus]
                assert m == 22 or wl.get(nk, -1) <= H, (m, nk, wl)
                if m < 22: a.wait(vm=[f"w{j}" for j in range(m + 1, nk + 1)] + (["wos"] if m == 13 else [])); a.wait(lg=0 if (m in (18, 19) or c.dep == NW) else [f"f{m}_0", f"f{m}_1"] if full else f"f{m}_0")
                else: a(poll_check(vFO, FO, "fo")); a(kv_ready())
                a("s_barrier")
                if c.stp & 2: stamp(a, c)
    a(sout(AY, 2, True))
    for hd in range(2):
        a(f"ds_read_b128 {vr(Q0 + 4*hd, 4)}, v{vQM} offset:{2560 + hd*1280}\nds_read_b64 {vr(QT + 2 + 4*hd, 2)}, v{vQT} offset:{hd*1024}")
    return sm[len(sm) - c.phq:]

Q0, QT, OB0, OB1, KM, KT, VV, MX = 10, 18, 28, 44, 60, 68, 76, 92
TL = 236
def ST(i): return 96 + 16*i
ORDER = [0, 8, 1, 2, 3, 4, 5, 6, 7]
def sdst(t): return OB1 if t == 0 else ST(0) if t == 8 else ST(t)
def k_rd(hd, n):
    t = ORDER[n]; o = t*2560 + hd*1280
    return [I(f"ds_read_b128 {vr(KM + 4*(n&1), 4)}, v{vKL} offset:{o}"),
            I(f"ds_read_b64 {vr(KT + 4*((n>>1)&1) + 2*(n&1), 2)}, v{vKT} offset:{o}")]
def qk(hd, n):
    d = vr(sdst(ORDER[n]), 16)
    return [I(f"{M32} {d}, {vr(KM + 4*(n&1), 4)}, {vr(Q0 + 4*hd, 4)}, 0"),
            I(f"{M32} {d}, {vr(KT + 4*((n>>1)&1), 4)}, {vr(QT + 4*hd + (0 if n & 1 else 2), 4)}, {d}")]
def merge(): return [I(f"v_cndmask_b32 v{ST(0)+r}, v{OB1+r}, v{ST(0)+r}, s[{64+2*r}:{65+2*r}]") for r in range(16)]
def mx(i):
    out = []
    for j in range(8):
        m = MX + (j & 1); x = ST(i) + 2*j
        if i == 0 and j < 2: out.append(I(f"v_max_f32 v{m}, v{x}, v{x+1}"))
        else: out.append(I(f"v_max3_f32 v{m}, v{m}, v{x}, v{x+1}"))
    return out
def mx_fin():
    q = Seq()
    q(f"v_max_f32 v{MX}, v{MX}, v{MX+1}\nv_mov_b32 v{MX+1}, v{MX}\nv_permlane32_swap_b32 v{MX}, v{MX+1}\nv_max_f32 v{MX}, v{MX}, v{MX+1}")
    q(f"v_and_b32 v{MX+1}, 0xffff0000, v{MX}\nv_sub_f32 v{MX}, v{MX+1}, v{MX}\nv_cvt_pk_bf16_f32 v{CM}, -v{MX+1}, v{MX}")
    return q.l
def sub(i):
    d = vr(ST(i), 16)
    return I(f"{M32} {d}, {vr(CM+2, 4)}, {vr(CM, 4)}, {d}")
def ex(i):
    out = []; b = ST(i)
    for j in range(8):
        out += [I(f"v_exp_f32 v{b+2*j}, v{b+2*j}"), I(f"v_exp_f32 v{b+2*j+1}, v{b+2*j+1}")]
        if j: out.append(I(f"v_cvt_pk_bf16_f32 v{b+j-1}, v{b+2*j-2}, v{b+2*j-1}"))
    out.append(I(f"v_cvt_pk_bf16_f32 v{b+7}, v{b+14}, v{b+15}"))
    if i == 0:
        for j in range(8): out.append(I(f"v_and_b32 v{b+8+j}, v{PM+j}, v{b+j}"))
        for j in range(8): out.append(I(f"v_xor_b32 v{b+j}, v{b+8+j}, v{b+j}"))
    return out
def v_rd(hd, n):
    t = ORDER[n]
    return [I(f"ds_read_b64_tr_b16 {vr(VV + 8*(n&1) + 2*i, 2)}, v{vTR+i} offset:{t*2560 + hd*1280}") for i in range(4)]
def pv(hd, n):
    t = ORDER[n]; o = vr(OB0 if hd == 0 else OB1, 16)
    p = ST(0) if t == 0 else ST(0) + 8 if t == 8 else ST(t)
    return [I(f"{M32} {o}, {vr(VV + 8*(n&1), 4)}, {vr(p, 4)}, {o if n else 0}"),
            I(f"{M32} {o}, {vr(VV + 8*(n&1) + 4, 4)}, {vr(p + 4, 4)}, {o}")]
def fin(u, O, c):
    q = Seq(); t = O + 10
    if u >= 2: q(f"v_add_f32 v{t}, 0x358637bd, v{t}")
    q(f"v_rcp_f32 v{t}, v{t}\nv_mul_f32 v{t}, v{vG0 if u >= 2 else vG1}, v{t}")
    for i in range(5):
        q(unpk(f"v_pk_mul_f32 {vr(O+2*i, 2)}, {vr(O+2*i, 2)}, {vr(t, 2)} op_sel_hi:[1,0]\nv_cvt_pk_bf16_f32 v{O+12+i if i < 4 else TL+u}, v{O+2*i}, v{O+2*i+1}", str(u)))
    sl = [0, 3, 1, 2][u]
    if c.s2: q(f"buffer_store_dwordx4 {vr(O+12, 4)}, v{vOA}, {srd(SWS)}, s{4 if sl >= 2 else sOA} offen offset:{(sl & 1)*2048} sc1", "st3b" if u == 1 else "st3a")
    else: q(f"buffer_store_dwordx4 {vr(O+12, 4)}, v{vOA}, {srd(SWS)}, s{sOA} offen offset:{u*512} sc1", "st3")
    return q.l
def par_loads(c):
    q = Seq(); VP = 245
    q(f"v_min_u32 v{VP}, {44*16}, v{vL16}")
    out = [q.l]
    for r in range(16):
        out.append([I(f"buffer_load_dwordx4 {ar(APT + 4*r, 4)}, v{VP}, {srd(SWS)}, s6 offen offset:{(r % 6)*768} {c.ldpol}", "pl")] + ([I("s_add_u32 s6, s6, 4608")] if r % 6 == 5 else []))
    return out
def kvsum():
    q = Seq(); ID = Q0; t = Q0 + 4
    q(f"v_bfe_u32 v{t}, v0, 3, 2\nv_bfe_u32 v{t+1}, v0, 1, 1\nv_lshl_add_u32 v{t}, v{t}, 1, v{t+1}")
    q(f"v_and_b32 v{t+1}, 1, v0\nv_lshlrev_b32 v{t+1}, 4, v{t+1}\nv_mov_b32 v{t+2}, 0x3f80\nv_lshlrev_b32 v{t+1}, v{t+1}, v{t+2}")
    q(f"v_bfe_u32 v{t+2}, v0, 2, 1\nv_bfe_u32 v{t+3}, v0, 5, 1\nv_cmp_eq_u32 vcc, v{t+2}, v{t+3}\nv_cndmask_b32 v{t+1}, 0, v{t+1}, vcc")
    for i in range(4): q(f"v_cmp_eq_u32 vcc, {i}, v{t}\nv_cndmask_b32 v{ID+i}, 0, v{t+1}, vcc")
    pre = [q.l]
    o = vr(OB0, 16)
    mf = [I(f"{M32} {o}, {vr(ID, 4)}, {ar(APT + 4*r, 4)}, {o if r else 0}") for r in range(16)]
    q = Seq()
    q(f"s_lshl_b32 s62, s{sW}, 10\ns_add_u32 s62, s62, {KVS}\nv_add_u32 v{t}, s62, v{vL16}")
    for i in range(4): q(f"v_cvt_pk_bf16_f32 v{OB0+i}, v{OB0+2*i}, v{OB0+2*i+1}")
    q(f"ds_write_b128 v{t}, {vr(OB0, 4)}")
    return pre, mf, q.l
def a_apply(T, O):
    q = Seq(); t = Q0
    q(f"v_and_b32 v{t}, 31, v0\nv_and_b32 v{t+1}, 19, v0\nv_cmp_gt_u32 vcc, 16, v{t}\nv_cndmask_b32 v{t}, v{t+1}, v{t}, vcc\nv_bfe_u32 v{t+1}, v0, 5, 1")
    q(f"v_mul_u32_u24 v{t+2}, 320, v{t+1}\nv_lshl_add_u32 v{t+2}, v{t}, 4, v{t+2}\nv_add_u32 v{t+2}, {KVS}, v{t+2}")
    q(f"v_lshlrev_b32 v{t+3}, 11, v{t+1}\nv_lshl_add_u32 v{t+3}, v{t}, 2, v{t+3}\nv_add_u32 v{t+3}, {KVS + 640}, v{t+3}")
    q(f"s_mul_i32 s62, s{sW}, 5120\ns_add_u32 s62, s62, {STG - KVR}\nv_add_u32 v{t}, s62, v{vKL}\nv_mul_u32_u24 v{t+1}, 5120, v{t+1}\nv_add3_u32 v{t+1}, v{t+1}, s62, v{vKT}")
    for hd in range(2):
        b = T + 24*hd
        q(f"ds_read_b128 {vr(b+14, 4)}, v{t} offset:{hd*1280}\nds_read_b128 {vr(b+18, 4)}, v{t} offset:{5120 + hd*1280}\nds_read_b32 v{b+12}, v{t+1} offset:{hd*1280}")
        for r in (9, 10, 11, 13): q(f"v_mov_b32 v{b+r}, 0")
    pre = q.l
    q = Seq()
    for hd in range(2):
        b = T + 24*hd
        q(f"ds_read_b128 {vr(b, 4)}, v{t+2} offset:{hd*1024}\nds_read_b128 {vr(b+4, 4)}, v{t+2} offset:{2048 + hd*1024}\nds_read_b32 v{b+8}, v{t+3} offset:{hd*1024}")
    for hd in range(2):
        b = T + 24*hd; o = vr(O[hd], 16)
        q(f"{M32} {o}, {vr(b, 4)}, {vr(b+14, 4)}, 0\n{M32} {o}, {vr(b+4, 4)}, {vr(b+18, 4)}, {o}\n{M32} {o}, {vr(b+8, 4)}, {vr(b+12, 4)}, {o}")
    return pre, q.l

def attention(a, c, rest):
    ld = wo_loads(c, WOE[:13])
    wl = wo_loads(c, WOE[13:] + WOL)
    a(k_rd(0, 0) + k_rd(0, 1) + [k_rd(0, 2)[1], k_rd(0, 3)[1]])
    k = len(rest) // 2
    a(rest[:k]); rest = rest[k:]
    if c.stp & 4: stamp(a, c)
    for n in range(9):
        a(qk(0, n))
        if n + 2 < 9: a(k_rd(0, n + 2)[:1 if n < 2 else 2])
        for _ in range(3):
            if ld: a(ld.pop(0))
        if n < 3: a(rest[n*len(rest)//3: (n+1)*len(rest)//3])
        if n == 3: a(merge())
        if n >= 4: a(mx(n - 4))
        if n == c.h_f2 - 28: a([W(vm="st2")] + flag_store(F2, sL, True))
    a(k_rd(1, 0) + k_rd(1, 1) + v_rd(0, 0) + v_rd(0, 1))
    a(qk(1, 0))
    for i in range(5, 8): a(mx(i))
    ld = wl[:2*c.f2n - 1] + [poll_issue(vF2, F2, "f2")] + wl[2*c.f2n - 1: 2*c.f2n + 3]
    ld += [poll_check(vF2, F2, "f2")] + par_loads(c) + wl[2*c.f2n + 3:]
    stamp(a, c)
    for hd in range(2):
        a(mx_fin())
        a(sub(0)); a(sub(1))
        if hd == 1:
            kpre, kmf, kfin = kvsum()
            a(fin(0, OB0, c)); a(kpre)
        for i in range(9):
            main = ex(i) if i < 8 else []
            fill = []
            if i + 2 < 8: fill.append(sub(i + 2))
            if i >= 1:
                ns = [0, 1] if i == 1 else [i]
                for n in ns:
                    fill += pv(hd, n)
                    if n + 2 < 9: fill += v_rd(hd, n + 2)
                if hd == 0:
                    fill += qk(1, i)
                    if i + 1 < 9: fill += k_rd(1, i + 1)
                    if i == 3: main += merge()
                    if i >= 4: main += mx(i - 4)
            if hd == 1 and 2 <= i <= 5: fill += kmf[4*(i-2): 4*i-4]
            if hd == 1 and i == 7: main += kfin
            for _ in range(3 if i else 2):
                if ld: fill.append(ld.pop(0))
            if main: a(weave(main, fill))
            else: a(fill)
        if hd == 0:
            a(v_rd(1, 0) + v_rd(1, 1))
            for i in range(5, 8): a(mx(i))
        stamp(a, c)
    assert not ld
    apre, amf = a_apply(ST(2), [ST(0), ST(1)])
    a(apre)
    a.wait(lg=0); a("s_barrier")
    a(amf)
    a(fin(1, OB1, c))
    a(fin(2, ST(0), c)); a(fin(3, ST(1), c))
    a(f"s_mov_b32 exec_hi, 0\nbuffer_store_dwordx4 {vr(TL, 4)}, v{vOT}, {srd(SWS)}, s{sOT} offen sc1\ns_mov_b32 exec_hi, -1", "st3")
    a.wait(vm="st3")
    a(flag_store(F3, sL, True))

def p3(a, c):
    OP, AC = 0, 144
    V1, V2, VW, VO = 236, 237, 238, 241
    a(poll_issue(vF3, F3, "f3"))
    a(f"v_add_u32 v{V1}, 4096, v{vL16}\nv_add_u32 v{V2}, 8192, v{vL16}")
    for tt in range(4):
        a(f"s_add_u32 s62, s{sW}, {tt}\ns_and_b32 s62, s62, 3")
        if tt: a(f"s_mul_i32 s63, s62, 15360\ns_add_u32 s63, s63, {(tt-1)*5120}\nv_add_u32 v{VW+tt-1}, s63, v{vL16}")
        a(f"s_lshl_b32 s63, s{sRT}, 2\ns_add_u32 s62, s62, s63\ns_mul_i32 s62, s62, 36864\ns_mul_i32 s63, s{sW}, 9216\ns_add_u32 s62, s62, s63\ns_add_u32 s{64+tt}, s62, {OPO}")
    a(f"v_and_b32 v{VO}, 15, v0\nv_mul_u32_u24 v{VO}, 1152, v{VO}\nv_bfe_u32 v{VO+1}, v0, 4, 1\nv_lshl_add_u32 v{VO+1}, v{VO+1}, 3, v{VO}\nv_and_b32 v254, 48, v0\nv_add_u32 v{VO}, v254, v{VO}")
    a(f"s_lshl_b32 s62, s{sRT}, 2\ns_add_u32 s62, s62, s{sW}\ns_mul_i32 s62, s62, {16*1152}\ns_mul_i32 s63, s{sCB}, 144\ns_add_u32 s68, s62, s63")
    a(f"s_mul_i32 s62, s{sW}, 15360\nv_add_u32 v254, s62, v{vL16}")
    mksrd(a, SM, 48, 49, nrec=2048*1152)
    a(poll_check(vF3, F3, "f3"))
    stamp(a, c)
    for s in range(9):
        for tt in range(4):
            a(f"buffer_load_dwordx4 {vr(OP + (s*4 + tt)*4, 4)}, v{[vL16, V1, V2][s >> 2]}, {srd(SWS)}, s{64+tt} offen offset:{(s & 3)*1024} {c.ldpol}")
    for s in range(9):
        for tt in ([0, 1, 2, 3] if s < 8 else [1, 2, 3, 0]):
            for ct in range(5):
                d = vr(AC + (tt*5 + ct)*4, 4)
                a(f"{M16} {d}, {ar(awo(s, ct), 4)}, {vr(OP + (s*4 + tt)*4, 4)}, {d if s else 0}")
    stamp(a, c)
    for tt in range(1, 4):
        for ct in range(5): a(f"ds_write_b128 v{VW+tt-1}, {vr(AC + (tt*5 + ct)*4, 4)} offset:{ct*1024}")
    a.wait(lg=0); a("s_barrier")
    for ct in range(5):
        for sl in range(3): a(f"ds_read_b128 {vr((ct*3 + sl)*4, 4)}, v254 offset:{sl*5120 + ct*1024}")
    for ct in range(5):
        d = AC + ct*4; b = ct*12
        for i in (0, 2): a(f"v_pk_add_f32 {vr(d+i, 2)}, {vr(d+i, 2)}, {vr(b+i, 2)}\nv_pk_add_f32 {vr(b+4+i, 2)}, {vr(b+4+i, 2)}, {vr(b+8+i, 2)}")
        for i in (0, 2): a(f"v_pk_add_f32 {vr(d+i, 2)}, {vr(d+i, 2)}, {vr(b+4+i, 2)}")
        a(f"v_cvt_pk_bf16_f32 v{64+2*ct}, v{d}, v{d+1}\nv_cvt_pk_bf16_f32 v{65+2*ct}, v{d+2}, v{d+3}")
        if ct in (1, 3): a(f"buffer_store_dwordx4 {vr(64 + 2*(ct-1), 4)}, v{VO}, {srd(SM)}, s68 offen offset:{32*(ct-1)}")
        if ct == 4: a(f"s_mov_b32 exec_hi, 0\nbuffer_store_dwordx2 {vr(72, 2)}, v{VO+1}, {srd(SM)}, s68 offen offset:128\ns_mov_b32 exec_hi, -1")

def kvsum2():
    q = Seq(); ID = Q0; t = QT
    q(f"v_add_u32 v{ID}, {IDS}, v{vL16}\nv_add_u32 v95, s11, v{vL16}\nds_read_b128 {vr(ID, 4)}, v{ID}")
    pre = q.l
    o = ar(KA, 16)
    mf = [I(f"{M32} {o}, {vr(ID, 4)}, {ar(APT + 4*r, 4)}, {o if r else 0}") for r in range(16)]
    q = Seq()
    R = [ID, ID+1, ID+2, ID+3, t, t+1, t+2, t+3]
    for i in range(8): q(f"v_accvgpr_read_b32 v{R[i]}, a{KA+i}")
    for i in range(4): q(f"v_cvt_pk_bf16_f32 v{ID+i}, v{R[2*i]}, v{R[2*i+1]}")
    q(f"ds_write_b128 v95, {vr(ID, 4)}")
    return pre, mf, q.l
def a_apply2(T, O):
    q = Seq(); t0, t1, t2, t3 = 94, vBH, vBL, 94
    q(f"v_and_b32 v{t0}, 31, v0\nv_and_b32 v{t1}, 19, v0\nv_cmp_gt_u32 vcc, 16, v{t0}\nv_cndmask_b32 v{t0}, v{t1}, v{t0}, vcc\nv_bfe_u32 v{t1}, v0, 5, 1")
    q(f"v_mul_u32_u24 v{t2}, 320, v{t1}\nv_lshl_add_u32 v{t2}, v{t0}, 4, v{t2}\nv_add_u32 v{t2}, {WPH + 2048}, v{t2}")
    q(f"v_lshl_add_u32 v{t3}, v{t1}, 10, v{t0}\nv_lshlrev_b32 v{t3}, 2, v{t3}\nv_add_u32 v{t3}, {WPH + 2048 + 640}, v{t3}")
    q(f"v_mul_u32_u24 v{t1}, 3840, v{t1}\nv_add_u32 v{t1}, v{t1}, v{vBT}")
    adr = q.l; q = Seq(); t0 = vQM
    for hd in range(2):
        b = T + 24*hd
        q(f"ds_read_b128 {ar(b+14, 4)}, v{t0} offset:{hd*1280}\nds_read_b128 {ar(b+18, 4)}, v{t0} offset:{5120 + hd*1280}\nds_read_b32 a{b+12}, v{t1} offset:{hd*1280}")
    pre = q.l
    q = Seq()
    for hd in range(2):
        b = T + 24*hd
        q(f"ds_read_b128 {ar(b, 4)}, v{t2} offset:{hd*1024}\nds_read_b128 {ar(b+4, 4)}, v{t2} offset:{4096 + hd*1024}\nds_read_b32 a{KA+8+4*hd}, v{t3} offset:{hd*1024}")
    for hd in range(2):
        b = T + 24*hd; o = vr(O[hd], 16)
        q(f"{M32} {o}, {ar(b, 4)}, {ar(b+14, 4)}, 0\n{M32} {o}, {ar(b+4, 4)}, {ar(b+18, 4)}, {o}\n{M32} {o}, {ar(KA+8+4*hd, 4)}, {ar(b+12, 4)}, {o}")
    return adr, pre, q.l

P1, P2, PW, PO, PR = 28, 29, 30, 33, 35
def p3_addr():
    a = Seq()
    a(f"v_add_u32 v{P1}, 4096, v{vL16}\nv_add_u32 v{P2}, 8192, v{vL16}\nv_lshl_add_u32 v{PR}, s{sW}, 14, v{vL16}")
    for tt in range(1, 4): a(f"v_xor_b32 v{PW+tt-1}, {tt << 14}, v{PR}")
    a(f"v_and_b32 v{PO}, 15, v0\nv_mul_u32_u24 v{PO}, 1152, v{PO}\nv_bfe_u32 v{PO+1}, v0, 4, 1\nv_lshl_add_u32 v{PO+1}, v{PO+1}, 3, v{PO}\nv_and_b32 v36, 48, v0\nv_add_u32 v{PO}, v36, v{PO}")
    a(f"s_lshl2_add_u32 s62, s{sRT}, s{sW}\ns_mul_i32 s62, s62, {16*1152}\ns_mul_i32 s63, s{sCB}, 144\ns_add_u32 s68, s62, s63")
    mksrd(a, SM, 48, 49, nrec=2048*1152)
    return a.l

PDW = [0]
def poison(T, vr=ar):
    q = Seq()
    if PDW[0]:
        q(f"v_accvgpr_write_b32 a{T}, -1")
        g = [[I(f"s_add_u32 s62, s{sOA}, {sl*2048}"), I(f"buffer_store_dword a{T}, v{vOA}, {srd(SWS)}, s62 offen sc1", "poi")] for sl in range(4)]
        g.append([I("s_mov_b32 exec_hi, 0"), I(f"buffer_store_dword a{T}, v{vOT}, {srd(SWS)}, s{sOT} offen sc1", "poi"), I("s_mov_b32 exec_hi, -1")])
        return q.l, g
    for i in range(4): q(f"v_accvgpr_write_b32 a{T+i}, -1")
    g = []
    for sl in range(4):
        g.append([I(f"s_add_u32 s62, s{sOA}, {sl*2048}"), I(f"buffer_store_dwordx4 {vr(T, 4)}, v{vOA}, {srd(SWS)}, s62 offen sc1", "poi")])
    g.append([I("s_mov_b32 exec_hi, 0"), I(f"buffer_store_dwordx4 {vr(T, 4)}, v{vOT}, {srd(SWS)}, s{sOT} offen sc1", "poi"), I("s_mov_b32 exec_hi, -1")])
    return q.l, g

def attention2(a, c, rest):
    e = wo_loads(c, WOE[:c.ne])
    wl = wo_loads(c, WOE[c.ne:] + WOL[:16]); wlast = wo_loads(c, WOL[16:])
    for x in flat(wlast):
        if x.tag == "wo": x.tag = "pe"
    pl = par_loads(c)
    A = [[] for _ in range(9)]; B = [[] for _ in range(18)]
    gb = c.ks0 + c.kn
    if c.a2n >= 0:
        for k, x in enumerate(e): A[k * c.a2n // len(e)].append(x)
        A[max(c.a2n - 2, 0)].append(poll_issue(vF2, F2, "f2"))
        A[c.a2n].append(poll_check(vF2, F2, "f2"))
        for k, x in enumerate(pl): A[c.a2n + k * (9 - c.a2n) // len(pl)].append(x)
    else:
        for k, x in enumerate(e): A[c.a0 + k // c.na].append(x)
        if c.f2n >= 2: B[c.f2n - 2].append(poll_issue(vF2, F2, "f2"))
        else: A[7 + c.f2n].append(poll_issue(vF2, F2, "f2"))
        B[c.f2n].append(poll_check(vF2, F2, "f2") + pl[0])
        for k, x in enumerate(pl[1:]): B[c.f2n + k // c.npl].append(x)
    if c.po:
        for k in range(c.pe): B[min(c.peg + k // c.pen, 17)].append(ldo(k >> 2, k & 3, "pe"))
    for g, n in enumerate(c.wc):
        assert g <= gb
        for k in range(int(n)):
            x = wl.pop(0)
            if c.wci: B[g].insert(min(len(B[g]), 2*k + (1 if g in (c.f2n, c.f2n - 2) else 0) + 1), x)
            else: B[g].append(x)
    assert not (c.wc and wl)
    for g in range(18):
        while wl and len(B[g]) < c.nwl and g not in (9, gb + 1, gb + 2): B[g].append(wl.pop(0))
    assert not wl
    B[min(gb + c.wlg, 17)][:0] = wlast
    a(k_rd(0, 0) + k_rd(0, 1) + [k_rd(0, 2)[1], k_rd(0, 3)[1]])
    k = len(rest) // 2
    a(rest[:k]); rest = rest[k:]
    if c.stp & 4: stamp(a, c)
    for n in range(9):
        a(qk(0, n))
        if n + 2 < 9: a(k_rd(0, n + 2)[:1 if n < 2 else 2])
        a(A[n])
        if n < 3: a(rest[n*len(rest)//3: (n+1)*len(rest)//3])
        if n == 3: a(merge())
        if n >= 4: a(mx(n - 4))
        if n == c.h_f2 - 28: a([W(vm="st2")] + flag_store(F2, sL, True))
    a(k_rd(1, 0) + k_rd(1, 1) + v_rd(0, 0) + v_rd(0, 1))
    a(qk(1, 0))
    for i in range(5, 8): a(mx(i))
    stamp(a, c)
    kpre, kmf, kfin = kvsum2()
    O2, O3 = Q0, KM
    adr, apre, amf = a_apply2(APT, [O2, O3])
    assert gb >= 8
    for hd in range(2):
        a(mx_fin())
        a(sub(0)); a(sub(1))
        if hd == 1: a(fin(0, OB0, c))
        for i in range(9):
            g = 9*hd + i
            main = ex(i) if i < 8 else []
            fill = []
            if g == gb + 1: a(amf)
            if i + 2 < 8: fill.append(sub(i + 2))
            if i >= 1:
                ns = [0, 1] if i == 1 else [i]
                for n in ns:
                    fill += pv(hd, n)
                    if n + 2 < 9: fill += v_rd(hd, n + 2)
                if hd == 0:
                    fill += qk(1, i)
                    if i + 1 < 9: fill += k_rd(1, i + 1)
                    if i == 3: main += merge()
                    if i >= 4: main += mx(i - 4)
            if g == 1: main += kpre
            if g == 2: main += adr
            if c.ks0 <= g < gb: fill += kmf[16*(g-c.ks0)//c.kn: 16*(g-c.ks0+1)//c.kn]
            if g == gb: main += kfin + apre
            if g == gb + 1: main += fin(2, O2, c)
            if g == gb + 2: main = fin(3, O3, c) + main
            if c.po:
                if g == 10: fill.append(poll_issue(vF3, F1 if c.pop < 23 else F2, "f3"))
            else:
                if g == 9 + c.f3n: fill.append([W(vm="st3a")] + flag_store(F3))
                if g == 17: fill.append(poll_issue(vF3, F3, "f3"))
            fill += B[g]
            if main: a(weave(main, fill))
            else: a(fill)
            if g == 8: a(v_rd(1, 0) + v_rd(1, 1))
            if g == gb: a.wait(lg=0); a("s_barrier")
            if c.po and g == 13: a(poll_check(vF3, F1 if c.pop < 23 else F2, "f3"))
        if hd == 0:
            for i in range(5, 8): a(mx(i))
        stamp(a, c)
    a(fin(1, OB1, c))
    a(f"s_mov_b32 exec_hi, 0\nbuffer_store_dwordx4 {vr(TL, 4)}, v{vOT}, {srd(SWS)}, s{sOT} offen sc1\ns_mov_b32 exec_hi, -1", "st3b")

stubs = Seq()
OPB = [96, 112, 128, 60, 76, 10]
OP = lambda s, tt: OPB[s % 6] + 4*tt
ldo = lambda s, tt, tag=None: I(f"buffer_load_dwordx4 {vr(OP(s, tt), 4)}, v{[vL16, P1, P2][s >> 2]}, {srd(SWS)}, s{7+tt} offen offset:{(s & 3)*1024} sc1", tag)
def p3_2(a, c):
    AC = 144
    def mmo(s, tt):
        return [I(f"{M16} {vr(AC + (tt*5 + ct)*4, 4)}, {ar(awo(s, ct), 4)}, {vr(OP(s, tt), 4)}, {vr(AC + (tt*5 + ct)*4, 4) if s else 0}") for ct in range(5)]
    def chk(nm, L):
        r = [OP(*x) for x in L]
        t = f"v_max3_u32 v94, v{r[0]}, v{r[1]}, v{r[2]}\n" + (f"v_max_u32 v94, v94, v{r[3]}\n" if len(r) > 3 else "") + f"v_cmp_eq_u32 vcc, -1, v94\ns_cbranch_vccnz .Lr{nm}"
        a(t); a.label(f".Lb{nm}")
        stubs.label(f".Lr{nm}")
        stubs(f"s_cmp_eq_u32 s69, 0\ns_cbranch_scc1 .Lb{nm}\ns_sub_u32 s69, s69, 1")
        stubs([ldo(*x, "nocount") for x in L])
        stubs("s_waitcnt vmcnt(0)"); stubs(t); stubs(f"s_branch .Lb{nm}")
    wr = lambda tt: [I(f"ds_write_b128 v{PW+tt-1}, {vr(AC + (tt*5 + ct)*4, 4)} offset:{ct*1024}") for ct in range(5)]
    TO = (1, 2, 3, 0)
    if c.po:
        a("s_mov_b32 s69, 300000")
        for k in range(c.pe, 24): a(ldo(k >> 2, k & 3))
        lb = [ldo(s, tt) for tt in TO for s in (6, 7, 8)]
        for s in range(6):
            chk(f"a{s}", [(s, tt) for tt in range(4)])
            if c.stp & 16: stamp(a, c)
            m = flat([mmo(s, tt) for tt in range(4)])
            if s == c.p3d + 1 and s >= 3: m = put(m, [(k, x) for k, x in enumerate(lb)]); lb = []
            a(m)
        a(lb)
        stamp(a, c)
    else:
        a(poll_check(vF3, F3, "f3", F3B))
        stamp(a, c)
        for k in range(24):
            if k == c.nfl: a([W(vm="st3b")] + flag_store(F3B))
            a(ldo(k >> 2, k & 3))
        if c.nfl >= 24: a([W(vm="st3b")] + flag_store(F3B))
        a(poll_issue(vF3, F3B, "f3b"))
        for k in range(24): a(mmo(k >> 2, k & 3))
        stamp(a, c)
        a(poll_check(vF3, F3B, "f3b"))
        stamp(a, c)
        for tt in TO:
            for s in (6, 7, 8): a(ldo(s, tt))
    prev = None
    for tt in TO:
        if c.po: chk(f"b{tt}", [(s, tt) for s in (6, 7, 8)])
        if c.stp & 16: stamp(a, c)
        m = mmo(6, tt) + mmo(7, tt) + mmo(8, tt)
        a(put(m, [(2 + 2*k, x) for k, x in enumerate(wr(prev))]) if prev else m)
        prev = tt
    stamp(a, c)
    if c.po and c.stamps: a(f"v_writelane_b32 v{vSTAMP}, s69, 31\ns_mov_b32 s69, 300000\nv_writelane_b32 v{vSTAMP}, s69, 30")
    a.wait(lg=0); a("s_barrier")
    if c.stp & 16: stamp(a, c)
    RB = 60; OC = 40
    for ct in range(5):
        for sl in range(3): a(f"ds_read_b128 {vr(RB + (ct*3 + sl)*4, 4)}, v{PR} offset:{sl*5120 + ct*1024}")
    for ct in range(5):
        d = AC + ct*4; b = RB + ct*12
        for i in (0, 2): a(f"v_pk_add_f32 {vr(d+i, 2)}, {vr(d+i, 2)}, {vr(b+i, 2)}\nv_pk_add_f32 {vr(b+4+i, 2)}, {vr(b+4+i, 2)}, {vr(b+8+i, 2)}")
        for i in (0, 2): a(f"v_pk_add_f32 {vr(d+i, 2)}, {vr(d+i, 2)}, {vr(b+4+i, 2)}")
        a(f"v_cvt_pk_bf16_f32 v{OC+2*ct}, v{d}, v{d+1}\nv_cvt_pk_bf16_f32 v{OC+1+2*ct}, v{d+2}, v{d+3}")
        if ct in (1, 3): a(f"buffer_store_dwordx4 {vr(OC + 2*(ct-1), 4)}, v{PO}, {srd(SM)}, s68 offen offset:{32*(ct-1)}")
        if ct == 4: a(f"s_mov_b32 exec_hi, 0\nbuffer_store_dwordx2 {vr(OC+8, 2)}, v{PO+1}, {srd(SM)}, s68 offen offset:128\ns_mov_b32 exec_hi, -1")

def p3_3(a, c):
    AC = 144; RB = 60; OC = 40; TO = (1, 2, 3, 0)
    acc = lambda tt, ct: vr(AC + (tt*5 + ct)*4, 4)
    mmo = lambda s, tt: [I(f"{M16} {acc(tt, ct)}, {ar(awo(s, ct), 4)}, {vr(OP(s, tt), 4)}, {acc(tt, ct) if s else 0}") for ct in range(5)]
    GB = [[(s, tt) for s in (6, 7, 8)] for tt in TO]
    def chk(nm, L, R):
        r = [OP(*x) for x in L]
        t = [f"v_max3_u32 v94, v{r[0]}, v{r[1]}, v{r[2]}", (f"v_max_u32 v94, v94, v{r[3]}\n" if len(r) > 3 else "") + "v_cmp_eq_u32 vcc, -1, v94", f"s_cbranch_vccnz .Lr{nm}"]
        o = [Seq(), Seq(), Seq()]
        for q, x in zip(o, t): q(x)
        o[2].label(f".Lb{nm}")
        if c.stp & 16: stamp(o[2], c)
        stubs.label(f".Lr{nm}")
        stubs(f"s_cmp_eq_u32 s69, 0\ns_cbranch_scc1 .Lb{nm}\ns_sub_u32 s69, s69, 1")
        stubs([ldo(*x, "nocount") for x in R])
        stubs("s_waitcnt vmcnt(0)"); stubs("\n".join(t)); stubs(f"s_branch .Lb{nm}")
        return [q.l for q in o]
    a("s_mov_b32 s69, 300000")
    la = [ldo(k >> 2, k & 3) for k in range(c.pe, 24)]
    a(la[:c.pu]); la = la[c.pu:]
    mf = flat([mmo(s, tt) for s in range(6) for tt in range(4)] + [mmo(*x) for g in GB for x in g])
    it = [(c.pr * k // 2, x) for k, x in enumerate(la)] + [(c.pb0 + c.pr2 * k // 2, ldo(*x)) for k, x in enumerate(sum(GB, []))]
    it = [(1 + k, x) for k, x in enumerate(p3_addr())] + it
    assert c.pb0 >= 60 and it[-1][0] < 115
    for s in range(6):
        L = [(s, tt) for tt in range(4)]
        o = chk(f"a{s}", L, L)
        if s == 0: a(o)
        else: it += [(20*s - c.pc + min(k, c.pc - 1), x) for k, x in enumerate(o)]
    if c.pd:
        L = sum(GB, []); r = [OP(*x) for x in L]
        t = [f"v_max3_u32 v94, v{r[0]}, v{r[1]}, v{r[2]}"] + [f"v_max3_u32 v94, v94, v{r[k]}, v{r[k+1]}" for k in (3, 5, 7, 9)] + [f"v_max_u32 v94, v94, v{r[11]}", "v_cmp_eq_u32 vcc, -1, v94"]
        it += [(115 + (k + 1) // 2, I(x)) for k, x in enumerate(t)]
        q = Seq(); q("s_cbranch_vccnz .Lrb"); q.label(".Lbb")
        if c.stp & 16: stamp(q, c)
        it.append((119, q.l))
        stubs.label(".Lrb")
        for k in range(c.pd - 1): stubs([ldo(*x, "nocount") for x in L])
        stubs.label(".Lrc")
        stubs("s_cmp_eq_u32 s69, 0\ns_cbranch_scc1 .Lbb\ns_sub_u32 s69, s69, 1")
        stubs([ldo(*x, "nocount") for x in L])
        if c.pd > 1: t = ["v_max_u32 v94, v96, v97"] + [f"v_max3_u32 v94, v94, v{k}, v{k+1}" for k in range(98, 144, 2)] + t[-1:]
        stubs(f"s_waitcnt vmcnt({12*(c.pd - 1)})"); stubs("\n".join(t)); stubs("s_cbranch_vccnz .Lrc\ns_branch .Lbb")
    for j in range(4):
        if not c.pd:
            o = chk(f"b{j}", GB[j], sum(GB[j:], []) if c.pra else GB[j])
            it += [(120 + 15*j - c.pc + min(k, c.pc - 1), x) for k, x in enumerate(o)]
        if j: it += [(120 + 15*j + (2 + 2*ct if j < 3 or not c.per else ct - 1), I(f"ds_write_b128 v{PW+j-1}, {acc(j, ct)} offset:{(j-1)*5120 + ct*1024}")) for ct in range(5)]
    RB = 164
    rd = [I(f"ds_read_b128 {vr(RB + (ct*3 + sl)*4, 4)}, v{PR} offset:{sl*5120 + ct*1024}") for ct in range(5) for sl in range(3)]
    if c.per:
        it.append((c.per, [W(lg=0), I("s_barrier")]))
        it += [(c.per + (k + 1) // 2, x) for k, x in enumerate(rd)]
    it.sort(key=lambda x: x[0])
    a(put(mf, it))
    stamp(a, c)
    if c.stamps: a(f"v_writelane_b32 v{vSTAMP}, s69, 31\ns_mov_b32 s69, 300000\nv_writelane_b32 v{vSTAMP}, s69, 30")
    if not c.per:
        a.wait(lg=0); a("s_barrier")
        if c.stp & 16: stamp(a, c)
        a(rd)
    for ct in range(5):
        d = AC + ct*4; b = RB + ct*12
        for i in (0, 2): a(f"v_pk_add_f32 {vr(b+i, 2)}, {vr(b+i, 2)}, {vr(b+4+i, 2)}\nv_pk_add_f32 {vr(d+i, 2)}, {vr(d+i, 2)}, {vr(b+8+i, 2)}")
        for i in (0, 2): a(f"v_pk_add_f32 {vr(d+i, 2)}, {vr(d+i, 2)}, {vr(b+i, 2)}")
        a(f"v_cvt_pk_bf16_f32 v{OC+2*ct}, v{d}, v{d+1}\nv_cvt_pk_bf16_f32 v{OC+1+2*ct}, v{d+2}, v{d+3}")
        if ct in (1, 3): a(f"buffer_store_dwordx4 {vr(OC + 2*(ct-1), 4)}, v{PO}, {srd(SM)}, s68 offen offset:{32*(ct-1)}")
        if ct == 4: a(f"s_mov_b32 exec_hi, 0\nbuffer_store_dwordx2 {vr(OC+8, 2)}, v{PO+1}, {srd(SM)}, s68 offen offset:128\ns_mov_b32 exec_hi, -1")

def finish(a, c):
    stamp(a, c)
    if c.stamps:
        a(f"s_cmp_lg_u32 s{sW}, 0\ns_cbranch_scc1 .Lend\ns_lshl_b32 s62, s2, 7\nv_lshrrev_b32 v4, 2, v{vL16}\ns_mov_b64 exec, 0xffffffff")
        a(f"buffer_store_dword v{vSTAMP}, v4, {srd(SWS)}, s62 offen")
    a.label(".Lend")
    a("s_endpgm")
    a(stubs)
    a("s_endpgm")
    a.label(".Lcodeend")

def build(c, path):
    a = Seq(); nst[0] = 0; PDW[0] = c.pdw; UPK[0] = c.upk; HOIST[:] = [c.hoist, c.hoistn]; PEN[:] = [c.vpen, c.dpen, c.vmc, c.ppen]
    wo_init(c)
    prologue(a, c)
    setup1(a, c)
    setup2(a, c)
    if c.pop == -2: p1, p2 = poison(208); a(p1); a(flat(p2))
    issue(a, c, c.o2)
    if c.pop == -1: p1, p2 = poison(208); a(p1); a(flat(p2))
    if c.pst: stamp(a, c)
    if c.warm == 1:
        for t in warm(sW): a.label(t[:-1]) if t.endswith(':') else a(t)
        if c.pst: stamp(a, c)
    a.wait(vm=["w0", "x0", "ga"])
    if c.pst: stamp(a, c)
    for s in range(9): a(f"ds_read_u16 v{vGA+s}, v{vMD+3} offset:{32*s}", f"g{s}")
    a(rd_x(0))
    issue(a, c, c.o2b)
    a.wait(lg="g0")
    a(patch(0)); a.wait(lg=0); a("s_barrier")
    stamp(a, c)
    a(rd_w(0, 0))
    issue(a, c, c.o3)
    if c.pop == -3: p1, p2 = poison(208); a(p1); a(flat(p2))
    ex = {}
    def add(k, v, pos=9): ex.setdefault(k, []).append(flat(v) if isinstance(k, tuple) else (pos, flat(v)))
    p1, p2 = producer(c)
    add(c.s_prod, p1, c.p_pr); add(c.s_prod + (c.p_pr + 4) // 10, p2, (c.p_pr + 4) % 10)
    add(c.s_fw, tag_check() + [W(vm="stp")] + flag_store(FW))
    add(2*c.s_pw - 1, poll_issue(vFW, FW, "fw"))
    add(("pre", c.s_pw), poll_check(vFW, FW, "fw"))
    allo = ",".join([c.o1, c.o2, c.o2b, c.o3]).split(",")
    if "wo" not in allo: add(2*c.s_wo, wo_dma())
    add(("pre", (c.s_rp - 1) // 2), [W(vm="wos")])
    p1, p2 = wo_repack()
    add(c.s_rp, p1, 7); add(c.s_rp + 1, p2, 9)
    add(c.s_rp + 2, wa_load())
    if not c.s3g: q = Seq(); setup3(q, c); add(15, q.l)
    if c.h_ea < 0:
        sa, va = early(); L = [kv_dma(c)[0]] + sa + [va[:-6]]
        for k, x in enumerate(L): add(-c.h_ea + 10*c.n_ea*k // len(L) // 10, [x], 10*c.n_ea*k // len(L) % 10)
    if c.s2 and c.po and 0 <= c.pop < 18:
        p1, p2 = poison(208); add(c.pop, p1, 0)
        for k, x in enumerate(p2): add(c.pop + k // 3, x, 3*(k % 3) + 2)
    n0 = len(a.l)
    pass1(a, c, ex)
    if c.m0h: a.l[n0:] = m0hoist(flat(a.l[n0:]), c.m0h)
    stamp(a, c)
    if c.stop == 1:
        a.wait(vm=0, lg=0); finish(a, c)
        open(path, "w").write(wrap(finalize(a.l, True), LDS_TOTAL + 1024)); return
    b = Seq()
    rest = g2(b, c)
    (attention2 if c.s2 else attention)(b, c, rest)
    a(sched(b.l, c.sch, "g2+att", c.beta / 100) if c.sch else b.l)
    stamp(a, c)
    (p3_3 if c.p33 else p3_2 if c.s2 else p3)(a, c)
    finish(a, c)
    txt = wrap(finalize(a.l, True), LDS_TOTAL + 1024)
    if c.al: txt = txt.replace('.p2align 8', '.p2align 12')
    if c.warm: txt, n = add_stubs(txt, -0x300); print('stubs', n)
    open(path, "w").write(txt)

if __name__ == "__main__":
    c = Cfg()
    path = sys.argv[1]
    for kv in sys.argv[2:]:
        k, v = kv.split("=")
        setattr(c, k, type(getattr(c, k))(int(v)) if not isinstance(getattr(c, k), str) else v)
    build(c, path)
```

```python
import sys
sys.path.insert(0, "work")
from fw import *

class Cfg:
    stop = 99
    stamps = True
    ldpol = "sc1"
    rotmod = 9
    stag = 0x7520
    o1 = 'pr'
    o2 = 'x1,w1'
    o2b = 'tag,x2'
    o3 = 'w2'
    p_pr = 0
    s_rp = 11
    fl = 1
    g3f = 1
    nwg = 256
    px = '1368'
    pw = 'cfi'
    pw2 = '258124578'
    pv = 5
    exp = 0
    m44 = 0
    wol = 0
    h_fo = 13
    s_wa = 9
    x2l = 0
    stp = 0
    pst = 0
    gx = (1, 3, 6, 8)
    gw = (2, 5, 8)
    sch = 32
    beta = 50
    s_prod = 0
    s_fw = 3
    s_pw = 6
    s_wo = 2
    h_f1 = 11
    h_kv = 17
    n_kv = 7
    h_f2 = 27
    phq = 30
    tlb = 0
    upk = 'famFAMst023'
    al = 1
    xpf = 1
    warm = 0
    hoist = 16
    hoistn = 3
    s3g = 0
    wc = '33000033314443'
    wci = 0
    na = 3
    a0 = 0
    ne = 13
    pf1 = 2
    f1l = 0
    sfo = 0
    h_pfo = 23
    pdw = 0
    bsk = ''
    w3l = 1
    ful = 99
    fus = ''
    m0h = 1
    m0d = 1
    p1w = 1
    pro = 0
    wpf = 0
    ppen = 4
    pen = 8
    wlg = 1
    p33 = 1
    pu = 2
    pr = 7
    pb0 = 68
    pr2 = 6
    pc = 3
    pra = 1
    per = 172
    h_ea = 3
    n_ea = 2
    pd = 0
    vpen = 32
    dpen = 12
    vmc = 56
    dep = 4
    f2n = 2
    s2 = 1
    a2n = -1
    npl = 4
    ks0 = 9
    kn = 4
    po = 1
    nwl = 4
    pon = 1
    e1n = 3
    e1s = '34456'
    pe = 8
    peg = 15
    pop = 20
    p3d = 3
    f3n = 7
    nfl = 12
    p3s = 0
NW = 5
F1, FW, F3, F2, FO, F3B = 0x60000, 0x80000, 0x20000, 0x40000, 0xA0000, 0xC0000
KVO, PKO, PARO, WOO, OPO = 0x100000, 0x600000, 0x8A0000, 0x960000, 0xAB0000
KV_PAIR, KV_KIND = 163840, 2621440
WOBLK = 5248
PSEC = 72 * 1152
WSL = 12416
KVR = 62080
XR = KVR
WOS = KVR + 49152
STG = KVR + 61440
SST = 7680
WPH = STG + 4 * SST
KVS = WPH + 4096
LDS_TOTAL = KVS + 4096
SX, SW1, SPK, SPS, SWS, SM = 4, 8, 12, 92, 20, 24
sW, sR, sG, sT = 28, 29, 30, 31
sKA, sKP, sLE, sQS = 32, 37, 46, 18
sL, sM0x, sM0w1, sM0w2 = 54, 55, 56, 57
sTAG = 58
sKX, sKW = 64, 73
sCB, sRT, sP = 96, 97, 98
sOA, sOT = 16, 17
def srd(n): return f"s[{n}:{n+3}]"
def vr(n, k): return f"v[{n}:{n+k-1}]"
def ar(n, k): return f"a[{n}:{n+k-1}]"
vL = 1
PM = 2
vX, vXR, vW1, vWA1, vWT1, vPAT, vGA = 10, 14, 16, 19, 20, 21, 22
vPK, vPS, vSA, vST, vSL, vK2, vF1 = 31, 34, 35, 36, 37, 38, 39
vKS = 10
AX, WA1, WA2, AD, FR, AY, ACC = 40, 64, 76, 88, 96, 144, 160
vPR1, vPR3, vPS3, vRP, vMD, vP4, vWP, vWP2, vWM = 200, 201, 203, 204, 207, 211, 212, 213, 214
vTW, vSC, V4, VT, VT4, vFW, vFO = 216, 218, 219, 220, 221, 222, 223
vL16, vG0, vG1, vTR = 224, 225, 226, 227
vBL, vBH, vBT, vKL, vKT = 231, 232, 233, 234, 235
vBT2, vQM, vQT, vONE = 236, 237, 238, 239
vOA, vOT, vF2, vF3, vPD, vTG, CM, vSTAMP = 240, 241, 242, 243, 244, 246, 248, 255
vWM2 = 254
fT, fKG, fH, fKL, fRR, fC, fC0, fC1, fQ = range(144, 153)
M32 = "v_mfma_f32_32x32x16_bf16"
M16 = "v_mfma_f32_16x16x32_bf16"

nst = [0]
def stamp(a, c):
    if not c.stamps or nst[0] >= 30: return
    a("s_memrealtime s[60:61]")
    a.wait(lg=0)
    a(f"v_writelane_b32 v{vSTAMP}, s60, {nst[0]}")
    nst[0] += 1

def lin(a, dst, terms, const=None):
    first = True
    for f, m in terms:
        if first:
            a(f"v_mul_u32_u24 v{dst}, {m}, v{f}")
            if not (const is None or const == 0): a(f"v_add_u32 v{dst}, {const}, v{dst}")
            first = False
        else:
            if 0 <= m <= 64: a(f"v_mad_u32_u24 v{dst}, v{f}, {m}, v{dst}")
            else:
                a(f"s_movk_i32 s63, {m}" if m < 32768 else f"s_mov_b32 s63, {m}")
                a(f"v_mad_u32_u24 v{dst}, v{f}, s63, v{dst}")

def mksrd(a, n, lo, hi, off=None, nrec=0x7fffffff):
    if off is None: a(f"s_mov_b32 s{n}, s{lo}\ns_mov_b32 s{n+1}, s{hi}")
    else: a(f"s_add_u32 s{n}, s{lo}, {off}\ns_addc_u32 s{n+1}, s{hi}, 0")
    a(f"s_mov_b32 s{n+2}, {nrec}\ns_mov_b32 s{n+3}, 0x20000")

def dma_x(s):
    q = Seq()
    q(f"s_add_u32 m0, s{sM0x}, {(s % 3) * 16384}")
    for i in range(4):
        q(f"buffer_load_dwordx4 v{vX+i}, {srd(SX)}, s{sKX+s} offen offset:{i*1024} lds", f"x{s}")
    return q.l
def dma_w(c, n):
    q = Seq()
    q(f"s_add_u32 m0, s{sM0w1 if n < 9 else sM0w2}, {(n % NW) * WSL}")
    for i in range(3):
        if n < 9: q(f"buffer_load_dwordx4 v{vW1+i}, {srd(SW1)}, s{sKW+n} offen offset:{i*1024} lds", f"w{n}")
        elif n < 14: q(f"buffer_load_dwordx4 v{vPK+i}, {srd(SPK)}, s{sKA+n-9} offen offset:{i*1024} {c.ldpol} lds", f"w{n}")
        else: q(f"buffer_load_dwordx4 v{vPS}, {srd(SPK)}, s{sKP+3*((n-14)%3)+i} offen offset:{i*1024} {c.ldpol} lds", f"w{n}")
    if n in (16, 19): q(f"v_add_u32 v{vPS}, {PSEC}, v{vPS}")
    return q.l
def rd_w(n, ks):
    base = (n % NW) * WSL; out = []
    for h in range(5):
        for j in range(2):
            ad = vWA1 if h < 4 else vWT1; off = base + ks * 6208 + j * 768 + (h * 48 if h < 4 else 0)
            out.append(I(f"ds_read_b64_tr_b16 {vr(FR + ks*24 + h*4 + j*2, 2)}, v{ad} offset:{off}", f"f{n}_{ks}"))
    return out
def rd_x(s):
    return [I(f"ds_read_b128 {ar((s*4 + ks*2 + tt)*4, 4)}, v{vXR+ks} offset:{(s%3)*16384 + tt*2048}", f"xr{s}") for ks in range(2) for tt in range(2)]
def mm(s, ks):
    out = []
    for h in range(5):
        for tt in range(2):
            d = vr(ACC + (h*2 + tt)*4, 4)
            out.append(I(f"{M16} {d}, {vr(FR + ks*24 + h*4, 4)}, {ar((s*4 + ks*2 + tt)*4, 4)}, {0 if (s == 0 and ks == 0) else d}"))
    return out
def patch(s): return I(f"ds_write_b16 v{vPAT}, v{vGA+s} offset:{(s % NW) * WSL}", "pat")

def pr_dma():
    q = Seq()
    q("s_mov_b32 m0, s91")
    for i in range(4): q(f"buffer_load_dwordx4 v{vW1+i if i < 3 else vP4}, {srd(SPS)}, 0 offen offset:{i*1024} lds", "pr")
    return q.l
def x_pf():
    q = Seq()
    q(f"s_and_b32 s62, s{sR}, 7\ns_add_u32 s62, s62, 4\ns_sub_u32 s63, s62, 9\ns_cselect_b32 s62, s62, s63\ns_lshl_b32 s62, s62, 7")
    q(f"s_lshr_b32 s63, s2, 6\ns_lshl2_add_u32 s63, s63, s{sW}\ns_mul_i32 s63, s63, {8*1152}\ns_add_u32 s62, s62, s63\nv_and_b32 v4, 7, v0\nv_mul_u32_u24 v4, 1152, v4")
    q(f"buffer_load_dword a255, v4, {srd(SX)}, s62 offen", "pf")
    return q.l
def issue(a, c, o):
    for t in o.split(","):
        if t == "xp": a(x_pf()); continue
        if t == "pr": a(pr_dma())
        elif t == "tag": a(tag_issue())
        elif t == "wo": a(wo_dma())
        elif t and t[0] == "x": a(dma_x(int(t[1])))
        elif t and t[0] == "w": a(dma_w(c, int(t[1])))

def prologue(a, c):
    a("s_getpc_b64 s[60:61]")
    a("s_load_dwordx16 s[32:47], s[0:1], 0\ns_load_dwordx4 s[48:51], s[0:1], 64\ns_load_dwordx2 s[52:53], s[0:1], 80")
    a(f"s_memrealtime s[{sTAG}:{sTAG+1}]")
    a(f"s_cmp_ge_u32 s2, {c.nwg}\ns_cbranch_scc1 .Lend")
    a(f"v_lshrrev_b32 v2, 6, v0\nv_and_b32 v{vL}, 63, v0")
    a(f"v_readfirstlane_b32 s{sW}, v2")
    a("s_lshr_b32 s3, s2, 3")
    a(f"s_and_b32 s62, s3, 7\ns_lshl_b32 s62, s62, 13\nv_and_b32 v{fT}, 15, v0\nv_lshlrev_b32 v3, 7, v{fT}\nv_lshl_add_u32 v3, v2, 11, v3\nv_add_u32 v3, s62, v3")
    a(f"v_min_u32 v3, .Lcodeend-{KN}-8, v3")
    a("global_load_dword v9, v3, s[60:61]", "pf")
    if c.m44:
        a(f"s_and_b32 s62, s2, 3\ns_and_b32 s63, s3, 3\ns_lshl2_add_u32 s{sR}, s62, s63")
        a(f"s_and_b32 s62, s2, 4\ns_bfe_u32 s{sG}, s3, 0x20002\ns_or_b32 s{sG}, s{sG}, s62\ns_lshr_b32 s{sT}, s3, 4")
        a(f"s_lshl_b32 s62, s63, 2\ns_lshr_b32 s62, {c.stag}, s62\ns_and_b32 s62, s62, 15\ns_lshr_b32 s63, s3, 2\ns_add_u32 s62, s62, s63\ns_sub_u32 s63, s62, 9\ns_cselect_b32 s62, s62, s63")
    else:
        a(f"s_and_b32 s62, s2, 1\ns_lshl_b32 s62, s62, 3\ns_and_b32 s{sR}, s3, 7\ns_or_b32 s{sR}, s{sR}, s62")
        a(f"s_and_b32 s62, s2, 6\ns_bfe_u32 s{sG}, s3, 0x10003\ns_or_b32 s{sG}, s{sG}, s62\ns_lshr_b32 s{sT}, s3, 4")
    if c.m44: pass
    elif c.stag == 0:
        m, sh = magic_div(c.rotmod, 32)
        a(f"s_mul_i32 s62, s3, {m}\ns_lshr_b32 s62, s62, {sh}\ns_mul_i32 s62, s62, {c.rotmod}\ns_sub_u32 s62, s3, s62")
    else:
        a(f"s_lshr_b32 s62, s3, 1\ns_and_b32 s62, s62, 12\ns_lshr_b32 s62, {c.stag}, s62\ns_and_b32 s62, s62, 15\ns_and_b32 s63, s3, 7\ns_add_u32 s62, s62, s63\ns_sub_u32 s63, s62, 9\ns_cselect_b32 s62, s62, s63")
    a(f"s_lshl_b32 s{sKX}, s62, 7\ns_mul_i32 s{sKW}, s62, 221184")
    a(f"v_lshrrev_b32 v{fKG}, 4, v{vL}\nv_and_b32 v4, 7, v0\nv_xor_b32 v4, v4, v{fKG}\nv_lshlrev_b32 v4, 4, v4\nv_xor_b32 v5, 64, v4")
    a(f"v_lshrrev_b32 v6, 3, v{vL}\nv_lshl_add_u32 v6, v2, 5, v6\nv_mul_u32_u24 v6, 1152, v6")
    a(f"v_add_u32 v{vX}, v6, v4\nv_add_u32 v5, v6, v5\nv_add_u32 v{vX+1}, 8192, v5\nv_add_u32 v{vX+2}, 16384, v{vX}\nv_add_u32 v{vX+3}, 24576, v5")
    a(f"s_lshr_b32 s62, s{sW}, 1\ns_lshl_b32 s62, s62, 2\ns_and_b32 s63, s{sW}, 1\ns_add_u32 s89, s62, s63\ns_mul_i32 s99, s89, {8*3456}")
    m12, s12 = magic_div(12, 192); m3, s3 = magic_div(3, 12)
    for i in range(3):
        a(f"v_add_u32 v4, {64*i}, v{vL}\nv_mul_u32_u24 v5, {m12}, v4\nv_lshrrev_b32 v5, {s12}, v5")
        a(f"v_mad_i32_i24 v4, v5, -12, v4\nv_mul_u32_u24 v6, {m3}, v4\nv_lshrrev_b32 v6, {s3}, v6")
        a(f"v_mad_i32_i24 v4, v6, -3, v4\nv_lshlrev_b32 v4, 4, v4\nv_min_u32 v4, 20, v4\nv_mad_u32_u24 v4, v6, 36, v4")
        a(f"v_and_b32 v6, 8, v5\nv_add_u32 v5, v5, v6\nv_mul_u32_u24 v5, 3456, v5\nv_add3_u32 v{vW1+i}, v4, v5, s99")
        if i: a(f"v_subrev_u32 v{vW1+i}, {1024*i}, v{vW1+i}")
    a(f"s_lshl_b32 s{sM0x}, s{sW}, 12\ns_add_u32 s{sM0x}, s{sM0x}, {XR}\ns_mul_i32 s{sM0w1}, s{sW}, 3104\ns_mul_i32 s{sM0w2}, s{sW}, 3072")
    a(f"s_mul_i32 s62, s{sR}, {128*1152}\ns_mul_i32 s90, s{sG}, 144\ns_mul_i32 s3, s{sT}, 1152\ns_add_u32 s63, s90, s3\ns_add_u32 s63, s63, 1152")
    if c.pro == 0:
        a.wait(lg=0)
        mksrd(a, SX, 32, 33, "s62"); mksrd(a, SW1, 42, 43, "s63")
        if c.stamps: a(f"v_writelane_b32 v{vSTAMP}, s{sTAG}, 0"); nst[0] = 1
        a(f"s_or_b32 s62, s2, s{sW}\ns_cbranch_scc1 .Lnotag")
        a(f"s_bitset1_b32 s{sTAG+1}, 31\nv_mov_b32 v4, s{sTAG}\nv_mov_b32 v5, s{sTAG+1}\nv_lshlrev_b32 v6, 3, v{fT}")
        a("global_store_dwordx2 v6, v[4:5], s[50:51] sc1", "nocount")
        a.label(".Lnotag")
        a(dma_x(0)); a(dma_w(c, 0))
    else:
        dx, dw = flat(dma_x(0)), flat(dma_w(c, 0))
        assert dx[0].t.startswith("s_add_u32 m0") and dw[0].t.startswith("s_add_u32 m0")
        a(f"s_mov_b32 s{SX+2}, 2147483647\ns_mov_b32 s{SX+3}, 0x20000\ns_mov_b32 s{SW1+2}, 2147483647\ns_mov_b32 s{SW1+3}, 0x20000")
        f1, f2 = (dw, dx) if c.pro == 3 else (dx, dw)
        sx = f"s_add_u32 s{SX}, s32, s62\ns_addc_u32 s{SX+1}, s33, 0"; sw = f"s_add_u32 s{SW1}, s42, s63\ns_addc_u32 s{SW1+1}, s43, 0"
        g1, g2_ = (sw, sx) if c.pro == 3 else (sx, sw)
        a(f1[0])
        a.wait(lg=0)
        a(g1); a(f1[1:]); a(f2[0]); a(g2_); a(f2[1:])
        if c.stamps: a(f"v_writelane_b32 v{vSTAMP}, s{sTAG}, 0"); nst[0] = 1
        a(f"s_or_b32 s62, s2, s{sW}\ns_cbranch_scc1 .Lnotag")
        a(f"s_bitset1_b32 s{sTAG+1}, 31\nv_mov_b32 v4, s{sTAG}\nv_mov_b32 v5, s{sTAG+1}\nv_lshlrev_b32 v6, 3, v{fT}")
        a("global_store_dwordx2 v6, v[4:5], s[50:51] sc1", "nocount")
        a.label(".Lnotag")
    kn = lambda s: f"s_add_u32 s{sKX+s}, s{sKX+s-1}, 128\ns_cmp_eq_u32 s{sKX+s}, 1152\ns_cselect_b32 s{sKX+s}, 0, s{sKX+s}\ns_mul_i32 s{sKW+s}, s{sKX+s}, 1728"
    a(kn(1))
    if "x1" in c.o1: a(dma_x(1))
    if c.pst: stamp(a, c)
    mksrd(a, SM, 46, 47, nrec=1152)
    a(f"s_lshr_b32 s62, s{sW}, 1\ns_lshl_b32 s62, s62, 6\ns_and_b32 s63, s{sW}, 1\ns_lshl_b32 s63, s63, 4\ns_add_u32 s62, s62, s63\ns_lshl_b32 s88, s{sW}, 10\ns_add_u32 m0, s88, {KVS}")
    a(f"v_lshrrev_b32 v4, 1, v{vL}\nv_lshl_add_u32 v4, v4, 7, s{sKX}\nv_subrev_u32 v5, 1152, v4\nv_min_u32 v4, v4, v5\nv_and_b32 v5, 1, v0\nv_lshl_add_u32 v4, v5, 5, v4")
    a(f"buffer_load_dwordx4 v4, {srd(SM)}, s62 offen lds", "ga")
    a(f"s_lshr_b32 s62, s{sR}, 1\ns_mul_i32 s62, s62, {72*3456}\ns_add_u32 s62, s62, s90\ns_add_u32 s63, s3, 1152\ns_bitcmp1_b32 s{sR}, 0\ns_cselect_b32 s63, 0, s63\ns_add_u32 s62, s62, s63")
    a(f"s_and_b32 s63, s{sR}, s{sT}\ns_cselect_b32 s100, s42, s34\ns_cselect_b32 s101, s43, s35")
    mksrd(a, SPS, 100, 101, "s62", nrec=71*3456+144)
    a(f"s_mul_i32 s91, s{sW}, {SST}\ns_add_u32 s91, s91, {STG}")
    m3b, s3b = magic_div(3, 64)
    a(f"v_mul_u32_u24 v5, {m3b}, v{vL}\nv_lshrrev_b32 v5, {s3b}, v5\nv_mad_i32_i24 v4, v5, -3, v{vL}\nv_lshlrev_b32 v4, 4, v4\nv_min_u32 v4, 20, v4\nv_mad_u32_u24 v{vMD}, v5, 36, v4")
    if "pr" in c.o1: a(pr_dma()[:4])
    a(f"s_mul_i32 s62, s{sW}, 36\ns_add_u32 s62, s62, {64*3456-3072}\nv_mul_u32_u24 v5, 3456, v5\nv_add3_u32 v{vP4}, v4, v5, s62")
    if c.g3f:
        a(f"v_bfe_u32 v5, v0, 2, 3\nv_mul_u32_u24 v5, 3456, v5\nv_and_b32 v4, 3, v0\nv_mad_u32_u24 v4, v4, 36, v5\nv_add_u32 v4, {64*3456-3072+20}, v4\nv_cmp_le_u32 vcc, 32, v{vL}\nv_cndmask_b32 v{vP4}, v{vP4}, v4, vcc")
    if "pr" in c.o1: a(pr_dma()[4:])
    if c.xpf == 1: a(x_pf())
    if c.pst: stamp(a, c)
    for s in range(2, 9): a(kn(s))
    a(f"s_lshl_b32 s{sP}, s{sG}, 1\ns_add_u32 s{sP}, s{sP}, s{sT}\ns_lshl_b32 s{sL}, s{sR}, 4\ns_add_u32 s{sL}, s{sL}, s{sP}")
    a(f"s_bfe_u32 s63, s{sL}, 0x40001\ns_mul_i32 s63, s63, {36*1152}\ns_lshr_b32 s3, s{sL}, 5\ns_mul_i32 s3, s3, 144\ns_add_u32 s63, s63, s3")
    a(f"s_bitcmp1_b32 s{sL}, 0\ns_cselect_b32 s100, s38, s44\ns_cselect_b32 s101, s39, s45")
    mksrd(a, 84, 100, 101, "s63", nrec=35*1152+144)
    if c.wpf == 1: a("s_load_dword s19, s[84:85], 0")
    if c.wpf >= 2:
        a(f"s_mul_i32 s62, s{sW}, {9*1152}\ns_add_u32 s100, s84, s62\ns_addc_u32 s101, s85, 0")
        for r in range(9):
            for o in ((0, 64, 140) if c.wpf == 2 else (0, 140)): a(f"s_load_dword s19, s[100:101], {r*1152 + o}")
    m9, s9 = magic_div(9, 512)
    for i in range(2):
        a(f"v_add_u32 v4, {256*i}, v0\nv_mul_u32_u24 v5, {m9}, v4\nv_lshrrev_b32 v5, {s9}, v5\nv_mad_i32_i24 v4, v5, -9, v4\nv_lshlrev_b32 v4, 4, v4\nv_mul_u32_u24 v5, 1152, v5\nv_add_u32 v{vMD+1+i}, v4, v5")
    a(f"s_and_b32 s63, s{sW}, 1\ns_lshl_b32 s62, s{sP}, 1\ns_add_u32 s62, s62, s63\ns_mul_i32 s62, s62, 648")
    mksrd(a, SM, 36, 37, "s62", nrec=648)
    if c.wpf == 1: a(f"s_load_dword s19, s[{SM}:{SM+1}], 0")
    if c.wpf >= 2:
        for o in list(range(0, 640, 64 if c.wpf == 2 else 128)) + [644]: a(f"s_load_dword s19, s[{SM}:{SM+1}], {o}")
    if c.wol == 1: a(wo_dma()[2])
    a(f"v_lshrrev_b32 v4, 2, v{vL}\ns_add_u32 s62, s88, {KVS}\nv_lshl_add_u32 v{vMD+3}, v4, 1, s62")
    a(f"v_and_b32 v{fC}, 3, v0\nv_mul_u32_u24 v{vPAT}, 192, v4\nv_mad_u32_u24 v{vPAT}, v{fC}, 48, v{vPAT}\nv_add3_u32 v{vPAT}, v{vPAT}, s{sM0w1}, 40")
    mksrd(a, SWS, 52, 53, nrec=0x10000000)
    if c.tlb:
        a(f"v_min_u32 v5, {(1 << (24 - c.tlb)) - 1}, v{vL}\nv_lshlrev_b32 v5, {c.tlb}, v5")
        a(f"buffer_load_dword v96, v5, {srd(SWS)}, 0 offen", "pf")
        a(f"v_min_u32 v5, {2048*1152 - 4}, v5\nglobal_load_dword v97, v5, s[48:49]", "pf")
    a(f"s_mul_i32 s62, s{sG}, {4*PSEC}\ns_add_u32 s62, s62, {PKO - 2048}")
    mksrd(a, SPK, 52, 53, "s62", nrec=4*PSEC + 2048)
    if c.m44: a(f"s_lshr_b32 s3, s2, 3\ns_lshr_b32 s{sCB}, s3, 2\ns_and_b32 s{sRT}, s3, 3\ns_and_b32 s62, s2, 3\ns_lshl3_add_u32 s{sRT}, s62, s{sRT}\ns_and_b32 s62, s2, 4\ns_add_u32 s{sRT}, s{sRT}, s62")
    else: a(f"s_lshr_b32 s3, s2, 3\ns_lshr_b32 s{sCB}, s3, 2\ns_and_b32 s{sRT}, s3, 3\ns_and_b32 s62, s2, 1\ns_lshl_b32 s62, s62, 4\ns_add_u32 s{sRT}, s{sRT}, s62\ns_and_b32 s62, s2, 6\ns_lshl_b32 s62, s62, 1\ns_add_u32 s{sRT}, s{sRT}, s62")
    a(f"v_lshrrev_b32 v{fH}, 5, v{vL}\nv_and_b32 v{fKL}, 1, v{fKG}\nv_bfe_u32 v{fRR}, v0, 2, 2\nv_and_b32 v{fC0}, 1, v0\nv_bfe_u32 v{fC1}, v0, 1, 1\nv_and_b32 v{fQ}, 31, v0")
    a(f"v_lshlrev_b32 v{vL16}, 4, v{vL}")
    a(f"v_lshrrev_b32 v4, 1, v{fT}\nv_xor_b32 v4, v4, v{fKG}\nv_lshlrev_b32 v4, 4, v4\nv_lshl_add_u32 v4, v{fT}, 7, v4\nv_add_u32 v{vXR}, s{sM0x}, v4\nv_xor_b32 v{vXR+1}, 64, v{vXR}")
    lin(a, 4, [(fKL, 3104), (fH, 1536), (fRR, 192)])
    a(f"v_lshl_add_u32 v{vWA1}, v{fC}, 3, v4\nv_mad_u32_u24 v{vWT1}, v{fC}, 48, v4\nv_add_u32 v{vWT1}, 40, v{vWT1}")

def wo_dma(S=84, s88=88):
    out = []
    for i in range(2): out.append([I(f"s_add_u32 m0, s{s88}, {WOS + 4096*i}"), I(f"buffer_load_dwordx4 v{vMD+1+i}, {srd(S)}, 0 offen lds", "wos")])
    out.append([I(f"s_and_b32 s63, s88, 1024"), I(f"s_add_u32 m0, s63, {WPH}"), I(f"buffer_load_dwordx4 v{vMD}, {srd(SM)}, 0 offen lds", "wos")])
    return out

def setup1(a, c):
    lin(a, vPR1, [(fRR, 192), (fKG, 48), (fC, 8)], "s91")
    lin(a, 4, [(fRR, 192), (fKL, 1536), (fC, 48)], 40)
    if c.g3f:
        lin(a, 5, [(fRR, 48), (fC, 8)], 3072)
        lin(a, 6, [(fT, 16)], 3072 + 512 + 8)
        a(f"v_cmp_eq_u32 vcc, 0, v{fKL}\nv_cndmask_b32 v5, v6, v5, vcc\nv_lshlrev_b32 v7, 6, v{fKL}\nv_add_u32 v7, 192, v7")
        a(f"v_cmp_eq_u32 vcc, 0, v{fH}\nv_cndmask_b32 v4, v5, v4, vcc\nv_add_u32 v{vPR3}, s91, v4\nv_mov_b32 v6, 768\nv_cndmask_b32 v5, v7, v6, vcc\nv_add_u32 v{vPR3+1}, v{vPR3}, v5")
        a(f"s_mul_i32 s62, s89, 1152\nv_mov_b32 v4, s62\nv_mov_b32 v5, {9216-2304}\nv_cndmask_b32 v4, v5, v4, vcc")
        lin(a, 4, [(4, 1), (fKL, 2304), (fRR, 32), (fC, 16)], 992)
        a(f"s_lshl_b32 s62, s{sW}, 8\ns_add_u32 s62, s62, 9216\nv_lshl_add_u32 v5, v{fT}, 4, s62")
        a(f"v_cmp_eq_u32 vcc, 2, v{fKG}\nv_cndmask_b32 v{vPS3}, v4, v5, vcc")
    else:
        lin(a, 5, [(fRR, 48)], 3072)
        a(f"v_lshlrev_b32 v6, 3, v{fC}\nv_cmp_eq_u32 vcc, 0, v{fKL}\nv_cndmask_b32 v6, 40, v6, vcc\nv_add_u32 v5, v5, v6")
        a(f"v_cmp_eq_u32 vcc, 0, v{fH}\nv_cndmask_b32 v4, v5, v4, vcc\nv_add_u32 v{vPR3}, s91, v4\nv_mov_b32 v5, 192\nv_mov_b32 v6, 768\nv_cndmask_b32 v5, v5, v6, vcc\nv_add_u32 v{vPR3+1}, v{vPR3}, v5")
        a(f"s_mul_i32 s62, s89, 1152\ns_add_u32 s62, s62, 992")
        lin(a, 4, [(fKL, 2304), (fRR, 32), (fC, 16)], "s62")
        a(f"s_lshl_b32 s62, s{sW}, 8\ns_add_u32 s62, s62, 9216\nv_lshl_add_u32 v5, v{fT}, 4, s62\ns_lshl_b32 s62, s{sW}, 5\ns_add_u32 s62, s62, {9216+992}\nv_lshl_add_u32 v6, v{fC}, 4, s62")
        a(f"v_cndmask_b32 v4, v5, v4, vcc\nv_cmp_eq_u32 vcc, 3, v{fKG}\nv_cndmask_b32 v{vPS3}, v4, v6, vcc")
    a(f"s_and_b32 s62, s{sR}, 1\ns_lshl_b32 s62, s62, 1\ns_lshl_b32 s63, s{sG}, 2\ns_add_u32 s62, s62, s63\ns_add_u32 s62, s62, s{sT}\ns_mul_i32 s62, s62, {PSEC}\ns_lshr_b32 s63, s{sR}, 1\ns_mul_i32 s63, s63, {9*1152}\ns_add_u32 s62, s62, s63\ns_add_u32 s82, s62, {PKO}")
    a(f"s_mul_i32 s63, s89, 1152\ns_add_u32 s83, s63, s82")
    lin(a, vWP2, [(fH, 1024), (fRR, 48)], WPH)
    lin(a, vWP, [(fKL, 16), (fC1, 8), (vWP2, 1)])
    a(f"v_add_u32 v{vWP2}, 40, v{vWP2}\nv_bfe_u32 v4, v0, 2, 1\nv_cmp_eq_u32 vcc, v4, v{fH}\nv_cndmask_b32 v{vWM}, 0, -1, vcc")
    lin(a, 4, [(fH, 18*144), (fKL, 4*144), (fRR, 144)], WOS)
    a(f"v_bfe_u32 v6, v0, 2, 1\nv_bfe_u32 v7, v0, 3, 1")
    lin(a, 5, [(7, 18*144), (6, 144)], WOS + 16*144)
    a(f"s_lshr_b32 s62, s{sW}, 1\ns_lshl_b32 s62, s62, 6\ns_and_b32 s3, s{sW}, 1\ns_lshl_b32 s63, s3, 3\ns_add_u32 s62, s62, s63")
    a(f"v_lshl_add_u32 v{vRP}, v{fC}, 4, v4\nv_add_u32 v{vRP}, s62, v{vRP}")
    a(f"v_lshlrev_b32 v6, 3, v{fC0}\nv_add_u32 v6, 128, v6\nv_and_b32 v7, 7, v0")
    a(f"s_cmp_ge_u32 s{sW}, 2\ns_cbranch_scc1 .Lrp2")
    a(f"v_add_u32 v{vRP+1}, v4, v6\nv_lshl_add_u32 v7, v{fKG}, 3, v7\nv_lshlrev_b32 v7, 4, v7\nv_add_u32 v{vRP+2}, 4096, v7\ns_branch .Lrp4")
    a.label(".Lrp2")
    a(f"s_cmp_eq_u32 s{sW}, 3\ns_cbranch_scc1 .Lrp3")
    lin(a, vRP+1, [(fH, 64), (fC, 16), (fKL, 8), (5, 1)])
    a(f"v_lshlrev_b32 v{vRP+2}, 3, v{vL}\nv_add_u32 v{vRP+2}, 4608, v{vRP+2}\ns_branch .Lrp4")
    a.label(".Lrp3")
    a(f"v_add_u32 v{vRP+1}, v5, v6\nv_lshlrev_b32 v{vRP+2}, 3, v{fT}\nv_add_u32 v{vRP+2}, 5120, v{vRP+2}")
    a.label(".Lrp4")

def setup2(a, c):
    a(f"s_lshl_b32 s62, s{sT}, 9\ns_add_u32 s62, s62, 2048")
    lin(a, vPK, [(fKG, 1152), (fT, 16)], "s62")
    a(f"v_subrev_u32 v{vPK+1}, 768, v{vPK}\ns_and_b32 s63, s{sW}, 1\ns_lshl_b32 s63, s63, 8\ns_add_u32 s63, s63, {PSEC - 2048}\nv_add_u32 v{vPS}, s63, v{vPK}")
    a(f"s_lshl_b32 s62, s{sT}, 6\ns_add_u32 s62, s62, 1024")
    lin(a, vPK+2, [(fKG, 1152), (fRR, PSEC), (fC, 16)], "s62")
    a(f"s_lshr_b32 s62, s{sKX}, 6\ns_add_u32 s63, s62, s{sW}\ns_mul_i32 s63, s63, 4608\ns_lshr_b32 s3, s{sW}, 1\ns_mul_i32 s3, s3, 3\ns_add_u32 s62, s62, s3\ns_mul_i32 s62, s62, 4608")
    for j in range(5):
        if j: a(f"s_add_u32 s63, s{sKA+j-1}, {4*4608}")
        a(f"s_sub_u32 s3, s63, {PSEC}\ns_cselect_b32 s{sKA+j}, s63, s3")
    for j in range(9):
        if j: a(f"s_add_u32 s62, s62, {4608*(4 if j % 3 == 0 else 1)}")
        a(f"s_sub_u32 s3, s62, {PSEC}\ns_cselect_b32 s62, s62, s3\ns_add_u32 s{sKP+j}, s62, {2048 - 1024*(j % 3)}")
    a(f"s_mov_b32 s{sLE}, 0x3fb8aa3b\ns_mov_b32 s{sQS}, 0x3eae1a93")
    a(f"v_lshlrev_b32 v4, 2, v{fH}\nv_xor_b32 v4, v4, v{fT}")
    lin(a, vSA, [(fH, 512), (4, 16), (fKL, 8)], "s91")
    lin(a, vST, [(fKG, 1280), (fT, 8)], "s91"); a(f"v_add_u32 v{vST}, 1024, v{vST}")
    a(f"v_add_u32 v{vSL}, s91, v{vL16}")
    lin(a, vK2, [(fH, KV_PAIR - 2560), (vL16, 1)])
    lin(a, vBL, [(fH, 1280), (fQ, 16)], "s91")
    a(f"v_xor_b32 v{vBH}, 64, v{vBL}\nv_add_u32 v{vBH}, 512, v{vBH}")
    lin(a, vBT, [(fH, 1280), (fQ, 8)], "s91"); a(f"v_add_u32 v{vBT}, 1024, v{vBT}")
    a(f"s_lshl_b32 s62, s{sW}, 8\ns_add_u32 s62, s62, {WPH + 2048}")
    lin(a, vBT2, [(fH, 1024), (fQ, 8)], "s62")
    a(f"s_add_u32 s3, s91, 1024\nv_mov_b32 v4, s3\nv_mov_b32 v5, s62\nv_cmp_eq_u32 vcc, 0, v{fH}\nv_cndmask_b32 v4, v5, v4, vcc\nv_mov_b32 v5, 2048\nv_mov_b32 v6, 2560\nv_cndmask_b32 v5, v5, v6, vcc")
    a(f"v_mad_u32_u24 v4, v5, v{fKL}, v4\nv_lshl_add_u32 v{vTW}, v{fT}, 3, v4\nv_lshrrev_b32 v5, 1, v5\nv_add_u32 v{vTW+1}, v{vTW}, v5")
    a(f"s_add_u32 s62, s62, 2048\nv_lshl_add_u32 v4, v{fQ}, 3, s62\nv_mov_b32 v5, {WPH + 896}\nv_cndmask_b32 v{vQT}, v5, v4, vcc")
    a(f"v_mov_b32 v4, 0x3f803f80\nv_cndmask_b32 v{CM+2}, 0, v4, vcc\nv_mov_b32 v{vONE}, 0x3f80")
    for r in (CM+1, CM+3, CM+4, CM+5): a(f"v_mov_b32 v{r}, 0")
    a(f"v_mov_b32 v4, s{sQS}\nv_cmp_eq_u32 vcc, 3, v{fKG}\nv_cndmask_b32 v{vSC}, 1.0, v4, vcc")
    a(f"v_lshl_add_u32 v4, v{fH}, 2, v{fRR}\nv_lshlrev_b32 v5, 2, v{fC1}\nv_xor_b32 v5, v5, v4")
    lin(a, 6, [(fC1, 512), (5, 16), (fC0, 8)])
    lin(a, 7, [(4, 8)], 1024)
    a(f"v_lshlrev_b32 v5, 2, v{fC0}\nv_xor_b32 v5, v5, v4")
    lin(a, 8, [(fC0, 512), (5, 16), (fC1, 8)])
    a(f"s_mul_i32 s62, s{sW}, 2560\ns_add_u32 s62, s62, {KVR}\ns_add_u32 s3, s62, 30720")
    a(f"v_cmp_eq_u32 vcc, 0, v{fKL}\nv_cndmask_b32 v6, v7, v6, vcc\nv_cndmask_b32 v{AD}, v7, v8, vcc\nv_mov_b32 v4, 64\nv_mov_b32 v5, 128\nv_cndmask_b32 v7, v4, v5, vcc")
    a(f"v_add_u32 v{vTR}, s3, v6")
    a(f"v_lshlrev_b32 v4, 2, v{fH}\nv_xor_b32 v4, v4, v{fQ}")
    lin(a, vKL, [(fH, 512), (4, 16)], "s62")
    lin(a, vKT, [(fQ, 8)], "s62"); a(f"v_add_u32 v{vKT}, 1024, v{vKT}")
    a(f"s_sub_u32 s62, s91, s62\nv_add_u32 v{vQM}, s62, v{vKL}")
    a(f"s_and_b32 s62, s{sW}, 1\ns_mul_i32 s62, s62, 1280\ns_lshr_b32 s3, s{sW}, 1\ns_mul_i32 s3, s3, 5120\ns_add_u32 s3, s62, s3\ns_add_u32 s3, s3, {STG}\nv_add_u32 v{AD}, s3, v{AD}")
    a(f"s_add_u32 s62, s62, {STG + 2560}\nv_add_u32 v{AD+4}, s62, v6")
    for i in range(1, 4): a(f"v_add_u32 v{vTR+i}, v{vTR+i-1}, v7\nv_add_u32 v{AD+i}, v{AD+i-1}, v7\nv_add_u32 v{AD+4+i}, v{AD+3+i}, v7")
    a(f"v_bfe_u32 v4, v0, 2, 3\ns_lshl_b32 s62, s{sW}, 3\nv_add_u32 v4, s62, v4\nv_lshrrev_b32 v5, 1, v4\nv_and_b32 v6, 1, v4\nv_lshl_add_u32 v5, v5, 4, v6\ns_lshl_b32 s62, s{sG}, 1\nv_add_u32 v5, s62, v5")
    a(f"s_lshl_b32 s63, s{sCB}, 5\nv_add_u32 v4, s63, v4\nv_lshlrev_b32 v6, 7, v{fC}\nv_lshl_add_u32 v{vFO}, v4, 9, v6\nv_lshl_add_u32 v{vFW}, v5, 9, v6")
    a(f"s_and_b32 s63, s{sW}, 1\ns_mul_i32 s63, s63, 6\ns_lshl_b32 s3, s{sR}, 2\ns_add_u32 s63, s63, s3\ns_sub_u32 s63, s63, 8\nv_min_u32 v4, 5, v{vL}\nv_add_u32 v4, s63, v4\nv_max_i32 v4, 0, v4")
    a(f"s_lshr_b32 s63, s{sW}, 1\ns_add_u32 s62, s62, s63\nv_lshrrev_b32 v5, 2, v4\nv_lshl_add_u32 v5, v5, 4, s62\nv_and_b32 v4, 3, v4\nv_lshlrev_b32 v4, 7, v4\nv_lshl_add_u32 v{vF1}, v5, 9, v4")
    a(f"s_lshl2_add_u32 s62, s{sL}, s{sW}\ns_lshl_b32 s62, s62, 7\nv_lshl_add_u32 v{vL}, v{fT}, {3 if c.fl else 31}, s62")
    if not c.fl: a(f"v_mov_b32 v{vL}, s62")
    a(f"s_lshl_b32 s62, s{sP}, 2\ns_add_u32 s62, s62, s{sW}\nv_lshl_add_u32 v4, v{fT}, 6, s62\nv_lshlrev_b32 v{vF2}, 7, v4")
    a(f"s_lshr_b32 s62, s{sRT}, 1\ns_lshl_b32 s62, s62, 6\ns_lshl_b32 s3, s{sW}, 4\ns_add_u32 s62, s62, s3\ns_and_b32 s3, s{sRT}, 1\ns_lshl_b32 s3, s3, 1\ns_add_u32 s62, s62, s3")
    a(f"v_bfe_u32 v4, v0, 1, 2\nv_lshl_add_u32 v4, v4, 2, v{fC0}\nv_add_u32 v4, s62, v4\nv_lshlrev_b32 v{vF3}, 7, v4")
    a(f"s_lshl_b32 s62, s{sCB}, 2\ns_add_u32 s62, s62, s{sW}\ns_mul_i32 s100, s62, {8*WOBLK}\ns_add_u32 s100, s100, {WOO}")
    if c.s2:
        a(f"v_and_b32 v{VT4}, 7, v0\nv_lshl_add_u32 v{V4}, v{fKL}, 3, v{VT4}\nv_mul_u32_u24 v{vWM2}, {2*WOBLK}, v{fH}\nv_lshl_add_u32 v{V4}, v{V4}, 4, v{vWM2}\nv_add_u32 v{V4}, 4096, v{V4}\nv_lshl_add_u32 v{vWM2}, v{fQ}, 4, v{vWM2}")
    else: a(f"v_and_b32 v{VT4}, 7, v0\nv_lshl_add_u32 v{V4}, v{fKG}, 3, v{VT4}\nv_lshlrev_b32 v{V4}, 4, v{V4}\nv_add_u32 v{V4}, 4096, v{V4}")
    a(f"v_mul_u32_u24 v{VT}, {2*WOBLK}, v{fKG}\nv_add_u32 v{VT}, 4608, v{VT}\nv_lshl_add_u32 v{VT4}, v{VT4}, 3, v{VT}\nv_lshl_add_u32 v{VT}, v{fT}, 3, v{VT}")
    a(f"v_mul_u32_u24 v{vOT}, 36864, v{fKL}\nv_lshl_add_u32 v{vOT}, v{fT}, 4, v{vOT}\nv_lshl_add_u32 v{vOA}, v{fH}, 8, v{vOT}")
    a(f"s_lshl_b32 s62, s{sR}, 2\ns_add_u32 s62, s62, s{sW}\ns_mul_i32 s62, s62, {2*36864}\ns_lshr_b32 s63, s{sP}, 2\ns_mul_i32 s63, s63, 9216\ns_add_u32 s62, s62, s63\ns_add_u32 s62, s62, {OPO}")
    a(f"s_and_b32 s63, s{sP}, 3\ns_lshl_b32 s3, s63, {9 if c.s2 else 11}\ns_add_u32 s{sOA}, s62, s3\ns_lshl_b32 s3, s63, 8\ns_add_u32 s{sOT}, s62, s3\ns_add_u32 s{sOT}, s{sOT}, 8192")

def setup3(a, c):
    if c.wol == 1: a(f"s_mov_b64 s[{SX}:{SX+1}], s[84:85]\ns_mov_b32 s{SX+2}, {35*1152+144}\ns_mov_b32 s{SW1}, s88")
    a(f"v_mul_u32_u24 v{vKS+1}, 320, v{fH}\nv_lshl_add_u32 v{vKS+1}, v{fQ}, 4, v{vKS+1}\nv_lshlrev_b32 v{vKS}, 2, v{fQ}")
    a(f"v_mad_i32_i24 v12, v{fH}, -4, v{fQ}\nv_mov_b32 v13, 0xffff")
    for r in range(16): a(f"v_cmp_le_i32 s[{64+2*r}:{65+2*r}], {8*(r>>2) + (r&3)}, v12")
    for j in range(8): a(f"v_cndmask_b32 v{PM+j}, 0, v13, s[{64+4*j}:{65+4*j}]")
    for j in range(8): a(f"v_cndmask_b32 v{PM+j}, v{PM+j}, -1, s[{66+4*j}:{67+4*j}]")

def producer(c):
    q = Seq(); T = AX
    q.wait(vm="pr")
    for k in range(2):
        for j in range(2): q(f"ds_read_b64_tr_b16 {vr(T + 4*k + 2*j, 2)}, v{vPR1} offset:{k*1536 + j*768}")
    for j in range(2): q(f"ds_read_b64_tr_b16 {vr(T + 8 + 2*j, 2)}, v{vPR3+j}")
    g = Seq()
    for k in range(2): g(f"buffer_store_dwordx4 {vr(T + 4*k, 4)}, v{vL16}, {srd(SWS)}, s83 offen offset:{2304*k} sc1", "stp")
    if c.g3f: g(f"s_cmp_eq_u32 s{sW}, 0\ns_mov_b32 s62, 0xffff\ns_cselect_b32 exec_hi, 0xccccffff, s62\ns_mov_b32 exec_lo, 0xcccccccc")
    else: g("s_mov_b32 exec_lo, 0xcccccccc\ns_mov_b32 exec_hi, 0xcffff")
    g(f"buffer_store_dwordx4 {vr(T+8, 4)}, v{vPS3}, {srd(SWS)}, s82 offen sc1", "stp")
    g("s_mov_b64 exec, -1")
    return q.l, g.l
def wo_repack(T=AX, s88=88):
    q = Seq()
    q(f"ds_read_b64_tr_b16 {vr(T+12, 2)}, v{vRP}\nds_read_b64_tr_b16 {vr(T+14, 2)}, v{vRP} offset:1152\nds_read_b64_tr_b16 {vr(T+16, 2)}, v{vRP+1}\nds_read_b64_tr_b16 {vr(T+18, 2)}, v{vRP+1} offset:1152", "rp")
    r = Seq()
    r(f"s_mul_i32 s63, s{sL}, {WOBLK}\ns_add_u32 s63, s63, {WOO}\ns_add_u32 s3, s{s88}, s63")
    r(f"buffer_store_dwordx4 {vr(T+12, 4)}, v{vL16}, {srd(SWS)}, s3 offen sc1", "stw")
    r.wait(lg="rp")
    r(f"s_cmp_ge_u32 s{sW}, 2\ns_cbranch_scc1 .Lw2\ns_cmp_eq_u32 s{sW}, 0\ns_cselect_b32 exec_lo, -1, 0\ns_cselect_b32 exec_hi, 0, -1")
    r(f"buffer_store_dwordx4 {vr(T+16, 4)}, v{vRP+2}, {srd(SWS)}, s63 offen sc1", "nocount")
    r("s_mov_b64 exec, -1\ns_branch .Lw3")
    r.label(".Lw2")
    r(f"buffer_store_dwordx2 {vr(T+16, 2)}, v{vRP+2}, {srd(SWS)}, s63 offen sc1", "stw")
    r.label(".Lw3")
    r("s_nop 1")
    return q.l, r.l
def wa_load():
    q = Seq()
    for i in range(5):
        q(f"ds_read_b64_tr_b16 {vr(WA1 + 2*i, 2)}, v{vWP} offset:{192*i}\nds_read_b64_tr_b16 {vr(WA2 + 2*i, 2)}, v{vWP2} offset:{192*i}")
    for r in (WA1 + 10, WA1 + 11, WA2 + 10, WA2 + 11): q(f"v_mov_b32 v{r}, 0")
    for i in range(10): q(f"v_and_b32 v{WA1+i}, v{vWM}, v{WA1+i}\nv_and_b32 v{WA2+i}, v{vWM}, v{WA2+i}")
    return q.l

def put(mf, items):
    out = []
    for g, m in enumerate(mf):
        out.append(m)
        for gg, it in items:
            if gg == g or (g == len(mf) - 1 and gg > g):
                out.extend(it if isinstance(it, list) else [it])
    return out
def grp(q): return [q[:2]] + q[2:]

def poll_issue(voff, base, name):
    q = Seq()
    q(f"s_mov_b32 s62, {base}")
    q(f"buffer_load_dwordx2 {vr(vPD, 2)}, v{voff}, {srd(SWS)}, s62 offen sc1", name)
    return q.l
def poll_check(voff, base, name, slowflag=None):
    q = Seq()
    q.wait(vm=name)
    q(f"v_cmp_ne_u64 vcc, s[{sTAG}:{sTAG+1}], {vr(vPD, 2)}\ns_cbranch_vccz .Lq{name}")
    if slowflag is not None:
        q(f"s_waitcnt vmcnt(0)\ns_mov_b32 s62, {slowflag}")
        q(f"buffer_store_dwordx2 {vr(vTG, 2)}, v{vL}, {srd(SWS)}, s62 offen sc1", "nocount")
    q(f"s_mov_b32 s62, {base}\ns_mov_b32 s63, 300000")
    q.label(f".Lp{name}")
    q(f"buffer_load_dwordx2 {vr(vPD, 2)}, v{voff}, {srd(SWS)}, s62 offen sc1", "nocount")
    q("s_waitcnt vmcnt(0)")
    q(f"v_cmp_ne_u64 vcc, s[{sTAG}:{sTAG+1}], {vr(vPD, 2)}")
    q(f"s_sub_u32 s63, s63, 1\ns_cbranch_scc1 .Lend\ns_cbranch_vccnz .Lp{name}")
    q.label(f".Lq{name}")
    return q.l
def flag_store(base, sidx=None, line=None):
    q = Seq()
    q(f"s_mov_b32 s62, {base}")
    q(f"buffer_store_dwordx2 {vr(vTG, 2)}, v{vL}, {srd(SWS)}, s62 offen sc1", "flag")
    return q.l
def tag_issue():
    q = Seq()
    q(f"v_mov_b32 v{vTG}, 0")
    q(f"global_load_dwordx2 {vr(vTG, 2)}, v{vTG}, s[50:51] sc1", "tag")
    return q.l
def tag_check():
    q = Seq()
    q.wait(vm="tag")
    q(f"v_readfirstlane_b32 s{sTAG+1}, v{vTG+1}\ns_mov_b32 s63, 300000\ns_cmp_lg_u32 s{sTAG+1}, 0\ns_cbranch_scc1 .Ltag2")
    q.label(".Ltag")
    q(f"v_mov_b32 v{vTG}, 0")
    q(f"global_load_dwordx2 {vr(vTG, 2)}, v{vTG}, s[50:51] sc1", "nocount")
    q("s_waitcnt vmcnt(0)")
    q(f"v_readfirstlane_b32 s{sTAG+1}, v{vTG+1}")
    q(f"s_sub_u32 s63, s63, 1\ns_cbranch_scc1 .Lend\ns_cmp_eq_u32 s{sTAG+1}, 0\ns_cbranch_scc1 .Ltag")
    q.label(".Ltag2")
    q(f"v_readfirstlane_b32 s{sTAG}, v{vTG}")
    return q.l
```

```python
import re
from pgs import add_stubs, warm
from g3a import *
import g3a

def g2_half(m, hf):
    g = m - 9
    if g < 5:
        ks = [4*g + 2*hf, 4*g + 2*hf + 1] if g < 4 else [16 + hf]
        return [((k - 4*g)*3 + t, AX + 8*t, k) for k in ks for t in range(3)]
    sec, j = divmod(g - 5, 3); A = AX if sec == 1 else AY
    return [((2*hf + h)*3 + i, A + 8*h, 6*j + 3*hf + i) for i in range(3) for h in range(2)]
def g2_rd(m, hf):
    return [I(f"ds_read_b128 {vr(FR + 24*hf + 4*q, 4)}, v{vL16} offset:{(m % NW)*WSL + f*1024}", f"f{m}_{hf}") for q, (f, A, k) in enumerate(g2_half(m, hf))]
def g2_mm(m, hf):
    out = []
    for q, (f, A, k) in enumerate(g2_half(m, hf)):
        for tt in range(2):
            d = vr(A + 4*tt, 4)
            out.append(I(f"{M16} {d}, {vr(FR + 24*hf + 4*q, 4)}, {ar((k*2 + tt)*4, 4)}, {d if k else 0}"))
    return out

def wsched(c):
    d = {}; m = 3
    for n in range(23):
        for h in range(2):
            l = []
            SK = [int(x, 36) for x in c.bsk]
            B = n - 1 + h
            while B in SK: B -= 1
            nk = B + 1
            while nk in SK: nk += 1
            full = (B + 1 in SK) or (nk + 1 in SK) or B >= c.ful or B in [int(x, 36) for x in c.fus]
            while m < 23 and m <= (n - 1 + h + NW if (n, h) <= (9, 0) else B + (NW if full else c.dep)) and len(l) < (1 if m < 9 or m > 10 else 2):
                if m < 9 and (h == 0 or m > n + 3): break
                if m >= 9 and ((n, h) < (c.s_pw, 1) or c.exp & 8): break
                l.append(m); m += 1
            d[(n, h)] = l
    return d

def sep(d):
    n = 4 if len(d) == 5 and "lds" in d[4].t else 3
    return [[d[0]] + (d[1+i: 2+i] if i < n - 1 else d[1+i:]) for i in range(n)]
def pass1(a, c, extra):
    ws = wsched(c)
    PX = [int(x, 36) for x in c.px]; PW = [int(x, 36) for x in c.pw]; PW2 = [int(x, 36) for x in c.pw2]
    for s in range(9):
        dm = []
        if s + 3 < 9:
            dm += list(zip(PX, sep(dma_x(s + 3)))) + list(zip(PW, sep(dma_w(c, s + 3))))
        g = [[m for m in ws[(s, h)] if m >= 9] for h in range(2)]
        for h in range(2):
            for i, m in enumerate(g[h]):
                dm += [(10*h + p, x) for p, x in zip(PW2[:3] if len(g[h]) == 1 else PW2[3+3*i: 6+3*i], sep(dma_w(c, m)))]
        if c.p1w == 1 or s + 3 >= 9 or s == 0: a.wait(lg=[f"f{s}_0", f"xr{s}"])
        elif c.p1w == 2: a.wait(lg=[f"f{s}_0"])
        it = [(k // 2, r) for k, r in enumerate(rd_w(s, 1))]
        it += [x for x in dm if x[0] < 10]
        it.append((c.pv, [W(vm=[f"w{s+1}", f"x{s+1}"])] + ([patch(s + 1)] if s + 1 < 9 else [])))
        it += extra.get(2*s, [])
        it.sort(key=lambda x: x[0])
        a(put(mm(s, 0), it))
        a(extra.get(("pre", s), []))
        a.wait(lg=0)
        a("s_barrier")
        if c.stp & 1: stamp(a, c)
        if s < 8:
            fc = rd_w(s + 1, 0)
            fc = fc[:4] + rd_x(s + 1)[:2] + fc[4:] + rd_x(s + 1)[2:]
        else: fc = g2_rd(9, 0)
        it = [(k // 2, r) for k, r in enumerate(fc)]
        it += [(p - 10, x) for p, x in dm if p >= 10]
        it += extra.get(2*s + 1, [])
        it.sort(key=lambda x: x[0])
        a(put(mm(s, 1), it))

def m0hoist(l, mode):
    l = list(l); i = 0
    T = lambda x: getattr(x, "t", "") or ""
    while i < len(l) - 1:
        if T(l[i]).startswith("s_add_u32 m0") and T(l[i+1]).startswith("buffer_load"):
            j = i - 1
            while j >= 0 and T(l[j]).startswith("ds_read"): j -= 1
            if j >= 0 and T(l[j]).startswith("v_mfma"):
                s = l.pop(i)
                if j == i - 1: l.insert(j, s)
                elif mode == 1: l.insert(j + 1, s)
                else:
                    L = l.pop(i); l.insert(j + 1, L); l.insert(j, s)
        i += 1
    return l

def m0dedup(l, mode):
    def regs(op):
        m = re.match(r"s\[(\d+):(\d+)\]", op)
        if m: return set(range(int(m.group(1)), int(m.group(2)) + 1))
        m = re.match(r"s(\d+)$", op)
        return {int(m.group(1))} if m else set()
    out = []; last = None
    for x in l:
        t = (getattr(x, "t", "") or "").strip()
        assert "\n" not in t
        if x.kind is None and t.startswith("s_add_u32 m0,"):
            if last == t: continue
            last = t
        elif "m0" in t or t.endswith(":") or t.startswith((".", "s_cbranch", "s_branch", "s_setpc", "s_endpgm")): last = None
        elif last and " " in t:
            ops = [y.strip() for y in t.split(None, 1)[1].split(",")]
            src = set().union(*[regs(y.strip()) for y in last.split(None, 1)[1].split(",")])
            if (regs(ops[0]) | (regs(ops[1]) if len(ops) > 1 and t.startswith("v_") else set())) & src and not t.startswith(("s_cmp", "buffer_", "ds_")): last = None
        out.append(x)
    return out

UPK = [""]
def unpk(t, key):
    if key not in UPK[0]: return t
    out = []
    for l in t.split("\n"):
        m = re.match(r"v_pk_(mul|add|fma)_f32 (.*)", l)
        if not m: out.append(l); continue
        op = m.group(1); rest = m.group(2)
        ops = re.findall(r"([vs])\[(\d+):\d+\]", rest)
        g = lambda k, d: [int(x) for x in re.search(k + r":\[([\d,]+)\]", rest).group(1).split(",")] if k + ":" in rest else d
        n = len(ops) - 1
        hi = g("op_sel_hi", [1]*n); ng = g("neg_lo", [0]*n); assert ng == g("neg_hi", [0]*n) and "op_sel:" not in rest
        for h in range(2):
            src = [("-" if ng[k] else "") + ops[1+k][0] + str(int(ops[1+k][1]) + (h if hi[k] else 0)) for k in range(n)]
            if op != "fma" and src[1][0] == "s": src = src[::-1]
            out.append(f"v_{op}_f32 v{int(ops[0][1]) + h}, " + ", ".join(src))
    return "\n".join(out)

def epi1():
    q = Seq()
    q(f"v_and_b32 v{vG1}, 16, v0\nv_cmp_eq_u32 vcc, 0, v{vG1}\ns_mul_i32 s63, s{sT}, 0x3f80")
    for h in range(5):
        for tt in range(2):
            d = ACC + (h*2 + tt)*4
            if h < 4:
                q(f"v_cvt_pk_bf16_f32 v{d}, v{d}, v{d+1}\nv_cvt_pk_bf16_f32 v{d+1}, v{d+2}, v{d+3}")
                q(f"ds_write_b64 v{vSA}, {vr(d, 2)} offset:{h*1280 + tt*256}")
            else:
                q(f"v_cvt_pk_bf16_f32 v{d+2}, v{d+2}, v{d+3}\nv_mov_b32 v{d+3}, s63")
                q(f"ds_write_b64 v{vST}, {vr(d+2, 2)} offset:{tt*128}")
    for i in range(5): q(f"ds_read_b128 {vr(ACC+4*i, 4)}, v{vSL} offset:{i*1024}")
    q(f"v_cndmask_b32 v{vG1}, v{ACC+36}, v{ACC+32}, vcc\nv_mul_f32 v{vG1}, 0xbfb8aa3b, v{vG1}\nv_exp_f32 v{vG1}, v{vG1}\nv_add_f32 v{vG1}, 1.0, v{vG1}\nv_rcp_f32 v{vG0}, v{vG1}\nv_sub_f32 v{vG1}, 1.0, v{vG0}")
    q(f"s_mul_i32 s63, s{sT}, {KV_KIND}\ns_mul_i32 s3, s{sG}, {2*KV_PAIR}\ns_add_u32 s63, s63, s3\ns_lshl_b32 s3, s{sR}, 2\ns_add_u32 s3, s3, s{sW}\ns_mul_i32 s3, s3, 2560\ns_add_u32 s63, s63, s3\ns_add_u32 s63, s63, {KVO}\ns_add_u32 s3, s63, {KV_PAIR+512}")
    for i in range(5):
        q(f"buffer_store_dwordx4 {vr(ACC+4*i, 4)}, v{vK2 if i == 2 else vL16}, {srd(SWS)}, {'s63' if i < 3 else 's3'} offen offset:{(i % 3)*1024} sc1", "st1")
    return q.l

def sout(A, blk, scale=False):
    q = Seq()
    for h in range(2):
        for tt in range(2):
            d = A + 8*h + 4*tt
            if scale:
                for i in (0, 2): q(unpk(f"v_pk_mul_f32 {vr(d+i, 2)}, {vr(d+i, 2)}, s[{sQS}:{sQS+1}] op_sel_hi:[1,0]", "s"))
            q(f"v_cvt_pk_bf16_f32 v{d}, v{d}, v{d+1}\nv_cvt_pk_bf16_f32 v{d+1}, v{d+2}, v{d+3}")
            q(f"ds_write_b64 v{vSA}, {vr(d, 2)} offset:{(blk + h)*1280 + tt*256}")
    return q.l
def tails():
    q = Seq()
    for tt in range(2):
        for h in range(2):
            d = AX + 16 + 4*tt + 2*h
            q(unpk(f"v_pk_mul_f32 {vr(d, 2)}, {vr(d, 2)}, {vr(vSC, 2)} op_sel_hi:[1,0]\nv_cvt_pk_bf16_f32 v{d}, v{d}, v{d+1}", "t"))
            q(f"ds_write2_b32 v{vTW+h}, v{d}, v{vONE} offset0:{32*tt} offset1:{32*tt+1}")
    return q.l

D2, D1, EM, PT = 160, 176, 192, 210
def phi(vT, kf, ka, km):
    BO = EM; T = PT
    q = Seq()
    q(f"ds_read_b128 {vr(BO, 4)}, v{vBL}\nds_read_b128 {vr(BO+4, 4)}, v{vBH}\nds_read_b64 {vr(BO+8, 2)}, v{vT}")
    q(f"v_mov_b32 v{BO+10}, 0\nv_mov_b32 v{BO+11}, 0")
    rd = q.l
    q = Seq()
    for s in range(3):
        q(f"{M32} {vr(D1, 16)}, {vr(WA1+4*s, 4)}, {vr(BO+4*s, 4)}, {vr(D1, 16) if s else 0}")
        q(f"{M32} {vr(D2, 16)}, {vr(WA2+4*s, 4)}, {vr(BO+4*s, 4)}, {vr(D2, 16) if s else 0}")
    mf = q.l
    q = Seq()
    P = [D1 + i for i in range(16)] + [D2 + 2, D2 + 3]
    E = [EM + i for i in range(18)]
    U = D2
    q(f"v_max3_f32 v{T}, v{P[0]}, v{P[1]}, v{P[2]}\nv_min3_f32 v{T+1}, v{P[0]}, v{P[1]}, v{P[2]}")
    for i in range(3, 17, 2): q(f"v_max3_f32 v{T}, v{T}, v{P[i]}, v{P[i+1]}\nv_min3_f32 v{T+1}, v{T+1}, v{P[i]}, v{P[i+1]}")
    q(f"v_max_f32 v{T}, v{T}, v{P[17]}\nv_min_f32 v{T+1}, v{T+1}, v{P[17]}")
    q(f"v_mul_f32 v{U}, s{sLE}, v{T+1}\nv_mul_f32 v{T}, s{sLE}, v{T}")
    for i in range(0, 18, 2):
        q(unpk(f"v_pk_fma_f32 {vr(E[i], 2)}, {vr(P[i], 2)}, s[{sLE}:{sLE+1}], {vr(U, 2)} op_sel_hi:[1,0,0] neg_lo:[1,0,0] neg_hi:[1,0,0]", kf))
        q(unpk(f"v_pk_fma_f32 {vr(P[i], 2)}, {vr(P[i], 2)}, s[{sLE}:{sLE+1}], {vr(T, 2)} op_sel_hi:[1,0,0] neg_lo:[0,0,1] neg_hi:[0,0,1]", kf))
    for R, S in ((E, T + 2), (P, T + 4)):
        for i in range(0, 18, 2):
            q(f"v_exp_f32 v{R[i]}, v{R[i]}\nv_exp_f32 v{R[i+1]}, v{R[i+1]}")
            if i == 4: q(unpk(f"v_pk_add_f32 {vr(S, 2)}, {vr(R[0], 2)}, {vr(R[2], 2)}", ka))
            if i > 4: q(unpk(f"v_pk_add_f32 {vr(S, 2)}, {vr(S, 2)}, {vr(R[i-2], 2)}", ka))
    for R, S in ((E, T + 2), (P, T + 4)):
        q(unpk(f"v_pk_add_f32 {vr(S, 2)}, {vr(S, 2)}, {vr(R[16], 2)}", ka))
    for S in (T + 2, T + 4): q(f"v_add_f32 v{S}, v{S}, v{S+1}")
    for S in (T + 2, T + 4): q(f"v_rcp_f32 v{S}, v{S}")
    for sg, R, S in ((1, E, T + 2), (0, P, T + 4)):
        for i in range(9):
            q(unpk(f"v_pk_mul_f32 {vr(R[2*i], 2)}, {vr(R[2*i], 2)}, {vr(S, 2)} op_sel_hi:[1,0]\nv_cvt_pk_bf16_f32 v{R[i]}, v{R[2*i]}, v{R[2*i+1]}", km))
            if i == 3: q(f"ds_write_b128 v{vBL}, {vr(R[0], 4)} offset:{sg*5120}")
            if i == 7: q(f"ds_write_b128 v{vBH}, {vr(R[4], 4)} offset:{sg*5120}")
            if i == 8: q(f"ds_write_b32 v{vBT}, v{R[8]} offset:{sg*5120}")
    return rd, mf, q.l

def kvpart():
    D = D1
    rd = []; mf = []
    for b in range(4):
        for m in range(2):
            o = 144 + 8*(b*2 + m)
            for j in range(2):
                rd.append(I(f"ds_read_b64_tr_b16 {ar(o + 2*j, 2)}, v{AD + 2*m + j} offset:{b*SST}"))
                rd.append(I(f"ds_read_b64_tr_b16 {ar(o + 4 + 2*j, 2)}, v{AD + 4 + 2*m + j} offset:{b*SST}"))
            mf.append(I(f"{M32} {vr(D, 16)}, {ar(o, 4)}, {ar(o+4, 4)}, {vr(D, 16) if (b or m) else 0}"))
    q = Seq()
    for i in range(5): q(f"v_cvt_pk_bf16_f32 v{D+i}, v{D+2*i}, v{D+2*i+1}")
    g = Seq()
    g("s_mov_b32 exec_lo, 0xfffff\ns_mov_b32 exec_hi, 0xfffff")
    g(f"buffer_store_dwordx4 {vr(D, 4)}, v{vKS+1}, {srd(SWS)}, s5 offen sc1", "st2")
    g("s_mov_b32 exec_lo, -1\ns_mov_b32 exec_hi, 0")
    g(f"buffer_store_dword v{D+4}, v{vKS}, {srd(SWS)}, s5 offen offset:640 sc1", "st2")
    g("s_mov_b64 exec, -1")
    return rd, mf, q.l + [g.l]

def kv_dma(c):
    q = Seq()
    q(f"s_lshr_b32 s62, s{sW}, 1\ns_mul_i32 s62, s62, {KV_KIND}\ns_mul_i32 s63, s{sP}, {KV_PAIR}\ns_add_u32 s62, s62, s63\ns_add_u32 s62, s62, {KVO - 8*2560}")
    q(f"s_and_b32 s63, s{sW}, 1\ns_mul_i32 s63, s63, 6\ns_lshl_b32 s3, s{sR}, 2\ns_add_u32 s99, s63, s3\ns_mul_i32 s63, s99, 2560\ns_add_u32 s62, s62, s63")
    mksrd(q, SM, 52, 53, "s62", nrec=15360)
    q(f"s_mul_i32 s{sM0x}, s{sW}, 15360\ns_add_u32 s{sM0x}, s{sM0x}, {KVR}")
    pre = q.l; groups = []
    for g in range(3):
        for o, n in ((0, 2), (2048, 3)):
            q = Seq()
            if o == 0: q(f"s_cmp_ge_u32 s99, {8 - 2*g}\ns_cselect_b32 s{SM+2}, 15360, 0")
            q(f"s_add_u32 m0, s{sM0x}, {g*5120 + o}\ns_movk_i32 s19, {g*5120 + o}")
            for i in range(n):
                if i: q = Seq(); q(f"s_add_u32 m0, s{sM0x}, {g*5120 + o}")
                q(f"buffer_load_dwordx4 v{vL16}, {srd(SM)}, s19 offen offset:{i*1024} {c.ldpol} lds", "kv")
                groups.append(q.l)
    return pre, groups

def kv_ready():
    a = Seq()
    a.wait(vm="kv")
    a(f"s_cmp_ge_u32 s{sW}, 2\ns_cbranch_scc1 .Lmk2\ns_add_u32 s63, s99, 6\ns_min_u32 s63, s63, 8\ns_cmp_ge_u32 s99, 8\ns_cbranch_scc1 .Lmk2")
    a(f"v_and_b32 v60, 31, v0\nv_bfe_u32 v61, v0, 5, 1\nv_mul_u32_u24 v61, 1280, v61\nv_lshl_add_u32 v60, v60, 3, v61\nv_add_u32 v60, s{sM0x}, v60\nv_mov_b32 v61, 0xf149")
    a.label(".Lmk")
    a("ds_write_b16 v60, v61 offset:1028", "nocount")
    a("v_add_u32 v60, 2560, v60\ns_add_u32 s99, s99, 1\ns_cmp_lt_u32 s99, s63\ns_cbranch_scc1 .Lmk")
    a("s_waitcnt lgkmcnt(0)")
    a.label(".Lmk2")
    return a.l

WOE = []; WOL = []; APT = 72; KA = 128
def wo_init(c):
    global APT
    WOE[:] = [(8, ct) for ct in range(5)] + [(s, 4) for s in range(8)] + [(s, ct) for s in range(4) for ct in range(4)][:15 if c.s2 else 14]
    WOL[:] = [(s, ct) for s in range(8) for ct in range(4) if (s, ct) not in WOE]
    APT = 64 if c.s2 else 72
def awo(s, ct): return 144 + 4*WOE.index((s, ct)) if (s, ct) in WOE else KA if (APT == 64 and WOL.index((s, ct)) == 16) else 4*WOL.index((s, ct))
SLOT = [(0, 0), (1, 0), (1, 1), (0, 1)]
def wo_loads(c, lst):
    out = []; cur = None
    def ld(sb, t):
        nonlocal cur
        out.append(I(t, "wo") if sb == cur else [I(f"s_add_u32 s101, s100, {sb*WOBLK}"), I(t, "wo")]); cur = sb
    for part in range(2):
        for s, ct in lst:
            if s == 8: ld(part, f"buffer_load_dwordx2 {ar(awo(s, ct) + 2*part, 2)}, v{VT if ct < 4 else VT4}, {srd(SWS)}, s101 offen offset:{ct*128} {c.ldpol}")
    for s, ct in sorted(lst):
        if s < 8 and c.s2:
            br, hd = SLOT[s >> 1]
            ld(4*(s & 1) + br, f"buffer_load_dwordx4 {ar(awo(s, ct), 4)}, v{vWM2 if ct < 4 else V4}, {srd(SWS)}, s101 offen offset:{ct*1024 + hd*512 if ct < 4 else hd*256} {c.ldpol}")
        elif s < 8: ld(s, f"buffer_load_dwordx4 {ar(awo(s, ct), 4)}, v{vL16 if ct < 4 else V4}, {srd(SWS)}, s101 offen offset:{(ct&3)*1024} {c.ldpol}")
    return out

IDS = LDS_TOTAL
def early():
    q = Seq()
    q(f"s_add_u32 s4, s{sOA}, 4096\ns_lshl2_add_u32 s47, s{sP}, s{sW}\ns_mul_i32 s6, s47, 12288\ns_add_u32 s6, s6, {PARO}\ns_mul_i32 s47, s{sR}, 768\ns_add_u32 s5, s6, s47")
    q(f"s_mul_i32 s11, s{sW}, 9216\ns_add_u32 s11, s11, {OPO}")
    for tt in range(4): q(f"s_xor_b32 s47, s{sW}, {tt}\ns_lshl2_add_u32 s47, s{sRT}, s47\ns_mul_i32 s47, s47, 36864\ns_add_u32 s{7+tt}, s47, s11")
    q(f"s_and_b32 s47, s{sW}, 2\ns_add_u32 s47, s47, s{sW}\ns_lshl_b32 s47, s47, 10\ns_add_u32 s11, s47, {WPH + 2048}")
    sa = q.l; q = Seq(); ID = 200; t = 204
    q(f"v_bfe_u32 v{t}, v0, 3, 2\nv_bfe_u32 v{t+1}, v0, 1, 1\nv_lshl_add_u32 v{t}, v{t}, 1, v{t+1}")
    q(f"v_and_b32 v{t+1}, 1, v0\nv_lshlrev_b32 v{t+1}, 4, v{t+1}\nv_lshlrev_b32 v{t+1}, v{t+1}, v{vONE}")
    q(f"v_bfe_u32 v{t+2}, v0, 2, 1\nv_bfe_u32 v{t+3}, v0, 5, 1\nv_cmp_eq_u32 vcc, v{t+2}, v{t+3}\nv_cndmask_b32 v{t+1}, 0, v{t+1}, vcc")
    for i in range(4): q(f"v_cmp_eq_u32 vcc, {i}, v{t}\nv_cndmask_b32 v{ID+i}, 0, v{t+1}, vcc")
    q(f"v_add_u32 v{t}, {IDS}, v{vL16}\nds_write_b128 v{t}, {vr(ID, 4)}")
    for r in (QT, QT+1, QT+4, QT+5, QT+8, QT+9): q(f"v_mov_b32 v{r}, 0")
    return sa, q.l

def g2(a, c):
    side = [[] for _ in range(29)]; side2 = [[] for _ in range(29)]
    def spread(S, items, h0, h1):
        n = len(items)
        for k, it in enumerate(items): S[h0 + k * (h1 - h0) // n].append(it)
    e1 = epi1()
    spread(side, e1[:-5], 0, c.e1n)
    F1S = [W(vm="st1")] + flag_store(F1, sL, False)
    if not c.f1l: side[c.h_f1].append(F1S)
    rd, mf, sm = phi(vBT, 'f', 'a', 'm')
    spread(side, sout(AX, 0) + tails() + rd + mf, 10, 11)
    spread(side, sm, 11, 19)
    if c.f1l: side[c.h_f1].insert(len(side[c.h_f1]) * c.f1l // 4, F1S)
    spread(side2, sout(AY, 2), 16, 17)
    krd, kmf, ks = kvpart()
    spread(side, krd, 19, 21); spread(side2, kmf, 20, 22); side2[21] += ks
    if c.h_f2 < 28: side[c.h_f2].append([W(vm="st2")] + flag_store(F2, sL, True))
    rd, mf, sm = phi(vBT2, 'F', 'A', 'M')
    spread(side, sout(AX, 0) + rd + mf, 22, 23)
    spread(side, sm[:len(sm) - c.phq], 23, 28)
    pre, kd = kv_dma(c)
    side2[c.h_kv - c.pf1].append(poll_issue(vF1, F1, "f1"))
    sa, va = early()
    k = [i for i, x in enumerate(pre) if x.t.startswith("s_addc")][0]
    pre = pre[:k-1] + [pre[k-1:k+1]] + pre[k+1:]
    if c.s3g:
        q = Seq(); setup3(q, c); spread(side, va + q.l, c.h_ea, 10); spread(side2, sa, c.h_ea, 7); spread(side2, pre, 7, 10)
    elif c.h_ea >= 0: spread(side2, sa, c.h_ea, c.h_ea + 3); spread(side, va, c.h_ea, c.h_ea + 3); spread(side, pre, 7, 10)
    else: spread(side, va[-6:], 5, 9)
    side2[c.h_kv].insert(0, poll_check(vF1, F1, "f1"))
    vm = [[] for _ in range(29)]
    ws = wsched(c); wl = {}; SK = [int(x, 36) for x in c.bsk]
    assert not set(SK) & {9, 18, 19, 22}
    for m in range(9, 23):
        for hf in range(2):
            H = 2*(m - 9) + hf
            for n in ws[(m, hf)]:
                d = dma_w(c, n)
                wl[n] = H + (1 if c.w3l else 0)
                for i in range(3): vm[H + ((i + 1) // 3 if c.w3l else 0)].append([d[0]] + d[1+i: 2+i if i < 2 else 9])
    spread(vm, kd, c.h_kv, c.h_kv + c.n_kv)
    for k, h in enumerate([int(x, 36) for x in c.e1s]): vm[h].append(e1[k-5])
    if c.s2 and c.po and c.pop >= 20:
        p1, p2 = poison(208); side2[c.pop - 20].insert(0, p1)
        for k, x in enumerate(p2): vm[c.pop - 20 + (k + 1) * c.pon // 6].append(x)
    FO = g3a.FO if (c.wol == 1 or c.sfo) else F1
    if c.sfo:
        assert c.pop >= 20 and c.pop - 20 + 5 * c.pon // 6 < c.h_fo < c.h_pfo
        side[c.h_fo].append([W(vm=["poi", "stw"])] + flag_store(FO, sL, False))
    else: assert c.pop - 20 + 5 * c.pon // 6 < int(c.e1s[-1], 36)
    if c.wol == 1:
        d = wo_dma(SX, SW1); vm[0].append(d[0]); vm[1].append(d[1])
        p1, p2 = wo_repack(PT - 12, SW1)
        side2[9].append(p1); vm[10].append(p2[:4]); vm[10].append(p2[4:])
        side[c.h_fo].append([W(vm="stw")] + flag_store(FO, sL, False))
    side2[c.h_pfo].append(poll_issue(vFO, FO, "fo"))
    for m in range(9, 23):
        for hf in range(2):
            H = 2*(m - 9) + hf
            mf = g2_mm(m, hf)
            rd = g2_rd(m, 1) if hf == 0 else g2_rd(m + 1, 0) if m < 22 else []
            it = [(k, r) for k, r in enumerate(rd)] + [((2*k + 1) * len(mf) // (2*len(vm[H])), x) for k, x in enumerate(vm[H])]
            for S in (side[H], side2[H]): it += [(k * len(mf) // len(S), x) for k, x in enumerate(S)]
            it.sort(key=lambda x: x[0])
            a(put(mf, it))
            if hf == 0 and m not in SK:
                if c.stp & 8: stamp(a, c)
                nk = m + 1
                while nk in SK: nk += 1
                full = (m + 1 in SK) or (nk + 1 in SK) or m >= c.ful or m in [int(x, 36) for x in c.fus]
                assert m == 22 or wl.get(nk, -1) <= H, (m, nk, wl)
                if m < 22: a.wait(vm=[f"w{j}" for j in range(m + 1, nk + 1)] + (["wos"] if m == 13 else [])); a.wait(lg=0 if (m in (18, 19) or c.dep == NW) else [f"f{m}_0", f"f{m}_1"] if full else f"f{m}_0")
                else: a(poll_check(vFO, FO, "fo")); a(kv_ready())
                a("s_barrier")
                if c.stp & 2: stamp(a, c)
    a(sout(AY, 2, True))
    for hd in range(2):
        a(f"ds_read_b128 {vr(Q0 + 4*hd, 4)}, v{vQM} offset:{2560 + hd*1280}\nds_read_b64 {vr(QT + 2 + 4*hd, 2)}, v{vQT} offset:{hd*1024}")
    return sm[len(sm) - c.phq:]

Q0, QT, OB0, OB1, KM, KT, VV, MX = 10, 18, 28, 44, 60, 68, 76, 92
TL = 236
def ST(i): return 96 + 16*i
ORDER = [0, 8, 1, 2, 3, 4, 5, 6, 7]
def sdst(t): return OB1 if t == 0 else ST(0) if t == 8 else ST(t)
def k_rd(hd, n):
    t = ORDER[n]; o = t*2560 + hd*1280
    return [I(f"ds_read_b128 {vr(KM + 4*(n&1), 4)}, v{vKL} offset:{o}"),
            I(f"ds_read_b64 {vr(KT + 4*((n>>1)&1) + 2*(n&1), 2)}, v{vKT} offset:{o}")]
def qk(hd, n):
    d = vr(sdst(ORDER[n]), 16)
    return [I(f"{M32} {d}, {vr(KM + 4*(n&1), 4)}, {vr(Q0 + 4*hd, 4)}, 0"),
            I(f"{M32} {d}, {vr(KT + 4*((n>>1)&1), 4)}, {vr(QT + 4*hd + (0 if n & 1 else 2), 4)}, {d}")]
def merge(): return [I(f"v_cndmask_b32 v{ST(0)+r}, v{OB1+r}, v{ST(0)+r}, s[{64+2*r}:{65+2*r}]") for r in range(16)]
def mx(i):
    out = []
    for j in range(8):
        m = MX + (j & 1); x = ST(i) + 2*j
        if i == 0 and j < 2: out.append(I(f"v_max_f32 v{m}, v{x}, v{x+1}"))
        else: out.append(I(f"v_max3_f32 v{m}, v{m}, v{x}, v{x+1}"))
    return out
def mx_fin():
    q = Seq()
    q(f"v_max_f32 v{MX}, v{MX}, v{MX+1}\nv_mov_b32 v{MX+1}, v{MX}\nv_permlane32_swap_b32 v{MX}, v{MX+1}\nv_max_f32 v{MX}, v{MX}, v{MX+1}")
    q(f"v_and_b32 v{MX+1}, 0xffff0000, v{MX}\nv_sub_f32 v{MX}, v{MX+1}, v{MX}\nv_cvt_pk_bf16_f32 v{CM}, -v{MX+1}, v{MX}")
    return q.l
def sub(i):
    d = vr(ST(i), 16)
    return I(f"{M32} {d}, {vr(CM+2, 4)}, {vr(CM, 4)}, {d}")
def ex(i):
    out = []; b = ST(i)
    for j in range(8):
        out += [I(f"v_exp_f32 v{b+2*j}, v{b+2*j}"), I(f"v_exp_f32 v{b+2*j+1}, v{b+2*j+1}")]
        if j: out.append(I(f"v_cvt_pk_bf16_f32 v{b+j-1}, v{b+2*j-2}, v{b+2*j-1}"))
    out.append(I(f"v_cvt_pk_bf16_f32 v{b+7}, v{b+14}, v{b+15}"))
    if i == 0:
        for j in range(8): out.append(I(f"v_and_b32 v{b+8+j}, v{PM+j}, v{b+j}"))
        for j in range(8): out.append(I(f"v_xor_b32 v{b+j}, v{b+8+j}, v{b+j}"))
    return out
def v_rd(hd, n):
    t = ORDER[n]
    return [I(f"ds_read_b64_tr_b16 {vr(VV + 8*(n&1) + 2*i, 2)}, v{vTR+i} offset:{t*2560 + hd*1280}") for i in range(4)]
def pv(hd, n):
    t = ORDER[n]; o = vr(OB0 if hd == 0 else OB1, 16)
    p = ST(0) if t == 0 else ST(0) + 8 if t == 8 else ST(t)
    return [I(f"{M32} {o}, {vr(VV + 8*(n&1), 4)}, {vr(p, 4)}, {o if n else 0}"),
            I(f"{M32} {o}, {vr(VV + 8*(n&1) + 4, 4)}, {vr(p + 4, 4)}, {o}")]
def fin(u, O, c):
    q = Seq(); t = O + 10
    if u >= 2: q(f"v_add_f32 v{t}, 0x358637bd, v{t}")
    q(f"v_rcp_f32 v{t}, v{t}\nv_mul_f32 v{t}, v{vG0 if u >= 2 else vG1}, v{t}")
    for i in range(5):
        q(unpk(f"v_pk_mul_f32 {vr(O+2*i, 2)}, {vr(O+2*i, 2)}, {vr(t, 2)} op_sel_hi:[1,0]\nv_cvt_pk_bf16_f32 v{O+12+i if i < 4 else TL+u}, v{O+2*i}, v{O+2*i+1}", str(u)))
    sl = [0, 3, 1, 2][u]
    if c.s2: q(f"buffer_store_dwordx4 {vr(O+12, 4)}, v{vOA}, {srd(SWS)}, s{4 if sl >= 2 else sOA} offen offset:{(sl & 1)*2048} sc1", "st3b" if u == 1 else "st3a")
    else: q(f"buffer_store_dwordx4 {vr(O+12, 4)}, v{vOA}, {srd(SWS)}, s{sOA} offen offset:{u*512} sc1", "st3")
    return q.l
def par_loads(c):
    q = Seq(); VP = 245
    q(f"v_min_u32 v{VP}, {44*16}, v{vL16}")
    out = [q.l]
    for r in range(16):
        out.append([I(f"buffer_load_dwordx4 {ar(APT + 4*r, 4)}, v{VP}, {srd(SWS)}, s6 offen offset:{(r % 6)*768} {c.ldpol}", "pl")] + ([I("s_add_u32 s6, s6, 4608")] if r % 6 == 5 else []))
    return out
def kvsum():
    q = Seq(); ID = Q0; t = Q0 + 4
    q(f"v_bfe_u32 v{t}, v0, 3, 2\nv_bfe_u32 v{t+1}, v0, 1, 1\nv_lshl_add_u32 v{t}, v{t}, 1, v{t+1}")
    q(f"v_and_b32 v{t+1}, 1, v0\nv_lshlrev_b32 v{t+1}, 4, v{t+1}\nv_mov_b32 v{t+2}, 0x3f80\nv_lshlrev_b32 v{t+1}, v{t+1}, v{t+2}")
    q(f"v_bfe_u32 v{t+2}, v0, 2, 1\nv_bfe_u32 v{t+3}, v0, 5, 1\nv_cmp_eq_u32 vcc, v{t+2}, v{t+3}\nv_cndmask_b32 v{t+1}, 0, v{t+1}, vcc")
    for i in range(4): q(f"v_cmp_eq_u32 vcc, {i}, v{t}\nv_cndmask_b32 v{ID+i}, 0, v{t+1}, vcc")
    pre = [q.l]
    o = vr(OB0, 16)
    mf = [I(f"{M32} {o}, {vr(ID, 4)}, {ar(APT + 4*r, 4)}, {o if r else 0}") for r in range(16)]
    q = Seq()
    q(f"s_lshl_b32 s62, s{sW}, 10\ns_add_u32 s62, s62, {KVS}\nv_add_u32 v{t}, s62, v{vL16}")
    for i in range(4): q(f"v_cvt_pk_bf16_f32 v{OB0+i}, v{OB0+2*i}, v{OB0+2*i+1}")
    q(f"ds_write_b128 v{t}, {vr(OB0, 4)}")
    return pre, mf, q.l
def a_apply(T, O):
    q = Seq(); t = Q0
    q(f"v_and_b32 v{t}, 31, v0\nv_and_b32 v{t+1}, 19, v0\nv_cmp_gt_u32 vcc, 16, v{t}\nv_cndmask_b32 v{t}, v{t+1}, v{t}, vcc\nv_bfe_u32 v{t+1}, v0, 5, 1")
    q(f"v_mul_u32_u24 v{t+2}, 320, v{t+1}\nv_lshl_add_u32 v{t+2}, v{t}, 4, v{t+2}\nv_add_u32 v{t+2}, {KVS}, v{t+2}")
    q(f"v_lshlrev_b32 v{t+3}, 11, v{t+1}\nv_lshl_add_u32 v{t+3}, v{t}, 2, v{t+3}\nv_add_u32 v{t+3}, {KVS + 640}, v{t+3}")
    q(f"s_mul_i32 s62, s{sW}, 5120\ns_add_u32 s62, s62, {STG - KVR}\nv_add_u32 v{t}, s62, v{vKL}\nv_mul_u32_u24 v{t+1}, 5120, v{t+1}\nv_add3_u32 v{t+1}, v{t+1}, s62, v{vKT}")
    for hd in range(2):
        b = T + 24*hd
        q(f"ds_read_b128 {vr(b+14, 4)}, v{t} offset:{hd*1280}\nds_read_b128 {vr(b+18, 4)}, v{t} offset:{5120 + hd*1280}\nds_read_b32 v{b+12}, v{t+1} offset:{hd*1280}")
        for r in (9, 10, 11, 13): q(f"v_mov_b32 v{b+r}, 0")
    pre = q.l
    q = Seq()
    for hd in range(2):
        b = T + 24*hd
        q(f"ds_read_b128 {vr(b, 4)}, v{t+2} offset:{hd*1024}\nds_read_b128 {vr(b+4, 4)}, v{t+2} offset:{2048 + hd*1024}\nds_read_b32 v{b+8}, v{t+3} offset:{hd*1024}")
    for hd in range(2):
        b = T + 24*hd; o = vr(O[hd], 16)
        q(f"{M32} {o}, {vr(b, 4)}, {vr(b+14, 4)}, 0\n{M32} {o}, {vr(b+4, 4)}, {vr(b+18, 4)}, {o}\n{M32} {o}, {vr(b+8, 4)}, {vr(b+12, 4)}, {o}")
    return pre, q.l

def attention(a, c, rest):
    ld = wo_loads(c, WOE[:13])
    wl = wo_loads(c, WOE[13:] + WOL)
    a(k_rd(0, 0) + k_rd(0, 1) + [k_rd(0, 2)[1], k_rd(0, 3)[1]])
    k = len(rest) // 2
    a(rest[:k]); rest = rest[k:]
    if c.stp & 4: stamp(a, c)
    for n in range(9):
        a(qk(0, n))
        if n + 2 < 9: a(k_rd(0, n + 2)[:1 if n < 2 else 2])
        for _ in range(3):
            if ld: a(ld.pop(0))
        if n < 3: a(rest[n*len(rest)//3: (n+1)*len(rest)//3])
        if n == 3: a(merge())
        if n >= 4: a(mx(n - 4))
        if n == c.h_f2 - 28: a([W(vm="st2")] + flag_store(F2, sL, True))
    a(k_rd(1, 0) + k_rd(1, 1) + v_rd(0, 0) + v_rd(0, 1))
    a(qk(1, 0))
    for i in range(5, 8): a(mx(i))
    ld = wl[:2*c.f2n - 1] + [poll_issue(vF2, F2, "f2")] + wl[2*c.f2n - 1: 2*c.f2n + 3]
    ld += [poll_check(vF2, F2, "f2")] + par_loads(c) + wl[2*c.f2n + 3:]
    stamp(a, c)
    for hd in range(2):
        a(mx_fin())
        a(sub(0)); a(sub(1))
        if hd == 1:
            kpre, kmf, kfin = kvsum()
            a(fin(0, OB0, c)); a(kpre)
        for i in range(9):
            main = ex(i) if i < 8 else []
            fill = []
            if i + 2 < 8: fill.append(sub(i + 2))
            if i >= 1:
                ns = [0, 1] if i == 1 else [i]
                for n in ns:
                    fill += pv(hd, n)
                    if n + 2 < 9: fill += v_rd(hd, n + 2)
                if hd == 0:
                    fill += qk(1, i)
                    if i + 1 < 9: fill += k_rd(1, i + 1)
                    if i == 3: main += merge()
                    if i >= 4: main += mx(i - 4)
            if hd == 1 and 2 <= i <= 5: fill += kmf[4*(i-2): 4*i-4]
            if hd == 1 and i == 7: main += kfin
            for _ in range(3 if i else 2):
                if ld: fill.append(ld.pop(0))
            if main: a(weave(main, fill))
            else: a(fill)
        if hd == 0:
            a(v_rd(1, 0) + v_rd(1, 1))
            for i in range(5, 8): a(mx(i))
        stamp(a, c)
    assert not ld
    apre, amf = a_apply(ST(2), [ST(0), ST(1)])
    a(apre)
    a.wait(lg=0); a("s_barrier")
    a(amf)
    a(fin(1, OB1, c))
    a(fin(2, ST(0), c)); a(fin(3, ST(1), c))
    a(f"s_mov_b32 exec_hi, 0\nbuffer_store_dwordx4 {vr(TL, 4)}, v{vOT}, {srd(SWS)}, s{sOT} offen sc1\ns_mov_b32 exec_hi, -1", "st3")
    a.wait(vm="st3")
    a(flag_store(F3, sL, True))

def p3(a, c):
    OP, AC = 0, 144
    V1, V2, VW, VO = 236, 237, 238, 241
    a(poll_issue(vF3, F3, "f3"))
    a(f"v_add_u32 v{V1}, 4096, v{vL16}\nv_add_u32 v{V2}, 8192, v{vL16}")
    for tt in range(4):
        a(f"s_add_u32 s62, s{sW}, {tt}\ns_and_b32 s62, s62, 3")
        if tt: a(f"s_mul_i32 s63, s62, 15360\ns_add_u32 s63, s63, {(tt-1)*5120}\nv_add_u32 v{VW+tt-1}, s63, v{vL16}")
        a(f"s_lshl_b32 s63, s{sRT}, 2\ns_add_u32 s62, s62, s63\ns_mul_i32 s62, s62, 36864\ns_mul_i32 s63, s{sW}, 9216\ns_add_u32 s62, s62, s63\ns_add_u32 s{64+tt}, s62, {OPO}")
    a(f"v_and_b32 v{VO}, 15, v0\nv_mul_u32_u24 v{VO}, 1152, v{VO}\nv_bfe_u32 v{VO+1}, v0, 4, 1\nv_lshl_add_u32 v{VO+1}, v{VO+1}, 3, v{VO}\nv_and_b32 v254, 48, v0\nv_add_u32 v{VO}, v254, v{VO}")
    a(f"s_lshl_b32 s62, s{sRT}, 2\ns_add_u32 s62, s62, s{sW}\ns_mul_i32 s62, s62, {16*1152}\ns_mul_i32 s63, s{sCB}, 144\ns_add_u32 s68, s62, s63")
    a(f"s_mul_i32 s62, s{sW}, 15360\nv_add_u32 v254, s62, v{vL16}")
    mksrd(a, SM, 48, 49, nrec=2048*1152)
    a(poll_check(vF3, F3, "f3"))
    stamp(a, c)
    for s in range(9):
        for tt in range(4):
            a(f"buffer_load_dwordx4 {vr(OP + (s*4 + tt)*4, 4)}, v{[vL16, V1, V2][s >> 2]}, {srd(SWS)}, s{64+tt} offen offset:{(s & 3)*1024} {c.ldpol}")
    for s in range(9):
        for tt in ([0, 1, 2, 3] if s < 8 else [1, 2, 3, 0]):
            for ct in range(5):
                d = vr(AC + (tt*5 + ct)*4, 4)
                a(f"{M16} {d}, {ar(awo(s, ct), 4)}, {vr(OP + (s*4 + tt)*4, 4)}, {d if s else 0}")
    stamp(a, c)
    for tt in range(1, 4):
        for ct in range(5): a(f"ds_write_b128 v{VW+tt-1}, {vr(AC + (tt*5 + ct)*4, 4)} offset:{ct*1024}")
    a.wait(lg=0); a("s_barrier")
    for ct in range(5):
        for sl in range(3): a(f"ds_read_b128 {vr((ct*3 + sl)*4, 4)}, v254 offset:{sl*5120 + ct*1024}")
    for ct in range(5):
        d = AC + ct*4; b = ct*12
        for i in (0, 2): a(f"v_pk_add_f32 {vr(d+i, 2)}, {vr(d+i, 2)}, {vr(b+i, 2)}\nv_pk_add_f32 {vr(b+4+i, 2)}, {vr(b+4+i, 2)}, {vr(b+8+i, 2)}")
        for i in (0, 2): a(f"v_pk_add_f32 {vr(d+i, 2)}, {vr(d+i, 2)}, {vr(b+4+i, 2)}")
        a(f"v_cvt_pk_bf16_f32 v{64+2*ct}, v{d}, v{d+1}\nv_cvt_pk_bf16_f32 v{65+2*ct}, v{d+2}, v{d+3}")
        if ct in (1, 3): a(f"buffer_store_dwordx4 {vr(64 + 2*(ct-1), 4)}, v{VO}, {srd(SM)}, s68 offen offset:{32*(ct-1)}")
        if ct == 4: a(f"s_mov_b32 exec_hi, 0\nbuffer_store_dwordx2 {vr(72, 2)}, v{VO+1}, {srd(SM)}, s68 offen offset:128\ns_mov_b32 exec_hi, -1")

def kvsum2():
    q = Seq(); ID = Q0; t = QT
    q(f"v_add_u32 v{ID}, {IDS}, v{vL16}\nv_add_u32 v95, s11, v{vL16}\nds_read_b128 {vr(ID, 4)}, v{ID}")
    pre = q.l
    o = ar(KA, 16)
    mf = [I(f"{M32} {o}, {vr(ID, 4)}, {ar(APT + 4*r, 4)}, {o if r else 0}") for r in range(16)]
    q = Seq()
    R = [ID, ID+1, ID+2, ID+3, t, t+1, t+2, t+3]
    for i in range(8): q(f"v_accvgpr_read_b32 v{R[i]}, a{KA+i}")
    for i in range(4): q(f"v_cvt_pk_bf16_f32 v{ID+i}, v{R[2*i]}, v{R[2*i+1]}")
    q(f"ds_write_b128 v95, {vr(ID, 4)}")
    return pre, mf, q.l
def a_apply2(T, O):
    q = Seq(); t0, t1, t2, t3 = 94, vBH, vBL, 94
    q(f"v_and_b32 v{t0}, 31, v0\nv_and_b32 v{t1}, 19, v0\nv_cmp_gt_u32 vcc, 16, v{t0}\nv_cndmask_b32 v{t0}, v{t1}, v{t0}, vcc\nv_bfe_u32 v{t1}, v0, 5, 1")
    q(f"v_mul_u32_u24 v{t2}, 320, v{t1}\nv_lshl_add_u32 v{t2}, v{t0}, 4, v{t2}\nv_add_u32 v{t2}, {WPH + 2048}, v{t2}")
    q(f"v_lshl_add_u32 v{t3}, v{t1}, 10, v{t0}\nv_lshlrev_b32 v{t3}, 2, v{t3}\nv_add_u32 v{t3}, {WPH + 2048 + 640}, v{t3}")
    q(f"v_mul_u32_u24 v{t1}, 3840, v{t1}\nv_add_u32 v{t1}, v{t1}, v{vBT}")
    adr = q.l; q = Seq(); t0 = vQM
    for hd in range(2):
        b = T + 24*hd
        q(f"ds_read_b128 {ar(b+14, 4)}, v{t0} offset:{hd*1280}\nds_read_b128 {ar(b+18, 4)}, v{t0} offset:{5120 + hd*1280}\nds_read_b32 a{b+12}, v{t1} offset:{hd*1280}")
    pre = q.l
    q = Seq()
    for hd in range(2):
        b = T + 24*hd
        q(f"ds_read_b128 {ar(b, 4)}, v{t2} offset:{hd*1024}\nds_read_b128 {ar(b+4, 4)}, v{t2} offset:{4096 + hd*1024}\nds_read_b32 a{KA+8+4*hd}, v{t3} offset:{hd*1024}")
    for hd in range(2):
        b = T + 24*hd; o = vr(O[hd], 16)
        q(f"{M32} {o}, {ar(b, 4)}, {ar(b+14, 4)}, 0\n{M32} {o}, {ar(b+4, 4)}, {ar(b+18, 4)}, {o}\n{M32} {o}, {ar(KA+8+4*hd, 4)}, {ar(b+12, 4)}, {o}")
    return adr, pre, q.l

P1, P2, PW, PO, PR = 28, 29, 30, 33, 35
def p3_addr():
    a = Seq()
    a(f"v_add_u32 v{P1}, 4096, v{vL16}\nv_add_u32 v{P2}, 8192, v{vL16}\nv_lshl_add_u32 v{PR}, s{sW}, 14, v{vL16}")
    for tt in range(1, 4): a(f"v_xor_b32 v{PW+tt-1}, {tt << 14}, v{PR}")
    a(f"v_and_b32 v{PO}, 15, v0\nv_mul_u32_u24 v{PO}, 1152, v{PO}\nv_bfe_u32 v{PO+1}, v0, 4, 1\nv_lshl_add_u32 v{PO+1}, v{PO+1}, 3, v{PO}\nv_and_b32 v36, 48, v0\nv_add_u32 v{PO}, v36, v{PO}")
    a(f"s_lshl2_add_u32 s62, s{sRT}, s{sW}\ns_mul_i32 s62, s62, {16*1152}\ns_mul_i32 s63, s{sCB}, 144\ns_add_u32 s68, s62, s63")
    mksrd(a, SM, 48, 49, nrec=2048*1152)
    return a.l

PDW = [0]
def poison(T, vr=ar):
    q = Seq()
    if PDW[0]:
        q(f"v_accvgpr_write_b32 a{T}, -1")
        g = [[I(f"s_add_u32 s62, s{sOA}, {sl*2048}"), I(f"buffer_store_dword a{T}, v{vOA}, {srd(SWS)}, s62 offen sc1", "poi")] for sl in range(4)]
        g.append([I("s_mov_b32 exec_hi, 0"), I(f"buffer_store_dword a{T}, v{vOT}, {srd(SWS)}, s{sOT} offen sc1", "poi"), I("s_mov_b32 exec_hi, -1")])
        return q.l, g
    for i in range(4): q(f"v_accvgpr_write_b32 a{T+i}, -1")
    g = []
    for sl in range(4):
        g.append([I(f"s_add_u32 s62, s{sOA}, {sl*2048}"), I(f"buffer_store_dwordx4 {vr(T, 4)}, v{vOA}, {srd(SWS)}, s62 offen sc1", "poi")])
    g.append([I("s_mov_b32 exec_hi, 0"), I(f"buffer_store_dwordx4 {vr(T, 4)}, v{vOT}, {srd(SWS)}, s{sOT} offen sc1", "poi"), I("s_mov_b32 exec_hi, -1")])
    return q.l, g

def attention2(a, c, rest):
    e = wo_loads(c, WOE[:c.ne])
    wl = wo_loads(c, WOE[c.ne:] + WOL[:16]); wlast = wo_loads(c, WOL[16:])
    for x in flat(wlast):
        if x.tag == "wo": x.tag = "pe"
    pl = par_loads(c)
    A = [[] for _ in range(9)]; B = [[] for _ in range(18)]
    gb = c.ks0 + c.kn
    if c.a2n >= 0:
        for k, x in enumerate(e): A[k * c.a2n // len(e)].append(x)
        A[max(c.a2n - 2, 0)].append(poll_issue(vF2, F2, "f2"))
        A[c.a2n].append(poll_check(vF2, F2, "f2"))
        for k, x in enumerate(pl): A[c.a2n + k * (9 - c.a2n) // len(pl)].append(x)
    else:
        for k, x in enumerate(e): A[c.a0 + k // c.na].append(x)
        if c.f2n >= 2: B[c.f2n - 2].append(poll_issue(vF2, F2, "f2"))
        else: A[7 + c.f2n].append(poll_issue(vF2, F2, "f2"))
        B[c.f2n].append(poll_check(vF2, F2, "f2") + pl[0])
        for k, x in enumerate(pl[1:]): B[c.f2n + k // c.npl].append(x)
    if c.po:
        for k in range(c.pe): B[min(c.peg + k // c.pen, 17)].append(ldo(k >> 2, k & 3, "pe"))
    for g, n in enumerate(c.wc):
        assert g <= gb
        for k in range(int(n)):
            x = wl.pop(0)
            if c.wci: B[g].insert(min(len(B[g]), 2*k + (1 if g in (c.f2n, c.f2n - 2) else 0) + 1), x)
            else: B[g].append(x)
    assert not (c.wc and wl)
    for g in range(18):
        while wl and len(B[g]) < c.nwl and g not in (9, gb + 1, gb + 2): B[g].append(wl.pop(0))
    assert not wl
    B[min(gb + c.wlg, 17)][:0] = wlast
    a(k_rd(0, 0) + k_rd(0, 1) + [k_rd(0, 2)[1], k_rd(0, 3)[1]])
    k = len(rest) // 2
    a(rest[:k]); rest = rest[k:]
    if c.stp & 4: stamp(a, c)
    for n in range(9):
        a(qk(0, n))
        if n + 2 < 9: a(k_rd(0, n + 2)[:1 if n < 2 else 2])
        a(A[n])
        if n < 3: a(rest[n*len(rest)//3: (n+1)*len(rest)//3])
        if n == 3: a(merge())
        if n >= 4: a(mx(n - 4))
        if n == c.h_f2 - 28: a([W(vm="st2")] + flag_store(F2, sL, True))
    a(k_rd(1, 0) + k_rd(1, 1) + v_rd(0, 0) + v_rd(0, 1))
    a(qk(1, 0))
    for i in range(5, 8): a(mx(i))
    stamp(a, c)
    kpre, kmf, kfin = kvsum2()
    O2, O3 = Q0, KM
    adr, apre, amf = a_apply2(APT, [O2, O3])
    assert gb >= 8
    for hd in range(2):
        a(mx_fin())
        a(sub(0)); a(sub(1))
        if hd == 1: a(fin(0, OB0, c))
        for i in range(9):
            g = 9*hd + i
            main = ex(i) if i < 8 else []
            fill = []
            if g == gb + 1: a(amf)
            if i + 2 < 8: fill.append(sub(i + 2))
            if i >= 1:
                ns = [0, 1] if i == 1 else [i]
                for n in ns:
                    fill += pv(hd, n)
                    if n + 2 < 9: fill += v_rd(hd, n + 2)
                if hd == 0:
                    fill += qk(1, i)
                    if i + 1 < 9: fill += k_rd(1, i + 1)
                    if i == 3: main += merge()
                    if i >= 4: main += mx(i - 4)
            if g == 1: main += kpre
            if g == 2: main += adr
            if c.ks0 <= g < gb: fill += kmf[16*(g-c.ks0)//c.kn: 16*(g-c.ks0+1)//c.kn]
            if g == gb: main += kfin + apre
            if g == gb + 1: main += fin(2, O2, c)
            if g == gb + 2: main = fin(3, O3, c) + main
            if c.po:
                if g == 10: fill.append(poll_issue(vF3, F1 if c.pop < 23 else F2, "f3"))
            else:
                if g == 9 + c.f3n: fill.append([W(vm="st3a")] + flag_store(F3))
                if g == 17: fill.append(poll_issue(vF3, F3, "f3"))
            fill += B[g]
            if main: a(weave(main, fill))
            else: a(fill)
            if g == 8: a(v_rd(1, 0) + v_rd(1, 1))
            if g == gb: a.wait(lg=0); a("s_barrier")
            if c.po and g == 13: a(poll_check(vF3, F1 if c.pop < 23 else F2, "f3"))
        if hd == 0:
            for i in range(5, 8): a(mx(i))
        stamp(a, c)
    a(fin(1, OB1, c))
    a(f"s_mov_b32 exec_hi, 0\nbuffer_store_dwordx4 {vr(TL, 4)}, v{vOT}, {srd(SWS)}, s{sOT} offen sc1\ns_mov_b32 exec_hi, -1", "st3b")

stubs = Seq()
OPB = [96, 112, 128, 60, 76, 10]
OP = lambda s, tt: OPB[s % 6] + 4*tt
ldo = lambda s, tt, tag=None: I(f"buffer_load_dwordx4 {vr(OP(s, tt), 4)}, v{[vL16, P1, P2][s >> 2]}, {srd(SWS)}, s{7+tt} offen offset:{(s & 3)*1024} sc1", tag)
def p3_2(a, c):
    AC = 144
    def mmo(s, tt):
        return [I(f"{M16} {vr(AC + (tt*5 + ct)*4, 4)}, {ar(awo(s, ct), 4)}, {vr(OP(s, tt), 4)}, {vr(AC + (tt*5 + ct)*4, 4) if s else 0}") for ct in range(5)]
    def chk(nm, L):
        r = [OP(*x) for x in L]
        t = f"v_max3_u32 v94, v{r[0]}, v{r[1]}, v{r[2]}\n" + (f"v_max_u32 v94, v94, v{r[3]}\n" if len(r) > 3 else "") + f"v_cmp_eq_u32 vcc, -1, v94\ns_cbranch_vccnz .Lr{nm}"
        a(t); a.label(f".Lb{nm}")
        stubs.label(f".Lr{nm}")
        stubs(f"s_cmp_eq_u32 s69, 0\ns_cbranch_scc1 .Lb{nm}\ns_sub_u32 s69, s69, 1")
        stubs([ldo(*x, "nocount") for x in L])
        stubs("s_waitcnt vmcnt(0)"); stubs(t); stubs(f"s_branch .Lb{nm}")
    wr = lambda tt: [I(f"ds_write_b128 v{PW+tt-1}, {vr(AC + (tt*5 + ct)*4, 4)} offset:{ct*1024}") for ct in range(5)]
    TO = (1, 2, 3, 0)
    if c.po:
        a("s_mov_b32 s69, 300000")
        for k in range(c.pe, 24): a(ldo(k >> 2, k & 3))
        lb = [ldo(s, tt) for tt in TO for s in (6, 7, 8)]
        for s in range(6):
            chk(f"a{s}", [(s, tt) for tt in range(4)])
            if c.stp & 16: stamp(a, c)
            m = flat([mmo(s, tt) for tt in range(4)])
            if s == c.p3d + 1 and s >= 3: m = put(m, [(k, x) for k, x in enumerate(lb)]); lb = []
            a(m)
        a(lb)
        stamp(a, c)
    else:
        a(poll_check(vF3, F3, "f3", F3B))
        stamp(a, c)
        for k in range(24):
            if k == c.nfl: a([W(vm="st3b")] + flag_store(F3B))
            a(ldo(k >> 2, k & 3))
        if c.nfl >= 24: a([W(vm="st3b")] + flag_store(F3B))
        a(poll_issue(vF3, F3B, "f3b"))
        for k in range(24): a(mmo(k >> 2, k & 3))
        stamp(a, c)
        a(poll_check(vF3, F3B, "f3b"))
        stamp(a, c)
        for tt in TO:
            for s in (6, 7, 8): a(ldo(s, tt))
    prev = None
    for tt in TO:
        if c.po: chk(f"b{tt}", [(s, tt) for s in (6, 7, 8)])
        if c.stp & 16: stamp(a, c)
        m = mmo(6, tt) + mmo(7, tt) + mmo(8, tt)
        a(put(m, [(2 + 2*k, x) for k, x in enumerate(wr(prev))]) if prev else m)
        prev = tt
    stamp(a, c)
    if c.po and c.stamps: a(f"v_writelane_b32 v{vSTAMP}, s69, 31\ns_mov_b32 s69, 300000\nv_writelane_b32 v{vSTAMP}, s69, 30")
    a.wait(lg=0); a("s_barrier")
    if c.stp & 16: stamp(a, c)
    RB = 60; OC = 40
    for ct in range(5):
        for sl in range(3): a(f"ds_read_b128 {vr(RB + (ct*3 + sl)*4, 4)}, v{PR} offset:{sl*5120 + ct*1024}")
    for ct in range(5):
        d = AC + ct*4; b = RB + ct*12
        for i in (0, 2): a(f"v_pk_add_f32 {vr(d+i, 2)}, {vr(d+i, 2)}, {vr(b+i, 2)}\nv_pk_add_f32 {vr(b+4+i, 2)}, {vr(b+4+i, 2)}, {vr(b+8+i, 2)}")
        for i in (0, 2): a(f"v_pk_add_f32 {vr(d+i, 2)}, {vr(d+i, 2)}, {vr(b+4+i, 2)}")
        a(f"v_cvt_pk_bf16_f32 v{OC+2*ct}, v{d}, v{d+1}\nv_cvt_pk_bf16_f32 v{OC+1+2*ct}, v{d+2}, v{d+3}")
        if ct in (1, 3): a(f"buffer_store_dwordx4 {vr(OC + 2*(ct-1), 4)}, v{PO}, {srd(SM)}, s68 offen offset:{32*(ct-1)}")
        if ct == 4: a(f"s_mov_b32 exec_hi, 0\nbuffer_store_dwordx2 {vr(OC+8, 2)}, v{PO+1}, {srd(SM)}, s68 offen offset:128\ns_mov_b32 exec_hi, -1")

def p3_3(a, c):
    AC = 144; RB = 60; OC = 40; TO = (1, 2, 3, 0)
    acc = lambda tt, ct: vr(AC + (tt*5 + ct)*4, 4)
    mmo = lambda s, tt: [I(f"{M16} {acc(tt, ct)}, {ar(awo(s, ct), 4)}, {vr(OP(s, tt), 4)}, {acc(tt, ct) if s else 0}") for ct in range(5)]
    GB = [[(s, tt) for s in (6, 7, 8)] for tt in TO]
    def chk(nm, L, R):
        r = [OP(*x) for x in L]
        t = [f"v_max3_u32 v94, v{r[0]}, v{r[1]}, v{r[2]}", (f"v_max_u32 v94, v94, v{r[3]}\n" if len(r) > 3 else "") + "v_cmp_eq_u32 vcc, -1, v94", f"s_cbranch_vccnz .Lr{nm}"]
        o = [Seq(), Seq(), Seq()]
        for q, x in zip(o, t): q(x)
        o[2].label(f".Lb{nm}")
        if c.stp & 16: stamp(o[2], c)
        stubs.label(f".Lr{nm}")
        stubs(f"s_cmp_eq_u32 s69, 0\ns_cbranch_scc1 .Lb{nm}\ns_sub_u32 s69, s69, 1")
        stubs([ldo(*x, "nocount") for x in R])
        stubs("s_waitcnt vmcnt(0)"); stubs("\n".join(t)); stubs(f"s_branch .Lb{nm}")
        return [q.l for q in o]
    a("s_mov_b32 s69, 300000")
    la = [ldo(k >> 2, k & 3) for k in range(c.pe, 24)]
    a(la[:c.pu]); la = la[c.pu:]
    mf = flat([mmo(s, tt) for s in range(6) for tt in range(4)] + [mmo(*x) for g in GB for x in g])
    it = [(c.pr * k // 2, x) for k, x in enumerate(la)] + [(c.pb0 + c.pr2 * k // 2, ldo(*x)) for k, x in enumerate(sum(GB, []))]
    it = [(1 + k, x) for k, x in enumerate(p3_addr())] + it
    assert c.pb0 >= 60 and it[-1][0] < 115
    for s in range(6):
        L = [(s, tt) for tt in range(4)]
        o = chk(f"a{s}", L, L)
        if s == 0: a(o)
        else: it += [(20*s - c.pc + min(k, c.pc - 1), x) for k, x in enumerate(o)]
    if c.pd:
        L = sum(GB, []); r = [OP(*x) for x in L]
        t = [f"v_max3_u32 v94, v{r[0]}, v{r[1]}, v{r[2]}"] + [f"v_max3_u32 v94, v94, v{r[k]}, v{r[k+1]}" for k in (3, 5, 7, 9)] + [f"v_max_u32 v94, v94, v{r[11]}", "v_cmp_eq_u32 vcc, -1, v94"]
        it += [(115 + (k + 1) // 2, I(x)) for k, x in enumerate(t)]
        q = Seq(); q("s_cbranch_vccnz .Lrb"); q.label(".Lbb")
        if c.stp & 16: stamp(q, c)
        it.append((119, q.l))
        stubs.label(".Lrb")
        for k in range(c.pd - 1): stubs([ldo(*x, "nocount") for x in L])
        stubs.label(".Lrc")
        stubs("s_cmp_eq_u32 s69, 0\ns_cbranch_scc1 .Lbb\ns_sub_u32 s69, s69, 1")
        stubs([ldo(*x, "nocount") for x in L])
        if c.pd > 1: t = ["v_max_u32 v94, v96, v97"] + [f"v_max3_u32 v94, v94, v{k}, v{k+1}" for k in range(98, 144, 2)] + t[-1:]
        stubs(f"s_waitcnt vmcnt({12*(c.pd - 1)})"); stubs("\n".join(t)); stubs("s_cbranch_vccnz .Lrc\ns_branch .Lbb")
    for j in range(4):
        if not c.pd:
            o = chk(f"b{j}", GB[j], sum(GB[j:], []) if c.pra else GB[j])
            it += [(120 + 15*j - c.pc + min(k, c.pc - 1), x) for k, x in enumerate(o)]
        if j: it += [(120 + 15*j + (2 + 2*ct if j < 3 or not c.per else ct - 1), I(f"ds_write_b128 v{PW+j-1}, {acc(j, ct)} offset:{(j-1)*5120 + ct*1024}")) for ct in range(5)]
    RB = 164
    rd = [I(f"ds_read_b128 {vr(RB + (ct*3 + sl)*4, 4)}, v{PR} offset:{sl*5120 + ct*1024}") for ct in range(5) for sl in range(3)]
    if c.per:
        it.append((c.per, [W(lg=0), I("s_barrier")]))
        it += [(c.per + (k + 1) // 2, x) for k, x in enumerate(rd)]
    it.sort(key=lambda x: x[0])
    a(put(mf, it))
    stamp(a, c)
    if c.stamps: a(f"v_writelane_b32 v{vSTAMP}, s69, 31\ns_mov_b32 s69, 300000\nv_writelane_b32 v{vSTAMP}, s69, 30")
    if not c.per:
        a.wait(lg=0); a("s_barrier")
        if c.stp & 16: stamp(a, c)
        a(rd)
    for ct in range(5):
        d = AC + ct*4; b = RB + ct*12
        for i in (0, 2): a(f"v_pk_add_f32 {vr(b+i, 2)}, {vr(b+i, 2)}, {vr(b+4+i, 2)}\nv_pk_add_f32 {vr(d+i, 2)}, {vr(d+i, 2)}, {vr(b+8+i, 2)}")
        for i in (0, 2): a(f"v_pk_add_f32 {vr(d+i, 2)}, {vr(d+i, 2)}, {vr(b+i, 2)}")
        a(f"v_cvt_pk_bf16_f32 v{OC+2*ct}, v{d}, v{d+1}\nv_cvt_pk_bf16_f32 v{OC+1+2*ct}, v{d+2}, v{d+3}")
        if ct in (1, 3): a(f"buffer_store_dwordx4 {vr(OC + 2*(ct-1), 4)}, v{PO}, {srd(SM)}, s68 offen offset:{32*(ct-1)}")
        if ct == 4: a(f"s_mov_b32 exec_hi, 0\nbuffer_store_dwordx2 {vr(OC+8, 2)}, v{PO+1}, {srd(SM)}, s68 offen offset:128\ns_mov_b32 exec_hi, -1")

def finish(a, c):
    stamp(a, c)
    if c.stamps:
        a(f"s_cmp_lg_u32 s{sW}, 0\ns_cbranch_scc1 .Lend\ns_lshl_b32 s62, s2, 7\nv_lshrrev_b32 v4, 2, v{vL16}\ns_mov_b64 exec, 0xffffffff")
        a(f"buffer_store_dword v{vSTAMP}, v4, {srd(SWS)}, s62 offen")
    a.label(".Lend")
    a("s_endpgm")
    a(stubs)
    a("s_endpgm")
    a.label(".Lcodeend")

def build(c, path):
    a = Seq(); nst[0] = 0; PDW[0] = c.pdw; UPK[0] = c.upk; HOIST[:] = [c.hoist, c.hoistn]; PEN[:] = [c.vpen, c.dpen, c.vmc, c.ppen]
    wo_init(c)
    prologue(a, c)
    setup1(a, c)
    setup2(a, c)
    if c.pop == -2: p1, p2 = poison(208); a(p1); a(flat(p2))
    issue(a, c, c.o2)
    if c.pop == -1: p1, p2 = poison(208); a(p1); a(flat(p2))
    if c.pst: stamp(a, c)
    if c.warm == 1:
        for t in warm(sW): a.label(t[:-1]) if t.endswith(':') else a(t)
        if c.pst: stamp(a, c)
    a.wait(vm=["w0", "x0", "ga"])
    if c.pst: stamp(a, c)
    for s in range(9): a(f"ds_read_u16 v{vGA+s}, v{vMD+3} offset:{32*s}", f"g{s}")
    a(rd_x(0))
    issue(a, c, c.o2b)
    a.wait(lg="g0")
    a(patch(0)); a.wait(lg=0); a("s_barrier")
    stamp(a, c)
    a(rd_w(0, 0))
    issue(a, c, c.o3)
    if c.pop == -3: p1, p2 = poison(208); a(p1); a(flat(p2))
    ex = {}
    def add(k, v, pos=9): ex.setdefault(k, []).append(flat(v) if isinstance(k, tuple) else (pos, flat(v)))
    p1, p2 = producer(c)
    add(c.s_prod, p1, c.p_pr); add(c.s_prod + (c.p_pr + 4) // 10, p2, (c.p_pr + 4) % 10)
    add(c.s_fw, tag_check() + [W(vm="stp")] + flag_store(FW))
    add(2*c.s_pw - 1, poll_issue(vFW, FW, "fw"))
    add(("pre", c.s_pw), poll_check(vFW, FW, "fw"))
    allo = ",".join([c.o1, c.o2, c.o2b, c.o3]).split(",")
    if "wo" not in allo: add(2*c.s_wo, wo_dma())
    add(("pre", (c.s_rp - 1) // 2), [W(vm="wos")])
    p1, p2 = wo_repack()
    add(c.s_rp, p1, 7); add(c.s_rp + 1, p2, 9)
    add(c.s_rp + 2, wa_load())
    if not c.s3g: q = Seq(); setup3(q, c); add(15, q.l)
    if c.h_ea < 0:
        sa, va = early(); L = [kv_dma(c)[0]] + sa + [va[:-6]]
        for k, x in enumerate(L): add(-c.h_ea + 10*c.n_ea*k // len(L) // 10, [x], 10*c.n_ea*k // len(L) % 10)
    if c.s2 and c.po and 0 <= c.pop < 18:
        p1, p2 = poison(208); add(c.pop, p1, 0)
        for k, x in enumerate(p2): add(c.pop + k // 3, x, 3*(k % 3) + 2)
    n0 = len(a.l)
    pass1(a, c, ex)
    if c.m0d & 1: a.l[n0:] = m0dedup(flat(a.l[n0:]), 1)
    if c.m0h: a.l[n0:] = m0hoist(flat(a.l[n0:]), c.m0h)
    if c.p1w != 1:
        L = flat(a.l[n0:])
        for st in range(1, 6):
            k = [i for i, x in enumerate(L) if x.kind is None and x.tag == f"x{st+3}" and x.t.startswith("buffer_load")]
            assert len(k) == 4
            L.insert(k[0], W(lg=[f"xr{st}"]))
        a.l[n0:] = L
    n1 = len(a.l)
    stamp(a, c)
    if c.stop == 1:
        a.wait(vm=0, lg=0); finish(a, c)
        open(path, "w").write(wrap(finalize(a.l, True), LDS_TOTAL + 1024)); return
    b = Seq()
    rest = g2(b, c)
    (attention2 if c.s2 else attention)(b, c, rest)
    a(sched(b.l, c.sch, "g2+att", c.beta / 100) if c.sch else b.l)
    stamp(a, c)
    (p3_3 if c.p33 else p3_2 if c.s2 else p3)(a, c)
    finish(a, c)
    if c.m0d & 2: a.l[n1:] = m0dedup(flat(a.l[n1:]), 2)
    txt = wrap(finalize(a.l, True), LDS_TOTAL + 1024)
    if c.al: txt = txt.replace('.p2align 8', '.p2align 12')
    if c.warm: txt, n = add_stubs(txt, -0x300); print('stubs', n)
    open(path, "w").write(txt)

if __name__ == "__main__":
    c = Cfg()
    path = sys.argv[1]
    for kv in sys.argv[2:]:
        k, v = kv.split("=")
        setattr(c, k, type(getattr(c, k))(int(v)) if not isinstance(getattr(c, k), str) else v)
    build(c, path)
```

```python
import sys
sys.path.insert(0, "work")
from fw import *

class Cfg:
    stop = 99
    stamps = True
    ldpol = "sc1"
    rotmod = 9
    stag = 0x7520
    o1 = 'pr'
    o2 = 'x1,w1'
    o2b = 'tag,x2'
    o3 = 'w2'
    p_pr = 0
    s_rp = 11
    fl = 1
    g3f = 1
    nwg = 256
    px = '1368'
    pw = 'cfi'
    pw2 = '258124578'
    pv = 5
    exp = 0
    m44 = 0
    wol = 0
    h_fo = 13
    s_wa = 9
    x2l = 0
    stp = 0
    pst = 0
    gx = (1, 3, 6, 8)
    gw = (2, 5, 8)
    sch = 32
    beta = 50
    s_prod = 0
    s_fw = 3
    s_pw = 6
    s_wo = 2
    h_f1 = 11
    h_kv = 17
    n_kv = 7
    h_f2 = 27
    phq = 30
    tlb = 0
    upk = 'famFAMst023'
    al = 1
    xpf = 1
    warm = 0
    hoist = 16
    hoistn = 3
    s3g = 0
    wc = '33000033314443'
    wci = 0
    na = 3
    a0 = 0
    ne = 13
    pf1 = 2
    f1l = 0
    sfo = 0
    h_pfo = 23
    pdw = 0
    bsk = ''
    w3l = 1
    ful = 99
    fus = ''
    m0h = 1
    m0d = 0
    wpf = 0
    ppen = 4
    pen = 8
    wlg = 1
    p33 = 1
    pu = 2
    pr = 7
    pb0 = 68
    pr2 = 6
    pc = 3
    pra = 1
    per = 172
    h_ea = 3
    n_ea = 2
    pd = 0
    vpen = 32
    dpen = 12
    vmc = 56
    dep = 4
    f2n = 2
    s2 = 1
    a2n = -1
    npl = 4
    ks0 = 9
    kn = 4
    po = 1
    nwl = 4
    pon = 1
    e1n = 3
    e1s = '34456'
    pe = 8
    peg = 15
    pop = 20
    p3d = 3
    f3n = 7
    nfl = 12
    p3s = 0
NW = 5
F1, FW, F3, F2, FO, F3B = 0x60000, 0x80000, 0x20000, 0x40000, 0xA0000, 0xC0000
KVO, PKO, PARO, WOO, OPO = 0x100000, 0x600000, 0x8A0000, 0x960000, 0xAB0000
KV_PAIR, KV_KIND = 163840, 2621440
WOBLK = 5248
PSEC = 72 * 1152
WSL = 12416
KVR = 62080
XR = KVR
WOS = KVR + 49152
STG = KVR + 61440
SST = 7680
WPH = STG + 4 * SST
KVS = WPH + 4096
LDS_TOTAL = KVS + 4096
SX, SW1, SPK, SPS, SWS, SM = 4, 8, 12, 92, 20, 24
sW, sR, sG, sT = 28, 29, 30, 31
sKA, sKP, sLE, sQS = 32, 37, 46, 18
sL, sM0x, sM0w1, sM0w2 = 54, 55, 56, 57
sTAG = 58
sKX, sKW = 64, 73
sCB, sRT, sP = 96, 97, 98
sOA, sOT = 16, 17
def srd(n): return f"s[{n}:{n+3}]"
def vr(n, k): return f"v[{n}:{n+k-1}]"
def ar(n, k): return f"a[{n}:{n+k-1}]"
vL = 1
PM = 2
vX, vXR, vW1, vWA1, vWT1, vPAT, vGA = 10, 14, 16, 19, 20, 21, 22
vPK, vPS, vSA, vST, vSL, vK2, vF1 = 31, 34, 35, 36, 37, 38, 39
vKS = 10
AX, WA1, WA2, AD, FR, AY, ACC = 40, 64, 76, 88, 96, 144, 160
vPR1, vPR3, vPS3, vRP, vMD, vP4, vWP, vWP2, vWM = 200, 201, 203, 204, 207, 211, 212, 213, 214
vTW, vSC, V4, VT, VT4, vFW, vFO = 216, 218, 219, 220, 221, 222, 223
vL16, vG0, vG1, vTR = 224, 225, 226, 227
vBL, vBH, vBT, vKL, vKT = 231, 232, 233, 234, 235
vBT2, vQM, vQT, vONE = 236, 237, 238, 239
vOA, vOT, vF2, vF3, vPD, vTG, CM, vSTAMP = 240, 241, 242, 243, 244, 246, 248, 255
vWM2 = 254
fT, fKG, fH, fKL, fRR, fC, fC0, fC1, fQ = range(144, 153)
M32 = "v_mfma_f32_32x32x16_bf16"
M16 = "v_mfma_f32_16x16x32_bf16"

nst = [0]
def stamp(a, c):
    if not c.stamps or nst[0] >= 30: return
    a("s_memrealtime s[60:61]")
    a.wait(lg=0)
    a(f"v_writelane_b32 v{vSTAMP}, s60, {nst[0]}")
    nst[0] += 1

def lin(a, dst, terms, const=None):
    first = True
    for f, m in terms:
        if first:
            a(f"v_mul_u32_u24 v{dst}, {m}, v{f}")
            if not (const is None or const == 0): a(f"v_add_u32 v{dst}, {const}, v{dst}")
            first = False
        else:
            if 0 <= m <= 64: a(f"v_mad_u32_u24 v{dst}, v{f}, {m}, v{dst}")
            else:
                a(f"s_movk_i32 s63, {m}" if m < 32768 else f"s_mov_b32 s63, {m}")
                a(f"v_mad_u32_u24 v{dst}, v{f}, s63, v{dst}")

def mksrd(a, n, lo, hi, off=None, nrec=0x7fffffff):
    if off is None: a(f"s_mov_b32 s{n}, s{lo}\ns_mov_b32 s{n+1}, s{hi}")
    else: a(f"s_add_u32 s{n}, s{lo}, {off}\ns_addc_u32 s{n+1}, s{hi}, 0")
    a(f"s_mov_b32 s{n+2}, {nrec}\ns_mov_b32 s{n+3}, 0x20000")

def dma_x(s):
    q = Seq()
    q(f"s_add_u32 m0, s{sM0x}, {(s % 3) * 16384}")
    for i in range(4):
        q(f"buffer_load_dwordx4 v{vX+i}, {srd(SX)}, s{sKX+s} offen offset:{i*1024} lds", f"x{s}")
    return q.l
def dma_w(c, n):
    q = Seq()
    q(f"s_add_u32 m0, s{sM0w1 if n < 9 else sM0w2}, {(n % NW) * WSL}")
    for i in range(3):
        if n < 9: q(f"buffer_load_dwordx4 v{vW1+i}, {srd(SW1)}, s{sKW+n} offen offset:{i*1024} lds", f"w{n}")
        elif n < 14: q(f"buffer_load_dwordx4 v{vPK+i}, {srd(SPK)}, s{sKA+n-9} offen offset:{i*1024} {c.ldpol} lds", f"w{n}")
        else: q(f"buffer_load_dwordx4 v{vPS}, {srd(SPK)}, s{sKP+3*((n-14)%3)+i} offen offset:{i*1024} {c.ldpol} lds", f"w{n}")
    if n in (16, 19): q(f"v_add_u32 v{vPS}, {PSEC}, v{vPS}")
    return q.l
def rd_w(n, ks):
    base = (n % NW) * WSL; out = []
    for h in range(5):
        for j in range(2):
            ad = vWA1 if h < 4 else vWT1; off = base + ks * 6208 + j * 768 + (h * 48 if h < 4 else 0)
            out.append(I(f"ds_read_b64_tr_b16 {vr(FR + ks*24 + h*4 + j*2, 2)}, v{ad} offset:{off}", f"f{n}_{ks}"))
    return out
def rd_x(s):
    return [I(f"ds_read_b128 {ar((s*4 + ks*2 + tt)*4, 4)}, v{vXR+ks} offset:{(s%3)*16384 + tt*2048}", f"xr{s}") for ks in range(2) for tt in range(2)]
def mm(s, ks):
    out = []
    for h in range(5):
        for tt in range(2):
            d = vr(ACC + (h*2 + tt)*4, 4)
            out.append(I(f"{M16} {d}, {vr(FR + ks*24 + h*4, 4)}, {ar((s*4 + ks*2 + tt)*4, 4)}, {0 if (s == 0 and ks == 0) else d}"))
    return out
def patch(s): return I(f"ds_write_b16 v{vPAT}, v{vGA+s} offset:{(s % NW) * WSL}", "pat")

def pr_dma():
    q = Seq()
    q("s_mov_b32 m0, s91")
    for i in range(4): q(f"buffer_load_dwordx4 v{vW1+i if i < 3 else vP4}, {srd(SPS)}, 0 offen offset:{i*1024} lds", "pr")
    return q.l
def x_pf():
    q = Seq()
    q(f"s_and_b32 s62, s{sR}, 7\ns_add_u32 s62, s62, 4\ns_sub_u32 s63, s62, 9\ns_cselect_b32 s62, s62, s63\ns_lshl_b32 s62, s62, 7")
    q(f"s_lshr_b32 s63, s2, 6\ns_lshl2_add_u32 s63, s63, s{sW}\ns_mul_i32 s63, s63, {8*1152}\ns_add_u32 s62, s62, s63\nv_and_b32 v4, 7, v0\nv_mul_u32_u24 v4, 1152, v4")
    q(f"buffer_load_dword a255, v4, {srd(SX)}, s62 offen", "pf")
    return q.l
def issue(a, c, o):
    for t in o.split(","):
        if t == "xp": a(x_pf()); continue
        if t == "pr": a(pr_dma())
        elif t == "tag": a(tag_issue())
        elif t == "wo": a(wo_dma())
        elif t and t[0] == "x": a(dma_x(int(t[1])))
        elif t and t[0] == "w": a(dma_w(c, int(t[1])))

def prologue(a, c):
    a("s_getpc_b64 s[60:61]")
    a("s_load_dwordx16 s[32:47], s[0:1], 0\ns_load_dwordx4 s[48:51], s[0:1], 64\ns_load_dwordx2 s[52:53], s[0:1], 80")
    a(f"s_memrealtime s[{sTAG}:{sTAG+1}]")
    a(f"s_cmp_ge_u32 s2, {c.nwg}\ns_cbranch_scc1 .Lend")
    a(f"v_lshrrev_b32 v2, 6, v0\nv_and_b32 v{vL}, 63, v0")
    a(f"v_readfirstlane_b32 s{sW}, v2")
    a("s_lshr_b32 s3, s2, 3")
    a(f"s_and_b32 s62, s3, 7\ns_lshl_b32 s62, s62, 13\nv_and_b32 v{fT}, 15, v0\nv_lshlrev_b32 v3, 7, v{fT}\nv_lshl_add_u32 v3, v2, 11, v3\nv_add_u32 v3, s62, v3")
    a(f"v_min_u32 v3, .Lcodeend-{KN}-8, v3")
    a("global_load_dword v9, v3, s[60:61]", "pf")
    if c.m44:
        a(f"s_and_b32 s62, s2, 3\ns_and_b32 s63, s3, 3\ns_lshl2_add_u32 s{sR}, s62, s63")
        a(f"s_and_b32 s62, s2, 4\ns_bfe_u32 s{sG}, s3, 0x20002\ns_or_b32 s{sG}, s{sG}, s62\ns_lshr_b32 s{sT}, s3, 4")
        a(f"s_lshl_b32 s62, s63, 2\ns_lshr_b32 s62, {c.stag}, s62\ns_and_b32 s62, s62, 15\ns_lshr_b32 s63, s3, 2\ns_add_u32 s62, s62, s63\ns_sub_u32 s63, s62, 9\ns_cselect_b32 s62, s62, s63")
    else:
        a(f"s_and_b32 s62, s2, 1\ns_lshl_b32 s62, s62, 3\ns_and_b32 s{sR}, s3, 7\ns_or_b32 s{sR}, s{sR}, s62")
        a(f"s_and_b32 s62, s2, 6\ns_bfe_u32 s{sG}, s3, 0x10003\ns_or_b32 s{sG}, s{sG}, s62\ns_lshr_b32 s{sT}, s3, 4")
    if c.m44: pass
    elif c.stag == 0:
        m, sh = magic_div(c.rotmod, 32)
        a(f"s_mul_i32 s62, s3, {m}\ns_lshr_b32 s62, s62, {sh}\ns_mul_i32 s62, s62, {c.rotmod}\ns_sub_u32 s62, s3, s62")
    else:
        a(f"s_lshr_b32 s62, s3, 1\ns_and_b32 s62, s62, 12\ns_lshr_b32 s62, {c.stag}, s62\ns_and_b32 s62, s62, 15\ns_and_b32 s63, s3, 7\ns_add_u32 s62, s62, s63\ns_sub_u32 s63, s62, 9\ns_cselect_b32 s62, s62, s63")
    a(f"s_lshl_b32 s{sKX}, s62, 7\ns_mul_i32 s{sKW}, s62, 221184")
    a(f"v_lshrrev_b32 v{fKG}, 4, v{vL}\nv_and_b32 v4, 7, v0\nv_xor_b32 v4, v4, v{fKG}\nv_lshlrev_b32 v4, 4, v4\nv_xor_b32 v5, 64, v4")
    a(f"v_lshrrev_b32 v6, 3, v{vL}\nv_lshl_add_u32 v6, v2, 5, v6\nv_mul_u32_u24 v6, 1152, v6")
    a(f"v_add_u32 v{vX}, v6, v4\nv_add_u32 v5, v6, v5\nv_add_u32 v{vX+1}, 8192, v5\nv_add_u32 v{vX+2}, 16384, v{vX}\nv_add_u32 v{vX+3}, 24576, v5")
    a(f"s_lshr_b32 s62, s{sW}, 1\ns_lshl_b32 s62, s62, 2\ns_and_b32 s63, s{sW}, 1\ns_add_u32 s89, s62, s63\ns_mul_i32 s99, s89, {8*3456}")
    m12, s12 = magic_div(12, 192); m3, s3 = magic_div(3, 12)
    for i in range(3):
        a(f"v_add_u32 v4, {64*i}, v{vL}\nv_mul_u32_u24 v5, {m12}, v4\nv_lshrrev_b32 v5, {s12}, v5")
        a(f"v_mad_i32_i24 v4, v5, -12, v4\nv_mul_u32_u24 v6, {m3}, v4\nv_lshrrev_b32 v6, {s3}, v6")
        a(f"v_mad_i32_i24 v4, v6, -3, v4\nv_lshlrev_b32 v4, 4, v4\nv_min_u32 v4, 20, v4\nv_mad_u32_u24 v4, v6, 36, v4")
        a(f"v_and_b32 v6, 8, v5\nv_add_u32 v5, v5, v6\nv_mul_u32_u24 v5, 3456, v5\nv_add3_u32 v{vW1+i}, v4, v5, s99")
        if i: a(f"v_subrev_u32 v{vW1+i}, {1024*i}, v{vW1+i}")
    a(f"s_lshl_b32 s{sM0x}, s{sW}, 12\ns_add_u32 s{sM0x}, s{sM0x}, {XR}\ns_mul_i32 s{sM0w1}, s{sW}, 3104\ns_mul_i32 s{sM0w2}, s{sW}, 3072")
    a(f"s_mul_i32 s62, s{sR}, {128*1152}\ns_mul_i32 s90, s{sG}, 144\ns_mul_i32 s3, s{sT}, 1152\ns_add_u32 s63, s90, s3\ns_add_u32 s63, s63, 1152")
    a.wait(lg=0)
    mksrd(a, SX, 32, 33, "s62"); mksrd(a, SW1, 42, 43, "s63")
    if c.stamps: a(f"v_writelane_b32 v{vSTAMP}, s{sTAG}, 0"); nst[0] = 1
    a(f"s_or_b32 s62, s2, s{sW}\ns_cbranch_scc1 .Lnotag")
    a(f"s_bitset1_b32 s{sTAG+1}, 31\nv_mov_b32 v4, s{sTAG}\nv_mov_b32 v5, s{sTAG+1}\nv_lshlrev_b32 v6, 3, v{fT}")
    a("global_store_dwordx2 v6, v[4:5], s[50:51] sc1", "nocount")
    a.label(".Lnotag")
    a(dma_x(0)); a(dma_w(c, 0))
    kn = lambda s: f"s_add_u32 s{sKX+s}, s{sKX+s-1}, 128\ns_cmp_eq_u32 s{sKX+s}, 1152\ns_cselect_b32 s{sKX+s}, 0, s{sKX+s}\ns_mul_i32 s{sKW+s}, s{sKX+s}, 1728"
    a(kn(1))
    if "x1" in c.o1: a(dma_x(1))
    if c.pst: stamp(a, c)
    mksrd(a, SM, 46, 47, nrec=1152)
    a(f"s_lshr_b32 s62, s{sW}, 1\ns_lshl_b32 s62, s62, 6\ns_and_b32 s63, s{sW}, 1\ns_lshl_b32 s63, s63, 4\ns_add_u32 s62, s62, s63\ns_lshl_b32 s88, s{sW}, 10\ns_add_u32 m0, s88, {KVS}")
    a(f"v_lshrrev_b32 v4, 1, v{vL}\nv_lshl_add_u32 v4, v4, 7, s{sKX}\nv_subrev_u32 v5, 1152, v4\nv_min_u32 v4, v4, v5\nv_and_b32 v5, 1, v0\nv_lshl_add_u32 v4, v5, 5, v4")
    a(f"buffer_load_dwordx4 v4, {srd(SM)}, s62 offen lds", "ga")
    a(f"s_lshr_b32 s62, s{sR}, 1\ns_mul_i32 s62, s62, {72*3456}\ns_add_u32 s62, s62, s90\ns_add_u32 s63, s3, 1152\ns_bitcmp1_b32 s{sR}, 0\ns_cselect_b32 s63, 0, s63\ns_add_u32 s62, s62, s63")
    a(f"s_and_b32 s63, s{sR}, s{sT}\ns_cselect_b32 s100, s42, s34\ns_cselect_b32 s101, s43, s35")
    mksrd(a, SPS, 100, 101, "s62", nrec=71*3456+144)
    a(f"s_mul_i32 s91, s{sW}, {SST}\ns_add_u32 s91, s91, {STG}")
    m3b, s3b = magic_div(3, 64)
    a(f"v_mul_u32_u24 v5, {m3b}, v{vL}\nv_lshrrev_b32 v5, {s3b}, v5\nv_mad_i32_i24 v4, v5, -3, v{vL}\nv_lshlrev_b32 v4, 4, v4\nv_min_u32 v4, 20, v4\nv_mad_u32_u24 v{vMD}, v5, 36, v4")
    if "pr" in c.o1: a(pr_dma()[:4])
    a(f"s_mul_i32 s62, s{sW}, 36\ns_add_u32 s62, s62, {64*3456-3072}\nv_mul_u32_u24 v5, 3456, v5\nv_add3_u32 v{vP4}, v4, v5, s62")
    if c.g3f:
        a(f"v_bfe_u32 v5, v0, 2, 3\nv_mul_u32_u24 v5, 3456, v5\nv_and_b32 v4, 3, v0\nv_mad_u32_u24 v4, v4, 36, v5\nv_add_u32 v4, {64*3456-3072+20}, v4\nv_cmp_le_u32 vcc, 32, v{vL}\nv_cndmask_b32 v{vP4}, v{vP4}, v4, vcc")
    if "pr" in c.o1: a(pr_dma()[4:])
    if c.xpf == 1: a(x_pf())
    if c.pst: stamp(a, c)
    for s in range(2, 9): a(kn(s))
    a(f"s_lshl_b32 s{sP}, s{sG}, 1\ns_add_u32 s{sP}, s{sP}, s{sT}\ns_lshl_b32 s{sL}, s{sR}, 4\ns_add_u32 s{sL}, s{sL}, s{sP}")
    a(f"s_bfe_u32 s63, s{sL}, 0x40001\ns_mul_i32 s63, s63, {36*1152}\ns_lshr_b32 s3, s{sL}, 5\ns_mul_i32 s3, s3, 144\ns_add_u32 s63, s63, s3")
    a(f"s_bitcmp1_b32 s{sL}, 0\ns_cselect_b32 s100, s38, s44\ns_cselect_b32 s101, s39, s45")
    mksrd(a, 84, 100, 101, "s63", nrec=35*1152+144)
    if c.wpf == 1: a("s_load_dword s19, s[84:85], 0")
    if c.wpf >= 2:
        a(f"s_mul_i32 s62, s{sW}, {9*1152}\ns_add_u32 s100, s84, s62\ns_addc_u32 s101, s85, 0")
        for r in range(9):
            for o in ((0, 64, 140) if c.wpf == 2 else (0, 140)): a(f"s_load_dword s19, s[100:101], {r*1152 + o}")
    m9, s9 = magic_div(9, 512)
    for i in range(2):
        a(f"v_add_u32 v4, {256*i}, v0\nv_mul_u32_u24 v5, {m9}, v4\nv_lshrrev_b32 v5, {s9}, v5\nv_mad_i32_i24 v4, v5, -9, v4\nv_lshlrev_b32 v4, 4, v4\nv_mul_u32_u24 v5, 1152, v5\nv_add_u32 v{vMD+1+i}, v4, v5")
    a(f"s_and_b32 s63, s{sW}, 1\ns_lshl_b32 s62, s{sP}, 1\ns_add_u32 s62, s62, s63\ns_mul_i32 s62, s62, 648")
    mksrd(a, SM, 36, 37, "s62", nrec=648)
    if c.wpf == 1: a(f"s_load_dword s19, s[{SM}:{SM+1}], 0")
    if c.wpf >= 2:
        for o in list(range(0, 640, 64 if c.wpf == 2 else 128)) + [644]: a(f"s_load_dword s19, s[{SM}:{SM+1}], {o}")
    if c.wol == 1: a(wo_dma()[2])
    a(f"v_lshrrev_b32 v4, 2, v{vL}\ns_add_u32 s62, s88, {KVS}\nv_lshl_add_u32 v{vMD+3}, v4, 1, s62")
    a(f"v_and_b32 v{fC}, 3, v0\nv_mul_u32_u24 v{vPAT}, 192, v4\nv_mad_u32_u24 v{vPAT}, v{fC}, 48, v{vPAT}\nv_add3_u32 v{vPAT}, v{vPAT}, s{sM0w1}, 40")
    mksrd(a, SWS, 52, 53, nrec=0x10000000)
    if c.tlb:
        a(f"v_min_u32 v5, {(1 << (24 - c.tlb)) - 1}, v{vL}\nv_lshlrev_b32 v5, {c.tlb}, v5")
        a(f"buffer_load_dword v96, v5, {srd(SWS)}, 0 offen", "pf")
        a(f"v_min_u32 v5, {2048*1152 - 4}, v5\nglobal_load_dword v97, v5, s[48:49]", "pf")
    a(f"s_mul_i32 s62, s{sG}, {4*PSEC}\ns_add_u32 s62, s62, {PKO - 2048}")
    mksrd(a, SPK, 52, 53, "s62", nrec=4*PSEC + 2048)
    if c.m44: a(f"s_lshr_b32 s3, s2, 3\ns_lshr_b32 s{sCB}, s3, 2\ns_and_b32 s{sRT}, s3, 3\ns_and_b32 s62, s2, 3\ns_lshl3_add_u32 s{sRT}, s62, s{sRT}\ns_and_b32 s62, s2, 4\ns_add_u32 s{sRT}, s{sRT}, s62")
    else: a(f"s_lshr_b32 s3, s2, 3\ns_lshr_b32 s{sCB}, s3, 2\ns_and_b32 s{sRT}, s3, 3\ns_and_b32 s62, s2, 1\ns_lshl_b32 s62, s62, 4\ns_add_u32 s{sRT}, s{sRT}, s62\ns_and_b32 s62, s2, 6\ns_lshl_b32 s62, s62, 1\ns_add_u32 s{sRT}, s{sRT}, s62")
    a(f"v_lshrrev_b32 v{fH}, 5, v{vL}\nv_and_b32 v{fKL}, 1, v{fKG}\nv_bfe_u32 v{fRR}, v0, 2, 2\nv_and_b32 v{fC0}, 1, v0\nv_bfe_u32 v{fC1}, v0, 1, 1\nv_and_b32 v{fQ}, 31, v0")
    a(f"v_lshlrev_b32 v{vL16}, 4, v{vL}")
    a(f"v_lshrrev_b32 v4, 1, v{fT}\nv_xor_b32 v4, v4, v{fKG}\nv_lshlrev_b32 v4, 4, v4\nv_lshl_add_u32 v4, v{fT}, 7, v4\nv_add_u32 v{vXR}, s{sM0x}, v4\nv_xor_b32 v{vXR+1}, 64, v{vXR}")
    lin(a, 4, [(fKL, 3104), (fH, 1536), (fRR, 192)])
    a(f"v_lshl_add_u32 v{vWA1}, v{fC}, 3, v4\nv_mad_u32_u24 v{vWT1}, v{fC}, 48, v4\nv_add_u32 v{vWT1}, 40, v{vWT1}")

def wo_dma(S=84, s88=88):
    out = []
    for i in range(2): out.append([I(f"s_add_u32 m0, s{s88}, {WOS + 4096*i}"), I(f"buffer_load_dwordx4 v{vMD+1+i}, {srd(S)}, 0 offen lds", "wos")])
    out.append([I(f"s_and_b32 s63, s88, 1024"), I(f"s_add_u32 m0, s63, {WPH}"), I(f"buffer_load_dwordx4 v{vMD}, {srd(SM)}, 0 offen lds", "wos")])
    return out

def setup1(a, c):
    lin(a, vPR1, [(fRR, 192), (fKG, 48), (fC, 8)], "s91")
    lin(a, 4, [(fRR, 192), (fKL, 1536), (fC, 48)], 40)
    if c.g3f:
        lin(a, 5, [(fRR, 48), (fC, 8)], 3072)
        lin(a, 6, [(fT, 16)], 3072 + 512 + 8)
        a(f"v_cmp_eq_u32 vcc, 0, v{fKL}\nv_cndmask_b32 v5, v6, v5, vcc\nv_lshlrev_b32 v7, 6, v{fKL}\nv_add_u32 v7, 192, v7")
        a(f"v_cmp_eq_u32 vcc, 0, v{fH}\nv_cndmask_b32 v4, v5, v4, vcc\nv_add_u32 v{vPR3}, s91, v4\nv_mov_b32 v6, 768\nv_cndmask_b32 v5, v7, v6, vcc\nv_add_u32 v{vPR3+1}, v{vPR3}, v5")
        a(f"s_mul_i32 s62, s89, 1152\nv_mov_b32 v4, s62\nv_mov_b32 v5, {9216-2304}\nv_cndmask_b32 v4, v5, v4, vcc")
        lin(a, 4, [(4, 1), (fKL, 2304), (fRR, 32), (fC, 16)], 992)
        a(f"s_lshl_b32 s62, s{sW}, 8\ns_add_u32 s62, s62, 9216\nv_lshl_add_u32 v5, v{fT}, 4, s62")
        a(f"v_cmp_eq_u32 vcc, 2, v{fKG}\nv_cndmask_b32 v{vPS3}, v4, v5, vcc")
    else:
        lin(a, 5, [(fRR, 48)], 3072)
        a(f"v_lshlrev_b32 v6, 3, v{fC}\nv_cmp_eq_u32 vcc, 0, v{fKL}\nv_cndmask_b32 v6, 40, v6, vcc\nv_add_u32 v5, v5, v6")
        a(f"v_cmp_eq_u32 vcc, 0, v{fH}\nv_cndmask_b32 v4, v5, v4, vcc\nv_add_u32 v{vPR3}, s91, v4\nv_mov_b32 v5, 192\nv_mov_b32 v6, 768\nv_cndmask_b32 v5, v5, v6, vcc\nv_add_u32 v{vPR3+1}, v{vPR3}, v5")
        a(f"s_mul_i32 s62, s89, 1152\ns_add_u32 s62, s62, 992")
        lin(a, 4, [(fKL, 2304), (fRR, 32), (fC, 16)], "s62")
        a(f"s_lshl_b32 s62, s{sW}, 8\ns_add_u32 s62, s62, 9216\nv_lshl_add_u32 v5, v{fT}, 4, s62\ns_lshl_b32 s62, s{sW}, 5\ns_add_u32 s62, s62, {9216+992}\nv_lshl_add_u32 v6, v{fC}, 4, s62")
        a(f"v_cndmask_b32 v4, v5, v4, vcc\nv_cmp_eq_u32 vcc, 3, v{fKG}\nv_cndmask_b32 v{vPS3}, v4, v6, vcc")
    a(f"s_and_b32 s62, s{sR}, 1\ns_lshl_b32 s62, s62, 1\ns_lshl_b32 s63, s{sG}, 2\ns_add_u32 s62, s62, s63\ns_add_u32 s62, s62, s{sT}\ns_mul_i32 s62, s62, {PSEC}\ns_lshr_b32 s63, s{sR}, 1\ns_mul_i32 s63, s63, {9*1152}\ns_add_u32 s62, s62, s63\ns_add_u32 s82, s62, {PKO}")
    a(f"s_mul_i32 s63, s89, 1152\ns_add_u32 s83, s63, s82")
    lin(a, vWP2, [(fH, 1024), (fRR, 48)], WPH)
    lin(a, vWP, [(fKL, 16), (fC1, 8), (vWP2, 1)])
    a(f"v_add_u32 v{vWP2}, 40, v{vWP2}\nv_bfe_u32 v4, v0, 2, 1\nv_cmp_eq_u32 vcc, v4, v{fH}\nv_cndmask_b32 v{vWM}, 0, -1, vcc")
    lin(a, 4, [(fH, 18*144), (fKL, 4*144), (fRR, 144)], WOS)
    a(f"v_bfe_u32 v6, v0, 2, 1\nv_bfe_u32 v7, v0, 3, 1")
    lin(a, 5, [(7, 18*144), (6, 144)], WOS + 16*144)
    a(f"s_lshr_b32 s62, s{sW}, 1\ns_lshl_b32 s62, s62, 6\ns_and_b32 s3, s{sW}, 1\ns_lshl_b32 s63, s3, 3\ns_add_u32 s62, s62, s63")
    a(f"v_lshl_add_u32 v{vRP}, v{fC}, 4, v4\nv_add_u32 v{vRP}, s62, v{vRP}")
    a(f"v_lshlrev_b32 v6, 3, v{fC0}\nv_add_u32 v6, 128, v6\nv_and_b32 v7, 7, v0")
    a(f"s_cmp_ge_u32 s{sW}, 2\ns_cbranch_scc1 .Lrp2")
    a(f"v_add_u32 v{vRP+1}, v4, v6\nv_lshl_add_u32 v7, v{fKG}, 3, v7\nv_lshlrev_b32 v7, 4, v7\nv_add_u32 v{vRP+2}, 4096, v7\ns_branch .Lrp4")
    a.label(".Lrp2")
    a(f"s_cmp_eq_u32 s{sW}, 3\ns_cbranch_scc1 .Lrp3")
    lin(a, vRP+1, [(fH, 64), (fC, 16), (fKL, 8), (5, 1)])
    a(f"v_lshlrev_b32 v{vRP+2}, 3, v{vL}\nv_add_u32 v{vRP+2}, 4608, v{vRP+2}\ns_branch .Lrp4")
    a.label(".Lrp3")
    a(f"v_add_u32 v{vRP+1}, v5, v6\nv_lshlrev_b32 v{vRP+2}, 3, v{fT}\nv_add_u32 v{vRP+2}, 5120, v{vRP+2}")
    a.label(".Lrp4")

def setup2(a, c):
    a(f"s_lshl_b32 s62, s{sT}, 9\ns_add_u32 s62, s62, 2048")
    lin(a, vPK, [(fKG, 1152), (fT, 16)], "s62")
    a(f"v_subrev_u32 v{vPK+1}, 768, v{vPK}\ns_and_b32 s63, s{sW}, 1\ns_lshl_b32 s63, s63, 8\ns_add_u32 s63, s63, {PSEC - 2048}\nv_add_u32 v{vPS}, s63, v{vPK}")
    a(f"s_lshl_b32 s62, s{sT}, 6\ns_add_u32 s62, s62, 1024")
    lin(a, vPK+2, [(fKG, 1152), (fRR, PSEC), (fC, 16)], "s62")
    a(f"s_lshr_b32 s62, s{sKX}, 6\ns_add_u32 s63, s62, s{sW}\ns_mul_i32 s63, s63, 4608\ns_lshr_b32 s3, s{sW}, 1\ns_mul_i32 s3, s3, 3\ns_add_u32 s62, s62, s3\ns_mul_i32 s62, s62, 4608")
    for j in range(5):
        if j: a(f"s_add_u32 s63, s{sKA+j-1}, {4*4608}")
        a(f"s_sub_u32 s3, s63, {PSEC}\ns_cselect_b32 s{sKA+j}, s63, s3")
    for j in range(9):
        if j: a(f"s_add_u32 s62, s62, {4608*(4 if j % 3 == 0 else 1)}")
        a(f"s_sub_u32 s3, s62, {PSEC}\ns_cselect_b32 s62, s62, s3\ns_add_u32 s{sKP+j}, s62, {2048 - 1024*(j % 3)}")
    a(f"s_mov_b32 s{sLE}, 0x3fb8aa3b\ns_mov_b32 s{sQS}, 0x3eae1a93")
    a(f"v_lshlrev_b32 v4, 2, v{fH}\nv_xor_b32 v4, v4, v{fT}")
    lin(a, vSA, [(fH, 512), (4, 16), (fKL, 8)], "s91")
    lin(a, vST, [(fKG, 1280), (fT, 8)], "s91"); a(f"v_add_u32 v{vST}, 1024, v{vST}")
    a(f"v_add_u32 v{vSL}, s91, v{vL16}")
    lin(a, vK2, [(fH, KV_PAIR - 2560), (vL16, 1)])
    lin(a, vBL, [(fH, 1280), (fQ, 16)], "s91")
    a(f"v_xor_b32 v{vBH}, 64, v{vBL}\nv_add_u32 v{vBH}, 512, v{vBH}")
    lin(a, vBT, [(fH, 1280), (fQ, 8)], "s91"); a(f"v_add_u32 v{vBT}, 1024, v{vBT}")
    a(f"s_lshl_b32 s62, s{sW}, 8\ns_add_u32 s62, s62, {WPH + 2048}")
    lin(a, vBT2, [(fH, 1024), (fQ, 8)], "s62")
    a(f"s_add_u32 s3, s91, 1024\nv_mov_b32 v4, s3\nv_mov_b32 v5, s62\nv_cmp_eq_u32 vcc, 0, v{fH}\nv_cndmask_b32 v4, v5, v4, vcc\nv_mov_b32 v5, 2048\nv_mov_b32 v6, 2560\nv_cndmask_b32 v5, v5, v6, vcc")
    a(f"v_mad_u32_u24 v4, v5, v{fKL}, v4\nv_lshl_add_u32 v{vTW}, v{fT}, 3, v4\nv_lshrrev_b32 v5, 1, v5\nv_add_u32 v{vTW+1}, v{vTW}, v5")
    a(f"s_add_u32 s62, s62, 2048\nv_lshl_add_u32 v4, v{fQ}, 3, s62\nv_mov_b32 v5, {WPH + 896}\nv_cndmask_b32 v{vQT}, v5, v4, vcc")
    a(f"v_mov_b32 v4, 0x3f803f80\nv_cndmask_b32 v{CM+2}, 0, v4, vcc\nv_mov_b32 v{vONE}, 0x3f80")
    for r in (CM+1, CM+3, CM+4, CM+5): a(f"v_mov_b32 v{r}, 0")
    a(f"v_mov_b32 v4, s{sQS}\nv_cmp_eq_u32 vcc, 3, v{fKG}\nv_cndmask_b32 v{vSC}, 1.0, v4, vcc")
    a(f"v_lshl_add_u32 v4, v{fH}, 2, v{fRR}\nv_lshlrev_b32 v5, 2, v{fC1}\nv_xor_b32 v5, v5, v4")
    lin(a, 6, [(fC1, 512), (5, 16), (fC0, 8)])
    lin(a, 7, [(4, 8)], 1024)
    a(f"v_lshlrev_b32 v5, 2, v{fC0}\nv_xor_b32 v5, v5, v4")
    lin(a, 8, [(fC0, 512), (5, 16), (fC1, 8)])
    a(f"s_mul_i32 s62, s{sW}, 2560\ns_add_u32 s62, s62, {KVR}\ns_add_u32 s3, s62, 30720")
    a(f"v_cmp_eq_u32 vcc, 0, v{fKL}\nv_cndmask_b32 v6, v7, v6, vcc\nv_cndmask_b32 v{AD}, v7, v8, vcc\nv_mov_b32 v4, 64\nv_mov_b32 v5, 128\nv_cndmask_b32 v7, v4, v5, vcc")
    a(f"v_add_u32 v{vTR}, s3, v6")
    a(f"v_lshlrev_b32 v4, 2, v{fH}\nv_xor_b32 v4, v4, v{fQ}")
    lin(a, vKL, [(fH, 512), (4, 16)], "s62")
    lin(a, vKT, [(fQ, 8)], "s62"); a(f"v_add_u32 v{vKT}, 1024, v{vKT}")
    a(f"s_sub_u32 s62, s91, s62\nv_add_u32 v{vQM}, s62, v{vKL}")
    a(f"s_and_b32 s62, s{sW}, 1\ns_mul_i32 s62, s62, 1280\ns_lshr_b32 s3, s{sW}, 1\ns_mul_i32 s3, s3, 5120\ns_add_u32 s3, s62, s3\ns_add_u32 s3, s3, {STG}\nv_add_u32 v{AD}, s3, v{AD}")
    a(f"s_add_u32 s62, s62, {STG + 2560}\nv_add_u32 v{AD+4}, s62, v6")
    for i in range(1, 4): a(f"v_add_u32 v{vTR+i}, v{vTR+i-1}, v7\nv_add_u32 v{AD+i}, v{AD+i-1}, v7\nv_add_u32 v{AD+4+i}, v{AD+3+i}, v7")
    a(f"v_bfe_u32 v4, v0, 2, 3\ns_lshl_b32 s62, s{sW}, 3\nv_add_u32 v4, s62, v4\nv_lshrrev_b32 v5, 1, v4\nv_and_b32 v6, 1, v4\nv_lshl_add_u32 v5, v5, 4, v6\ns_lshl_b32 s62, s{sG}, 1\nv_add_u32 v5, s62, v5")
    a(f"s_lshl_b32 s63, s{sCB}, 5\nv_add_u32 v4, s63, v4\nv_lshlrev_b32 v6, 7, v{fC}\nv_lshl_add_u32 v{vFO}, v4, 9, v6\nv_lshl_add_u32 v{vFW}, v5, 9, v6")
    a(f"s_and_b32 s63, s{sW}, 1\ns_mul_i32 s63, s63, 6\ns_lshl_b32 s3, s{sR}, 2\ns_add_u32 s63, s63, s3\ns_sub_u32 s63, s63, 8\nv_min_u32 v4, 5, v{vL}\nv_add_u32 v4, s63, v4\nv_max_i32 v4, 0, v4")
    a(f"s_lshr_b32 s63, s{sW}, 1\ns_add_u32 s62, s62, s63\nv_lshrrev_b32 v5, 2, v4\nv_lshl_add_u32 v5, v5, 4, s62\nv_and_b32 v4, 3, v4\nv_lshlrev_b32 v4, 7, v4\nv_lshl_add_u32 v{vF1}, v5, 9, v4")
    a(f"s_lshl2_add_u32 s62, s{sL}, s{sW}\ns_lshl_b32 s62, s62, 7\nv_lshl_add_u32 v{vL}, v{fT}, {3 if c.fl else 31}, s62")
    if not c.fl: a(f"v_mov_b32 v{vL}, s62")
    a(f"s_lshl_b32 s62, s{sP}, 2\ns_add_u32 s62, s62, s{sW}\nv_lshl_add_u32 v4, v{fT}, 6, s62\nv_lshlrev_b32 v{vF2}, 7, v4")
    a(f"s_lshr_b32 s62, s{sRT}, 1\ns_lshl_b32 s62, s62, 6\ns_lshl_b32 s3, s{sW}, 4\ns_add_u32 s62, s62, s3\ns_and_b32 s3, s{sRT}, 1\ns_lshl_b32 s3, s3, 1\ns_add_u32 s62, s62, s3")
    a(f"v_bfe_u32 v4, v0, 1, 2\nv_lshl_add_u32 v4, v4, 2, v{fC0}\nv_add_u32 v4, s62, v4\nv_lshlrev_b32 v{vF3}, 7, v4")
    a(f"s_lshl_b32 s62, s{sCB}, 2\ns_add_u32 s62, s62, s{sW}\ns_mul_i32 s100, s62, {8*WOBLK}\ns_add_u32 s100, s100, {WOO}")
    if c.s2:
        a(f"v_and_b32 v{VT4}, 7, v0\nv_lshl_add_u32 v{V4}, v{fKL}, 3, v{VT4}\nv_mul_u32_u24 v{vWM2}, {2*WOBLK}, v{fH}\nv_lshl_add_u32 v{V4}, v{V4}, 4, v{vWM2}\nv_add_u32 v{V4}, 4096, v{V4}\nv_lshl_add_u32 v{vWM2}, v{fQ}, 4, v{vWM2}")
    else: a(f"v_and_b32 v{VT4}, 7, v0\nv_lshl_add_u32 v{V4}, v{fKG}, 3, v{VT4}\nv_lshlrev_b32 v{V4}, 4, v{V4}\nv_add_u32 v{V4}, 4096, v{V4}")
    a(f"v_mul_u32_u24 v{VT}, {2*WOBLK}, v{fKG}\nv_add_u32 v{VT}, 4608, v{VT}\nv_lshl_add_u32 v{VT4}, v{VT4}, 3, v{VT}\nv_lshl_add_u32 v{VT}, v{fT}, 3, v{VT}")
    a(f"v_mul_u32_u24 v{vOT}, 36864, v{fKL}\nv_lshl_add_u32 v{vOT}, v{fT}, 4, v{vOT}\nv_lshl_add_u32 v{vOA}, v{fH}, 8, v{vOT}")
    a(f"s_lshl_b32 s62, s{sR}, 2\ns_add_u32 s62, s62, s{sW}\ns_mul_i32 s62, s62, {2*36864}\ns_lshr_b32 s63, s{sP}, 2\ns_mul_i32 s63, s63, 9216\ns_add_u32 s62, s62, s63\ns_add_u32 s62, s62, {OPO}")
    a(f"s_and_b32 s63, s{sP}, 3\ns_lshl_b32 s3, s63, {9 if c.s2 else 11}\ns_add_u32 s{sOA}, s62, s3\ns_lshl_b32 s3, s63, 8\ns_add_u32 s{sOT}, s62, s3\ns_add_u32 s{sOT}, s{sOT}, 8192")

def setup3(a, c):
    if c.wol == 1: a(f"s_mov_b64 s[{SX}:{SX+1}], s[84:85]\ns_mov_b32 s{SX+2}, {35*1152+144}\ns_mov_b32 s{SW1}, s88")
    a(f"v_mul_u32_u24 v{vKS+1}, 320, v{fH}\nv_lshl_add_u32 v{vKS+1}, v{fQ}, 4, v{vKS+1}\nv_lshlrev_b32 v{vKS}, 2, v{fQ}")
    a(f"v_mad_i32_i24 v12, v{fH}, -4, v{fQ}\nv_mov_b32 v13, 0xffff")
    for r in range(16): a(f"v_cmp_le_i32 s[{64+2*r}:{65+2*r}], {8*(r>>2) + (r&3)}, v12")
    for j in range(8): a(f"v_cndmask_b32 v{PM+j}, 0, v13, s[{64+4*j}:{65+4*j}]")
    for j in range(8): a(f"v_cndmask_b32 v{PM+j}, v{PM+j}, -1, s[{66+4*j}:{67+4*j}]")

def producer(c):
    q = Seq(); T = AX
    q.wait(vm="pr")
    for k in range(2):
        for j in range(2): q(f"ds_read_b64_tr_b16 {vr(T + 4*k + 2*j, 2)}, v{vPR1} offset:{k*1536 + j*768}")
    for j in range(2): q(f"ds_read_b64_tr_b16 {vr(T + 8 + 2*j, 2)}, v{vPR3+j}")
    g = Seq()
    for k in range(2): g(f"buffer_store_dwordx4 {vr(T + 4*k, 4)}, v{vL16}, {srd(SWS)}, s83 offen offset:{2304*k} sc1", "stp")
    if c.g3f: g(f"s_cmp_eq_u32 s{sW}, 0\ns_mov_b32 s62, 0xffff\ns_cselect_b32 exec_hi, 0xccccffff, s62\ns_mov_b32 exec_lo, 0xcccccccc")
    else: g("s_mov_b32 exec_lo, 0xcccccccc\ns_mov_b32 exec_hi, 0xcffff")
    g(f"buffer_store_dwordx4 {vr(T+8, 4)}, v{vPS3}, {srd(SWS)}, s82 offen sc1", "stp")
    g("s_mov_b64 exec, -1")
    return q.l, g.l
def wo_repack(T=AX, s88=88):
    q = Seq()
    q(f"ds_read_b64_tr_b16 {vr(T+12, 2)}, v{vRP}\nds_read_b64_tr_b16 {vr(T+14, 2)}, v{vRP} offset:1152\nds_read_b64_tr_b16 {vr(T+16, 2)}, v{vRP+1}\nds_read_b64_tr_b16 {vr(T+18, 2)}, v{vRP+1} offset:1152", "rp")
    r = Seq()
    r(f"s_mul_i32 s63, s{sL}, {WOBLK}\ns_add_u32 s63, s63, {WOO}\ns_add_u32 s3, s{s88}, s63")
    r(f"buffer_store_dwordx4 {vr(T+12, 4)}, v{vL16}, {srd(SWS)}, s3 offen sc1", "stw")
    r.wait(lg="rp")
    r(f"s_cmp_ge_u32 s{sW}, 2\ns_cbranch_scc1 .Lw2\ns_cmp_eq_u32 s{sW}, 0\ns_cselect_b32 exec_lo, -1, 0\ns_cselect_b32 exec_hi, 0, -1")
    r(f"buffer_store_dwordx4 {vr(T+16, 4)}, v{vRP+2}, {srd(SWS)}, s63 offen sc1", "nocount")
    r("s_mov_b64 exec, -1\ns_branch .Lw3")
    r.label(".Lw2")
    r(f"buffer_store_dwordx2 {vr(T+16, 2)}, v{vRP+2}, {srd(SWS)}, s63 offen sc1", "stw")
    r.label(".Lw3")
    r("s_nop 1")
    return q.l, r.l
def wa_load():
    q = Seq()
    for i in range(5):
        q(f"ds_read_b64_tr_b16 {vr(WA1 + 2*i, 2)}, v{vWP} offset:{192*i}\nds_read_b64_tr_b16 {vr(WA2 + 2*i, 2)}, v{vWP2} offset:{192*i}")
    for r in (WA1 + 10, WA1 + 11, WA2 + 10, WA2 + 11): q(f"v_mov_b32 v{r}, 0")
    for i in range(10): q(f"v_and_b32 v{WA1+i}, v{vWM}, v{WA1+i}\nv_and_b32 v{WA2+i}, v{vWM}, v{WA2+i}")
    return q.l

def put(mf, items):
    out = []
    for g, m in enumerate(mf):
        out.append(m)
        for gg, it in items:
            if gg == g or (g == len(mf) - 1 and gg > g):
                out.extend(it if isinstance(it, list) else [it])
    return out
def grp(q): return [q[:2]] + q[2:]

def poll_issue(voff, base, name):
    q = Seq()
    q(f"s_mov_b32 s62, {base}")
    q(f"buffer_load_dwordx2 {vr(vPD, 2)}, v{voff}, {srd(SWS)}, s62 offen sc1", name)
    return q.l
def poll_check(voff, base, name, slowflag=None):
    q = Seq()
    q.wait(vm=name)
    q(f"v_cmp_ne_u64 vcc, s[{sTAG}:{sTAG+1}], {vr(vPD, 2)}\ns_cbranch_vccz .Lq{name}")
    if slowflag is not None:
        q(f"s_waitcnt vmcnt(0)\ns_mov_b32 s62, {slowflag}")
        q(f"buffer_store_dwordx2 {vr(vTG, 2)}, v{vL}, {srd(SWS)}, s62 offen sc1", "nocount")
    q(f"s_mov_b32 s62, {base}\ns_mov_b32 s63, 300000")
    q.label(f".Lp{name}")
    q(f"buffer_load_dwordx2 {vr(vPD, 2)}, v{voff}, {srd(SWS)}, s62 offen sc1", "nocount")
    q("s_waitcnt vmcnt(0)")
    q(f"v_cmp_ne_u64 vcc, s[{sTAG}:{sTAG+1}], {vr(vPD, 2)}")
    q(f"s_sub_u32 s63, s63, 1\ns_cbranch_scc1 .Lend\ns_cbranch_vccnz .Lp{name}")
    q.label(f".Lq{name}")
    return q.l
def flag_store(base, sidx=None, line=None):
    q = Seq()
    q(f"s_mov_b32 s62, {base}")
    q(f"buffer_store_dwordx2 {vr(vTG, 2)}, v{vL}, {srd(SWS)}, s62 offen sc1", "flag")
    return q.l
def tag_issue():
    q = Seq()
    q(f"v_mov_b32 v{vTG}, 0")
    q(f"global_load_dwordx2 {vr(vTG, 2)}, v{vTG}, s[50:51] sc1", "tag")
    return q.l
def tag_check():
    q = Seq()
    q.wait(vm="tag")
    q(f"v_readfirstlane_b32 s{sTAG+1}, v{vTG+1}\ns_mov_b32 s63, 300000\ns_cmp_lg_u32 s{sTAG+1}, 0\ns_cbranch_scc1 .Ltag2")
    q.label(".Ltag")
    q(f"v_mov_b32 v{vTG}, 0")
    q(f"global_load_dwordx2 {vr(vTG, 2)}, v{vTG}, s[50:51] sc1", "nocount")
    q("s_waitcnt vmcnt(0)")
    q(f"v_readfirstlane_b32 s{sTAG+1}, v{vTG+1}")
    q(f"s_sub_u32 s63, s63, 1\ns_cbranch_scc1 .Lend\ns_cmp_eq_u32 s{sTAG+1}, 0\ns_cbranch_scc1 .Ltag")
    q.label(".Ltag2")
    q(f"v_readfirstlane_b32 s{sTAG}, v{vTG}")
    return q.l
```

```python
import re
from pgs import add_stubs, warm
from g3a import *
import g3a

def g2_half(m, hf):
    g = m - 9
    if g < 5:
        ks = [4*g + 2*hf, 4*g + 2*hf + 1] if g < 4 else [16 + hf]
        return [((k - 4*g)*3 + t, AX + 8*t, k) for k in ks for t in range(3)]
    sec, j = divmod(g - 5, 3); A = AX if sec == 1 else AY
    return [((2*hf + h)*3 + i, A + 8*h, 6*j + 3*hf + i) for i in range(3) for h in range(2)]
def g2_rd(m, hf):
    return [I(f"ds_read_b128 {vr(FR + 24*hf + 4*q, 4)}, v{vL16} offset:{(m % NW)*WSL + f*1024}", f"f{m}_{hf}") for q, (f, A, k) in enumerate(g2_half(m, hf))]
def g2_mm(m, hf):
    out = []
    for q, (f, A, k) in enumerate(g2_half(m, hf)):
        for tt in range(2):
            d = vr(A + 4*tt, 4)
            out.append(I(f"{M16} {d}, {vr(FR + 24*hf + 4*q, 4)}, {ar((k*2 + tt)*4, 4)}, {d if k else 0}"))
    return out

def wsched(c):
    d = {}; m = 3
    for n in range(23):
        for h in range(2):
            l = []
            SK = [int(x, 36) for x in c.bsk]
            B = n - 1 + h
            while B in SK: B -= 1
            nk = B + 1
            while nk in SK: nk += 1
            full = (B + 1 in SK) or (nk + 1 in SK) or B >= c.ful or B in [int(x, 36) for x in c.fus]
            while m < 23 and m <= (n - 1 + h + NW if (n, h) <= (9, 0) else B + (NW if full else c.dep)) and len(l) < (1 if m < 9 or m > 10 else 2):
                if m < 9 and (h == 0 or m > n + 3): break
                if m >= 9 and ((n, h) < (c.s_pw, 1) or c.exp & 8): break
                l.append(m); m += 1
            d[(n, h)] = l
    return d

def sep(d):
    n = 4 if len(d) == 5 and "lds" in d[4].t else 3
    return [[d[0]] + (d[1+i: 2+i] if i < n - 1 else d[1+i:]) for i in range(n)]
def pass1(a, c, extra):
    ws = wsched(c)
    PX = [int(x, 36) for x in c.px]; PW = [int(x, 36) for x in c.pw]; PW2 = [int(x, 36) for x in c.pw2]
    for s in range(9):
        dm = []
        if s + 3 < 9:
            dm += list(zip(PX, sep(dma_x(s + 3)))) + list(zip(PW, sep(dma_w(c, s + 3))))
        g = [[m for m in ws[(s, h)] if m >= 9] for h in range(2)]
        for h in range(2):
            for i, m in enumerate(g[h]):
                dm += [(10*h + p, x) for p, x in zip(PW2[:3] if len(g[h]) == 1 else PW2[3+3*i: 6+3*i], sep(dma_w(c, m)))]
        a.wait(lg=[f"f{s}_0", f"xr{s}"])
        it = [(k // 2, r) for k, r in enumerate(rd_w(s, 1))]
        it += [x for x in dm if x[0] < 10]
        it.append((c.pv, [W(vm=[f"w{s+1}", f"x{s+1}"])] + ([patch(s + 1)] if s + 1 < 9 else [])))
        it += extra.get(2*s, [])
        it.sort(key=lambda x: x[0])
        a(put(mm(s, 0), it))
        a(extra.get(("pre", s), []))
        a.wait(lg=0)
        a("s_barrier")
        if c.stp & 1: stamp(a, c)
        if s < 8:
            fc = rd_w(s + 1, 0)
            fc = fc[:4] + rd_x(s + 1)[:2] + fc[4:] + rd_x(s + 1)[2:]
        else: fc = g2_rd(9, 0)
        it = [(k // 2, r) for k, r in enumerate(fc)]
        it += [(p - 10, x) for p, x in dm if p >= 10]
        it += extra.get(2*s + 1, [])
        it.sort(key=lambda x: x[0])
        a(put(mm(s, 1), it))

def m0hoist(l, mode):
    l = list(l); i = 0
    T = lambda x: getattr(x, "t", "") or ""
    while i < len(l) - 1:
        if T(l[i]).startswith("s_add_u32 m0") and T(l[i+1]).startswith("buffer_load"):
            j = i - 1
            while j >= 0 and T(l[j]).startswith("ds_read"): j -= 1
            if j >= 0 and T(l[j]).startswith("v_mfma"):
                s = l.pop(i)
                if j == i - 1: l.insert(j, s)
                elif mode == 1: l.insert(j + 1, s)
                else:
                    L = l.pop(i); l.insert(j + 1, L); l.insert(j, s)
        i += 1
    return l

def m0dedup(l, mode):
    def regs(op):
        m = re.match(r"s\[(\d+):(\d+)\]", op)
        if m: return set(range(int(m.group(1)), int(m.group(2)) + 1))
        m = re.match(r"s(\d+)$", op)
        return {int(m.group(1))} if m else set()
    out = []; last = None
    for x in l:
        t = (getattr(x, "t", "") or "").strip()
        assert "\n" not in t
        if x.kind is None and t.startswith("s_add_u32 m0,"):
            if last == t: continue
            last = t
        elif "m0" in t or t.endswith(":") or t.startswith((".", "s_cbranch", "s_branch", "s_setpc", "s_endpgm")): last = None
        elif last and " " in t:
            ops = [y.strip() for y in t.split(None, 1)[1].split(",")]
            src = set().union(*[regs(y.strip()) for y in last.split(None, 1)[1].split(",")])
            if (regs(ops[0]) | (regs(ops[1]) if len(ops) > 1 and t.startswith("v_") else set())) & src and not t.startswith(("s_cmp", "buffer_", "ds_")): last = None
        out.append(x)
    return out

UPK = [""]
def unpk(t, key):
    if key not in UPK[0]: return t
    out = []
    for l in t.split("\n"):
        m = re.match(r"v_pk_(mul|add|fma)_f32 (.*)", l)
        if not m: out.append(l); continue
        op = m.group(1); rest = m.group(2)
        ops = re.findall(r"([vs])\[(\d+):\d+\]", rest)
        g = lambda k, d: [int(x) for x in re.search(k + r":\[([\d,]+)\]", rest).group(1).split(",")] if k + ":" in rest else d
        n = len(ops) - 1
        hi = g("op_sel_hi", [1]*n); ng = g("neg_lo", [0]*n); assert ng == g("neg_hi", [0]*n) and "op_sel:" not in rest
        for h in range(2):
            src = [("-" if ng[k] else "") + ops[1+k][0] + str(int(ops[1+k][1]) + (h if hi[k] else 0)) for k in range(n)]
            if op != "fma" and src[1][0] == "s": src = src[::-1]
            out.append(f"v_{op}_f32 v{int(ops[0][1]) + h}, " + ", ".join(src))
    return "\n".join(out)

def epi1():
    q = Seq()
    q(f"v_and_b32 v{vG1}, 16, v0\nv_cmp_eq_u32 vcc, 0, v{vG1}\ns_mul_i32 s63, s{sT}, 0x3f80")
    for h in range(5):
        for tt in range(2):
            d = ACC + (h*2 + tt)*4
            if h < 4:
                q(f"v_cvt_pk_bf16_f32 v{d}, v{d}, v{d+1}\nv_cvt_pk_bf16_f32 v{d+1}, v{d+2}, v{d+3}")
                q(f"ds_write_b64 v{vSA}, {vr(d, 2)} offset:{h*1280 + tt*256}")
            else:
                q(f"v_cvt_pk_bf16_f32 v{d+2}, v{d+2}, v{d+3}\nv_mov_b32 v{d+3}, s63")
                q(f"ds_write_b64 v{vST}, {vr(d+2, 2)} offset:{tt*128}")
    for i in range(5): q(f"ds_read_b128 {vr(ACC+4*i, 4)}, v{vSL} offset:{i*1024}")
    q(f"v_cndmask_b32 v{vG1}, v{ACC+36}, v{ACC+32}, vcc\nv_mul_f32 v{vG1}, 0xbfb8aa3b, v{vG1}\nv_exp_f32 v{vG1}, v{vG1}\nv_add_f32 v{vG1}, 1.0, v{vG1}\nv_rcp_f32 v{vG0}, v{vG1}\nv_sub_f32 v{vG1}, 1.0, v{vG0}")
    q(f"s_mul_i32 s63, s{sT}, {KV_KIND}\ns_mul_i32 s3, s{sG}, {2*KV_PAIR}\ns_add_u32 s63, s63, s3\ns_lshl_b32 s3, s{sR}, 2\ns_add_u32 s3, s3, s{sW}\ns_mul_i32 s3, s3, 2560\ns_add_u32 s63, s63, s3\ns_add_u32 s63, s63, {KVO}\ns_add_u32 s3, s63, {KV_PAIR+512}")
    for i in range(5):
        q(f"buffer_store_dwordx4 {vr(ACC+4*i, 4)}, v{vK2 if i == 2 else vL16}, {srd(SWS)}, {'s63' if i < 3 else 's3'} offen offset:{(i % 3)*1024} sc1", "st1")
    return q.l

def sout(A, blk, scale=False):
    q = Seq()
    for h in range(2):
        for tt in range(2):
            d = A + 8*h + 4*tt
            if scale:
                for i in (0, 2): q(unpk(f"v_pk_mul_f32 {vr(d+i, 2)}, {vr(d+i, 2)}, s[{sQS}:{sQS+1}] op_sel_hi:[1,0]", "s"))
            q(f"v_cvt_pk_bf16_f32 v{d}, v{d}, v{d+1}\nv_cvt_pk_bf16_f32 v{d+1}, v{d+2}, v{d+3}")
            q(f"ds_write_b64 v{vSA}, {vr(d, 2)} offset:{(blk + h)*1280 + tt*256}")
    return q.l
def tails():
    q = Seq()
    for tt in range(2):
        for h in range(2):
            d = AX + 16 + 4*tt + 2*h
            q(unpk(f"v_pk_mul_f32 {vr(d, 2)}, {vr(d, 2)}, {vr(vSC, 2)} op_sel_hi:[1,0]\nv_cvt_pk_bf16_f32 v{d}, v{d}, v{d+1}", "t"))
            q(f"ds_write2_b32 v{vTW+h}, v{d}, v{vONE} offset0:{32*tt} offset1:{32*tt+1}")
    return q.l

D2, D1, EM, PT = 160, 176, 192, 210
def phi(vT, kf, ka, km):
    BO = EM; T = PT
    q = Seq()
    q(f"ds_read_b128 {vr(BO, 4)}, v{vBL}\nds_read_b128 {vr(BO+4, 4)}, v{vBH}\nds_read_b64 {vr(BO+8, 2)}, v{vT}")
    q(f"v_mov_b32 v{BO+10}, 0\nv_mov_b32 v{BO+11}, 0")
    rd = q.l
    q = Seq()
    for s in range(3):
        q(f"{M32} {vr(D1, 16)}, {vr(WA1+4*s, 4)}, {vr(BO+4*s, 4)}, {vr(D1, 16) if s else 0}")
        q(f"{M32} {vr(D2, 16)}, {vr(WA2+4*s, 4)}, {vr(BO+4*s, 4)}, {vr(D2, 16) if s else 0}")
    mf = q.l
    q = Seq()
    P = [D1 + i for i in range(16)] + [D2 + 2, D2 + 3]
    E = [EM + i for i in range(18)]
    U = D2
    q(f"v_max3_f32 v{T}, v{P[0]}, v{P[1]}, v{P[2]}\nv_min3_f32 v{T+1}, v{P[0]}, v{P[1]}, v{P[2]}")
    for i in range(3, 17, 2): q(f"v_max3_f32 v{T}, v{T}, v{P[i]}, v{P[i+1]}\nv_min3_f32 v{T+1}, v{T+1}, v{P[i]}, v{P[i+1]}")
    q(f"v_max_f32 v{T}, v{T}, v{P[17]}\nv_min_f32 v{T+1}, v{T+1}, v{P[17]}")
    q(f"v_mul_f32 v{U}, s{sLE}, v{T+1}\nv_mul_f32 v{T}, s{sLE}, v{T}")
    for i in range(0, 18, 2):
        q(unpk(f"v_pk_fma_f32 {vr(E[i], 2)}, {vr(P[i], 2)}, s[{sLE}:{sLE+1}], {vr(U, 2)} op_sel_hi:[1,0,0] neg_lo:[1,0,0] neg_hi:[1,0,0]", kf))
        q(unpk(f"v_pk_fma_f32 {vr(P[i], 2)}, {vr(P[i], 2)}, s[{sLE}:{sLE+1}], {vr(T, 2)} op_sel_hi:[1,0,0] neg_lo:[0,0,1] neg_hi:[0,0,1]", kf))
    for R, S in ((E, T + 2), (P, T + 4)):
        for i in range(0, 18, 2):
            q(f"v_exp_f32 v{R[i]}, v{R[i]}\nv_exp_f32 v{R[i+1]}, v{R[i+1]}")
            if i == 4: q(unpk(f"v_pk_add_f32 {vr(S, 2)}, {vr(R[0], 2)}, {vr(R[2], 2)}", ka))
            if i > 4: q(unpk(f"v_pk_add_f32 {vr(S, 2)}, {vr(S, 2)}, {vr(R[i-2], 2)}", ka))
    for R, S in ((E, T + 2), (P, T + 4)):
        q(unpk(f"v_pk_add_f32 {vr(S, 2)}, {vr(S, 2)}, {vr(R[16], 2)}", ka))
    for S in (T + 2, T + 4): q(f"v_add_f32 v{S}, v{S}, v{S+1}")
    for S in (T + 2, T + 4): q(f"v_rcp_f32 v{S}, v{S}")
    for sg, R, S in ((1, E, T + 2), (0, P, T + 4)):
        for i in range(9):
            q(unpk(f"v_pk_mul_f32 {vr(R[2*i], 2)}, {vr(R[2*i], 2)}, {vr(S, 2)} op_sel_hi:[1,0]\nv_cvt_pk_bf16_f32 v{R[i]}, v{R[2*i]}, v{R[2*i+1]}", km))
            if i == 3: q(f"ds_write_b128 v{vBL}, {vr(R[0], 4)} offset:{sg*5120}")
            if i == 7: q(f"ds_write_b128 v{vBH}, {vr(R[4], 4)} offset:{sg*5120}")
            if i == 8: q(f"ds_write_b32 v{vBT}, v{R[8]} offset:{sg*5120}")
    return rd, mf, q.l

def kvpart():
    D = D1
    rd = []; mf = []
    for b in range(4):
        for m in range(2):
            o = 144 + 8*(b*2 + m)
            for j in range(2):
                rd.append(I(f"ds_read_b64_tr_b16 {ar(o + 2*j, 2)}, v{AD + 2*m + j} offset:{b*SST}"))
                rd.append(I(f"ds_read_b64_tr_b16 {ar(o + 4 + 2*j, 2)}, v{AD + 4 + 2*m + j} offset:{b*SST}"))
            mf.append(I(f"{M32} {vr(D, 16)}, {ar(o, 4)}, {ar(o+4, 4)}, {vr(D, 16) if (b or m) else 0}"))
    q = Seq()
    for i in range(5): q(f"v_cvt_pk_bf16_f32 v{D+i}, v{D+2*i}, v{D+2*i+1}")
    g = Seq()
    g("s_mov_b32 exec_lo, 0xfffff\ns_mov_b32 exec_hi, 0xfffff")
    g(f"buffer_store_dwordx4 {vr(D, 4)}, v{vKS+1}, {srd(SWS)}, s5 offen sc1", "st2")
    g("s_mov_b32 exec_lo, -1\ns_mov_b32 exec_hi, 0")
    g(f"buffer_store_dword v{D+4}, v{vKS}, {srd(SWS)}, s5 offen offset:640 sc1", "st2")
    g("s_mov_b64 exec, -1")
    return rd, mf, q.l + [g.l]

def kv_dma(c):
    q = Seq()
    q(f"s_lshr_b32 s62, s{sW}, 1\ns_mul_i32 s62, s62, {KV_KIND}\ns_mul_i32 s63, s{sP}, {KV_PAIR}\ns_add_u32 s62, s62, s63\ns_add_u32 s62, s62, {KVO - 8*2560}")
    q(f"s_and_b32 s63, s{sW}, 1\ns_mul_i32 s63, s63, 6\ns_lshl_b32 s3, s{sR}, 2\ns_add_u32 s99, s63, s3\ns_mul_i32 s63, s99, 2560\ns_add_u32 s62, s62, s63")
    mksrd(q, SM, 52, 53, "s62", nrec=15360)
    q(f"s_mul_i32 s{sM0x}, s{sW}, 15360\ns_add_u32 s{sM0x}, s{sM0x}, {KVR}")
    pre = q.l; groups = []
    for g in range(3):
        for o, n in ((0, 2), (2048, 3)):
            q = Seq()
            if o == 0: q(f"s_cmp_ge_u32 s99, {8 - 2*g}\ns_cselect_b32 s{SM+2}, 15360, 0")
            q(f"s_add_u32 m0, s{sM0x}, {g*5120 + o}\ns_movk_i32 s19, {g*5120 + o}")
            for i in range(n):
                if i: q = Seq(); q(f"s_add_u32 m0, s{sM0x}, {g*5120 + o}")
                q(f"buffer_load_dwordx4 v{vL16}, {srd(SM)}, s19 offen offset:{i*1024} {c.ldpol} lds", "kv")
                groups.append(q.l)
    return pre, groups

def kv_ready():
    a = Seq()
    a.wait(vm="kv")
    a(f"s_cmp_ge_u32 s{sW}, 2\ns_cbranch_scc1 .Lmk2\ns_add_u32 s63, s99, 6\ns_min_u32 s63, s63, 8\ns_cmp_ge_u32 s99, 8\ns_cbranch_scc1 .Lmk2")
    a(f"v_and_b32 v60, 31, v0\nv_bfe_u32 v61, v0, 5, 1\nv_mul_u32_u24 v61, 1280, v61\nv_lshl_add_u32 v60, v60, 3, v61\nv_add_u32 v60, s{sM0x}, v60\nv_mov_b32 v61, 0xf149")
    a.label(".Lmk")
    a("ds_write_b16 v60, v61 offset:1028", "nocount")
    a("v_add_u32 v60, 2560, v60\ns_add_u32 s99, s99, 1\ns_cmp_lt_u32 s99, s63\ns_cbranch_scc1 .Lmk")
    a("s_waitcnt lgkmcnt(0)")
    a.label(".Lmk2")
    return a.l

WOE = []; WOL = []; APT = 72; KA = 128
def wo_init(c):
    global APT
    WOE[:] = [(8, ct) for ct in range(5)] + [(s, 4) for s in range(8)] + [(s, ct) for s in range(4) for ct in range(4)][:15 if c.s2 else 14]
    WOL[:] = [(s, ct) for s in range(8) for ct in range(4) if (s, ct) not in WOE]
    APT = 64 if c.s2 else 72
def awo(s, ct): return 144 + 4*WOE.index((s, ct)) if (s, ct) in WOE else KA if (APT == 64 and WOL.index((s, ct)) == 16) else 4*WOL.index((s, ct))
SLOT = [(0, 0), (1, 0), (1, 1), (0, 1)]
def wo_loads(c, lst):
    out = []; cur = None
    def ld(sb, t):
        nonlocal cur
        out.append(I(t, "wo") if sb == cur else [I(f"s_add_u32 s101, s100, {sb*WOBLK}"), I(t, "wo")]); cur = sb
    for part in range(2):
        for s, ct in lst:
            if s == 8: ld(part, f"buffer_load_dwordx2 {ar(awo(s, ct) + 2*part, 2)}, v{VT if ct < 4 else VT4}, {srd(SWS)}, s101 offen offset:{ct*128} {c.ldpol}")
    for s, ct in sorted(lst):
        if s < 8 and c.s2:
            br, hd = SLOT[s >> 1]
            ld(4*(s & 1) + br, f"buffer_load_dwordx4 {ar(awo(s, ct), 4)}, v{vWM2 if ct < 4 else V4}, {srd(SWS)}, s101 offen offset:{ct*1024 + hd*512 if ct < 4 else hd*256} {c.ldpol}")
        elif s < 8: ld(s, f"buffer_load_dwordx4 {ar(awo(s, ct), 4)}, v{vL16 if ct < 4 else V4}, {srd(SWS)}, s101 offen offset:{(ct&3)*1024} {c.ldpol}")
    return out

IDS = LDS_TOTAL
def early():
    q = Seq()
    q(f"s_add_u32 s4, s{sOA}, 4096\ns_lshl2_add_u32 s47, s{sP}, s{sW}\ns_mul_i32 s6, s47, 12288\ns_add_u32 s6, s6, {PARO}\ns_mul_i32 s47, s{sR}, 768\ns_add_u32 s5, s6, s47")
    q(f"s_mul_i32 s11, s{sW}, 9216\ns_add_u32 s11, s11, {OPO}")
    for tt in range(4): q(f"s_xor_b32 s47, s{sW}, {tt}\ns_lshl2_add_u32 s47, s{sRT}, s47\ns_mul_i32 s47, s47, 36864\ns_add_u32 s{7+tt}, s47, s11")
    q(f"s_and_b32 s47, s{sW}, 2\ns_add_u32 s47, s47, s{sW}\ns_lshl_b32 s47, s47, 10\ns_add_u32 s11, s47, {WPH + 2048}")
    sa = q.l; q = Seq(); ID = 200; t = 204
    q(f"v_bfe_u32 v{t}, v0, 3, 2\nv_bfe_u32 v{t+1}, v0, 1, 1\nv_lshl_add_u32 v{t}, v{t}, 1, v{t+1}")
    q(f"v_and_b32 v{t+1}, 1, v0\nv_lshlrev_b32 v{t+1}, 4, v{t+1}\nv_lshlrev_b32 v{t+1}, v{t+1}, v{vONE}")
    q(f"v_bfe_u32 v{t+2}, v0, 2, 1\nv_bfe_u32 v{t+3}, v0, 5, 1\nv_cmp_eq_u32 vcc, v{t+2}, v{t+3}\nv_cndmask_b32 v{t+1}, 0, v{t+1}, vcc")
    for i in range(4): q(f"v_cmp_eq_u32 vcc, {i}, v{t}\nv_cndmask_b32 v{ID+i}, 0, v{t+1}, vcc")
    q(f"v_add_u32 v{t}, {IDS}, v{vL16}\nds_write_b128 v{t}, {vr(ID, 4)}")
    for r in (QT, QT+1, QT+4, QT+5, QT+8, QT+9): q(f"v_mov_b32 v{r}, 0")
    return sa, q.l

def g2(a, c):
    side = [[] for _ in range(29)]; side2 = [[] for _ in range(29)]
    def spread(S, items, h0, h1):
        n = len(items)
        for k, it in enumerate(items): S[h0 + k * (h1 - h0) // n].append(it)
    e1 = epi1()
    spread(side, e1[:-5], 0, c.e1n)
    F1S = [W(vm="st1")] + flag_store(F1, sL, False)
    if not c.f1l: side[c.h_f1].append(F1S)
    rd, mf, sm = phi(vBT, 'f', 'a', 'm')
    spread(side, sout(AX, 0) + tails() + rd + mf, 10, 11)
    spread(side, sm, 11, 19)
    if c.f1l: side[c.h_f1].insert(len(side[c.h_f1]) * c.f1l // 4, F1S)
    spread(side2, sout(AY, 2), 16, 17)
    krd, kmf, ks = kvpart()
    spread(side, krd, 19, 21); spread(side2, kmf, 20, 22); side2[21] += ks
    if c.h_f2 < 28: side[c.h_f2].append([W(vm="st2")] + flag_store(F2, sL, True))
    rd, mf, sm = phi(vBT2, 'F', 'A', 'M')
    spread(side, sout(AX, 0) + rd + mf, 22, 23)
    spread(side, sm[:len(sm) - c.phq], 23, 28)
    pre, kd = kv_dma(c)
    side2[c.h_kv - c.pf1].append(poll_issue(vF1, F1, "f1"))
    sa, va = early()
    k = [i for i, x in enumerate(pre) if x.t.startswith("s_addc")][0]
    pre = pre[:k-1] + [pre[k-1:k+1]] + pre[k+1:]
    if c.s3g:
        q = Seq(); setup3(q, c); spread(side, va + q.l, c.h_ea, 10); spread(side2, sa, c.h_ea, 7); spread(side2, pre, 7, 10)
    elif c.h_ea >= 0: spread(side2, sa, c.h_ea, c.h_ea + 3); spread(side, va, c.h_ea, c.h_ea + 3); spread(side, pre, 7, 10)
    else: spread(side, va[-6:], 5, 9)
    side2[c.h_kv].insert(0, poll_check(vF1, F1, "f1"))
    vm = [[] for _ in range(29)]
    ws = wsched(c); wl = {}; SK = [int(x, 36) for x in c.bsk]
    assert not set(SK) & {9, 18, 19, 22}
    for m in range(9, 23):
        for hf in range(2):
            H = 2*(m - 9) + hf
            for n in ws[(m, hf)]:
                d = dma_w(c, n)
                wl[n] = H + (1 if c.w3l else 0)
                for i in range(3): vm[H + ((i + 1) // 3 if c.w3l else 0)].append([d[0]] + d[1+i: 2+i if i < 2 else 9])
    spread(vm, kd, c.h_kv, c.h_kv + c.n_kv)
    for k, h in enumerate([int(x, 36) for x in c.e1s]): vm[h].append(e1[k-5])
    if c.s2 and c.po and c.pop >= 20:
        p1, p2 = poison(208); side2[c.pop - 20].insert(0, p1)
        for k, x in enumerate(p2): vm[c.pop - 20 + (k + 1) * c.pon // 6].append(x)
    FO = g3a.FO if (c.wol == 1 or c.sfo) else F1
    if c.sfo:
        assert c.pop >= 20 and c.pop - 20 + 5 * c.pon // 6 < c.h_fo < c.h_pfo
        side[c.h_fo].append([W(vm=["poi", "stw"])] + flag_store(FO, sL, False))
    else: assert c.pop - 20 + 5 * c.pon // 6 < int(c.e1s[-1], 36)
    if c.wol == 1:
        d = wo_dma(SX, SW1); vm[0].append(d[0]); vm[1].append(d[1])
        p1, p2 = wo_repack(PT - 12, SW1)
        side2[9].append(p1); vm[10].append(p2[:4]); vm[10].append(p2[4:])
        side[c.h_fo].append([W(vm="stw")] + flag_store(FO, sL, False))
    side2[c.h_pfo].append(poll_issue(vFO, FO, "fo"))
    for m in range(9, 23):
        for hf in range(2):
            H = 2*(m - 9) + hf
            mf = g2_mm(m, hf)
            rd = g2_rd(m, 1) if hf == 0 else g2_rd(m + 1, 0) if m < 22 else []
            it = [(k, r) for k, r in enumerate(rd)] + [((2*k + 1) * len(mf) // (2*len(vm[H])), x) for k, x in enumerate(vm[H])]
            for S in (side[H], side2[H]): it += [(k * len(mf) // len(S), x) for k, x in enumerate(S)]
            it.sort(key=lambda x: x[0])
            a(put(mf, it))
            if hf == 0 and m not in SK:
                if c.stp & 8: stamp(a, c)
                nk = m + 1
                while nk in SK: nk += 1
                full = (m + 1 in SK) or (nk + 1 in SK) or m >= c.ful or m in [int(x, 36) for x in c.fus]
                assert m == 22 or wl.get(nk, -1) <= H, (m, nk, wl)
                if m < 22: a.wait(vm=[f"w{j}" for j in range(m + 1, nk + 1)] + (["wos"] if m == 13 else [])); a.wait(lg=0 if (m in (18, 19) or c.dep == NW) else [f"f{m}_0", f"f{m}_1"] if full else f"f{m}_0")
                else: a(poll_check(vFO, FO, "fo")); a(kv_ready())
                a("s_barrier")
                if c.stp & 2: stamp(a, c)
    a(sout(AY, 2, True))
    for hd in range(2):
        a(f"ds_read_b128 {vr(Q0 + 4*hd, 4)}, v{vQM} offset:{2560 + hd*1280}\nds_read_b64 {vr(QT + 2 + 4*hd, 2)}, v{vQT} offset:{hd*1024}")
    return sm[len(sm) - c.phq:]

Q0, QT, OB0, OB1, KM, KT, VV, MX = 10, 18, 28, 44, 60, 68, 76, 92
TL = 236
def ST(i): return 96 + 16*i
ORDER = [0, 8, 1, 2, 3, 4, 5, 6, 7]
def sdst(t): return OB1 if t == 0 else ST(0) if t == 8 else ST(t)
def k_rd(hd, n):
    t = ORDER[n]; o = t*2560 + hd*1280
    return [I(f"ds_read_b128 {vr(KM + 4*(n&1), 4)}, v{vKL} offset:{o}"),
            I(f"ds_read_b64 {vr(KT + 4*((n>>1)&1) + 2*(n&1), 2)}, v{vKT} offset:{o}")]
def qk(hd, n):
    d = vr(sdst(ORDER[n]), 16)
    return [I(f"{M32} {d}, {vr(KM + 4*(n&1), 4)}, {vr(Q0 + 4*hd, 4)}, 0"),
            I(f"{M32} {d}, {vr(KT + 4*((n>>1)&1), 4)}, {vr(QT + 4*hd + (0 if n & 1 else 2), 4)}, {d}")]
def merge(): return [I(f"v_cndmask_b32 v{ST(0)+r}, v{OB1+r}, v{ST(0)+r}, s[{64+2*r}:{65+2*r}]") for r in range(16)]
def mx(i):
    out = []
    for j in range(8):
        m = MX + (j & 1); x = ST(i) + 2*j
        if i == 0 and j < 2: out.append(I(f"v_max_f32 v{m}, v{x}, v{x+1}"))
        else: out.append(I(f"v_max3_f32 v{m}, v{m}, v{x}, v{x+1}"))
    return out
def mx_fin():
    q = Seq()
    q(f"v_max_f32 v{MX}, v{MX}, v{MX+1}\nv_mov_b32 v{MX+1}, v{MX}\nv_permlane32_swap_b32 v{MX}, v{MX+1}\nv_max_f32 v{MX}, v{MX}, v{MX+1}")
    q(f"v_and_b32 v{MX+1}, 0xffff0000, v{MX}\nv_sub_f32 v{MX}, v{MX+1}, v{MX}\nv_cvt_pk_bf16_f32 v{CM}, -v{MX+1}, v{MX}")
    return q.l
def sub(i):
    d = vr(ST(i), 16)
    return I(f"{M32} {d}, {vr(CM+2, 4)}, {vr(CM, 4)}, {d}")
def ex(i):
    out = []; b = ST(i)
    for j in range(8):
        out += [I(f"v_exp_f32 v{b+2*j}, v{b+2*j}"), I(f"v_exp_f32 v{b+2*j+1}, v{b+2*j+1}")]
        if j: out.append(I(f"v_cvt_pk_bf16_f32 v{b+j-1}, v{b+2*j-2}, v{b+2*j-1}"))
    out.append(I(f"v_cvt_pk_bf16_f32 v{b+7}, v{b+14}, v{b+15}"))
    if i == 0:
        for j in range(8): out.append(I(f"v_and_b32 v{b+8+j}, v{PM+j}, v{b+j}"))
        for j in range(8): out.append(I(f"v_xor_b32 v{b+j}, v{b+8+j}, v{b+j}"))
    return out
def v_rd(hd, n):
    t = ORDER[n]
    return [I(f"ds_read_b64_tr_b16 {vr(VV + 8*(n&1) + 2*i, 2)}, v{vTR+i} offset:{t*2560 + hd*1280}") for i in range(4)]
def pv(hd, n):
    t = ORDER[n]; o = vr(OB0 if hd == 0 else OB1, 16)
    p = ST(0) if t == 0 else ST(0) + 8 if t == 8 else ST(t)
    return [I(f"{M32} {o}, {vr(VV + 8*(n&1), 4)}, {vr(p, 4)}, {o if n else 0}"),
            I(f"{M32} {o}, {vr(VV + 8*(n&1) + 4, 4)}, {vr(p + 4, 4)}, {o}")]
def fin(u, O, c):
    q = Seq(); t = O + 10
    if u >= 2: q(f"v_add_f32 v{t}, 0x358637bd, v{t}")
    q(f"v_rcp_f32 v{t}, v{t}\nv_mul_f32 v{t}, v{vG0 if u >= 2 else vG1}, v{t}")
    for i in range(5):
        q(unpk(f"v_pk_mul_f32 {vr(O+2*i, 2)}, {vr(O+2*i, 2)}, {vr(t, 2)} op_sel_hi:[1,0]\nv_cvt_pk_bf16_f32 v{O+12+i if i < 4 else TL+u}, v{O+2*i}, v{O+2*i+1}", str(u)))
    sl = [0, 3, 1, 2][u]
    if c.s2: q(f"buffer_store_dwordx4 {vr(O+12, 4)}, v{vOA}, {srd(SWS)}, s{4 if sl >= 2 else sOA} offen offset:{(sl & 1)*2048} sc1", "st3b" if u == 1 else "st3a")
    else: q(f"buffer_store_dwordx4 {vr(O+12, 4)}, v{vOA}, {srd(SWS)}, s{sOA} offen offset:{u*512} sc1", "st3")
    return q.l
def par_loads(c):
    q = Seq(); VP = 245
    q(f"v_min_u32 v{VP}, {44*16}, v{vL16}")
    out = [q.l]
    for r in range(16):
        out.append([I(f"buffer_load_dwordx4 {ar(APT + 4*r, 4)}, v{VP}, {srd(SWS)}, s6 offen offset:{(r % 6)*768} {c.ldpol}", "pl")] + ([I("s_add_u32 s6, s6, 4608")] if r % 6 == 5 else []))
    return out
def kvsum():
    q = Seq(); ID = Q0; t = Q0 + 4
    q(f"v_bfe_u32 v{t}, v0, 3, 2\nv_bfe_u32 v{t+1}, v0, 1, 1\nv_lshl_add_u32 v{t}, v{t}, 1, v{t+1}")
    q(f"v_and_b32 v{t+1}, 1, v0\nv_lshlrev_b32 v{t+1}, 4, v{t+1}\nv_mov_b32 v{t+2}, 0x3f80\nv_lshlrev_b32 v{t+1}, v{t+1}, v{t+2}")
    q(f"v_bfe_u32 v{t+2}, v0, 2, 1\nv_bfe_u32 v{t+3}, v0, 5, 1\nv_cmp_eq_u32 vcc, v{t+2}, v{t+3}\nv_cndmask_b32 v{t+1}, 0, v{t+1}, vcc")
    for i in range(4): q(f"v_cmp_eq_u32 vcc, {i}, v{t}\nv_cndmask_b32 v{ID+i}, 0, v{t+1}, vcc")
    pre = [q.l]
    o = vr(OB0, 16)
    mf = [I(f"{M32} {o}, {vr(ID, 4)}, {ar(APT + 4*r, 4)}, {o if r else 0}") for r in range(16)]
    q = Seq()
    q(f"s_lshl_b32 s62, s{sW}, 10\ns_add_u32 s62, s62, {KVS}\nv_add_u32 v{t}, s62, v{vL16}")
    for i in range(4): q(f"v_cvt_pk_bf16_f32 v{OB0+i}, v{OB0+2*i}, v{OB0+2*i+1}")
    q(f"ds_write_b128 v{t}, {vr(OB0, 4)}")
    return pre, mf, q.l
def a_apply(T, O):
    q = Seq(); t = Q0
    q(f"v_and_b32 v{t}, 31, v0\nv_and_b32 v{t+1}, 19, v0\nv_cmp_gt_u32 vcc, 16, v{t}\nv_cndmask_b32 v{t}, v{t+1}, v{t}, vcc\nv_bfe_u32 v{t+1}, v0, 5, 1")
    q(f"v_mul_u32_u24 v{t+2}, 320, v{t+1}\nv_lshl_add_u32 v{t+2}, v{t}, 4, v{t+2}\nv_add_u32 v{t+2}, {KVS}, v{t+2}")
    q(f"v_lshlrev_b32 v{t+3}, 11, v{t+1}\nv_lshl_add_u32 v{t+3}, v{t}, 2, v{t+3}\nv_add_u32 v{t+3}, {KVS + 640}, v{t+3}")
    q(f"s_mul_i32 s62, s{sW}, 5120\ns_add_u32 s62, s62, {STG - KVR}\nv_add_u32 v{t}, s62, v{vKL}\nv_mul_u32_u24 v{t+1}, 5120, v{t+1}\nv_add3_u32 v{t+1}, v{t+1}, s62, v{vKT}")
    for hd in range(2):
        b = T + 24*hd
        q(f"ds_read_b128 {vr(b+14, 4)}, v{t} offset:{hd*1280}\nds_read_b128 {vr(b+18, 4)}, v{t} offset:{5120 + hd*1280}\nds_read_b32 v{b+12}, v{t+1} offset:{hd*1280}")
        for r in (9, 10, 11, 13): q(f"v_mov_b32 v{b+r}, 0")
    pre = q.l
    q = Seq()
    for hd in range(2):
        b = T + 24*hd
        q(f"ds_read_b128 {vr(b, 4)}, v{t+2} offset:{hd*1024}\nds_read_b128 {vr(b+4, 4)}, v{t+2} offset:{2048 + hd*1024}\nds_read_b32 v{b+8}, v{t+3} offset:{hd*1024}")
    for hd in range(2):
        b = T + 24*hd; o = vr(O[hd], 16)
        q(f"{M32} {o}, {vr(b, 4)}, {vr(b+14, 4)}, 0\n{M32} {o}, {vr(b+4, 4)}, {vr(b+18, 4)}, {o}\n{M32} {o}, {vr(b+8, 4)}, {vr(b+12, 4)}, {o}")
    return pre, q.l

def attention(a, c, rest):
    ld = wo_loads(c, WOE[:13])
    wl = wo_loads(c, WOE[13:] + WOL)
    a(k_rd(0, 0) + k_rd(0, 1) + [k_rd(0, 2)[1], k_rd(0, 3)[1]])
    k = len(rest) // 2
    a(rest[:k]); rest = rest[k:]
    if c.stp & 4: stamp(a, c)
    for n in range(9):
        a(qk(0, n))
        if n + 2 < 9: a(k_rd(0, n + 2)[:1 if n < 2 else 2])
        for _ in range(3):
            if ld: a(ld.pop(0))
        if n < 3: a(rest[n*len(rest)//3: (n+1)*len(rest)//3])
        if n == 3: a(merge())
        if n >= 4: a(mx(n - 4))
        if n == c.h_f2 - 28: a([W(vm="st2")] + flag_store(F2, sL, True))
    a(k_rd(1, 0) + k_rd(1, 1) + v_rd(0, 0) + v_rd(0, 1))
    a(qk(1, 0))
    for i in range(5, 8): a(mx(i))
    ld = wl[:2*c.f2n - 1] + [poll_issue(vF2, F2, "f2")] + wl[2*c.f2n - 1: 2*c.f2n + 3]
    ld += [poll_check(vF2, F2, "f2")] + par_loads(c) + wl[2*c.f2n + 3:]
    stamp(a, c)
    for hd in range(2):
        a(mx_fin())
        a(sub(0)); a(sub(1))
        if hd == 1:
            kpre, kmf, kfin = kvsum()
            a(fin(0, OB0, c)); a(kpre)
        for i in range(9):
            main = ex(i) if i < 8 else []
            fill = []
            if i + 2 < 8: fill.append(sub(i + 2))
            if i >= 1:
                ns = [0, 1] if i == 1 else [i]
                for n in ns:
                    fill += pv(hd, n)
                    if n + 2 < 9: fill += v_rd(hd, n + 2)
                if hd == 0:
                    fill += qk(1, i)
                    if i + 1 < 9: fill += k_rd(1, i + 1)
                    if i == 3: main += merge()
                    if i >= 4: main += mx(i - 4)
            if hd == 1 and 2 <= i <= 5: fill += kmf[4*(i-2): 4*i-4]
            if hd == 1 and i == 7: main += kfin
            for _ in range(3 if i else 2):
                if ld: fill.append(ld.pop(0))
            if main: a(weave(main, fill))
            else: a(fill)
        if hd == 0:
            a(v_rd(1, 0) + v_rd(1, 1))
            for i in range(5, 8): a(mx(i))
        stamp(a, c)
    assert not ld
    apre, amf = a_apply(ST(2), [ST(0), ST(1)])
    a(apre)
    a.wait(lg=0); a("s_barrier")
    a(amf)
    a(fin(1, OB1, c))
    a(fin(2, ST(0), c)); a(fin(3, ST(1), c))
    a(f"s_mov_b32 exec_hi, 0\nbuffer_store_dwordx4 {vr(TL, 4)}, v{vOT}, {srd(SWS)}, s{sOT} offen sc1\ns_mov_b32 exec_hi, -1", "st3")
    a.wait(vm="st3")
    a(flag_store(F3, sL, True))

def p3(a, c):
    OP, AC = 0, 144
    V1, V2, VW, VO = 236, 237, 238, 241
    a(poll_issue(vF3, F3, "f3"))
    a(f"v_add_u32 v{V1}, 4096, v{vL16}\nv_add_u32 v{V2}, 8192, v{vL16}")
    for tt in range(4):
        a(f"s_add_u32 s62, s{sW}, {tt}\ns_and_b32 s62, s62, 3")
        if tt: a(f"s_mul_i32 s63, s62, 15360\ns_add_u32 s63, s63, {(tt-1)*5120}\nv_add_u32 v{VW+tt-1}, s63, v{vL16}")
        a(f"s_lshl_b32 s63, s{sRT}, 2\ns_add_u32 s62, s62, s63\ns_mul_i32 s62, s62, 36864\ns_mul_i32 s63, s{sW}, 9216\ns_add_u32 s62, s62, s63\ns_add_u32 s{64+tt}, s62, {OPO}")
    a(f"v_and_b32 v{VO}, 15, v0\nv_mul_u32_u24 v{VO}, 1152, v{VO}\nv_bfe_u32 v{VO+1}, v0, 4, 1\nv_lshl_add_u32 v{VO+1}, v{VO+1}, 3, v{VO}\nv_and_b32 v254, 48, v0\nv_add_u32 v{VO}, v254, v{VO}")
    a(f"s_lshl_b32 s62, s{sRT}, 2\ns_add_u32 s62, s62, s{sW}\ns_mul_i32 s62, s62, {16*1152}\ns_mul_i32 s63, s{sCB}, 144\ns_add_u32 s68, s62, s63")
    a(f"s_mul_i32 s62, s{sW}, 15360\nv_add_u32 v254, s62, v{vL16}")
    mksrd(a, SM, 48, 49, nrec=2048*1152)
    a(poll_check(vF3, F3, "f3"))
    stamp(a, c)
    for s in range(9):
        for tt in range(4):
            a(f"buffer_load_dwordx4 {vr(OP + (s*4 + tt)*4, 4)}, v{[vL16, V1, V2][s >> 2]}, {srd(SWS)}, s{64+tt} offen offset:{(s & 3)*1024} {c.ldpol}")
    for s in range(9):
        for tt in ([0, 1, 2, 3] if s < 8 else [1, 2, 3, 0]):
            for ct in range(5):
                d = vr(AC + (tt*5 + ct)*4, 4)
                a(f"{M16} {d}, {ar(awo(s, ct), 4)}, {vr(OP + (s*4 + tt)*4, 4)}, {d if s else 0}")
    stamp(a, c)
    for tt in range(1, 4):
        for ct in range(5): a(f"ds_write_b128 v{VW+tt-1}, {vr(AC + (tt*5 + ct)*4, 4)} offset:{ct*1024}")
    a.wait(lg=0); a("s_barrier")
    for ct in range(5):
        for sl in range(3): a(f"ds_read_b128 {vr((ct*3 + sl)*4, 4)}, v254 offset:{sl*5120 + ct*1024}")
    for ct in range(5):
        d = AC + ct*4; b = ct*12
        for i in (0, 2): a(f"v_pk_add_f32 {vr(d+i, 2)}, {vr(d+i, 2)}, {vr(b+i, 2)}\nv_pk_add_f32 {vr(b+4+i, 2)}, {vr(b+4+i, 2)}, {vr(b+8+i, 2)}")
        for i in (0, 2): a(f"v_pk_add_f32 {vr(d+i, 2)}, {vr(d+i, 2)}, {vr(b+4+i, 2)}")
        a(f"v_cvt_pk_bf16_f32 v{64+2*ct}, v{d}, v{d+1}\nv_cvt_pk_bf16_f32 v{65+2*ct}, v{d+2}, v{d+3}")
        if ct in (1, 3): a(f"buffer_store_dwordx4 {vr(64 + 2*(ct-1), 4)}, v{VO}, {srd(SM)}, s68 offen offset:{32*(ct-1)}")
        if ct == 4: a(f"s_mov_b32 exec_hi, 0\nbuffer_store_dwordx2 {vr(72, 2)}, v{VO+1}, {srd(SM)}, s68 offen offset:128\ns_mov_b32 exec_hi, -1")

def kvsum2():
    q = Seq(); ID = Q0; t = QT
    q(f"v_add_u32 v{ID}, {IDS}, v{vL16}\nv_add_u32 v95, s11, v{vL16}\nds_read_b128 {vr(ID, 4)}, v{ID}")
    pre = q.l
    o = ar(KA, 16)
    mf = [I(f"{M32} {o}, {vr(ID, 4)}, {ar(APT + 4*r, 4)}, {o if r else 0}") for r in range(16)]
    q = Seq()
    R = [ID, ID+1, ID+2, ID+3, t, t+1, t+2, t+3]
    for i in range(8): q(f"v_accvgpr_read_b32 v{R[i]}, a{KA+i}")
    for i in range(4): q(f"v_cvt_pk_bf16_f32 v{ID+i}, v{R[2*i]}, v{R[2*i+1]}")
    q(f"ds_write_b128 v95, {vr(ID, 4)}")
    return pre, mf, q.l
def a_apply2(T, O):
    q = Seq(); t0, t1, t2, t3 = 94, vBH, vBL, 94
    q(f"v_and_b32 v{t0}, 31, v0\nv_and_b32 v{t1}, 19, v0\nv_cmp_gt_u32 vcc, 16, v{t0}\nv_cndmask_b32 v{t0}, v{t1}, v{t0}, vcc\nv_bfe_u32 v{t1}, v0, 5, 1")
    q(f"v_mul_u32_u24 v{t2}, 320, v{t1}\nv_lshl_add_u32 v{t2}, v{t0}, 4, v{t2}\nv_add_u32 v{t2}, {WPH + 2048}, v{t2}")
    q(f"v_lshl_add_u32 v{t3}, v{t1}, 10, v{t0}\nv_lshlrev_b32 v{t3}, 2, v{t3}\nv_add_u32 v{t3}, {WPH + 2048 + 640}, v{t3}")
    q(f"v_mul_u32_u24 v{t1}, 3840, v{t1}\nv_add_u32 v{t1}, v{t1}, v{vBT}")
    adr = q.l; q = Seq(); t0 = vQM
    for hd in range(2):
        b = T + 24*hd
        q(f"ds_read_b128 {ar(b+14, 4)}, v{t0} offset:{hd*1280}\nds_read_b128 {ar(b+18, 4)}, v{t0} offset:{5120 + hd*1280}\nds_read_b32 a{b+12}, v{t1} offset:{hd*1280}")
    pre = q.l
    q = Seq()
    for hd in range(2):
        b = T + 24*hd
        q(f"ds_read_b128 {ar(b, 4)}, v{t2} offset:{hd*1024}\nds_read_b128 {ar(b+4, 4)}, v{t2} offset:{4096 + hd*1024}\nds_read_b32 a{KA+8+4*hd}, v{t3} offset:{hd*1024}")
    for hd in range(2):
        b = T + 24*hd; o = vr(O[hd], 16)
        q(f"{M32} {o}, {ar(b, 4)}, {ar(b+14, 4)}, 0\n{M32} {o}, {ar(b+4, 4)}, {ar(b+18, 4)}, {o}\n{M32} {o}, {ar(KA+8+4*hd, 4)}, {ar(b+12, 4)}, {o}")
    return adr, pre, q.l

P1, P2, PW, PO, PR = 28, 29, 30, 33, 35
def p3_addr():
    a = Seq()
    a(f"v_add_u32 v{P1}, 4096, v{vL16}\nv_add_u32 v{P2}, 8192, v{vL16}\nv_lshl_add_u32 v{PR}, s{sW}, 14, v{vL16}")
    for tt in range(1, 4): a(f"v_xor_b32 v{PW+tt-1}, {tt << 14}, v{PR}")
    a(f"v_and_b32 v{PO}, 15, v0\nv_mul_u32_u24 v{PO}, 1152, v{PO}\nv_bfe_u32 v{PO+1}, v0, 4, 1\nv_lshl_add_u32 v{PO+1}, v{PO+1}, 3, v{PO}\nv_and_b32 v36, 48, v0\nv_add_u32 v{PO}, v36, v{PO}")
    a(f"s_lshl2_add_u32 s62, s{sRT}, s{sW}\ns_mul_i32 s62, s62, {16*1152}\ns_mul_i32 s63, s{sCB}, 144\ns_add_u32 s68, s62, s63")
    mksrd(a, SM, 48, 49, nrec=2048*1152)
    return a.l

PDW = [0]
def poison(T, vr=ar):
    q = Seq()
    if PDW[0]:
        q(f"v_accvgpr_write_b32 a{T}, -1")
        g = [[I(f"s_add_u32 s62, s{sOA}, {sl*2048}"), I(f"buffer_store_dword a{T}, v{vOA}, {srd(SWS)}, s62 offen sc1", "poi")] for sl in range(4)]
        g.append([I("s_mov_b32 exec_hi, 0"), I(f"buffer_store_dword a{T}, v{vOT}, {srd(SWS)}, s{sOT} offen sc1", "poi"), I("s_mov_b32 exec_hi, -1")])
        return q.l, g
    for i in range(4): q(f"v_accvgpr_write_b32 a{T+i}, -1")
    g = []
    for sl in range(4):
        g.append([I(f"s_add_u32 s62, s{sOA}, {sl*2048}"), I(f"buffer_store_dwordx4 {vr(T, 4)}, v{vOA}, {srd(SWS)}, s62 offen sc1", "poi")])
    g.append([I("s_mov_b32 exec_hi, 0"), I(f"buffer_store_dwordx4 {vr(T, 4)}, v{vOT}, {srd(SWS)}, s{sOT} offen sc1", "poi"), I("s_mov_b32 exec_hi, -1")])
    return q.l, g

def attention2(a, c, rest):
    e = wo_loads(c, WOE[:c.ne])
    wl = wo_loads(c, WOE[c.ne:] + WOL[:16]); wlast = wo_loads(c, WOL[16:])
    for x in flat(wlast):
        if x.tag == "wo": x.tag = "pe"
    pl = par_loads(c)
    A = [[] for _ in range(9)]; B = [[] for _ in range(18)]
    gb = c.ks0 + c.kn
    if c.a2n >= 0:
        for k, x in enumerate(e): A[k * c.a2n // len(e)].append(x)
        A[max(c.a2n - 2, 0)].append(poll_issue(vF2, F2, "f2"))
        A[c.a2n].append(poll_check(vF2, F2, "f2"))
        for k, x in enumerate(pl): A[c.a2n + k * (9 - c.a2n) // len(pl)].append(x)
    else:
        for k, x in enumerate(e): A[c.a0 + k // c.na].append(x)
        if c.f2n >= 2: B[c.f2n - 2].append(poll_issue(vF2, F2, "f2"))
        else: A[7 + c.f2n].append(poll_issue(vF2, F2, "f2"))
        B[c.f2n].append(poll_check(vF2, F2, "f2") + pl[0])
        for k, x in enumerate(pl[1:]): B[c.f2n + k // c.npl].append(x)
    if c.po:
        for k in range(c.pe): B[min(c.peg + k // c.pen, 17)].append(ldo(k >> 2, k & 3, "pe"))
    for g, n in enumerate(c.wc):
        assert g <= gb
        for k in range(int(n)):
            x = wl.pop(0)
            if c.wci: B[g].insert(min(len(B[g]), 2*k + (1 if g in (c.f2n, c.f2n - 2) else 0) + 1), x)
            else: B[g].append(x)
    assert not (c.wc and wl)
    for g in range(18):
        while wl and len(B[g]) < c.nwl and g not in (9, gb + 1, gb + 2): B[g].append(wl.pop(0))
    assert not wl
    B[min(gb + c.wlg, 17)][:0] = wlast
    a(k_rd(0, 0) + k_rd(0, 1) + [k_rd(0, 2)[1], k_rd(0, 3)[1]])
    k = len(rest) // 2
    a(rest[:k]); rest = rest[k:]
    if c.stp & 4: stamp(a, c)
    for n in range(9):
        a(qk(0, n))
        if n + 2 < 9: a(k_rd(0, n + 2)[:1 if n < 2 else 2])
        a(A[n])
        if n < 3: a(rest[n*len(rest)//3: (n+1)*len(rest)//3])
        if n == 3: a(merge())
        if n >= 4: a(mx(n - 4))
        if n == c.h_f2 - 28: a([W(vm="st2")] + flag_store(F2, sL, True))
    a(k_rd(1, 0) + k_rd(1, 1) + v_rd(0, 0) + v_rd(0, 1))
    a(qk(1, 0))
    for i in range(5, 8): a(mx(i))
    stamp(a, c)
    kpre, kmf, kfin = kvsum2()
    O2, O3 = Q0, KM
    adr, apre, amf = a_apply2(APT, [O2, O3])
    assert gb >= 8
    for hd in range(2):
        a(mx_fin())
        a(sub(0)); a(sub(1))
        if hd == 1: a(fin(0, OB0, c))
        for i in range(9):
            g = 9*hd + i
            main = ex(i) if i < 8 else []
            fill = []
            if g == gb + 1: a(amf)
            if i + 2 < 8: fill.append(sub(i + 2))
            if i >= 1:
                ns = [0, 1] if i == 1 else [i]
                for n in ns:
                    fill += pv(hd, n)
                    if n + 2 < 9: fill += v_rd(hd, n + 2)
                if hd == 0:
                    fill += qk(1, i)
                    if i + 1 < 9: fill += k_rd(1, i + 1)
                    if i == 3: main += merge()
                    if i >= 4: main += mx(i - 4)
            if g == 1: main += kpre
            if g == 2: main += adr
            if c.ks0 <= g < gb: fill += kmf[16*(g-c.ks0)//c.kn: 16*(g-c.ks0+1)//c.kn]
            if g == gb: main += kfin + apre
            if g == gb + 1: main += fin(2, O2, c)
            if g == gb + 2: main = fin(3, O3, c) + main
            if c.po:
                if g == 10: fill.append(poll_issue(vF3, F1 if c.pop < 23 else F2, "f3"))
            else:
                if g == 9 + c.f3n: fill.append([W(vm="st3a")] + flag_store(F3))
                if g == 17: fill.append(poll_issue(vF3, F3, "f3"))
            fill += B[g]
            if main: a(weave(main, fill))
            else: a(fill)
            if g == 8: a(v_rd(1, 0) + v_rd(1, 1))
            if g == gb: a.wait(lg=0); a("s_barrier")
            if c.po and g == 13: a(poll_check(vF3, F1 if c.pop < 23 else F2, "f3"))
        if hd == 0:
            for i in range(5, 8): a(mx(i))
        stamp(a, c)
    a(fin(1, OB1, c))
    a(f"s_mov_b32 exec_hi, 0\nbuffer_store_dwordx4 {vr(TL, 4)}, v{vOT}, {srd(SWS)}, s{sOT} offen sc1\ns_mov_b32 exec_hi, -1", "st3b")

stubs = Seq()
OPB = [96, 112, 128, 60, 76, 10]
OP = lambda s, tt: OPB[s % 6] + 4*tt
ldo = lambda s, tt, tag=None: I(f"buffer_load_dwordx4 {vr(OP(s, tt), 4)}, v{[vL16, P1, P2][s >> 2]}, {srd(SWS)}, s{7+tt} offen offset:{(s & 3)*1024} sc1", tag)
def p3_2(a, c):
    AC = 144
    def mmo(s, tt):
        return [I(f"{M16} {vr(AC + (tt*5 + ct)*4, 4)}, {ar(awo(s, ct), 4)}, {vr(OP(s, tt), 4)}, {vr(AC + (tt*5 + ct)*4, 4) if s else 0}") for ct in range(5)]
    def chk(nm, L):
        r = [OP(*x) for x in L]
        t = f"v_max3_u32 v94, v{r[0]}, v{r[1]}, v{r[2]}\n" + (f"v_max_u32 v94, v94, v{r[3]}\n" if len(r) > 3 else "") + f"v_cmp_eq_u32 vcc, -1, v94\ns_cbranch_vccnz .Lr{nm}"
        a(t); a.label(f".Lb{nm}")
        stubs.label(f".Lr{nm}")
        stubs(f"s_cmp_eq_u32 s69, 0\ns_cbranch_scc1 .Lb{nm}\ns_sub_u32 s69, s69, 1")
        stubs([ldo(*x, "nocount") for x in L])
        stubs("s_waitcnt vmcnt(0)"); stubs(t); stubs(f"s_branch .Lb{nm}")
    wr = lambda tt: [I(f"ds_write_b128 v{PW+tt-1}, {vr(AC + (tt*5 + ct)*4, 4)} offset:{ct*1024}") for ct in range(5)]
    TO = (1, 2, 3, 0)
    if c.po:
        a("s_mov_b32 s69, 300000")
        for k in range(c.pe, 24): a(ldo(k >> 2, k & 3))
        lb = [ldo(s, tt) for tt in TO for s in (6, 7, 8)]
        for s in range(6):
            chk(f"a{s}", [(s, tt) for tt in range(4)])
            if c.stp & 16: stamp(a, c)
            m = flat([mmo(s, tt) for tt in range(4)])
            if s == c.p3d + 1 and s >= 3: m = put(m, [(k, x) for k, x in enumerate(lb)]); lb = []
            a(m)
        a(lb)
        stamp(a, c)
    else:
        a(poll_check(vF3, F3, "f3", F3B))
        stamp(a, c)
        for k in range(24):
            if k == c.nfl: a([W(vm="st3b")] + flag_store(F3B))
            a(ldo(k >> 2, k & 3))
        if c.nfl >= 24: a([W(vm="st3b")] + flag_store(F3B))
        a(poll_issue(vF3, F3B, "f3b"))
        for k in range(24): a(mmo(k >> 2, k & 3))
        stamp(a, c)
        a(poll_check(vF3, F3B, "f3b"))
        stamp(a, c)
        for tt in TO:
            for s in (6, 7, 8): a(ldo(s, tt))
    prev = None
    for tt in TO:
        if c.po: chk(f"b{tt}", [(s, tt) for s in (6, 7, 8)])
        if c.stp & 16: stamp(a, c)
        m = mmo(6, tt) + mmo(7, tt) + mmo(8, tt)
        a(put(m, [(2 + 2*k, x) for k, x in enumerate(wr(prev))]) if prev else m)
        prev = tt
    stamp(a, c)
    if c.po and c.stamps: a(f"v_writelane_b32 v{vSTAMP}, s69, 31\ns_mov_b32 s69, 300000\nv_writelane_b32 v{vSTAMP}, s69, 30")
    a.wait(lg=0); a("s_barrier")
    if c.stp & 16: stamp(a, c)
    RB = 60; OC = 40
    for ct in range(5):
        for sl in range(3): a(f"ds_read_b128 {vr(RB + (ct*3 + sl)*4, 4)}, v{PR} offset:{sl*5120 + ct*1024}")
    for ct in range(5):
        d = AC + ct*4; b = RB + ct*12
        for i in (0, 2): a(f"v_pk_add_f32 {vr(d+i, 2)}, {vr(d+i, 2)}, {vr(b+i, 2)}\nv_pk_add_f32 {vr(b+4+i, 2)}, {vr(b+4+i, 2)}, {vr(b+8+i, 2)}")
        for i in (0, 2): a(f"v_pk_add_f32 {vr(d+i, 2)}, {vr(d+i, 2)}, {vr(b+4+i, 2)}")
        a(f"v_cvt_pk_bf16_f32 v{OC+2*ct}, v{d}, v{d+1}\nv_cvt_pk_bf16_f32 v{OC+1+2*ct}, v{d+2}, v{d+3}")
        if ct in (1, 3): a(f"buffer_store_dwordx4 {vr(OC + 2*(ct-1), 4)}, v{PO}, {srd(SM)}, s68 offen offset:{32*(ct-1)}")
        if ct == 4: a(f"s_mov_b32 exec_hi, 0\nbuffer_store_dwordx2 {vr(OC+8, 2)}, v{PO+1}, {srd(SM)}, s68 offen offset:128\ns_mov_b32 exec_hi, -1")

def p3_3(a, c):
    AC = 144; RB = 60; OC = 40; TO = (1, 2, 3, 0)
    acc = lambda tt, ct: vr(AC + (tt*5 + ct)*4, 4)
    mmo = lambda s, tt: [I(f"{M16} {acc(tt, ct)}, {ar(awo(s, ct), 4)}, {vr(OP(s, tt), 4)}, {acc(tt, ct) if s else 0}") for ct in range(5)]
    GB = [[(s, tt) for s in (6, 7, 8)] for tt in TO]
    def chk(nm, L, R):
        r = [OP(*x) for x in L]
        t = [f"v_max3_u32 v94, v{r[0]}, v{r[1]}, v{r[2]}", (f"v_max_u32 v94, v94, v{r[3]}\n" if len(r) > 3 else "") + "v_cmp_eq_u32 vcc, -1, v94", f"s_cbranch_vccnz .Lr{nm}"]
        o = [Seq(), Seq(), Seq()]
        for q, x in zip(o, t): q(x)
        o[2].label(f".Lb{nm}")
        if c.stp & 16: stamp(o[2], c)
        stubs.label(f".Lr{nm}")
        stubs(f"s_cmp_eq_u32 s69, 0\ns_cbranch_scc1 .Lb{nm}\ns_sub_u32 s69, s69, 1")
        stubs([ldo(*x, "nocount") for x in R])
        stubs("s_waitcnt vmcnt(0)"); stubs("\n".join(t)); stubs(f"s_branch .Lb{nm}")
        return [q.l for q in o]
    a("s_mov_b32 s69, 300000")
    la = [ldo(k >> 2, k & 3) for k in range(c.pe, 24)]
    a(la[:c.pu]); la = la[c.pu:]
    mf = flat([mmo(s, tt) for s in range(6) for tt in range(4)] + [mmo(*x) for g in GB for x in g])
    it = [(c.pr * k // 2, x) for k, x in enumerate(la)] + [(c.pb0 + c.pr2 * k // 2, ldo(*x)) for k, x in enumerate(sum(GB, []))]
    it = [(1 + k, x) for k, x in enumerate(p3_addr())] + it
    assert c.pb0 >= 60 and it[-1][0] < 115
    for s in range(6):
        L = [(s, tt) for tt in range(4)]
        o = chk(f"a{s}", L, L)
        if s == 0: a(o)
        else: it += [(20*s - c.pc + min(k, c.pc - 1), x) for k, x in enumerate(o)]
    if c.pd:
        L = sum(GB, []); r = [OP(*x) for x in L]
        t = [f"v_max3_u32 v94, v{r[0]}, v{r[1]}, v{r[2]}"] + [f"v_max3_u32 v94, v94, v{r[k]}, v{r[k+1]}" for k in (3, 5, 7, 9)] + [f"v_max_u32 v94, v94, v{r[11]}", "v_cmp_eq_u32 vcc, -1, v94"]
        it += [(115 + (k + 1) // 2, I(x)) for k, x in enumerate(t)]
        q = Seq(); q("s_cbranch_vccnz .Lrb"); q.label(".Lbb")
        if c.stp & 16: stamp(q, c)
        it.append((119, q.l))
        stubs.label(".Lrb")
        for k in range(c.pd - 1): stubs([ldo(*x, "nocount") for x in L])
        stubs.label(".Lrc")
        stubs("s_cmp_eq_u32 s69, 0\ns_cbranch_scc1 .Lbb\ns_sub_u32 s69, s69, 1")
        stubs([ldo(*x, "nocount") for x in L])
        if c.pd > 1: t = ["v_max_u32 v94, v96, v97"] + [f"v_max3_u32 v94, v94, v{k}, v{k+1}" for k in range(98, 144, 2)] + t[-1:]
        stubs(f"s_waitcnt vmcnt({12*(c.pd - 1)})"); stubs("\n".join(t)); stubs("s_cbranch_vccnz .Lrc\ns_branch .Lbb")
    for j in range(4):
        if not c.pd:
            o = chk(f"b{j}", GB[j], sum(GB[j:], []) if c.pra else GB[j])
            it += [(120 + 15*j - c.pc + min(k, c.pc - 1), x) for k, x in enumerate(o)]
        if j: it += [(120 + 15*j + (2 + 2*ct if j < 3 or not c.per else ct - 1), I(f"ds_write_b128 v{PW+j-1}, {acc(j, ct)} offset:{(j-1)*5120 + ct*1024}")) for ct in range(5)]
    RB = 164
    rd = [I(f"ds_read_b128 {vr(RB + (ct*3 + sl)*4, 4)}, v{PR} offset:{sl*5120 + ct*1024}") for ct in range(5) for sl in range(3)]
    if c.per:
        it.append((c.per, [W(lg=0), I("s_barrier")]))
        it += [(c.per + (k + 1) // 2, x) for k, x in enumerate(rd)]
    it.sort(key=lambda x: x[0])
    a(put(mf, it))
    stamp(a, c)
    if c.stamps: a(f"v_writelane_b32 v{vSTAMP}, s69, 31\ns_mov_b32 s69, 300000\nv_writelane_b32 v{vSTAMP}, s69, 30")
    if not c.per:
        a.wait(lg=0); a("s_barrier")
        if c.stp & 16: stamp(a, c)
        a(rd)
    for ct in range(5):
        d = AC + ct*4; b = RB + ct*12
        for i in (0, 2): a(f"v_pk_add_f32 {vr(b+i, 2)}, {vr(b+i, 2)}, {vr(b+4+i, 2)}\nv_pk_add_f32 {vr(d+i, 2)}, {vr(d+i, 2)}, {vr(b+8+i, 2)}")
        for i in (0, 2): a(f"v_pk_add_f32 {vr(d+i, 2)}, {vr(d+i, 2)}, {vr(b+i, 2)}")
        a(f"v_cvt_pk_bf16_f32 v{OC+2*ct}, v{d}, v{d+1}\nv_cvt_pk_bf16_f32 v{OC+1+2*ct}, v{d+2}, v{d+3}")
        if ct in (1, 3): a(f"buffer_store_dwordx4 {vr(OC + 2*(ct-1), 4)}, v{PO}, {srd(SM)}, s68 offen offset:{32*(ct-1)}")
        if ct == 4: a(f"s_mov_b32 exec_hi, 0\nbuffer_store_dwordx2 {vr(OC+8, 2)}, v{PO+1}, {srd(SM)}, s68 offen offset:128\ns_mov_b32 exec_hi, -1")

def finish(a, c):
    stamp(a, c)
    if c.stamps:
        a(f"s_cmp_lg_u32 s{sW}, 0\ns_cbranch_scc1 .Lend\ns_lshl_b32 s62, s2, 7\nv_lshrrev_b32 v4, 2, v{vL16}\ns_mov_b64 exec, 0xffffffff")
        a(f"buffer_store_dword v{vSTAMP}, v4, {srd(SWS)}, s62 offen")
    a.label(".Lend")
    a("s_endpgm")
    a(stubs)
    a("s_endpgm")
    a.label(".Lcodeend")

def build(c, path):
    a = Seq(); nst[0] = 0; PDW[0] = c.pdw; UPK[0] = c.upk; HOIST[:] = [c.hoist, c.hoistn]; PEN[:] = [c.vpen, c.dpen, c.vmc, c.ppen]
    wo_init(c)
    prologue(a, c)
    setup1(a, c)
    setup2(a, c)
    if c.pop == -2: p1, p2 = poison(208); a(p1); a(flat(p2))
    issue(a, c, c.o2)
    if c.pop == -1: p1, p2 = poison(208); a(p1); a(flat(p2))
    if c.pst: stamp(a, c)
    if c.warm == 1:
        for t in warm(sW): a.label(t[:-1]) if t.endswith(':') else a(t)
        if c.pst: stamp(a, c)
    a.wait(vm=["w0", "x0", "ga"])
    if c.pst: stamp(a, c)
    for s in range(9): a(f"ds_read_u16 v{vGA+s}, v{vMD+3} offset:{32*s}", f"g{s}")
    a(rd_x(0))
    issue(a, c, c.o2b)
    a.wait(lg="g0")
    a(patch(0)); a.wait(lg=0); a("s_barrier")
    stamp(a, c)
    a(rd_w(0, 0))
    issue(a, c, c.o3)
    if c.pop == -3: p1, p2 = poison(208); a(p1); a(flat(p2))
    ex = {}
    def add(k, v, pos=9): ex.setdefault(k, []).append(flat(v) if isinstance(k, tuple) else (pos, flat(v)))
    p1, p2 = producer(c)
    add(c.s_prod, p1, c.p_pr); add(c.s_prod + (c.p_pr + 4) // 10, p2, (c.p_pr + 4) % 10)
    add(c.s_fw, tag_check() + [W(vm="stp")] + flag_store(FW))
    add(2*c.s_pw - 1, poll_issue(vFW, FW, "fw"))
    add(("pre", c.s_pw), poll_check(vFW, FW, "fw"))
    allo = ",".join([c.o1, c.o2, c.o2b, c.o3]).split(",")
    if "wo" not in allo: add(2*c.s_wo, wo_dma())
    add(("pre", (c.s_rp - 1) // 2), [W(vm="wos")])
    p1, p2 = wo_repack()
    add(c.s_rp, p1, 7); add(c.s_rp + 1, p2, 9)
    add(c.s_rp + 2, wa_load())
    if not c.s3g: q = Seq(); setup3(q, c); add(15, q.l)
    if c.h_ea < 0:
        sa, va = early(); L = [kv_dma(c)[0]] + sa + [va[:-6]]
        for k, x in enumerate(L): add(-c.h_ea + 10*c.n_ea*k // len(L) // 10, [x], 10*c.n_ea*k // len(L) % 10)
    if c.s2 and c.po and 0 <= c.pop < 18:
        p1, p2 = poison(208); add(c.pop, p1, 0)
        for k, x in enumerate(p2): add(c.pop + k // 3, x, 3*(k % 3) + 2)
    n0 = len(a.l)
    pass1(a, c, ex)
    if c.m0d & 1: a.l[n0:] = m0dedup(flat(a.l[n0:]), 1)
    if c.m0h: a.l[n0:] = m0hoist(flat(a.l[n0:]), c.m0h)
    n1 = len(a.l)
    stamp(a, c)
    if c.stop == 1:
        a.wait(vm=0, lg=0); finish(a, c)
        open(path, "w").write(wrap(finalize(a.l, True), LDS_TOTAL + 1024)); return
    b = Seq()
    rest = g2(b, c)
    (attention2 if c.s2 else attention)(b, c, rest)
    a(sched(b.l, c.sch, "g2+att", c.beta / 100) if c.sch else b.l)
    stamp(a, c)
    (p3_3 if c.p33 else p3_2 if c.s2 else p3)(a, c)
    finish(a, c)
    if c.m0d & 2: a.l[n1:] = m0dedup(flat(a.l[n1:]), 2)
    txt = wrap(finalize(a.l, True), LDS_TOTAL + 1024)
    if c.al: txt = txt.replace('.p2align 8', '.p2align 12')
    if c.warm: txt, n = add_stubs(txt, -0x300); print('stubs', n)
    open(path, "w").write(txt)

if __name__ == "__main__":
    c = Cfg()
    path = sys.argv[1]
    for kv in sys.argv[2:]:
        k, v = kv.split("=")
        setattr(c, k, type(getattr(c, k))(int(v)) if not isinstance(getattr(c, k), str) else v)
    build(c, path)
```
